```python
import torch

def _softmax(x, axis=-1):
    return torch.softmax(x, dim=axis)
def _gelu(x):
    return torch.nn.functional.gelu(x, approximate="tanh")
def _silu(x):
    return torch.nn.functional.silu(x)
def _sigmoid(x):
    return torch.sigmoid(x)
def _layernorm(x, axis=-1, eps=1e-5):
    m = x.mean(dim=axis, keepdim=True)
    v = x.var(dim=axis, keepdim=True, unbiased=False)
    return (x - m) / torch.sqrt(v + eps)
def _scatter_add(tgt, idx, src, axis=0):
    return tgt.clone().index_add_(axis, idx, src)
def _segment_sum(src, seg, n):
    out = torch.zeros((n,) + src.shape[1:], dtype=src.dtype)
    return out.index_add_(0, seg, src)
def _pad(x, pw):
    flat = tuple(v for pair in reversed(pw) for v in pair)
    return torch.nn.functional.pad(x, flat)

kernel_name = 'standalone__edge_featured_mpnn_egc__graph'

def setup_inputs():

    _w = (lambda a: (lambda t: t.to(torch.bfloat16) if t.is_floating_point() else t)(torch.as_tensor(a)))
    N, deg, D, De = 10000, 32, 128, max(4, 1)
    E = N * deg
    return {
        "x": _w((lambda *s: torch.randn(*s, dtype=torch.bfloat16) * 0.1)(N, D)),
        "e_attr": _w((lambda *s: torch.randn(*s, dtype=torch.bfloat16) * 0.1)(E, De)),
        "src": _w((lambda lo, hi, *s: torch.randint(lo, hi, s))(0, N, E).to(torch.int64)),
        "dst": _w((lambda lo, hi, *s: torch.randint(lo, hi, s))(0, N, E).to(torch.int64)),
        "u_w": _w((lambda *s: torch.randn(*s, dtype=torch.bfloat16) * 0.05)(D, D)),
        "v_w": _w((lambda *s: torch.randn(*s, dtype=torch.bfloat16) * 0.05)(D, D)),
        "g_w": _w((lambda *s: torch.randn(*s, dtype=torch.bfloat16) * 0.1)(2 * D + De, D)),
    }

def reference(x, e_attr, src, dst, u_w, v_w, g_w):
    N, D = x.shape
    g_in = torch.concatenate([x[dst], x[src], e_attr], axis=-1)
    eta = _sigmoid(g_in @ g_w)
    hv = x @ v_w
    msg = eta * hv[src]
    agg = _segment_sum(msg, dst, N)
    return _silu(x @ u_w + agg)
```

```python
import sys

N, E = 10000, 320000
NB = 80
NBK = 125
CH = 1280
NCH = 250
T_HALF = N * 256
WS_T = 0
WS_REC = 0x500000
WS_OFF = 0xA00000
WS_STAMP = 0xB00000
NLOG2E = 0xBFB8AA3B
KA = dict(x=0, e=8, src=16, dst=24, u=32, v=40, g=48, out=56, dbg=64, ws=72)


class Asm:
    def __init__(self):
        self.l = []

    def __call__(self, s):
        for ln in s.strip("\n").split("\n"):
            ln = ln.strip()
            if not ln:
                continue
            self.l.append(ln if ln.endswith(":") else "    " + ln)

    def text(self):
        return "\n".join(self.l) + "\n"


def vr(a, n):
    return f"v[{a}:{a+n-1}]" if n > 1 else f"v{a}"


def sr(a, n):
    return f"s[{a}:{a+n-1}]" if n > 1 else f"s{a}"


def srd(a, d, base, off, size):
    if off is None:
        a(f"s_mov_b32 s{d}, s{base}\ns_mov_b32 s{d+1}, s{base+1}")
    else:
        a(f"s_add_u32 s{d}, s{base}, {off}\ns_addc_u32 s{d+1}, s{base+1}, 0")
    a(f"s_mov_b32 s{d+2}, {size}\ns_mov_b32 s{d+3}, 0x20000")


def scan64(a, v):
    for ctl in ("row_shr:1", "row_shr:2", "row_shr:4", "row_shr:8"):
        a(f"s_nop 1\nv_add_u32_dpp v{v}, v{v}, v{v} {ctl} row_mask:0xf bank_mask:0xf")
    a(f"s_nop 1\nv_add_u32_dpp v{v}, v{v}, v{v} row_bcast:15 row_mask:0xa bank_mask:0xf")
    a(f"s_nop 1\nv_add_u32_dpp v{v}, v{v}, v{v} row_bcast:31 row_mask:0xc bank_mask:0xf")


class Stamps:
    def __init__(self, on, first_sgpr, slot_base):
        self.on, self.s0, self.n, self.base = on, first_sgpr, 0, slot_base

    def mark(self, a):
        if self.on:
            a(f"s_memrealtime s[{self.s0+2*self.n}:{self.s0+2*self.n+1}]\ns_waitcnt lgkmcnt(0)")
            self.n += 1

    def flush(self, a, ws, wave_sgpr, wg="s2"):
        if not self.on:
            return
        a(f"s_lshl_b32 s3, {wg}, 4\ns_add_u32 s3, s3, {wave_sgpr}\ns_lshl_b32 s3, s3, 6\ns_add_u32 s3, s3, {self.base}")
        a("s_mov_b64 exec, 1\nv_mov_b32 v1, s3")
        for i in range(self.n):
            a(f"v_mov_b32 v2, s{self.s0+2*i}\nglobal_store_dword v1, v2, s[{ws}:{ws+1}] offset:{4*i}")
        a("s_waitcnt vmcnt(0)")


def w_src_off(a, vdst0, vdst1, lane, tmp, half_sgpr_128):
    a(f"""
    v_lshrrev_b32 v{vdst0}, 3, v{lane}
    v_lshlrev_b32 v{vdst0}, 8, v{vdst0}
    v_and_b32 v{tmp}, 7, v{lane}
    v_lshlrev_b32 v{tmp}, 4, v{tmp}
    v_and_b32 v{vdst1}, 16, v{lane}
    v_lshlrev_b32 v{vdst1}, 1, v{vdst1}           ; -> bit 5
    v_xor_b32 v{tmp}, v{tmp}, v{vdst1}
    v_add3_u32 v{vdst0}, v{vdst0}, v{tmp}, {half_sgpr_128}
    v_xor_b32 v{vdst1}, 64, v{vdst0}
    """)


def w_frag_addr(a, vA, lane, tmp, base):
    a(f"""
    v_lshrrev_b32 v{vA}, 4, v{lane}               ; sigma
    v_lshlrev_b32 v{vA}, 10, v{vA}                ; 8 rows * 128 B
    v_bfe_u32 v{tmp}, v{lane}, 2, 2               ; rho
    v_lshl_add_u32 v{vA}, v{tmp}, 7, v{vA}
    v_and_b32 v{tmp}, 3, v{lane}
    v_lshl_add_u32 v{vA}, v{tmp}, 3, v{vA}
    v_bfe_u32 v{tmp}, v{lane}, 3, 2
    v_lshlrev_b32 v{tmp}, 5, v{tmp}
    v_add3_u32 v{vA}, v{vA}, v{tmp}, {base}
    v_xor_b32 v{vA+1}, 32, v{vA}
    v_xor_b32 v{vA+2}, 64, v{vA}
    v_xor_b32 v{vA+3}, 0x60, v{vA}
    """)


def gemm(a, nmat, vA, vX, vRing, nslot, vAcc):
    steps = [(ks, m, t) for ks in range(4) for m in range(nmat) for t in range(4)]
    n = len(steps)
    depth = nslot - 1

    def rd(s):
        ks, m, t = steps[s]
        r = vRing + 4 * (s % nslot)
        o = m * 16384 + ks * 4096
        a(f"ds_read_b64_tr_b16 {vr(r,2)}, v{vA+t} offset:{o}")
        a(f"ds_read_b64_tr_b16 {vr(r+2,2)}, v{vA+t} offset:{o+512}")

    for s in range(depth):
        rd(s)
    for s in range(n):
        ks, m, t = steps[s]
        issued = min(n, s + depth)
        a(f"s_waitcnt lgkmcnt({2*(issued-s-1)})")
        acc = vAcc + (m * 4 + t) * 4
        c = "0" if ks == 0 else vr(acc, 4)
        a(f"v_mfma_f32_16x16x32_bf16 {vr(acc,4)}, {vr(vX+4*ks,4)}, {vr(vRing+4*(s%nslot),4)}, {c}")
        if s + depth < n:
            rd(s + depth)


def k1(stamp):
    a = Asm()
    st = Stamps(stamp, 60, WS_STAMP)
    HIST, START, STAGE = 20480, 20992, 0
    a(f"""
    s_cmp_ge_u32 s2, {2*NCH}
    s_cbranch_scc1 K1_END
    """)
    st.mark(a)
    a(f"""
    s_load_dwordx8 s[4:11], s[0:1], 0
    s_load_dwordx4 s[12:15], s[0:1], {KA['v']}    ; v_w, g_w
    s_load_dwordx2 s[16:17], s[0:1], {KA['ws']}
    v_lshrrev_b32 v2, 6, v0
    v_and_b32 v1, 63, v0                          ; lane
    v_readfirstlane_b32 s18, v2                   ; wave
    s_cmp_ge_u32 s2, {NCH}
    s_cbranch_scc1 K1_GEMM
    """)
    a(f"""
    s_mul_i32 s19, s2, {CH*4}
    v_lshl_add_u32 v2, v0, 4, s19
    v_lshlrev_b32 v3, 1, v2
    v_lshlrev_b32 v28, 2, v0
    v_mov_b32 v29, 0
    s_waitcnt lgkmcnt(0)
    global_load_dwordx4 v[4:7], v2, s[10:11]
    global_load_dwordx4 v[8:11], v2, s[8:9]
    global_load_dwordx4 v[12:15], v3, s[6:7]
    global_load_dwordx4 v[16:19], v3, s[6:7] offset:16
    ds_write_b32 v28, v29 offset:{HIST}
    s_mov_b32 s20, 52429
    s_mov_b32 s21, {-NB*256}
    v_mov_b32 v29, 1
    s_waitcnt lgkmcnt(0)
    s_barrier
    s_waitcnt vmcnt(3)
    """)
    st.mark(a)
    for i in range(4):
        a(f"""
        v_mul_u32_u24 v{30+i}, s20, v{4+i}
        v_lshrrev_b32 v{30+i}, 22, v{30+i}        ; bucket
        v_lshlrev_b32 v{4+i}, 8, v{4+i}
        v_mad_i32_i24 v{21+2*i}, v{30+i}, s21, v{4+i}   ; node*256
        v_lshlrev_b32 v{30+i}, 2, v{30+i}
        ds_add_rtn_u32 v{34+i}, v{30+i}, v29 offset:{HIST}
        """)
    a(f"""
    v_lshlrev_b32 v28, 3, v1
    s_waitcnt lgkmcnt(0)
    s_barrier
    ds_read_b64 v[38:39], v28 offset:{HIST}
    s_waitcnt vmcnt(2)
    """)
    for i in range(4):
        a(f"v_lshlrev_b32 v{20+2*i}, 8, v{8+i}            ; src*256")
    a("""
    s_waitcnt lgkmcnt(0)
    v_add_u32 v40, v38, v39
    v_mov_b32 v41, v40
    """)
    scan64(a, 41)
    a(f"""
    v_sub_u32 v42, v41, v40
    v_add_u32 v43, v42, v38
    ds_write_b64 v28, v[42:43] offset:{START}
    """)
    for i in range(4):
        a(f"ds_read_b32 v{44+i}, v{30+i} offset:{START}")
    a(f"""
    s_cmp_lg_u32 s18, 0
    s_cbranch_scc1 K1_NOOFF
    s_lshl_b32 s19, s2, 9
    s_add_u32 s19, s19, {WS_OFF}
    v_lshl_or_b32 v42, v38, 16, v42
    v_lshl_or_b32 v43, v39, 16, v43
    v_add_u32 v28, s19, v28
    global_store_dwordx2 v28, v[42:43], s[16:17]
    s_waitcnt vmcnt(1)
    s_branch K1_OFFD
    K1_NOOFF:
    s_waitcnt vmcnt(0)
    K1_OFFD:
    """)
    for i in range(4):
        a(f"""
        s_waitcnt lgkmcnt({3 if i else 3})
        v_add_lshl_u32 v{44+i}, v{44+i}, v{34+i}, 4
        ds_write2_b64 v{44+i}, {vr(20+2*i,2)}, {vr(12+2*i,2)} offset0:0 offset1:1
        """)
    a(f"""
    v_lshlrev_b32 v2, 4, v0
    s_mul_i32 s19, s2, {CH*16}
    s_add_u32 s19, s19, {WS_REC}
    s_add_u32 s16, s16, s19
    s_addc_u32 s17, s17, 0
    v_add_u32 v3, 5120, v2
    v_add_u32 v48, 10240, v2
    v_add_u32 v49, 15360, v2
    s_waitcnt lgkmcnt(0)
    s_barrier
    """)
    st.mark(a)
    for i in range(4):
        a(f"ds_read_b128 {vr(4+4*i,4)}, v2 offset:{5120*i}")
    for i, ad in enumerate((2, 3, 48, 49)):
        a(f"s_waitcnt lgkmcnt({3-i})\nglobal_store_dwordx4 v{ad}, {vr(4+4*i,4)}, s[16:17]")
    if stamp:
        a("s_sub_u32 s16, s16, s19\ns_subb_u32 s17, s17, 0\ns_waitcnt vmcnt(0)")
        st.mark(a)
        st.flush(a, 16, "s18")
    a("s_endpgm")
    st.n = 1 if stamp else 0
    vX, vRing, vAcc, vA = 8, 24, 56, 88
    a(f"""
    K1_GEMM:
    s_sub_u32 s19, s2, {NCH}
    s_and_b32 s20, s19, 1                         ; half
    s_lshr_b32 s19, s19, 1
    s_lshl_b32 s21, s20, 7                        ; half*128
    s_mul_i32 s19, s19, {NB}
    s_lshl_b32 s22, s18, 4
    s_add_u32 s19, s19, s22
    s_lshl_b32 s19, s19, 8                        ; *256 B
    v_and_b32 v2, 15, v1
    v_lshlrev_b32 v2, 8, v2
    v_and_b32 v3, 48, v1
    v_add3_u32 v2, v2, v3, s19
    """)
    w_src_off(a, 4, 5, 1, 6, "s21")
    a(f"""
    s_waitcnt lgkmcnt(0)
    s_cmp_eq_u32 s18, 4
    s_cbranch_scc1 K1_NODMA
    s_add_u32 s14, s14, {128*256}
    s_addc_u32 s15, s15, 0
    s_cmp_lt_u32 s18, 2
    s_cselect_b32 s24, s14, s12
    s_cselect_b32 s25, s15, s13
    s_mov_b32 s26, {128*256}
    s_mov_b32 s27, 0x20000
    s_and_b32 s22, s18, 1
    s_lshl_b32 s22, s22, 14
    s_lshl_b32 s23, s18, 13
    """)
    for i in range(8):
        a(f"""
        s_mov_b32 m0, s23
        s_add_u32 s23, s23, 1024
        buffer_load_dwordx4 v{4+(i&1)}, s[24:27], s22 offen lds
        s_add_u32 s22, s22, 2048
        """)
    a("K1_NODMA:")
    for ks in range(4):
        a(f"global_load_dwordx4 {vr(vX+4*ks,4)}, v2, s[4:5] offset:{64*ks}")
    w_frag_addr(a, vA, 1, 6, "0")
    a(f"""
    s_mul_i32 s20, s20, {T_HALF}
    s_add_u32 s19, s19, s20
    v_lshrrev_b32 v2, 4, v1
    v_lshlrev_b32 v2, 10, v2
    v_and_b32 v3, 15, v1
    v_lshlrev_b32 v3, 4, v3
    v_add3_u32 v2, v2, v3, s19
    s_mov_b32 s28, {hex(NLOG2E)}
    s_mov_b32 s29, 0xffff
    s_waitcnt vmcnt(0)
    s_barrier
    """)
    st.mark(a)
    gemm(a, 2, vA, vX, vRing, 8, vAcc)
    st.mark(a)
    a("s_nop 7")
    for i in range(4):
        P = vRing + 4 * i
        for t in range(4):
            b, h = vAcc + 4 * t + i, vAcc + 16 + 4 * t + i
            a(f"""
            v_mul_f32 v{b}, s28, v{b}
            v_add_f32 v{h}, 0, v{h}               ; -0 / denormal -> +0
            v_cvt_f16_f32 v{b}, v{b}
            v_add_u32 v{h}, 0x8000, v{h}
            v_sub_u32_e64 v{h}, v{h}, v{b} clamp
            v_bfi_b32 v{P+t}, s29, v{b}, v{h}
            """)
        a(f"global_store_dwordx4 v2, {vr(P,4)}, s[16:17] offset:{256*i}")
    if stamp:
        a("s_waitcnt vmcnt(0)")
        st.mark(a)
        st.flush(a, 16, "s18")
    a("K1_END:")
    return a.text(), 96


LA, LAGG, LCNT, LFLAG, LQST, LCW, LLIST = 0, 20480, 40960, 41472, 41984, 42496, 43008
KMAX = 7
LDS2 = LLIST + (NCH * 4 * KMAX + 3 * NB + 12) * 16 + 256
DUMMY = 0x400000


def k2(stamp):
    a = Asm()
    st = Stamps(stamp, 70, WS_STAMP + 0x80000)
    sX, sU, sG, sOUT, sWS = 4, 6, 10, 12, 16
    sW, sH, sB = 18, 19, 20
    SRD_T, SRD_R, SRD_W = 24, 28, 32
    sM = 36
    sN, sNG, sT0, sFIRST = 50, 51, 52, 53
    sMB = 54
    sMORE, sK = 58, 59
    sINC = 60
    vL = 1
    vLO = 2
    vSel, vSelA, vCw = 104, 120, 124
    vRO, vRem = 126, 127
    vRec, vRank = 72, 64
    vX, vRing, vAcc, vA = 8, 24, 48, 100
    vAdr = 8
    a(f"""
    s_cmp_ge_u32 s2, {2*NBK}
    s_cbranch_scc1 K2_END
    """)
    st.mark(a)
    a(f"""
    s_load_dwordx2 s[{sWS}:{sWS+1}], s[0:1], {KA['ws']}
    s_load_dwordx2 s[{sX}:{sX+1}], s[0:1], {KA['x']}
    s_load_dwordx2 s[{sU}:{sU+1}], s[0:1], {KA['u']}
    s_load_dwordx2 s[{sG}:{sG+1}], s[0:1], {KA['g']}
    s_load_dwordx2 s[{sOUT}:{sOUT+1}], s[0:1], {KA['out']}
    v_lshrrev_b32 v4, 6, v0
    v_and_b32 v{vL}, 63, v0
    v_readfirstlane_b32 s{sW}, v4
    s_lshr_b32 s{sB}, s2, 1
    s_and_b32 s21, s2, 1
    s_lshl_b32 s{sH}, s21, 7
    v_lshrrev_b32 v4, 2, v0                       ; chunk
    s_lshl_b32 s22, s{sB}, 2
    v_lshl_add_u32 v5, v4, 9, s22
    s_mul_i32 s21, s21, {T_HALF}
    s_waitcnt lgkmcnt(0)
    """)
    srd(a, SRD_T, sWS, WS_OFF, NCH * 512)
    a(f"buffer_load_dword v{vRem}, v5, s[{SRD_T}:{SRD_T+3}], 0 offen")
    w_src_off(a, 6, 7, vL, 5, f"s{sH}")
    a(f"""
    s_cmp_lt_u32 s{sW}, 8
    s_cselect_b32 s{SRD_W}, s{sG}, s{sU}
    s_cselect_b32 s{SRD_W+1}, s{sG+1}, s{sU+1}
    s_mov_b32 s{SRD_W+2}, {128*256}
    s_mov_b32 s{SRD_W+3}, 0x20000
    s_and_b32 s22, s{sW}, 7
    s_lshl_b32 s22, s22, 12                       ; 16 rows * 256
    s_lshl_b32 s23, s{sW}, 11
    s_add_u32 s23, s23, {LLIST}
    s_mov_b32 m0, s23
    s_add_u32 s23, s23, 1024
    buffer_load_dwordx4 v6, s[{SRD_W}:{SRD_W+3}], s22 offen lds
    s_add_u32 s22, s22, 2048
    s_mov_b32 m0, s23
    v_mul_u32_u24 v{vRO}, {CH*16}, v4
    buffer_load_dwordx4 v7, s[{SRD_W}:{SRD_W+3}], s22 offen lds
    s_cmp_lt_u32 s{sW}, 10
    s_cbranch_scc0 K2_NOX
    ; x fragments of node tile (wave % 5)
    s_cmp_ge_u32 s{sW}, 5
    s_cselect_b32 s22, 5, 0
    s_cselect_b32 s{sK}, {LLIST+16384}, {LLIST & 0}
    s_sub_u32 s22, s{sW}, s22
    s_lshl_b32 s{sT0}, s22, 12
    s_mul_i32 s23, s{sB}, {NB*256}
    s_add_u32 s23, s23, s{sT0}
    v_and_b32 v4, 15, v{vL}
    v_lshlrev_b32 v4, 8, v4
    v_and_b32 v7, 48, v{vL}
    v_add3_u32 v4, v4, v7, s23
    s_max_u32 s{sK}, s{sK}, {LLIST}
    """)
    for ks in range(4):
        a(f"global_load_dwordx4 {vr(vX+4*ks,4)}, v4, s[{sX}:{sX+1}] offset:{64*ks}")
    w_frag_addr(a, vA, vL, 5, f"s{sK}")
    a(f"""
    s_branch K2_XD
    K2_NOX:
    v_lshrrev_b32 v4, 3, v{vL}
    v_lshlrev_b32 v4, 8, v4
    v_and_b32 v5, 7, v{vL}
    v_lshlrev_b32 v5, 4, v5
    s_add_u32 s22, s{sH}, {256*256}
    v_add3_u32 v4, v4, v5, s22
    s_mov_b32 m0, {LCW}
    s_mov_b32 exec_hi, 0
    global_load_lds_dwordx4 v4, s[{sG}:{sG+1}]
    s_mov_b32 exec_hi, -1
    v_lshlrev_b32 v5, 2, v0
    v_mov_b32 v6, 0
    ds_write_b32 v5, v6 offset:{LCNT-2560}
    K2_XD:
    """)
    srd(a, SRD_T, sWS, "s21", T_HALF)
    srd(a, SRD_R, sWS, WS_REC, E * 16)
    a(f"""
    s_mov_b32 s{sMB}, 1
    s_mov_b32 s{sMB+1}, 16
    v_mov_b32 v5, 0x3c00
    """)
    for g in range(4):
        for t in range(4):
            a(f"s_lshl_b64 s[{sMB+2}:{sMB+3}], s[{sMB}:{sMB+1}], {8*t+g}\nv_cndmask_b32 v{vSel+4*g+t}, 0, v5, s[{sMB+2}:{sMB+3}]")
    a(f"""
    s_mov_b32 s{sMB}, 15
    s_mov_b32 s{sMB+1}, 0xf0
    v_mov_b32 v5, 0x3f803f80
    """)
    for t in range(4):
        a(f"s_lshl_b64 s[{sMB+2}:{sMB+3}], s[{sMB}:{sMB+1}], {8*t}\nv_cndmask_b32 v{vSelA+t}, 0, v5, s[{sMB+2}:{sMB+3}]")
    a(f"""
    v_and_b32 v{vLO+1}, 15, v{vL}
    v_lshlrev_b32 v{vLO}, 4, v{vLO+1}
    v_lshlrev_b32 v{vLO+1}, 2, v{vLO+1}
    v_add_u32 v{vLO+1}, {LAGG}, v{vLO+1}
    s_mov_b32 s{sINC}, 128
    s_mov_b32 s{sINC+1}, 128
    s_mov_b32 s{sFIRST}, 1
    v_and_b32 v4, 3, v0
    s_cmp_lt_u32 s{sW}, 10
    s_cbranch_scc0 K2_W3
    s_waitcnt vmcnt(6)
    s_branch K2_WD
    K2_W3:
    s_waitcnt vmcnt(3)
    K2_WD:
    """)
    st.mark(a)
    a(f"""
    v_and_b32 v5, 0xffff, v{vRem}
    v_lshrrev_b32 v{vRem}, 16, v{vRem}
    v_add_u32 v5, v5, v4
    v_sub_u32 v{vRem}, v{vRem}, v4
    v_lshl_add_u32 v{vRO}, v5, 4, v{vRO}
    K2_BATCH:
    """)
    for k in range(KMAX):
        a(f"v_cmp_lt_i32 s[{sM+2*k}:{sM+2*k+1}], {4*k}, v{vRem}")
    for k in range(KMAX):
        a(f"s_mov_b64 exec, s[{sM+2*k}:{sM+2*k+1}]\ns_cbranch_execz K2_RL{k}")
        a(f"buffer_load_dwordx4 {vr(vRec+4*k,4)}, v{vRO}, s[{SRD_R}:{SRD_R+3}], 0 offen offset:{64*k}")
    a(f"s_waitcnt vmcnt({KMAX})\ns_branch K2_RLD")
    for k in range(KMAX - 1, -1, -1):
        a(f"K2_RL{k}:\ns_waitcnt vmcnt({k})")
        if k:
            a("s_branch K2_RLD")
    a(f"""
    K2_RLD:
    s_mov_b64 exec, -1
    s_lshr_b32 s22, s2, 3
    s_mul_i32 s22, s22, {646*128}
    v_mul_u32_u24 v4, 84, v0
    s_waitcnt lgkmcnt(0)
    s_barrier
    buffer_load_dword v71, v4, s[{SRD_T}:{SRD_T+3}], s22 offen
    """)
    st.mark(a)
    a(f"""
    v_bfe_u32 v4, v{vL}, 2, 2
    v_lshlrev_b32 v4, 7, v4
    v_lshrrev_b32 v5, 4, v{vL}
    v_lshl_add_u32 v4, v5, 5, v4
    v_and_b32 v5, 3, v{vL}
    v_lshl_add_u32 v4, v5, 3, v4
    ds_read_b64_tr_b16 v[6:7], v4 offset:{LCW}
    s_mov_b32 s{sMB}, {hex(NLOG2E)}
    s_mov_b32 s{sMB+1}, 0xffff0000
    s_waitcnt lgkmcnt(0)
    v_lshlrev_b32 v4, 16, v6
    v_and_b32 v6, s{sMB+1}, v6
    v_lshlrev_b32 v5, 16, v7
    v_and_b32 v7, s{sMB+1}, v7
    v_mul_f32 v4, s{sMB}, v4
    v_mul_f32 v6, s{sMB}, v6
    v_mul_f32 v5, s{sMB}, v5
    v_mul_f32 v7, s{sMB}, v7
    v_cvt_pk_bf16_f32 v{vCw}, v4, v6
    v_cvt_pk_bf16_f32 v{vCw+1}, v5, v7
    s_cmp_lt_u32 s{sW}, 10
    s_cselect_b32 s22, s{sFIRST}, 0
    s_cmp_eq_u32 s22, 0
    s_cbranch_scc1 K2_GD
    """)
    gemm(a, 1, vA, vX, vRing, 6, vAcc)
    a(f"""
    v_lshrrev_b32 v4, 4, v{vL}
    v_lshlrev_b32 v4, 10, v4
    s_cmp_lt_u32 s{sW}, 5
    s_cbranch_scc0 K2_GU
    v_add3_u32 v4, v4, v{vLO}, s{sT0}
    s_nop 3
    """)
    for i in range(4):
        P = vRing + 4 * i
        for t in range(4):
            c = vAcc + 4 * t + i
            a(f"""
            v_mul_f32 v{c}, s{sMB}, v{c}
            v_and_b32 v{P+t}, s{sMB+1}, v{c}
            v_sub_f32 v{c}, v{c}, v{P+t}
            v_cvt_pk_bf16_f32 v{P+t}, v{c}, v{P+t}
            """)
        a(f"ds_write_b128 v4, {vr(P,4)} offset:{LA+256*i}")
    a(f"""
    s_branch K2_GD
    K2_GU:
    v_add3_u32 v4, v4, v{vLO+1}, s{sT0}
    s_nop 3
    """)
    for i in range(4):
        for t in (0, 2):
            a(f"ds_write2_b32 v4, v{vAcc+4*t+i}, v{vAcc+4*(t+1)+i} offset0:{64*i+16*t} offset1:{64*i+16*t+16}")
    a(f"""
    K2_GD:
    s_mov_b32 s{sFIRST}, 0
    v_mov_b32 v4, 1
    v_cmp_lt_i32 vcc, {4*KMAX}, v{vRem}
    v_mov_b32 v5, {LFLAG}
    s_and_saveexec_b64 s[{sMB}:{sMB+1}], vcc
    s_cbranch_execz K2_NOMORE
    ds_write_b32 v5, v4
    K2_NOMORE:
    s_waitcnt vmcnt(1)
    """)
    st.mark(a)
    for k in range(KMAX):
        a(f"""
        s_mov_b64 exec, s[{sM+2*k}:{sM+2*k+1}]
        s_cbranch_execz K2_HD
        v_lshrrev_b32 v{vAdr+k}, 6, v{vRec+4*k+1}
        ds_add_rtn_u32 v{vRank+k}, v{vAdr+k}, v4 offset:{LCNT}
        """)
    a(f"""
    K2_HD:
    s_mov_b64 exec, -1
    v_lshlrev_b32 v7, 3, v{vL}
    s_waitcnt lgkmcnt(0)
    s_barrier
    ds_read_b64 v[16:17], v7 offset:{LCNT}
    ds_read_b32 v18, v5
    v_and_b32 v24, -4, v0
    v_and_b32 v25, 3, v0
    ds_read_b32 v26, v24 offset:{LCNT}
    s_waitcnt lgkmcnt(2)
    v_add_u32 v16, 3, v16
    v_add_u32 v17, 3, v17
    v_lshrrev_b32 v16, 2, v16
    v_lshrrev_b32 v17, 2, v17
    v_add_u32 v19, v16, v17
    v_mov_b32 v20, v19
    """)
    scan64(a, 20)
    a(f"""
    v_sub_u32 v22, v20, v19
    v_add_u32 v23, v22, v16
    v_readlane_b32 s{sNG}, v20, 63
    s_mov_b32 s22, {LLIST}
    v_lshl_add_u32 v22, v22, 6, s22
    v_lshl_add_u32 v23, v23, 6, s22
    ds_write_b64 v7, v[22:23] offset:{LQST}
    """)
    for k in range(KMAX):
        a(f"""
        s_mov_b64 exec, s[{sM+2*k}:{sM+2*k+1}]
        s_cbranch_execz K2_SD
        ds_read_b32 v{vAdr+k}, v{vAdr+k} offset:{LQST}
        """)
    a(f"""
    K2_SD:
    s_mov_b64 exec, -1
    s_cmp_lt_u32 s{sW}, 6
    s_cbranch_scc0 K2_NOPAD
    ds_read_b32 v27, v24 offset:{LQST}
    v_mov_b32 v28, {DUMMY}
    v_mov_b32 v29, 0
    v_mov_b32 v30, 0
    v_mov_b32 v31, 0
    v_subrev_u32 v24, {4*NB}, v24                 ; (node-80)*4
    v_cmp_gt_u32 s[{sMB}:{sMB+1}], 12, v24
    s_waitcnt lgkmcnt(0)
    v_sub_u32 v32, 0, v26
    v_and_b32 v32, 3, v32
    v_cmp_lt_u32 vcc, v25, v32
    v_cndmask_b32 v26, v26, v24, s[{sMB}:{sMB+1}]
    v_add_u32 v26, v26, v25
    v_lshl_add_u32 v27, v26, 4, v27
    s_or_b64 exec, vcc, s[{sMB}:{sMB+1}]
    ds_write_b128 v27, v[28:31]
    s_mov_b64 exec, -1
    K2_NOPAD:
    s_waitcnt lgkmcnt(0)
    v_readfirstlane_b32 s{sMORE}, v18
    """)
    for k in range(KMAX):
        a(f"""
        s_mov_b64 exec, s[{sM+2*k}:{sM+2*k+1}]
        s_cbranch_execz K2_CD
        v_lshl_add_u32 v{vAdr+k}, v{vRank+k}, 4, v{vAdr+k}
        ds_write_b128 v{vAdr+k}, {vr(vRec+4*k,4)}
        """)
    vW = (8, 24)
    vZ, vT, vAc, vE, vAp, vS, vN = 40, 56, 72, 76, 80, 84, 88
    vNA = (90, 92)
    vQ = 94
    a(f"""
    K2_CD:
    s_mov_b64 exec, -1
    s_add_u32 s{sNG}, s{sNG}, 3
    s_lshr_b32 s{sNG}, s{sNG}, 2                  ; groups
    s_lshr_b32 s22, s{sNG}, 4
    s_and_b32 s23, s{sNG}, 15
    s_mul_i32 s{sMB}, s22, s{sW}
    s_min_u32 s{sMB+1}, s{sW}, s23
    s_add_u32 s{sMB}, s{sMB}, s{sMB+1}
    s_cmp_lt_u32 s{sW}, s23
    s_addc_u32 s{sN}, s22, 0
    s_lshl_b32 s{sMB}, s{sMB}, 6
    s_add_u32 s{sMB}, s{sMB}, {LLIST}
    s_lshl_b32 s{sNG}, s{sNG}, 6
    v_lshrrev_b32 v4, 4, v{vL}
    v_bfe_u32 v5, v{vL}, 2, 2
    v_mov_b32 v6, s{sMB}
    v_and_b32 v7, 3, v{vL}
    s_waitcnt lgkmcnt(0)
    v_mad_u32_u24 v{vQ}, v4, s{sNG}, v6
    v_mad_u32_u24 v{vQ+1}, v5, s{sNG}, v6
    v_lshl_add_u32 v{vQ+1}, v7, 4, v{vQ+1}
    v_mov_b32 v{vNA[1]}, v{vLO}
    s_barrier
    """)
    st.mark(a)

    def meta(off, S, Nn):
        d = off // 4
        a(f"""
        ds_read2_b32 {vr(S,2)}, v{vQ} offset0:{d} offset1:{d+4}
        ds_read2_b32 {vr(S+2,2)}, v{vQ} offset0:{d+8} offset1:{d+12}
        ds_read_b32 v{Nn}, v{vQ} offset:{off+4}
        """)

    def saddr(S):
        a(f"""
        v_pk_add_f32 {vr(S,2)}, {vr(S,2)}, {vr(vLO,2)} op_sel_hi:[1,0]
        v_pk_add_f32 {vr(S+2,2)}, {vr(S+2,2)}, {vr(vLO,2)} op_sel_hi:[1,0]
        """)

    def loads(p, S):
        for g in range(4):
            a(f"buffer_load_dwordx4 {vr(vW[p]+4*g,4)}, v{S+g}, s[{SRD_T}:{SRD_T+3}], 0 offen")

    def naddr(p, Nn):
        a(f"v_pk_add_f32 {vr(vNA[p],2)}, {vr(Nn,2)}, {vr(vLO,2)} op_sel_hi:[0,1]")

    a(f"""
    s_cmp_eq_u32 s{sN}, 0
    s_cbranch_scc1 K2_LD
    """)
    meta(0, vS, vN)
    meta(64, vZ, vZ + 4)
    a(f"ds_read_b64 {vr(vE,2)}, v{vQ+1} offset:8\ns_waitcnt lgkmcnt(4)")
    saddr(vS)
    naddr(0, vN)
    loads(0, vS)
    a(f"""
    ds_read_b128 {vr(vAp,4)}, v{vNA[0]} offset:{LA}
    s_cmp_eq_u32 s{sN}, 1
    s_waitcnt lgkmcnt(0)
    s_cbranch_scc1 K2_L0
    """)
    saddr(vZ)
    naddr(1, vZ + 4)
    loads(1, vZ)
    for p in range(2):
        W = vW[p]
        a(f"""
        K2_L{p}:
        s_cmp_eq_u32 s{sN}, 1
        s_cbranch_scc1 K2_L{p}a
        s_waitcnt vmcnt(4)
        s_branch K2_L{p}b
        K2_L{p}a:
        s_waitcnt vmcnt(0)
        K2_L{p}b:
        v_mfma_f32_16x16x4_4b_bf16 {vr(vZ,16)}, {vr(vE,2)}, {vr(vCw,2)}, 0
        v_mfma_f32_32x32x16_bf16 {vr(vZ,16)}, {vr(vSelA,4)}, {vr(vAp,4)}, {vr(vZ,16)}
        """)
        for g in range(4):
            a(f"v_mfma_f32_32x32x16_f16 {vr(vZ,16)}, {vr(vSel+4*g,4)}, {vr(W+4*g,4)}, {vr(vZ,16)}")
        meta(128 + 64 * p, vS, vN)
        a(f"""
        ds_read_b64 {vr(vE,2)}, v{vQ+1} offset:{64+64*p+8}
        ds_read_b128 {vr(vAp,4)}, v{vNA[p^1]} offset:{LA}
        s_nop 6
        """)
        for g in range(4):
            for t in range(4):
                a(f"v_exp_f32 v{vT+4*g+t}, v{vZ+4*t+g}")
        for i in range(8):
            a(f"v_pk_add_f32 {vr(vT+2*i,2)}, {vr(vT+2*i,2)}, 1.0 op_sel_hi:[1,0]")
        for i in range(16):
            a(f"v_rcp_f32 v{vT+i}, v{vT+i}")
        a("s_waitcnt lgkmcnt(0)")
        saddr(vS)
        if p == 1:
            a(f"v_pk_add_f32 {vr(vQ,2)}, {vr(vQ,2)}, s[{sINC}:{sINC+1}]")
        for g in range(4):
            for h in range(2):
                o = 4 * g + 2 * h
                if g == 0:
                    a(f"v_pk_mul_f32 {vr(vAc+2*h,2)}, {vr(vT+o,2)}, {vr(W+o,2)}")
                else:
                    a(f"v_pk_fma_f32 {vr(vAc+2*h,2)}, {vr(vT+o,2)}, {vr(W+o,2)}, {vr(vAc+2*h,2)}")
        for t in range(4):
            a(f"ds_add_f32 v{vNA[p]+1}, v{vAc+t} offset:{64*t}")
        a(f"""
        s_cmp_le_u32 s{sN}, 2
        s_cbranch_scc1 K2_L{p}c
        """)
        loads(p, vS)
        naddr(p, vN)
        a(f"""
        K2_L{p}c:
        s_sub_u32 s{sN}, s{sN}, 1
        s_cmp_eq_u32 s{sN}, 0
        """)
        a("s_cbranch_scc1 K2_LD" if p == 0 else "s_cbranch_scc0 K2_L0")
    a(f"""
    K2_LD:
    s_waitcnt vmcnt(0) lgkmcnt(0)
    """)
    st.mark(a)
    a(f"""
    s_barrier
    s_cmp_eq_u32 s{sMORE}, 0
    s_cbranch_scc1 K2_FIN
    v_subrev_u32 v{vRem}, {4*KMAX}, v{vRem}
    v_add_u32 v{vRO}, {64*KMAX}, v{vRO}
    s_cmp_lt_u32 s{sW}, 10
    s_cbranch_scc1 K2_BATCH
    v_lshlrev_b32 v5, 2, v0
    v_mov_b32 v6, 0
    ds_write_b32 v5, v6 offset:{LCNT-2560}
    s_branch K2_BATCH
    K2_FIN:
    s_cmp_lt_u32 s{sW}, 10
    s_cbranch_scc0 K2_STORED
    v_lshlrev_b32 v4, 5, v0
    ds_read_b128 v[8:11], v4 offset:{LAGG}
    ds_read_b128 v[12:15], v4 offset:{LAGG+16}
    s_mov_b32 s22, {hex(NLOG2E)}
    s_mul_i32 s23, s{sB}, {NB*256}
    s_add_u32 s23, s23, s{sH}
    v_lshrrev_b32 v5, 3, v0
    v_lshlrev_b32 v5, 8, v5
    v_and_b32 v6, 7, v0
    v_lshlrev_b32 v6, 4, v6
    v_add3_u32 v5, v5, v6, s23
    s_waitcnt lgkmcnt(0)
    """)
    for i in range(8):
        a(f"v_mul_f32 v{16+i}, s22, v{8+i}")
    for i in range(8):
        a(f"v_exp_f32 v{16+i}, v{16+i}")
    for i in range(4):
        a(f"v_pk_add_f32 {vr(16+2*i,2)}, {vr(16+2*i,2)}, 1.0 op_sel_hi:[1,0]")
    for i in range(8):
        a(f"v_rcp_f32 v{16+i}, v{16+i}")
    for i in range(4):
        a(f"v_pk_mul_f32 {vr(16+2*i,2)}, {vr(16+2*i,2)}, {vr(8+2*i,2)}")
    for i in range(4):
        a(f"v_cvt_pk_bf16_f32 v{8+i}, v{16+2*i}, v{17+2*i}")
    a(f"""
    global_store_dwordx4 v5, v[8:11], s[{sOUT}:{sOUT+1}]
    K2_STORED:
    """)
    if stamp:
        a("s_waitcnt vmcnt(0)")
        st.mark(a)
        st.flush(a, sWS, f"s{sW}")
    a("K2_END:")
    return a.text(), 128


HDR = """; Kernarg layout (80 bytes, pointers): x, e_attr, src, dst, u_w, v_w, g_w, out, debug, ws
; @launch kernel=egc_prep_kernel grid=({g1},1,1) block=(320,1,1) lds=32768
; @launch kernel=egc_main_kernel grid=({g2},1,1) block=(1024,1,1) lds={lds2}
.amdgcn_target "amdgcn-amd-amdhsa--gfx950"
.text
"""


def kernel(name, body):
    return f""".globl {name}
.p2align 8
.type {name},@function
{name}:
{body}    s_endpgm
"""


def desc(name, vgpr, extra=""):
    return f""".p2align 6
.amdhsa_kernel {name}
  .amdhsa_next_free_vgpr {vgpr}
  .amdhsa_next_free_sgpr 96
  .amdhsa_accum_offset {vgpr}
  .amdhsa_group_segment_fixed_size 0
  .amdhsa_kernarg_size 80
  .amdhsa_user_sgpr_count 2
  .amdhsa_user_sgpr_kernarg_segment_ptr 1
  .amdhsa_system_sgpr_workgroup_id_x 1
{extra}.end_amdhsa_kernel
"""


def build(stamp=False):
    b1, v1 = k1(stamp)
    b2, v2 = k2(stamp)
    s = HDR.format(g1=2 * NCH, g2=2 * NBK, lds2=LDS2)
    s += kernel("egc_prep_kernel", b1) + kernel("egc_main_kernel", b2)
    s += '.section .rodata,"a"\n'
    s += desc("egc_prep_kernel", v1, "  .amdhsa_float_denorm_mode_32 0\n  .amdhsa_fp16_overflow 1\n")
    s += desc("egc_main_kernel", v2, "  .amdhsa_float_denorm_mode_32 3\n")
    return s


if __name__ == "__main__":
    out = sys.argv[1]
    open(out, "w").write(build(stamp="--stamp" in sys.argv))
```

```python
import sys

N, E = 10000, 320000
NB = 80
NBK = 125
CH = 1280
NCH = 250
T_HALF = N * 256
WS_T = 0
WS_REC = 0x500000
WS_OFF = 0xA00000
WS_STAMP = 0xB00000
NLOG2E = 0xBFB8AA3B
KA = dict(x=0, e=8, src=16, dst=24, u=32, v=40, g=48, out=56, dbg=64, ws=72)


class Asm:
    def __init__(self):
        self.l = []

    def __call__(self, s):
        for ln in s.strip("\n").split("\n"):
            ln = ln.strip()
            if not ln:
                continue
            self.l.append(ln if ln.endswith(":") else "    " + ln)

    def text(self):
        return "\n".join(self.l) + "\n"


def vr(a, n):
    return f"v[{a}:{a+n-1}]" if n > 1 else f"v{a}"


def sr(a, n):
    return f"s[{a}:{a+n-1}]" if n > 1 else f"s{a}"


def srd(a, d, base, off, size):
    if off is None:
        a(f"s_mov_b32 s{d}, s{base}\ns_mov_b32 s{d+1}, s{base+1}")
    else:
        a(f"s_add_u32 s{d}, s{base}, {off}\ns_addc_u32 s{d+1}, s{base+1}, 0")
    a(f"s_mov_b32 s{d+2}, {size}\ns_mov_b32 s{d+3}, 0x20000")


def scan64(a, v):
    for ctl in ("row_shr:1", "row_shr:2", "row_shr:4", "row_shr:8"):
        a(f"s_nop 1\nv_add_u32_dpp v{v}, v{v}, v{v} {ctl} row_mask:0xf bank_mask:0xf")
    a(f"s_nop 1\nv_add_u32_dpp v{v}, v{v}, v{v} row_bcast:15 row_mask:0xa bank_mask:0xf")
    a(f"s_nop 1\nv_add_u32_dpp v{v}, v{v}, v{v} row_bcast:31 row_mask:0xc bank_mask:0xf")


class Stamps:
    def __init__(self, on, first_sgpr, slot_base):
        self.on, self.s0, self.n, self.base = on, first_sgpr, 0, slot_base

    def mark(self, a):
        if self.on:
            a(f"s_memrealtime s[{self.s0+2*self.n}:{self.s0+2*self.n+1}]\ns_waitcnt lgkmcnt(0)")
            self.n += 1

    def flush(self, a, ws, wave_sgpr, wg="s2"):
        if not self.on:
            return
        a(f"s_lshl_b32 s3, {wg}, 4\ns_add_u32 s3, s3, {wave_sgpr}\ns_lshl_b32 s3, s3, 6\ns_add_u32 s3, s3, {self.base}")
        a("s_mov_b64 exec, 1\nv_mov_b32 v1, s3")
        for i in range(self.n):
            a(f"v_mov_b32 v2, s{self.s0+2*i}\nglobal_store_dword v1, v2, s[{ws}:{ws+1}] offset:{4*i}")
        a("s_waitcnt vmcnt(0)")


def w_src_off(a, vdst0, vdst1, lane, tmp, half_sgpr_128):
    a(f"""
    v_lshrrev_b32 v{vdst0}, 3, v{lane}
    v_lshlrev_b32 v{vdst0}, 8, v{vdst0}
    v_and_b32 v{tmp}, 7, v{lane}
    v_lshlrev_b32 v{tmp}, 4, v{tmp}
    v_and_b32 v{vdst1}, 16, v{lane}
    v_lshlrev_b32 v{vdst1}, 1, v{vdst1}           ; -> bit 5
    v_xor_b32 v{tmp}, v{tmp}, v{vdst1}
    v_add3_u32 v{vdst0}, v{vdst0}, v{tmp}, {half_sgpr_128}
    v_xor_b32 v{vdst1}, 64, v{vdst0}
    """)


def w_frag_addr(a, vA, lane, tmp, base):
    a(f"""
    v_lshrrev_b32 v{vA}, 4, v{lane}               ; sigma
    v_lshlrev_b32 v{vA}, 10, v{vA}                ; 8 rows * 128 B
    v_bfe_u32 v{tmp}, v{lane}, 2, 2               ; rho
    v_lshl_add_u32 v{vA}, v{tmp}, 7, v{vA}
    v_and_b32 v{tmp}, 3, v{lane}
    v_lshl_add_u32 v{vA}, v{tmp}, 3, v{vA}
    v_bfe_u32 v{tmp}, v{lane}, 3, 2
    v_lshlrev_b32 v{tmp}, 5, v{tmp}
    v_add3_u32 v{vA}, v{vA}, v{tmp}, {base}
    v_xor_b32 v{vA+1}, 32, v{vA}
    v_xor_b32 v{vA+2}, 64, v{vA}
    v_xor_b32 v{vA+3}, 0x60, v{vA}
    """)


def gemm(a, nmat, vA, vX, vRing, nslot, vAcc):
    steps = [(ks, m, t) for ks in range(4) for m in range(nmat) for t in range(4)]
    n = len(steps)
    depth = nslot - 1

    def rd(s):
        ks, m, t = steps[s]
        r = vRing + 4 * (s % nslot)
        o = m * 16384 + ks * 4096
        a(f"ds_read_b64_tr_b16 {vr(r,2)}, v{vA+t} offset:{o}")
        a(f"ds_read_b64_tr_b16 {vr(r+2,2)}, v{vA+t} offset:{o+512}")

    for s in range(depth):
        rd(s)
    for s in range(n):
        ks, m, t = steps[s]
        issued = min(n, s + depth)
        a(f"s_waitcnt lgkmcnt({2*(issued-s-1)})")
        acc = vAcc + (m * 4 + t) * 4
        c = "0" if ks == 0 else vr(acc, 4)
        a(f"v_mfma_f32_16x16x32_bf16 {vr(acc,4)}, {vr(vX+4*ks,4)}, {vr(vRing+4*(s%nslot),4)}, {c}")
        if s + depth < n:
            rd(s + depth)


def k1(stamp):
    a = Asm()
    st = Stamps(stamp, 60, WS_STAMP)
    HIST, START, STAGE = 20480, 20992, 0
    a(f"""
    s_cmp_ge_u32 s2, {2*NCH}
    s_cbranch_scc1 K1_END
    """)
    st.mark(a)
    a(f"""
    s_load_dwordx8 s[4:11], s[0:1], 0
    s_load_dwordx4 s[12:15], s[0:1], {KA['v']}    ; v_w, g_w
    s_load_dwordx2 s[16:17], s[0:1], {KA['ws']}
    v_lshrrev_b32 v2, 6, v0
    v_and_b32 v1, 63, v0                          ; lane
    v_readfirstlane_b32 s18, v2                   ; wave
    s_cmp_ge_u32 s2, {NCH}
    s_cbranch_scc1 K1_GEMM
    """)
    a(f"""
    s_mul_i32 s19, s2, {CH*4}
    v_lshl_add_u32 v2, v0, 4, s19
    v_lshlrev_b32 v3, 1, v2
    v_lshlrev_b32 v28, 2, v0
    v_mov_b32 v29, 0
    s_waitcnt lgkmcnt(0)
    global_load_dwordx4 v[4:7], v2, s[10:11]
    global_load_dwordx4 v[8:11], v2, s[8:9]
    global_load_dwordx4 v[12:15], v3, s[6:7]
    global_load_dwordx4 v[16:19], v3, s[6:7] offset:16
    ds_write_b32 v28, v29 offset:{HIST}
    s_mov_b32 s20, 52429
    s_mov_b32 s21, {-NB*256}
    v_mov_b32 v29, 1
    s_waitcnt lgkmcnt(0)
    s_barrier
    s_waitcnt vmcnt(3)
    """)
    st.mark(a)
    for i in range(4):
        a(f"""
        v_mul_u32_u24 v{30+i}, s20, v{4+i}
        v_lshrrev_b32 v{30+i}, 22, v{30+i}        ; bucket
        v_lshlrev_b32 v{4+i}, 8, v{4+i}
        v_mad_i32_i24 v{21+2*i}, v{30+i}, s21, v{4+i}   ; node*256
        v_lshlrev_b32 v{30+i}, 2, v{30+i}
        ds_add_rtn_u32 v{34+i}, v{30+i}, v29 offset:{HIST}
        """)
    a(f"""
    v_lshlrev_b32 v28, 3, v1
    s_waitcnt lgkmcnt(0)
    s_barrier
    ds_read_b64 v[38:39], v28 offset:{HIST}
    s_waitcnt vmcnt(2)
    """)
    for i in range(4):
        a(f"v_lshlrev_b32 v{20+2*i}, 8, v{8+i}            ; src*256")
    a("""
    s_waitcnt lgkmcnt(0)
    v_add_u32 v40, v38, v39
    v_mov_b32 v41, v40
    """)
    scan64(a, 41)
    a(f"""
    v_sub_u32 v42, v41, v40
    v_add_u32 v43, v42, v38
    ds_write_b64 v28, v[42:43] offset:{START}
    """)
    for i in range(4):
        a(f"ds_read_b32 v{44+i}, v{30+i} offset:{START}")
    a(f"""
    s_cmp_lg_u32 s18, 0
    s_cbranch_scc1 K1_NOOFF
    s_lshl_b32 s19, s2, 9
    s_add_u32 s19, s19, {WS_OFF}
    v_lshl_or_b32 v42, v38, 16, v42
    v_lshl_or_b32 v43, v39, 16, v43
    v_add_u32 v28, s19, v28
    global_store_dwordx2 v28, v[42:43], s[16:17]
    s_waitcnt vmcnt(1)
    s_branch K1_OFFD
    K1_NOOFF:
    s_waitcnt vmcnt(0)
    K1_OFFD:
    """)
    for i in range(4):
        a(f"""
        s_waitcnt lgkmcnt({3 if i else 3})
        v_add_lshl_u32 v{44+i}, v{44+i}, v{34+i}, 4
        ds_write2_b64 v{44+i}, {vr(20+2*i,2)}, {vr(12+2*i,2)} offset0:0 offset1:1
        """)
    a(f"""
    v_lshlrev_b32 v2, 4, v0
    s_mul_i32 s19, s2, {CH*16}
    s_add_u32 s19, s19, {WS_REC}
    s_add_u32 s16, s16, s19
    s_addc_u32 s17, s17, 0
    v_add_u32 v3, 5120, v2
    v_add_u32 v48, 10240, v2
    v_add_u32 v49, 15360, v2
    s_waitcnt lgkmcnt(0)
    s_barrier
    """)
    st.mark(a)
    for i in range(4):
        a(f"ds_read_b128 {vr(4+4*i,4)}, v2 offset:{5120*i}")
    for i, ad in enumerate((2, 3, 48, 49)):
        a(f"s_waitcnt lgkmcnt({3-i})\nglobal_store_dwordx4 v{ad}, {vr(4+4*i,4)}, s[16:17]")
    if stamp:
        a("s_sub_u32 s16, s16, s19\ns_subb_u32 s17, s17, 0\ns_waitcnt vmcnt(0)")
        st.mark(a)
        st.flush(a, 16, "s18")
    a("s_endpgm")
    st.n = 1 if stamp else 0
    vX, vRing, vAcc, vA = 8, 24, 56, 88
    a(f"""
    K1_GEMM:
    s_sub_u32 s19, s2, {NCH}
    s_and_b32 s20, s19, 1                         ; half
    s_lshr_b32 s19, s19, 1
    s_lshl_b32 s21, s20, 7                        ; half*128
    s_mul_i32 s19, s19, {NB}
    s_lshl_b32 s22, s18, 4
    s_add_u32 s19, s19, s22
    s_lshl_b32 s19, s19, 8                        ; *256 B
    v_and_b32 v2, 15, v1
    v_lshlrev_b32 v2, 8, v2
    v_and_b32 v3, 48, v1
    v_add3_u32 v2, v2, v3, s19
    """)
    w_src_off(a, 4, 5, 1, 6, "s21")
    a(f"""
    s_waitcnt lgkmcnt(0)
    s_cmp_eq_u32 s18, 4
    s_cbranch_scc1 K1_NODMA
    s_add_u32 s14, s14, {128*256}
    s_addc_u32 s15, s15, 0
    s_cmp_lt_u32 s18, 2
    s_cselect_b32 s24, s14, s12
    s_cselect_b32 s25, s15, s13
    s_mov_b32 s26, {128*256}
    s_mov_b32 s27, 0x20000
    s_and_b32 s22, s18, 1
    s_lshl_b32 s22, s22, 14
    s_lshl_b32 s23, s18, 13
    """)
    for i in range(8):
        a(f"""
        s_mov_b32 m0, s23
        s_add_u32 s23, s23, 1024
        buffer_load_dwordx4 v{4+(i&1)}, s[24:27], s22 offen lds
        s_add_u32 s22, s22, 2048
        """)
    a("K1_NODMA:")
    for ks in range(4):
        a(f"global_load_dwordx4 {vr(vX+4*ks,4)}, v2, s[4:5] offset:{64*ks}")
    w_frag_addr(a, vA, 1, 6, "0")
    a(f"""
    s_mul_i32 s20, s20, {T_HALF}
    s_add_u32 s19, s19, s20
    v_lshrrev_b32 v2, 4, v1
    v_lshlrev_b32 v2, 10, v2
    v_and_b32 v3, 15, v1
    v_lshlrev_b32 v3, 4, v3
    v_add3_u32 v2, v2, v3, s19
    s_mov_b32 s28, {hex(NLOG2E)}
    s_mov_b32 s29, 0xffff
    s_waitcnt vmcnt(0)
    s_barrier
    """)
    st.mark(a)
    gemm(a, 2, vA, vX, vRing, 8, vAcc)
    st.mark(a)
    a("s_nop 7")
    for i in range(4):
        P = vRing + 4 * i
        for t in range(4):
            b, h = vAcc + 4 * t + i, vAcc + 16 + 4 * t + i
            a(f"""
            v_mul_f32 v{b}, s28, v{b}
            v_add_f32 v{h}, 0, v{h}               ; -0 / denormal -> +0
            v_cvt_f16_f32 v{b}, v{b}
            v_add_u32 v{h}, 0x8000, v{h}
            v_sub_u32_e64 v{h}, v{h}, v{b} clamp
            v_bfi_b32 v{P+t}, s29, v{b}, v{h}
            """)
        a(f"global_store_dwordx4 v2, {vr(P,4)}, s[16:17] offset:{256*i}")
    if stamp:
        a("s_waitcnt vmcnt(0)")
        st.mark(a)
        st.flush(a, 16, "s18")
    a("K1_END:")
    return a.text(), 96


LA, LAGG, LCNT, LFLAG, LQST, LCW, LLIST = 0, 20480, 61440, 61952, 62464, 62976, 63488
KMAX = 7
KSMALL = 3
QCAP = 832
LDS2 = LLIST + QCAP * 64 + 256
DUMMY = 0x400000


def k2(stamp):
    a = Asm()
    st = Stamps(stamp, 70, WS_STAMP + 0x80000)
    sX, sU, sG, sOUT, sWS = 4, 6, 10, 12, 16
    sW, sH, sB = 18, 19, 20
    SRD_T, SRD_R, SRD_W = 24, 28, 32
    sM = 36
    sN, sNG, sT0, sFIRST = 50, 51, 52, 53
    sMB = 54
    sMORE, sK = 58, 59
    sINC = 60
    s12 = 62
    sADV = 64
    vL = 1
    vLO = 2
    vSel, vSelA, vCw = 104, 120, 124
    vRO, vRem = 126, 127
    vRec, vRank = 72, 64
    vX, vRing, vAcc, vA = 8, 24, 48, 100
    vAdr = 8
    a(f"""
    s_cmp_ge_u32 s2, {2*NBK}
    s_cbranch_scc1 K2_END
    """)
    st.mark(a)
    a(f"""
    s_load_dwordx2 s[{sWS}:{sWS+1}], s[0:1], {KA['ws']}
    s_load_dwordx2 s[{sX}:{sX+1}], s[0:1], {KA['x']}
    s_load_dwordx2 s[{sU}:{sU+1}], s[0:1], {KA['u']}
    s_load_dwordx2 s[{sG}:{sG+1}], s[0:1], {KA['g']}
    s_load_dwordx2 s[{sOUT}:{sOUT+1}], s[0:1], {KA['out']}
    v_lshrrev_b32 v4, 6, v0
    v_and_b32 v{vL}, 63, v0
    v_readfirstlane_b32 s{sW}, v4
    s_lshr_b32 s{sB}, s2, 1
    s_and_b32 s21, s2, 1
    s_lshl_b32 s{sH}, s21, 7
    v_lshrrev_b32 v4, 2, v0                       ; chunk
    s_lshl_b32 s22, s{sB}, 2
    v_lshl_add_u32 v5, v4, 9, s22
    s_mul_i32 s21, s21, {T_HALF}
    s_waitcnt lgkmcnt(0)
    """)
    srd(a, SRD_T, sWS, WS_OFF, NCH * 512)
    a(f"buffer_load_dword v{vRem}, v5, s[{SRD_T}:{SRD_T+3}], 0 offen")
    w_src_off(a, 6, 7, vL, 5, f"s{sH}")
    a(f"""
    s_cmp_lt_u32 s{sW}, 8
    s_cselect_b32 s{SRD_W}, s{sG}, s{sU}
    s_cselect_b32 s{SRD_W+1}, s{sG+1}, s{sU+1}
    s_mov_b32 s{SRD_W+2}, {128*256}
    s_mov_b32 s{SRD_W+3}, 0x20000
    s_and_b32 s22, s{sW}, 7
    s_lshl_b32 s22, s22, 12                       ; 16 rows * 256
    s_lshl_b32 s23, s{sW}, 11
    s_add_u32 s23, s23, {LLIST}
    s_mov_b32 m0, s23
    s_add_u32 s23, s23, 1024
    buffer_load_dwordx4 v6, s[{SRD_W}:{SRD_W+3}], s22 offen lds
    s_add_u32 s22, s22, 2048
    s_mov_b32 m0, s23
    v_mul_u32_u24 v{vRO}, {CH*16}, v4
    buffer_load_dwordx4 v7, s[{SRD_W}:{SRD_W+3}], s22 offen lds
    s_cmp_lt_u32 s{sW}, 10
    s_cbranch_scc0 K2_NOX
    ; x fragments of node tile (wave % 5)
    s_cmp_ge_u32 s{sW}, 5
    s_cselect_b32 s22, 5, 0
    s_cselect_b32 s{sK}, {LLIST+16384}, {LLIST & 0}
    s_sub_u32 s22, s{sW}, s22
    s_lshl_b32 s{sT0}, s22, 12
    s_mul_i32 s23, s{sB}, {NB*256}
    s_add_u32 s23, s23, s{sT0}
    v_and_b32 v4, 15, v{vL}
    v_lshlrev_b32 v4, 8, v4
    v_and_b32 v7, 48, v{vL}
    v_add3_u32 v4, v4, v7, s23
    s_max_u32 s{sK}, s{sK}, {LLIST}
    """)
    for ks in range(4):
        a(f"global_load_dwordx4 {vr(vX+4*ks,4)}, v4, s[{sX}:{sX+1}] offset:{64*ks}")
    w_frag_addr(a, vA, vL, 5, f"s{sK}")
    a(f"""
    s_branch K2_XD
    K2_NOX:
    v_lshrrev_b32 v4, 3, v{vL}
    v_lshlrev_b32 v4, 8, v4
    v_and_b32 v5, 7, v{vL}
    v_lshlrev_b32 v5, 4, v5
    s_add_u32 s22, s{sH}, {256*256}
    v_add3_u32 v4, v4, v5, s22
    s_mov_b32 m0, {LCW}
    s_mov_b32 exec_hi, 0
    global_load_lds_dwordx4 v4, s[{sG}:{sG+1}]
    s_mov_b32 exec_hi, -1
    v_lshlrev_b32 v5, 2, v0
    v_mov_b32 v6, 0
    ds_write_b32 v5, v6 offset:{LCNT-2560}
    K2_XD:
    """)
    srd(a, SRD_T, sWS, "s21", T_HALF)
    srd(a, SRD_R, sWS, WS_REC, E * 16)
    a(f"""
    s_mov_b32 s{sMB}, 1
    s_mov_b32 s{sMB+1}, 16
    v_mov_b32 v5, 0x3c00
    """)
    for g in range(4):
        for t in range(4):
            a(f"s_lshl_b64 s[{sMB+2}:{sMB+3}], s[{sMB}:{sMB+1}], {8*t+g}\nv_cndmask_b32 v{vSel+4*g+t}, 0, v5, s[{sMB+2}:{sMB+3}]")
    a(f"""
    s_mov_b32 s{sMB}, 15
    s_mov_b32 s{sMB+1}, 0xf0
    v_mov_b32 v5, 0x3f803f80
    """)
    for t in range(4):
        a(f"s_lshl_b64 s[{sMB+2}:{sMB+3}], s[{sMB}:{sMB+1}], {8*t}\nv_cndmask_b32 v{vSelA+t}, 0, v5, s[{sMB+2}:{sMB+3}]")
    a(f"""
    v_and_b32 v{vLO+1}, 15, v{vL}
    v_lshlrev_b32 v{vLO}, 4, v{vLO+1}
    v_lshlrev_b32 v{vLO+1}, 3, v{vLO+1}
    v_add_u32 v{vLO+1}, {LAGG}, v{vLO+1}
    s_mov_b32 s{s12}, 1.0
    s_mov_b32 s{s12+1}, 2.0
    s_mov_b32 s{sADV}, {4*KMAX}
    s_mov_b32 s{sINC}, 128
    s_mov_b32 s{sINC+1}, 128
    s_mov_b32 s{sFIRST}, 1
    v_and_b32 v4, 3, v0
    s_cmp_lt_u32 s{sW}, 10
    s_cbranch_scc0 K2_W3
    s_waitcnt vmcnt(6)
    s_branch K2_WD
    K2_W3:
    s_waitcnt vmcnt(3)
    K2_WD:
    """)
    st.mark(a)
    a(f"""
    v_and_b32 v5, 0xffff, v{vRem}
    v_lshrrev_b32 v{vRem}, 16, v{vRem}
    v_add_u32 v5, v5, v4
    v_sub_u32 v{vRem}, v{vRem}, v4
    v_lshl_add_u32 v{vRO}, v5, 4, v{vRO}
    K2_BATCH:
    """)
    for k in range(KMAX):
        a(f"v_cmp_lt_i32 s[{sM+2*k}:{sM+2*k+1}], {4*k}, v{vRem}")
    a(f"s_cmp_eq_u32 s{sADV}, {4*KMAX}\ns_cselect_b64 s[{sM+2*KSMALL}:{sM+2*KSMALL+1}], s[{sM+2*KSMALL}:{sM+2*KSMALL+1}], 0")
    for k in range(KMAX):
        a(f"s_mov_b64 exec, s[{sM+2*k}:{sM+2*k+1}]\ns_cbranch_execz K2_RL{k}")
        a(f"buffer_load_dwordx4 {vr(vRec+4*k,4)}, v{vRO}, s[{SRD_R}:{SRD_R+3}], 0 offen offset:{64*k}")
    a(f"s_waitcnt vmcnt({KMAX})\ns_branch K2_RLD")
    for k in range(KMAX - 1, -1, -1):
        a(f"K2_RL{k}:\ns_waitcnt vmcnt({k})")
        if k:
            a("s_branch K2_RLD")
    a(f"""
    K2_RLD:
    s_mov_b64 exec, -1
    s_lshr_b32 s22, s2, 3
    s_mul_i32 s22, s22, {646*128}
    v_mul_u32_u24 v4, 84, v0
    s_waitcnt lgkmcnt(0)
    s_barrier
    buffer_load_dword v71, v4, s[{SRD_T}:{SRD_T+3}], s22 offen
    """)
    st.mark(a)
    a(f"""
    v_bfe_u32 v4, v{vL}, 2, 2
    v_lshlrev_b32 v4, 7, v4
    v_lshrrev_b32 v5, 4, v{vL}
    v_lshl_add_u32 v4, v5, 5, v4
    v_and_b32 v5, 3, v{vL}
    v_lshl_add_u32 v4, v5, 3, v4
    ds_read_b64_tr_b16 v[6:7], v4 offset:{LCW}
    s_mov_b32 s{sMB}, {hex(NLOG2E)}
    s_mov_b32 s{sMB+1}, 0xffff0000
    s_waitcnt lgkmcnt(0)
    v_lshlrev_b32 v4, 16, v6
    v_and_b32 v6, s{sMB+1}, v6
    v_lshlrev_b32 v5, 16, v7
    v_and_b32 v7, s{sMB+1}, v7
    v_mul_f32 v4, s{sMB}, v4
    v_mul_f32 v6, s{sMB}, v6
    v_mul_f32 v5, s{sMB}, v5
    v_mul_f32 v7, s{sMB}, v7
    v_cvt_pk_bf16_f32 v{vCw}, v4, v6
    v_cvt_pk_bf16_f32 v{vCw+1}, v5, v7
    s_cmp_lt_u32 s{sW}, 10
    s_cselect_b32 s22, s{sFIRST}, 0
    s_cmp_eq_u32 s22, 0
    s_cbranch_scc1 K2_GD
    """)
    gemm(a, 1, vA, vX, vRing, 6, vAcc)
    a(f"""
    v_lshrrev_b32 v4, 4, v{vL}
    v_lshlrev_b32 v4, 10, v4
    s_cmp_lt_u32 s{sW}, 5
    s_cbranch_scc0 K2_GU
    v_add3_u32 v4, v4, v{vLO}, s{sT0}
    s_nop 3
    """)
    for i in range(4):
        P = vRing + 4 * i
        for t in range(4):
            c = vAcc + 4 * t + i
            a(f"""
            v_mul_f32 v{c}, s{sMB}, v{c}
            v_and_b32 v{P+t}, s{sMB+1}, v{c}
            v_sub_f32 v{c}, v{c}, v{P+t}
            v_cvt_pk_bf16_f32 v{P+t}, v{c}, v{P+t}
            """)
        a(f"ds_write_b128 v4, {vr(P,4)} offset:{LA+256*i}")
    a(f"""
    s_branch K2_GD
    K2_GU:
    v_add_u32 v4, s{sT0}, v4
    v_lshl_add_u32 v4, v4, 1, v{vLO+1}
    s_nop 2
    """)
    for i in range(4):
        for t in range(4):
            a(f"v_cvt_f64_f32 {vr(vX+8*i+2*t,2)}, v{vAcc+4*t+i}")
        for t in (0, 2):
            a(f"ds_write2_b64 v4, {vr(vX+8*i+2*t,2)}, {vr(vX+8*i+2*t+2,2)} offset0:{64*i+16*t} offset1:{64*i+16*t+16}")
    a(f"""
    K2_GD:
    s_mov_b32 s{sFIRST}, 0
    v_mov_b32 v4, 1
    v_cmp_lt_i32 vcc, s{sADV}, v{vRem}
    v_mov_b32 v5, {LFLAG}
    s_and_saveexec_b64 s[{sMB}:{sMB+1}], vcc
    s_cbranch_execz K2_NOMORE
    ds_write_b32 v5, v4
    K2_NOMORE:
    s_waitcnt vmcnt(1)
    """)
    st.mark(a)
    for k in range(KMAX):
        a(f"""
        s_mov_b64 exec, s[{sM+2*k}:{sM+2*k+1}]
        s_cbranch_execz K2_HD
        v_lshrrev_b32 v{vAdr+k}, 6, v{vRec+4*k+1}
        ds_add_rtn_u32 v{vRank+k}, v{vAdr+k}, v4 offset:{LCNT}
        """)
    a(f"""
    K2_HD:
    s_mov_b64 exec, -1
    v_lshlrev_b32 v7, 3, v{vL}
    s_waitcnt lgkmcnt(0)
    s_barrier
    ds_read_b64 v[16:17], v7 offset:{LCNT}
    ds_read_b32 v18, v5
    v_and_b32 v24, -4, v0
    v_and_b32 v25, 3, v0
    ds_read_b32 v26, v24 offset:{LCNT}
    s_waitcnt lgkmcnt(2)
    v_add_u32 v16, 3, v16
    v_add_u32 v17, 3, v17
    v_lshrrev_b32 v16, 2, v16
    v_lshrrev_b32 v17, 2, v17
    v_add_u32 v19, v16, v17
    v_mov_b32 v20, v19
    """)
    scan64(a, 20)
    a(f"""
    v_sub_u32 v22, v20, v19
    v_add_u32 v23, v22, v16
    v_readlane_b32 s{sNG}, v20, 63
    s_mov_b32 s22, {LLIST}
    v_lshl_add_u32 v22, v22, 6, s22
    v_lshl_add_u32 v23, v23, 6, s22
    s_cmp_gt_u32 s{sNG}, {QCAP-3}
    s_cbranch_scc1 K2_OVER
    ds_write_b64 v7, v[22:23] offset:{LQST}
    """)
    for k in range(KMAX):
        a(f"""
        s_mov_b64 exec, s[{sM+2*k}:{sM+2*k+1}]
        s_cbranch_execz K2_SD
        ds_read_b32 v{vAdr+k}, v{vAdr+k} offset:{LQST}
        """)
    a(f"""
    K2_SD:
    s_mov_b64 exec, -1
    s_cmp_lt_u32 s{sW}, 6
    s_cbranch_scc0 K2_NOPAD
    ds_read_b32 v27, v24 offset:{LQST}
    v_mov_b32 v28, {DUMMY}
    v_mov_b32 v29, 0
    v_mov_b32 v30, 0
    v_mov_b32 v31, 0
    v_subrev_u32 v24, {4*NB}, v24                 ; (node-80)*4
    v_cmp_gt_u32 s[{sMB}:{sMB+1}], 12, v24
    s_waitcnt lgkmcnt(0)
    v_sub_u32 v32, 0, v26
    v_and_b32 v32, 3, v32
    v_cmp_lt_u32 vcc, v25, v32
    v_cndmask_b32 v26, v26, v24, s[{sMB}:{sMB+1}]
    v_add_u32 v26, v26, v25
    v_lshl_add_u32 v27, v26, 4, v27
    s_or_b64 exec, vcc, s[{sMB}:{sMB+1}]
    ds_write_b128 v27, v[28:31]
    s_mov_b64 exec, -1
    K2_NOPAD:
    s_waitcnt lgkmcnt(0)
    v_readfirstlane_b32 s{sMORE}, v18
    """)
    for k in range(KMAX):
        a(f"""
        s_mov_b64 exec, s[{sM+2*k}:{sM+2*k+1}]
        s_cbranch_execz K2_CD
        v_lshl_add_u32 v{vAdr+k}, v{vRank+k}, 4, v{vAdr+k}
        ds_write_b128 v{vAdr+k}, {vr(vRec+4*k,4)}
        """)
    vW = (8, 24)
    vZ, vT, vAc, vE, vAp, vS, vN = 40, 56, 72, 76, 80, 84, 88
    vNA = (90, 92)
    vQ = 94
    vD = 96
    a(f"""
    K2_CD:
    s_mov_b64 exec, -1
    s_add_u32 s{sNG}, s{sNG}, 3
    s_lshr_b32 s{sNG}, s{sNG}, 2                  ; groups
    s_lshr_b32 s22, s{sNG}, 4
    s_and_b32 s23, s{sNG}, 15
    s_mul_i32 s{sMB}, s22, s{sW}
    s_min_u32 s{sMB+1}, s{sW}, s23
    s_add_u32 s{sMB}, s{sMB}, s{sMB+1}
    s_cmp_lt_u32 s{sW}, s23
    s_addc_u32 s{sN}, s22, 0
    s_lshl_b32 s{sMB}, s{sMB}, 6
    s_add_u32 s{sMB}, s{sMB}, {LLIST}
    s_lshl_b32 s{sNG}, s{sNG}, 6
    v_lshrrev_b32 v4, 4, v{vL}
    v_bfe_u32 v5, v{vL}, 2, 2
    v_mov_b32 v6, s{sMB}
    v_and_b32 v7, 3, v{vL}
    s_waitcnt lgkmcnt(0)
    v_mad_u32_u24 v{vQ}, v4, s{sNG}, v6
    v_mad_u32_u24 v{vQ+1}, v5, s{sNG}, v6
    v_lshl_add_u32 v{vQ+1}, v7, 4, v{vQ+1}
    v_mov_b32 v{vNA[1]}, v{vLO}
    s_barrier
    """)
    st.mark(a)

    def meta(off, S, Nn):
        d = off // 4
        a(f"""
        ds_read2_b32 {vr(S,2)}, v{vQ} offset0:{d} offset1:{d+4}
        ds_read2_b32 {vr(S+2,2)}, v{vQ} offset0:{d+8} offset1:{d+12}
        ds_read_b32 v{Nn}, v{vQ} offset:{off+4}
        """)

    def saddr(S):
        a(f"""
        v_pk_add_f32 {vr(S,2)}, {vr(S,2)}, {vr(vLO,2)} op_sel_hi:[1,0]
        v_pk_add_f32 {vr(S+2,2)}, {vr(S+2,2)}, {vr(vLO,2)} op_sel_hi:[1,0]
        """)

    def loads(p, S):
        for g in range(4):
            a(f"buffer_load_dwordx4 {vr(vW[p]+4*g,4)}, v{S+g}, s[{SRD_T}:{SRD_T+3}], 0 offen")

    def naddr(p, Nn):
        a(f"v_pk_fma_f32 {vr(vNA[p],2)}, {vr(Nn,2)}, s[{s12}:{s12+1}], {vr(vLO,2)} op_sel_hi:[0,1,1]")

    a(f"""
    s_cmp_eq_u32 s{sN}, 0
    s_cbranch_scc1 K2_LD
    """)
    meta(0, vS, vN)
    meta(64, vZ, vZ + 4)
    a(f"ds_read_b64 {vr(vE,2)}, v{vQ+1} offset:8\ns_waitcnt lgkmcnt(4)")
    saddr(vS)
    naddr(0, vN)
    loads(0, vS)
    a(f"""
    ds_read_b128 {vr(vAp,4)}, v{vNA[0]} offset:{LA}
    s_cmp_eq_u32 s{sN}, 1
    s_waitcnt lgkmcnt(0)
    s_cbranch_scc1 K2_L0
    """)
    saddr(vZ)
    naddr(1, vZ + 4)
    loads(1, vZ)
    for p in range(2):
        W = vW[p]
        a(f"""
        K2_L{p}:
        s_cmp_eq_u32 s{sN}, 1
        s_cbranch_scc1 K2_L{p}a
        s_waitcnt vmcnt(4)
        s_branch K2_L{p}b
        K2_L{p}a:
        s_waitcnt vmcnt(0)
        K2_L{p}b:
        v_mfma_f32_16x16x4_4b_bf16 {vr(vZ,16)}, {vr(vE,2)}, {vr(vCw,2)}, 0
        v_mfma_f32_32x32x16_bf16 {vr(vZ,16)}, {vr(vSelA,4)}, {vr(vAp,4)}, {vr(vZ,16)}
        """)
        for g in range(4):
            a(f"v_mfma_f32_32x32x16_f16 {vr(vZ,16)}, {vr(vSel+4*g,4)}, {vr(W+4*g,4)}, {vr(vZ,16)}")
        meta(128 + 64 * p, vS, vN)
        a(f"""
        ds_read_b64 {vr(vE,2)}, v{vQ+1} offset:{64+64*p+8}
        ds_read_b128 {vr(vAp,4)}, v{vNA[p^1]} offset:{LA}
        s_nop 6
        """)
        for g in range(4):
            for t in range(4):
                a(f"v_exp_f32 v{vT+4*g+t}, v{vZ+4*t+g}")
        for i in range(8):
            a(f"v_pk_add_f32 {vr(vT+2*i,2)}, {vr(vT+2*i,2)}, 1.0 op_sel_hi:[1,0]")
        for i in range(16):
            a(f"v_rcp_f32 v{vT+i}, v{vT+i}")
        a("s_waitcnt lgkmcnt(0)")
        saddr(vS)
        if p == 1:
            a(f"v_pk_add_f32 {vr(vQ,2)}, {vr(vQ,2)}, s[{sINC}:{sINC+1}]")
        for g in range(4):
            for h in range(2):
                o = 4 * g + 2 * h
                if g == 0:
                    a(f"v_pk_mul_f32 {vr(vAc+2*h,2)}, {vr(vT+o,2)}, {vr(W+o,2)}")
                else:
                    a(f"v_pk_fma_f32 {vr(vAc+2*h,2)}, {vr(vT+o,2)}, {vr(W+o,2)}, {vr(vAc+2*h,2)}")
        for t in range(4):
            a(f"v_cvt_f64_f32 {vr(vD+2*t,2)}, v{vAc+t}")
        for t in range(4):
            a(f"ds_add_f64 v{vNA[p]+1}, {vr(vD+2*t,2)} offset:{128*t}")
        a(f"""
        s_cmp_le_u32 s{sN}, 2
        s_cbranch_scc1 K2_L{p}c
        """)
        loads(p, vS)
        naddr(p, vN)
        a(f"""
        K2_L{p}c:
        s_sub_u32 s{sN}, s{sN}, 1
        s_cmp_eq_u32 s{sN}, 0
        """)
        a("s_cbranch_scc1 K2_LD" if p == 0 else "s_cbranch_scc0 K2_L0")
    a(f"""
    K2_LD:
    s_waitcnt vmcnt(0) lgkmcnt(0)
    """)
    st.mark(a)
    a(f"""
    s_barrier
    s_cmp_eq_u32 s{sMORE}, 0
    s_cbranch_scc1 K2_FIN
    s_lshl_b32 s22, s{sADV}, 4
    v_subrev_u32 v{vRem}, s{sADV}, v{vRem}
    v_add_u32 v{vRO}, s22, v{vRO}
    K2_AGAIN:
    s_cmp_lt_u32 s{sW}, 10
    s_cbranch_scc1 K2_BATCH
    v_lshlrev_b32 v5, 2, v0
    v_mov_b32 v6, 0
    ds_write_b32 v5, v6 offset:{LCNT-2560}
    s_branch K2_BATCH
    K2_OVER:
    s_mov_b32 s{sADV}, {4*KSMALL}
    s_waitcnt vmcnt(0) lgkmcnt(0)
    s_barrier
    s_branch K2_AGAIN
    K2_FIN:
    s_cmp_lt_u32 s{sW}, 10
    s_cbranch_scc0 K2_STORED
    v_lshlrev_b32 v4, 6, v0
    ds_read_b128 v[24:27], v4 offset:{LAGG}
    ds_read_b128 v[28:31], v4 offset:{LAGG+16}
    ds_read_b128 v[32:35], v4 offset:{LAGG+32}
    ds_read_b128 v[36:39], v4 offset:{LAGG+48}
    s_mov_b32 s22, {hex(NLOG2E)}
    s_mul_i32 s23, s{sB}, {NB*256}
    s_add_u32 s23, s23, s{sH}
    v_lshrrev_b32 v5, 3, v0
    v_lshlrev_b32 v5, 8, v5
    v_and_b32 v6, 7, v0
    v_lshlrev_b32 v6, 4, v6
    v_add3_u32 v5, v5, v6, s23
    s_waitcnt lgkmcnt(0)
    """)
    for i in range(8):
        a(f"v_cvt_f32_f64 v{8+i}, {vr(24+2*i,2)}")
    for i in range(8):
        a(f"v_mul_f32 v{16+i}, s22, v{8+i}")
    for i in range(8):
        a(f"v_exp_f32 v{16+i}, v{16+i}")
    for i in range(4):
        a(f"v_pk_add_f32 {vr(16+2*i,2)}, {vr(16+2*i,2)}, 1.0 op_sel_hi:[1,0]")
    for i in range(8):
        a(f"v_rcp_f32 v{16+i}, v{16+i}")
    for i in range(4):
        a(f"v_pk_mul_f32 {vr(16+2*i,2)}, {vr(16+2*i,2)}, {vr(8+2*i,2)}")
    for i in range(4):
        a(f"v_cvt_pk_bf16_f32 v{8+i}, v{16+2*i}, v{17+2*i}")
    a(f"""
    global_store_dwordx4 v5, v[8:11], s[{sOUT}:{sOUT+1}]
    K2_STORED:
    """)
    if stamp:
        a("s_waitcnt vmcnt(0)")
        st.mark(a)
        st.flush(a, sWS, f"s{sW}")
    a("K2_END:")
    return a.text(), 128


HDR = """; Kernarg layout (80 bytes, pointers): x, e_attr, src, dst, u_w, v_w, g_w, out, debug, ws
; @launch kernel=egc_prep_kernel grid=({g1},1,1) block=(320,1,1) lds=32768
; @launch kernel=egc_main_kernel grid=({g2},1,1) block=(1024,1,1) lds={lds2}
.amdgcn_target "amdgcn-amd-amdhsa--gfx950"
.text
"""


def kernel(name, body):
    return f""".globl {name}
.p2align 8
.type {name},@function
{name}:
{body}    s_endpgm
"""


def desc(name, vgpr, extra=""):
    return f""".p2align 6
.amdhsa_kernel {name}
  .amdhsa_next_free_vgpr {vgpr}
  .amdhsa_next_free_sgpr 96
  .amdhsa_accum_offset {vgpr}
  .amdhsa_group_segment_fixed_size 0
  .amdhsa_kernarg_size 80
  .amdhsa_user_sgpr_count 2
  .amdhsa_user_sgpr_kernarg_segment_ptr 1
  .amdhsa_system_sgpr_workgroup_id_x 1
{extra}.end_amdhsa_kernel
"""


def build(stamp=False):
    b1, v1 = k1(stamp)
    b2, v2 = k2(stamp)
    s = HDR.format(g1=2 * NCH, g2=2 * NBK, lds2=LDS2)
    s += kernel("egc_prep_kernel", b1) + kernel("egc_main_kernel", b2)
    s += '.section .rodata,"a"\n'
    s += desc("egc_prep_kernel", v1, "  .amdhsa_float_denorm_mode_32 0\n  .amdhsa_fp16_overflow 1\n")
    s += desc("egc_main_kernel", v2, "  .amdhsa_float_denorm_mode_32 3\n")
    return s


if __name__ == "__main__":
    out = sys.argv[1]
    open(out, "w").write(build(stamp="--stamp" in sys.argv))
```

```python
import sys, os
X = set(os.environ.get('X', '').split(','))

STF = 'sc1' if 'sc1' in X else 'nt' if 'nt' in X else ''
LNT = 'nt' if 'ldnt' in X else ''
XNT = 'nt' if 'xnt' in X else ''
N, E = 10000, 320000
NB = 80
NBK = 125
CH = 1280
NCH = 250
T_HALF = N * 256
WS_B = 0xF000000 if 'wsend' in X else 0
WS_T = WS_B
WS_REC = WS_B + 0x500000
WS_OFF = WS_B + 0xA00000
WS_STAMP = 0xB00000
NLOG2E = 0xBFB8AA3B
KA = dict(x=0, e=8, src=16, dst=24, u=32, v=40, g=48, out=56, dbg=64, ws=72)


class Asm:
    def __init__(self):
        self.l = []

    def __call__(self, s):
        for ln in s.strip("\n").split("\n"):
            ln = ln.strip()
            if not ln:
                continue
            self.l.append(ln if ln.endswith(":") else "    " + ln)

    def text(self):
        return "\n".join(self.l) + "\n"


def vr(a, n):
    return f"v[{a}:{a+n-1}]" if n > 1 else f"v{a}"


def sr(a, n):
    return f"s[{a}:{a+n-1}]" if n > 1 else f"s{a}"


def srd(a, d, base, off, size):
    if off is None:
        a(f"s_mov_b32 s{d}, s{base}\ns_mov_b32 s{d+1}, s{base+1}")
    else:
        a(f"s_add_u32 s{d}, s{base}, {off}\ns_addc_u32 s{d+1}, s{base+1}, 0")
    a(f"s_mov_b32 s{d+2}, {size}\ns_mov_b32 s{d+3}, 0x20000")


def scan64(a, v):
    for ctl in ("row_shr:1", "row_shr:2", "row_shr:4", "row_shr:8"):
        a(f"s_nop 1\nv_add_u32_dpp v{v}, v{v}, v{v} {ctl} row_mask:0xf bank_mask:0xf")
    a(f"s_nop 1\nv_add_u32_dpp v{v}, v{v}, v{v} row_bcast:15 row_mask:0xa bank_mask:0xf")
    a(f"s_nop 1\nv_add_u32_dpp v{v}, v{v}, v{v} row_bcast:31 row_mask:0xc bank_mask:0xf")


class Stamps:
    def __init__(self, on, first_sgpr, slot_base):
        self.on, self.s0, self.n, self.base = on, first_sgpr, 0, slot_base

    def mark(self, a):
        if self.on:
            a(f"s_memrealtime s[{self.s0+2*self.n}:{self.s0+2*self.n+1}]\ns_waitcnt lgkmcnt(0)")
            self.n += 1

    def cyc(self, a):
        if self.on:
            a(f"s_memtime s[{self.s0+2*self.n}:{self.s0+2*self.n+1}]\ns_waitcnt lgkmcnt(0)")
            self.n += 1

    def flush(self, a, ws, wave_sgpr, wg="s2"):
        if not self.on:
            return
        a(f"s_lshl_b32 s3, {wg}, 4\ns_add_u32 s3, s3, {wave_sgpr}\ns_lshl_b32 s3, s3, 6\ns_add_u32 s3, s3, {self.base}")
        a("s_mov_b64 exec, 1\nv_mov_b32 v1, s3")
        for i in range(self.n):
            a(f"v_mov_b32 v2, s{self.s0+2*i}\nglobal_store_dword v1, v2, s[{ws}:{ws+1}] offset:{4*i}")
        a("s_waitcnt vmcnt(0)")


def w_src_off(a, vdst0, vdst1, lane, tmp, half_sgpr_128):
    a(f"""
    v_lshrrev_b32 v{vdst0}, 3, v{lane}
    v_lshlrev_b32 v{vdst0}, 8, v{vdst0}
    v_and_b32 v{tmp}, 7, v{lane}
    v_lshlrev_b32 v{tmp}, 4, v{tmp}
    v_and_b32 v{vdst1}, 16, v{lane}
    v_lshlrev_b32 v{vdst1}, 1, v{vdst1}           ; -> bit 5
    v_xor_b32 v{tmp}, v{tmp}, v{vdst1}
    v_add3_u32 v{vdst0}, v{vdst0}, v{tmp}, {half_sgpr_128}
    v_xor_b32 v{vdst1}, 64, v{vdst0}
    """)


def w_frag_addr(a, vA, lane, tmp, base):
    a(f"""
    v_lshrrev_b32 v{vA}, 4, v{lane}               ; sigma
    v_lshlrev_b32 v{vA}, 10, v{vA}                ; 8 rows * 128 B
    v_bfe_u32 v{tmp}, v{lane}, 2, 2               ; rho
    v_lshl_add_u32 v{vA}, v{tmp}, 7, v{vA}
    v_and_b32 v{tmp}, 3, v{lane}
    v_lshl_add_u32 v{vA}, v{tmp}, 3, v{vA}
    v_bfe_u32 v{tmp}, v{lane}, 3, 2
    v_lshlrev_b32 v{tmp}, 5, v{tmp}
    v_add3_u32 v{vA}, v{vA}, v{tmp}, {base}
    v_xor_b32 v{vA+1}, 32, v{vA}
    v_xor_b32 v{vA+2}, 64, v{vA}
    v_xor_b32 v{vA+3}, 0x60, v{vA}
    """)


def gemm(a, nmat, vA, vX, vRing, nslot, vAcc):
    steps = [(ks, m, t) for ks in range(4) for m in range(nmat) for t in range(4)]
    n = len(steps)
    depth = nslot - 1

    def rd(s):
        ks, m, t = steps[s]
        r = vRing + 4 * (s % nslot)
        o = m * 16384 + ks * 4096
        a(f"ds_read_b64_tr_b16 {vr(r,2)}, v{vA+t} offset:{o}")
        a(f"ds_read_b64_tr_b16 {vr(r+2,2)}, v{vA+t} offset:{o+512}")

    for s in range(depth):
        rd(s)
    for s in range(n):
        ks, m, t = steps[s]
        issued = min(n, s + depth)
        a(f"s_waitcnt lgkmcnt({2*(issued-s-1)})")
        acc = vAcc + (m * 4 + t) * 4
        c = "0" if ks == 0 else vr(acc, 4)
        a(f"v_mfma_f32_16x16x32_bf16 {vr(acc,4)}, {vr(vX+4*ks,4)}, {vr(vRing+4*(s%nslot),4)}, {c}")
        if s + depth < n:
            rd(s + depth)


def k1(stamp):
    a = Asm()
    st = Stamps(stamp, 60, WS_STAMP)
    HIST, START, STAGE = 20480, 20992, 0
    a(f"""
    s_cmp_ge_u32 s2, {2*NCH}
    s_cbranch_scc1 K1_END
    """)
    st.mark(a)
    a(f"""
    s_load_dwordx8 s[4:11], s[0:1], 0
    s_load_dwordx4 s[12:15], s[0:1], {KA['v']}    ; v_w, g_w
    s_load_dwordx2 s[16:17], s[0:1], {KA['ws']}
    v_lshrrev_b32 v2, 6, v0
    v_and_b32 v1, 63, v0                          ; lane
    v_readfirstlane_b32 s18, v2                   ; wave
    s_cmp_ge_u32 s2, {NCH}
    s_cbranch_scc1 K1_GEMM
    """)
    a(f"""
    s_mul_i32 s19, s2, {CH*4}
    v_lshl_add_u32 v2, v0, 4, s19
    v_lshlrev_b32 v3, 1, v2
    v_lshlrev_b32 v28, 2, v0
    v_mov_b32 v29, 0
    s_waitcnt lgkmcnt(0)
    global_load_dwordx4 v[4:7], v2, s[10:11] {LNT}
    global_load_dwordx4 v[8:11], v2, s[8:9] {LNT}
    global_load_dwordx4 v[12:15], v3, s[6:7] {LNT}
    global_load_dwordx4 v[16:19], v3, s[6:7] offset:16 {LNT}
    ds_write_b32 v28, v29 offset:{HIST}
    s_mov_b32 s20, 52429
    s_mov_b32 s21, {-NB*256}
    v_mov_b32 v29, 1
    s_waitcnt lgkmcnt(0)
    s_barrier
    s_waitcnt vmcnt(3)
    """)
    st.mark(a)
    for i in range(4):
        a(f"""
        v_mul_u32_u24 v{30+i}, s20, v{4+i}
        v_lshrrev_b32 v{30+i}, 22, v{30+i}        ; bucket
        v_lshlrev_b32 v{4+i}, 8, v{4+i}
        v_mad_i32_i24 v{21+2*i}, v{30+i}, s21, v{4+i}   ; node*256
        v_lshlrev_b32 v{30+i}, 2, v{30+i}
        ds_add_rtn_u32 v{34+i}, v{30+i}, v29 offset:{HIST}
        """)
    a(f"""
    v_lshlrev_b32 v28, 3, v1
    s_waitcnt lgkmcnt(0)
    s_barrier
    ds_read_b64 v[38:39], v28 offset:{HIST}
    s_waitcnt vmcnt(2)
    """)
    for i in range(4):
        a(f"v_lshlrev_b32 v{20+2*i}, 8, v{8+i}            ; src*256")
    a("""
    s_waitcnt lgkmcnt(0)
    v_add_u32 v40, v38, v39
    v_mov_b32 v41, v40
    """)
    scan64(a, 41)
    a(f"""
    v_sub_u32 v42, v41, v40
    v_add_u32 v43, v42, v38
    ds_write_b64 v28, v[42:43] offset:{START}
    """)
    for i in range(4):
        a(f"ds_read_b32 v{44+i}, v{30+i} offset:{START}")
    a(f"""
    s_cmp_lg_u32 s18, 0
    s_cbranch_scc1 K1_NOOFF
    s_lshl_b32 s19, s2, 9
    s_add_u32 s19, s19, {WS_OFF}
    v_lshl_or_b32 v42, v38, 16, v42
    v_lshl_or_b32 v43, v39, 16, v43
    v_add_u32 v28, s19, v28
    global_store_dwordx2 v28, v[42:43], s[16:17] {STF}
    s_waitcnt vmcnt(1)
    s_branch K1_OFFD
    K1_NOOFF:
    s_waitcnt vmcnt(0)
    K1_OFFD:
    """)
    for i in range(4):
        a(f"""
        s_waitcnt lgkmcnt({3 if i else 3})
        v_add_lshl_u32 v{44+i}, v{44+i}, v{34+i}, 4
        ds_write2_b64 v{44+i}, {vr(20+2*i,2)}, {vr(12+2*i,2)} offset0:0 offset1:1
        """)
    a(f"""
    v_lshlrev_b32 v2, 4, v0
    s_mul_i32 s19, s2, {CH*16}
    s_add_u32 s19, s19, {WS_REC}
    s_add_u32 s16, s16, s19
    s_addc_u32 s17, s17, 0
    v_add_u32 v3, 5120, v2
    v_add_u32 v48, 10240, v2
    v_add_u32 v49, 15360, v2
    s_waitcnt lgkmcnt(0)
    s_barrier
    """)
    st.mark(a)
    for i in range(4):
        a(f"ds_read_b128 {vr(4+4*i,4)}, v2 offset:{5120*i}")
    for i, ad in enumerate((2, 3, 48, 49)):
        a(f"s_waitcnt lgkmcnt({3-i})")
        if "norec" not in X:
            a(f"global_store_dwordx4 v{ad}, {vr(4+4*i,4)}, s[16:17] {STF}")
    if stamp:
        a("s_sub_u32 s16, s16, s19\ns_subb_u32 s17, s17, 0\ns_waitcnt vmcnt(0)")
        st.mark(a)
        st.flush(a, 16, "s18")
    a("s_endpgm")
    st.n = 1 if stamp else 0
    vX, vRing, vAcc, vA = 8, 24, 56, 88
    a(f"""
    K1_GEMM:
    s_sub_u32 s19, s2, {NCH}
    s_and_b32 s20, s19, 1                         ; half
    s_lshr_b32 s19, s19, 1
    s_lshl_b32 s21, s20, 7                        ; half*128
    s_mul_i32 s19, s19, {NB}
    s_lshl_b32 s22, s18, 4
    s_add_u32 s19, s19, s22
    s_lshl_b32 s19, s19, 8                        ; *256 B
    v_and_b32 v2, 15, v1
    v_lshlrev_b32 v2, 8, v2
    v_and_b32 v3, 48, v1
    v_add3_u32 v2, v2, v3, s19                    ; x fragment offset
    """)
    w_src_off(a, 4, 5, 1, 6, "s21")
    a(f"""
    s_waitcnt lgkmcnt(0)
    s_cmp_eq_u32 s18, 4
    s_cbranch_scc1 K1_NODMA
    s_add_u32 s14, s14, {128*256}
    s_addc_u32 s15, s15, 0
    s_cmp_lt_u32 s18, 2
    s_cselect_b32 s24, s14, s12
    s_cselect_b32 s25, s15, s13
    s_mov_b32 s26, {128*256}
    s_mov_b32 s27, 0x20000
    s_and_b32 s22, s18, 1
    s_lshl_b32 s22, s22, 14
    s_lshl_b32 s23, s18, 13
    """)
    for i in range(8):
        a(f"""
        s_mov_b32 m0, s23
        s_add_u32 s23, s23, 1024
        buffer_load_dwordx4 v{4+(i&1)}, s[24:27], s22 offen lds
        s_add_u32 s22, s22, 2048
        """)
    a("K1_NODMA:")
    for ks in range(4):
        a(f"global_load_dwordx4 {vr(vX+4*ks,4)}, v2, s[4:5] offset:{64*ks} {XNT}")
    w_frag_addr(a, vA, 1, 6, "0")
    a(f"""
    s_mul_i32 s20, s20, {T_HALF}
    s_add_u32 s19, s19, s20
    s_add_u32 s19, s19, {WS_T}
    v_lshrrev_b32 v2, 4, v1
    v_lshlrev_b32 v2, 10, v2
    v_and_b32 v3, 15, v1
    v_lshlrev_b32 v3, 4, v3
    v_add3_u32 v2, v2, v3, s19
    s_mov_b32 s28, {hex(NLOG2E)}
    s_mov_b32 s29, 0xffff
    s_waitcnt vmcnt(0)
    s_barrier
    """)
    st.mark(a)
    gemm(a, 2, vA, vX, vRing, 8, vAcc)
    st.mark(a)
    a("s_nop 7")
    for i in range(4):
        P = vRing + 4 * i
        for t in range(4):
            b, h = vAcc + 4 * t + i, vAcc + 16 + 4 * t + i
            a(f"""
            v_mul_f32 v{b}, s28, v{b}
            v_add_f32 v{h}, 0, v{h}               ; -0 / denormal -> +0
            v_cvt_f16_f32 v{b}, v{b}
            v_add_u32 v{h}, 0x8000, v{h}
            v_sub_u32_e64 v{h}, v{h}, v{b} clamp
            v_bfi_b32 v{P+t}, s29, v{b}, v{h}
            """)
        if "noT" not in X:
            a(f"global_store_dwordx4 v2, {vr(P,4)}, s[16:17] offset:{256*i} {STF}")
    if stamp:
        a("s_waitcnt vmcnt(0)")
        st.mark(a)
        st.flush(a, 16, "s18")
    a("K1_END:")
    return a.text(), 96


LA, LAGG, LCNT, LFLAG, LQST, LCW, LLIST = 0, 20480, 61440, 61952, 62464, 62976, 63488
KMAX = 7
KSMALL = 3
QCAP = 832
LDS2 = LLIST + QCAP * 64 + 256
DUMMY = 0x400000


def k2(stamp):
    a = Asm()
    st = Stamps(stamp, 70, WS_STAMP + 0x80000)
    sX, sU, sG, sOUT, sWS = 4, 6, 10, 12, 16
    sW, sH, sB = 18, 19, 20
    SRD_T, SRD_R, SRD_W = 24, 28, 32
    sM = 36
    sN, sNG, sT0, sFIRST = 50, 51, 52, 53
    sMB = 54
    sMORE, sK = 58, 59
    sINC = 60
    s12 = 62
    sADV = 64
    vL = 1
    vLO = 2
    vSel, vSelA, vCw = 104, 120, 124
    vRO, vRem = 126, 127
    vRec, vRank = 72, 64
    vX, vRing, vAcc, vA = 8, 24, 48, 100
    vAdr = 8
    a(f"""
    s_cmp_ge_u32 s2, {256 if 'map' in X else 2*NBK}
    s_cbranch_scc1 K2_END
    """)
    if 'map' in X:
        a(f"""
        s_bfe_u32 s21, s2, 0x20001
        s_lshl_b32 s21, s21, 5
        s_lshr_b32 s{sB}, s2, 3
        s_add_u32 s{sB}, s{sB}, s21
        s_cmp_ge_u32 s{sB}, {NBK}
        s_cbranch_scc1 K2_END
        """)
    else:
        a(f"s_lshr_b32 s{sB}, s2, 1")
    st.mark(a)
    if stamp:
        a("s_memtime s[94:95]\ns_waitcnt lgkmcnt(0)")
    a(f"""
    s_load_dwordx2 s[{sWS}:{sWS+1}], s[0:1], {KA['ws']}
    s_load_dwordx2 s[{sX}:{sX+1}], s[0:1], {KA['x']}
    s_load_dwordx2 s[{sU}:{sU+1}], s[0:1], {KA['u']}
    s_load_dwordx2 s[{sG}:{sG+1}], s[0:1], {KA['g']}
    s_load_dwordx2 s[{sOUT}:{sOUT+1}], s[0:1], {KA['out']}
    v_lshrrev_b32 v4, 6, v0
    v_and_b32 v{vL}, 63, v0
    v_readfirstlane_b32 s{sW}, v4
    s_and_b32 s21, s2, 1
    s_lshl_b32 s{sH}, s21, 7
    v_lshrrev_b32 v4, 2, v0                       ; chunk
    s_lshl_b32 s22, s{sB}, 2
    v_lshl_add_u32 v5, v4, 9, s22
    s_mul_i32 s21, s21, {T_HALF}
    s_add_u32 s21, s21, {WS_T}
    s_waitcnt lgkmcnt(0)
    """)
    srd(a, SRD_T, sWS, WS_OFF, NCH * 512)
    a(f"buffer_load_dword v{vRem}, v5, s[{SRD_T}:{SRD_T+3}], 0 offen")
    w_src_off(a, 6, 7, vL, 5, f"s{sH}")
    a(f"""
    s_cmp_lt_u32 s{sW}, 8
    s_cselect_b32 s{SRD_W}, s{sG}, s{sU}
    s_cselect_b32 s{SRD_W+1}, s{sG+1}, s{sU+1}
    s_mov_b32 s{SRD_W+2}, {128*256}
    s_mov_b32 s{SRD_W+3}, 0x20000
    s_and_b32 s22, s{sW}, 7
    s_lshl_b32 s22, s22, 12                       ; 16 rows * 256
    s_lshl_b32 s23, s{sW}, 11
    s_add_u32 s23, s23, {LLIST}
    s_mov_b32 m0, s23
    s_add_u32 s23, s23, 1024
    buffer_load_dwordx4 v6, s[{SRD_W}:{SRD_W+3}], s22 offen lds
    s_add_u32 s22, s22, 2048
    s_mov_b32 m0, s23
    v_mul_u32_u24 v{vRO}, {CH*16}, v4
    buffer_load_dwordx4 v7, s[{SRD_W}:{SRD_W+3}], s22 offen lds
    s_cmp_lt_u32 s{sW}, 10
    s_cbranch_scc0 K2_NOX
    ; x fragments of node tile (wave % 5)
    s_cmp_ge_u32 s{sW}, 5
    s_cselect_b32 s22, 5, 0
    s_cselect_b32 s{sK}, {LLIST+16384}, {LLIST & 0}
    s_sub_u32 s22, s{sW}, s22
    s_lshl_b32 s{sT0}, s22, 12
    s_mul_i32 s23, s{sB}, {NB*256}
    s_add_u32 s23, s23, s{sT0}
    v_and_b32 v4, 15, v{vL}
    v_lshlrev_b32 v4, 8, v4
    v_and_b32 v7, 48, v{vL}
    v_add3_u32 v4, v4, v7, s23
    s_max_u32 s{sK}, s{sK}, {LLIST}
    """)
    for ks in range(4):
        a(f"global_load_dwordx4 {vr(vX+4*ks,4)}, v4, s[{sX}:{sX+1}] offset:{64*ks}")
    w_frag_addr(a, vA, vL, 5, f"s{sK}")
    a(f"""
    s_branch K2_XD
    K2_NOX:
    v_lshrrev_b32 v4, 3, v{vL}
    v_lshlrev_b32 v4, 8, v4
    v_and_b32 v5, 7, v{vL}
    v_lshlrev_b32 v5, 4, v5
    s_add_u32 s22, s{sH}, {256*256}
    v_add3_u32 v4, v4, v5, s22
    s_mov_b32 m0, {LCW}
    s_mov_b32 exec_hi, 0
    global_load_lds_dwordx4 v4, s[{sG}:{sG+1}]
    s_mov_b32 exec_hi, -1
    v_lshlrev_b32 v5, 2, v0
    v_mov_b32 v6, 0
    ds_write_b32 v5, v6 offset:{LCNT-2560}
    K2_XD:
    """)
    srd(a, SRD_T, sWS, "s21", T_HALF)
    srd(a, SRD_R, sWS, WS_REC, E * 16)
    a(f"""
    s_mov_b32 s{sMB}, 1
    s_mov_b32 s{sMB+1}, 16
    v_mov_b32 v5, 0x3c00
    """)
    for g in range(4):
        for t in range(4):
            a(f"s_lshl_b64 s[{sMB+2}:{sMB+3}], s[{sMB}:{sMB+1}], {8*t+g}\nv_cndmask_b32 v{vSel+4*g+t}, 0, v5, s[{sMB+2}:{sMB+3}]")
    a(f"""
    s_mov_b32 s{sMB}, 15
    s_mov_b32 s{sMB+1}, 0xf0
    v_mov_b32 v5, 0x3f803f80
    """)
    for t in range(4):
        a(f"s_lshl_b64 s[{sMB+2}:{sMB+3}], s[{sMB}:{sMB+1}], {8*t}\nv_cndmask_b32 v{vSelA+t}, 0, v5, s[{sMB+2}:{sMB+3}]")
    a(f"""
    v_and_b32 v{vLO+1}, 15, v{vL}
    v_lshlrev_b32 v{vLO}, 4, v{vLO+1}
    v_lshlrev_b32 v{vLO+1}, 3, v{vLO+1}
    v_add_u32 v{vLO+1}, {LAGG}, v{vLO+1}
    s_mov_b32 s{s12}, 1.0
    s_mov_b32 s{s12+1}, 2.0
    s_mov_b32 s{sADV}, {4*KMAX}
    s_mov_b32 s{sINC}, 128
    s_mov_b32 s{sINC+1}, 128
    s_mov_b32 s{sFIRST}, 1
    v_and_b32 v4, 3, v0
    s_cmp_lt_u32 s{sW}, 10
    s_cbranch_scc0 K2_W3
    s_waitcnt vmcnt(6)
    s_branch K2_WD
    K2_W3:
    s_waitcnt vmcnt(3)
    K2_WD:
    """)
    st.mark(a)
    a(f"""
    v_and_b32 v5, 0xffff, v{vRem}
    v_lshrrev_b32 v{vRem}, 16, v{vRem}
    v_add_u32 v5, v5, v4
    v_sub_u32 v{vRem}, v{vRem}, v4
    v_lshl_add_u32 v{vRO}, v5, 4, v{vRO}
    K2_BATCH:
    """)
    for k in range(KMAX):
        a(f"v_cmp_lt_i32 s[{sM+2*k}:{sM+2*k+1}], {4*k}, v{vRem}")
    a(f"s_cmp_eq_u32 s{sADV}, {4*KMAX}\ns_cselect_b64 s[{sM+2*KSMALL}:{sM+2*KSMALL+1}], s[{sM+2*KSMALL}:{sM+2*KSMALL+1}], 0")
    for k in range(KMAX):
        a(f"s_mov_b64 exec, s[{sM+2*k}:{sM+2*k+1}]\ns_cbranch_execz K2_RL{k}")
        a(f"buffer_load_dwordx4 {vr(vRec+4*k,4)}, v{vRO}, s[{SRD_R}:{SRD_R+3}], 0 offen offset:{64*k}")
    a(f"s_waitcnt vmcnt({KMAX})\ns_branch K2_RLD")
    for k in range(KMAX - 1, -1, -1):
        a(f"K2_RL{k}:\ns_waitcnt vmcnt({k})")
        if k:
            a("s_branch K2_RLD")
    a(f"""
    K2_RLD:
    s_mov_b64 exec, -1
    s_lshr_b32 s22, s2, 3
    s_mul_i32 s22, s22, {646*128}
    v_mul_u32_u24 v4, 84, v0
    s_waitcnt lgkmcnt(0)
    s_barrier
    buffer_load_dword v71, v4, s[{SRD_T}:{SRD_T+3}], s22 offen
    """)
    st.mark(a)
    a(f"""
    v_bfe_u32 v4, v{vL}, 2, 2
    v_lshlrev_b32 v4, 7, v4
    v_lshrrev_b32 v5, 4, v{vL}
    v_lshl_add_u32 v4, v5, 5, v4
    v_and_b32 v5, 3, v{vL}
    v_lshl_add_u32 v4, v5, 3, v4
    ds_read_b64_tr_b16 v[6:7], v4 offset:{LCW}
    s_mov_b32 s{sMB}, {hex(NLOG2E)}
    s_mov_b32 s{sMB+1}, 0xffff0000
    s_waitcnt lgkmcnt(0)
    v_lshlrev_b32 v4, 16, v6
    v_and_b32 v6, s{sMB+1}, v6
    v_lshlrev_b32 v5, 16, v7
    v_and_b32 v7, s{sMB+1}, v7
    v_mul_f32 v4, s{sMB}, v4
    v_mul_f32 v6, s{sMB}, v6
    v_mul_f32 v5, s{sMB}, v5
    v_mul_f32 v7, s{sMB}, v7
    v_cvt_pk_bf16_f32 v{vCw}, v4, v6
    v_cvt_pk_bf16_f32 v{vCw+1}, v5, v7
    s_cmp_lt_u32 s{sW}, 10
    s_cselect_b32 s22, s{sFIRST}, 0
    s_cmp_eq_u32 s22, 0
    s_cbranch_scc1 K2_GD
    """)
    gemm(a, 1, vA, vX, vRing, 6, vAcc)
    a(f"""
    v_lshrrev_b32 v4, 4, v{vL}
    v_lshlrev_b32 v4, 10, v4
    s_cmp_lt_u32 s{sW}, 5
    s_cbranch_scc0 K2_GU
    v_add3_u32 v4, v4, v{vLO}, s{sT0}
    s_nop 3
    """)
    for i in range(4):
        P = vRing + 4 * i
        for t in range(4):
            c = vAcc + 4 * t + i
            a(f"""
            v_mul_f32 v{c}, s{sMB}, v{c}
            v_and_b32 v{P+t}, s{sMB+1}, v{c}
            v_sub_f32 v{c}, v{c}, v{P+t}
            v_cvt_pk_bf16_f32 v{P+t}, v{c}, v{P+t}
            """)
        a(f"ds_write_b128 v4, {vr(P,4)} offset:{LA+256*i}")
    a(f"""
    s_branch K2_GD
    K2_GU:
    v_add_u32 v4, s{sT0}, v4
    v_lshl_add_u32 v4, v4, 1, v{vLO+1}
    s_nop 2
    """)
    for i in range(4):
        for t in range(4):
            a(f"v_cvt_f64_f32 {vr(vX+8*i+2*t,2)}, v{vAcc+4*t+i}")
        for t in (0, 2):
            a(f"ds_write2_b64 v4, {vr(vX+8*i+2*t,2)}, {vr(vX+8*i+2*t+2,2)} offset0:{64*i+16*t} offset1:{64*i+16*t+16}")
    a(f"""
    K2_GD:
    s_mov_b32 s{sFIRST}, 0
    v_mov_b32 v4, 1
    v_cmp_lt_i32 vcc, s{sADV}, v{vRem}
    v_mov_b32 v5, {LFLAG}
    s_and_saveexec_b64 s[{sMB}:{sMB+1}], vcc
    s_cbranch_execz K2_NOMORE
    ds_write_b32 v5, v4
    K2_NOMORE:
    s_waitcnt vmcnt(1)
    """)
    st.mark(a)
    for k in range(KMAX):
        a(f"""
        s_mov_b64 exec, s[{sM+2*k}:{sM+2*k+1}]
        s_cbranch_execz K2_HD
        v_lshrrev_b32 v{vAdr+k}, 6, v{vRec+4*k+1}
        ds_add_rtn_u32 v{vRank+k}, v{vAdr+k}, v4 offset:{LCNT}
        """)
    a(f"""
    K2_HD:
    s_mov_b64 exec, -1
    v_lshlrev_b32 v7, 3, v{vL}
    s_waitcnt lgkmcnt(0)
    s_barrier
    ds_read_b64 v[16:17], v7 offset:{LCNT}
    ds_read_b32 v18, v5
    v_and_b32 v24, -4, v0
    v_and_b32 v25, 3, v0
    ds_read_b32 v26, v24 offset:{LCNT}
    s_waitcnt lgkmcnt(2)
    v_add_u32 v16, 3, v16
    v_add_u32 v17, 3, v17
    v_lshrrev_b32 v16, 2, v16
    v_lshrrev_b32 v17, 2, v17
    v_add_u32 v19, v16, v17
    v_mov_b32 v20, v19
    """)
    scan64(a, 20)
    a(f"""
    v_sub_u32 v22, v20, v19
    v_add_u32 v23, v22, v16
    v_readlane_b32 s{sNG}, v20, 63
    s_mov_b32 s22, {LLIST}
    v_lshl_add_u32 v22, v22, 6, s22
    v_lshl_add_u32 v23, v23, 6, s22
    s_cmp_gt_u32 s{sNG}, {QCAP-3}
    s_cbranch_scc1 K2_OVER
    ds_write_b64 v7, v[22:23] offset:{LQST}
    """)
    for k in range(KMAX):
        a(f"""
        s_mov_b64 exec, s[{sM+2*k}:{sM+2*k+1}]
        s_cbranch_execz K2_SD
        ds_read_b32 v{vAdr+k}, v{vAdr+k} offset:{LQST}
        """)
    a(f"""
    K2_SD:
    s_mov_b64 exec, -1
    s_cmp_lt_u32 s{sW}, 6
    s_cbranch_scc0 K2_NOPAD
    ds_read_b32 v27, v24 offset:{LQST}
    v_mov_b32 v28, {DUMMY}
    v_mov_b32 v29, 0
    v_mov_b32 v30, 0
    v_mov_b32 v31, 0
    v_subrev_u32 v24, {4*NB}, v24                 ; (node-80)*4
    v_cmp_gt_u32 s[{sMB}:{sMB+1}], 12, v24
    s_waitcnt lgkmcnt(0)
    v_sub_u32 v32, 0, v26
    v_and_b32 v32, 3, v32
    v_cmp_lt_u32 vcc, v25, v32
    v_cndmask_b32 v26, v26, v24, s[{sMB}:{sMB+1}]
    v_add_u32 v26, v26, v25
    v_lshl_add_u32 v27, v26, 4, v27
    s_or_b64 exec, vcc, s[{sMB}:{sMB+1}]
    ds_write_b128 v27, v[28:31]
    s_mov_b64 exec, -1
    K2_NOPAD:
    s_waitcnt lgkmcnt(0)
    v_readfirstlane_b32 s{sMORE}, v18
    """)
    for k in range(KMAX):
        a(f"""
        s_mov_b64 exec, s[{sM+2*k}:{sM+2*k+1}]
        s_cbranch_execz K2_CD
        v_lshl_add_u32 v{vAdr+k}, v{vRank+k}, 4, v{vAdr+k}
        ds_write_b128 v{vAdr+k}, {vr(vRec+4*k,4)}
        """)
    vW = (8, 24)
    vZ, vT, vAc, vE, vAp, vS, vN = 40, 56, 72, 76, 80, 84, 88
    vNA = (90, 92)
    vQ = 94
    vD = 96
    a(f"""
    K2_CD:
    s_mov_b64 exec, -1
    s_add_u32 s{sNG}, s{sNG}, 3
    s_lshr_b32 s{sNG}, s{sNG}, 2                  ; groups
    s_lshr_b32 s22, s{sNG}, 4
    s_and_b32 s23, s{sNG}, 15
    s_mul_i32 s{sMB}, s22, s{sW}
    s_min_u32 s{sMB+1}, s{sW}, s23
    s_add_u32 s{sMB}, s{sMB}, s{sMB+1}
    s_cmp_lt_u32 s{sW}, s23
    s_addc_u32 s{sN}, s22, 0                      ; group count
    s_lshl_b32 s{sMB}, s{sMB}, 6
    s_add_u32 s{sMB}, s{sMB}, {LLIST}
    s_lshl_b32 s{sNG}, s{sNG}, 6
    v_lshrrev_b32 v4, 4, v{vL}
    v_bfe_u32 v5, v{vL}, 2, 2
    v_mov_b32 v6, s{sMB}
    v_and_b32 v7, 3, v{vL}
    s_waitcnt lgkmcnt(0)
    v_mad_u32_u24 v{vQ}, v4, s{sNG}, v6
    v_mad_u32_u24 v{vQ+1}, v5, s{sNG}, v6
    v_lshl_add_u32 v{vQ+1}, v7, 4, v{vQ+1}
    v_mov_b32 v{vNA[1]}, v{vLO}
    s_barrier
    """)
    st.mark(a)
    if stamp:
        a("s_memtime s[90:91]\ns_waitcnt lgkmcnt(0)")

    def meta(off, S, Nn):
        d = off // 4
        a(f"""
        ds_read2_b32 {vr(S,2)}, v{vQ} offset0:{d} offset1:{d+4}
        ds_read2_b32 {vr(S+2,2)}, v{vQ} offset0:{d+8} offset1:{d+12}
        ds_read_b32 v{Nn}, v{vQ} offset:{off+4}
        """)

    def saddr(S):
        a(f"""
        v_pk_add_f32 {vr(S,2)}, {vr(S,2)}, {vr(vLO,2)} op_sel_hi:[1,0]
        v_pk_add_f32 {vr(S+2,2)}, {vr(S+2,2)}, {vr(vLO,2)} op_sel_hi:[1,0]
        """)

    def loads(p, S, loop=False):
        if loop and "noload" in X:
            return
        for g in range(4):
            a(f"buffer_load_dwordx4 {vr(vW[p]+4*g,4)}, v{S+g}, s[{SRD_T}:{SRD_T+3}], 0 offen")

    def naddr(p, Nn):
        a(f"v_pk_fma_f32 {vr(vNA[p],2)}, {vr(Nn,2)}, s[{s12}:{s12+1}], {vr(vLO,2)} op_sel_hi:[0,1,1]")

    a(f"""
    s_cmp_eq_u32 s{sN}, 0
    s_cbranch_scc1 K2_LD
    """)
    meta(0, vS, vN)
    meta(64, vZ, vZ + 4)
    a(f"ds_read_b64 {vr(vE,2)}, v{vQ+1} offset:8\ns_waitcnt lgkmcnt(4)")
    saddr(vS)
    naddr(0, vN)
    loads(0, vS)
    a(f"""
    ds_read_b128 {vr(vAp,4)}, v{vNA[0]} offset:{LA}
    s_cmp_eq_u32 s{sN}, 1
    s_waitcnt lgkmcnt(0)
    s_cbranch_scc1 K2_L0
    """)
    saddr(vZ)
    naddr(1, vZ + 4)
    loads(1, vZ)
    for p in range(2):
        W = vW[p]
        a(f"""
        K2_L{p}:
        s_cmp_eq_u32 s{sN}, 1
        s_cbranch_scc1 K2_L{p}a
        s_waitcnt vmcnt(4)
        s_branch K2_L{p}b
        K2_L{p}a:
        s_waitcnt vmcnt(0)
        K2_L{p}b:
        v_mfma_f32_16x16x4_4b_bf16 {vr(vZ,16)}, {vr(vE,2)}, {vr(vCw,2)}, 0
        v_mfma_f32_32x32x16_bf16 {vr(vZ,16)}, {vr(vSelA,4)}, {vr(vAp,4)}, {vr(vZ,16)}
        """)
        for g in range(0 if "noext" in X or "mix" in X else 4):
            a(f"v_mfma_f32_32x32x16_f16 {vr(vZ,16)}, {vr(vSel+4*g,4)}, {vr(W+4*g,4)}, {vr(vZ,16)}")
        meta(128 + 64 * p, vS, vN)
        a(f"""
        ds_read_b64 {vr(vE,2)}, v{vQ+1} offset:{64+64*p+8}
        ds_read_b128 {vr(vAp,4)}, v{vNA[p^1]} offset:{LA}
        s_nop 6
        """)
        if "mix" in X:
            for g in range(4):
                for t in range(4):
                    a(f"v_fma_mix_f32 v{vT+4*g+t}, v{W+4*g+t}, 1.0, v{vZ+4*t+g} op_sel_hi:[1,0,0]")
            for i in range(16):
                a(f"v_exp_f32 v{vT+i}, v{vT+i}")
        for g in range(0 if "notrans" in X or "mix" in X else 4):
            for t in range(4):
                a(f"v_exp_f32 v{vT+4*g+t}, v{vZ+4*t+g}")
        for i in range(8):
            a(f"v_pk_add_f32 {vr(vT+2*i,2)}, {vr(vT+2*i,2)}, 1.0 op_sel_hi:[1,0]")
        for i in range(0 if "notrans" in X else 16):
            a(f"v_rcp_f32 v{vT+i}, v{vT+i}")
        a("s_waitcnt lgkmcnt(0)")
        saddr(vS)
        if p == 1:
            a(f"v_pk_add_f32 {vr(vQ,2)}, {vr(vQ,2)}, s[{sINC}:{sINC+1}]")
        for g in range(4):
            for h in range(2):
                o = 4 * g + 2 * h
                if g == 0:
                    a(f"v_pk_mul_f32 {vr(vAc+2*h,2)}, {vr(vT+o,2)}, {vr(W+o,2)}")
                else:
                    a(f"v_pk_fma_f32 {vr(vAc+2*h,2)}, {vr(vT+o,2)}, {vr(W+o,2)}, {vr(vAc+2*h,2)}")
        for t in range(4):
            a(f"v_cvt_f64_f32 {vr(vD+2*t,2)}, v{vAc+t}")
        for t in range(0 if "noadd" in X else 4):
            a(f"ds_add_f64 v{vNA[p]+1}, {vr(vD+2*t,2)} offset:{128*t}")
        a(f"""
        s_cmp_le_u32 s{sN}, 2
        s_cbranch_scc1 K2_L{p}c
        """)
        loads(p, vS, True)
        naddr(p, vN)
        a(f"""
        K2_L{p}c:
        s_sub_u32 s{sN}, s{sN}, 1
        s_cmp_eq_u32 s{sN}, 0
        """)
        a("s_cbranch_scc1 K2_LD" if p == 0 else "s_cbranch_scc0 K2_L0")
    a(f"""
    K2_LD:
    s_waitcnt vmcnt(0) lgkmcnt(0)
    """)
    st.mark(a)
    if stamp:
        a("s_memtime s[92:93]\ns_waitcnt lgkmcnt(0)\ns_sub_u32 s92, s92, s90")
    a(f"""
    s_barrier
    s_cmp_eq_u32 s{sMORE}, 0
    s_cbranch_scc1 K2_FIN
    s_lshl_b32 s22, s{sADV}, 4
    v_subrev_u32 v{vRem}, s{sADV}, v{vRem}
    v_add_u32 v{vRO}, s22, v{vRO}
    K2_AGAIN:
    s_cmp_lt_u32 s{sW}, 10
    s_cbranch_scc1 K2_BATCH
    v_lshlrev_b32 v5, 2, v0
    v_mov_b32 v6, 0
    ds_write_b32 v5, v6 offset:{LCNT-2560}
    s_branch K2_BATCH
    K2_OVER:
    ; batch does not fit the list: redo it with fewer records per segment
    s_mov_b32 s{sADV}, {4*KSMALL}
    s_waitcnt vmcnt(0) lgkmcnt(0)
    s_barrier
    s_branch K2_AGAIN
    K2_FIN:
    s_cmp_lt_u32 s{sW}, 10
    s_cbranch_scc0 K2_STORED
    v_lshlrev_b32 v4, 6, v0
    ds_read_b128 v[24:27], v4 offset:{LAGG}
    ds_read_b128 v[28:31], v4 offset:{LAGG+16}
    ds_read_b128 v[32:35], v4 offset:{LAGG+32}
    ds_read_b128 v[36:39], v4 offset:{LAGG+48}
    s_mov_b32 s22, {hex(NLOG2E)}
    s_mul_i32 s23, s{sB}, {NB*256}
    s_add_u32 s23, s23, s{sH}
    v_lshrrev_b32 v5, 3, v0
    v_lshlrev_b32 v5, 8, v5
    v_and_b32 v6, 7, v0
    v_lshlrev_b32 v6, 4, v6
    v_add3_u32 v5, v5, v6, s23
    s_waitcnt lgkmcnt(0)
    """)
    for i in range(8):
        a(f"v_cvt_f32_f64 v{8+i}, {vr(24+2*i,2)}")
    for i in range(8):
        a(f"v_mul_f32 v{16+i}, s22, v{8+i}")
    for i in range(8):
        a(f"v_exp_f32 v{16+i}, v{16+i}")
    for i in range(4):
        a(f"v_pk_add_f32 {vr(16+2*i,2)}, {vr(16+2*i,2)}, 1.0 op_sel_hi:[1,0]")
    for i in range(8):
        a(f"v_rcp_f32 v{16+i}, v{16+i}")
    for i in range(4):
        a(f"v_pk_mul_f32 {vr(16+2*i,2)}, {vr(16+2*i,2)}, {vr(8+2*i,2)}")
    for i in range(4):
        a(f"v_cvt_pk_bf16_f32 v{8+i}, v{16+2*i}, v{17+2*i}")
    a(f"""
    global_store_dwordx4 v5, v[8:11], s[{sOUT}:{sOUT+1}]
    K2_STORED:
    """)
    if stamp:
        a("s_waitcnt vmcnt(0)")
        st.mark(a)
        a(f"s_mov_b32 s{st.s0+2*st.n}, s92\ns_sub_u32 s{st.s0+2*st.n+2}, s90, s94")
        st.n += 2
        st.flush(a, sWS, f"s{sW}")
    a("K2_END:")
    return a.text(), 128


HDR = """; Kernarg layout (80 bytes, pointers): x, e_attr, src, dst, u_w, v_w, g_w, out, debug, ws
; @launch kernel=egc_prep_kernel grid=({g1},1,1) block=(320,1,1) lds=32768
; @launch kernel=egc_main_kernel grid=({g2},1,1) block=(1024,1,1) lds={lds2}
.amdgcn_target "amdgcn-amd-amdhsa--gfx950"
.text
"""


def kernel(name, body):
    return f""".globl {name}
.p2align 8
.type {name},@function
{name}:
{body}    s_endpgm
"""


def desc(name, vgpr, extra=""):
    return f""".p2align 6
.amdhsa_kernel {name}
  .amdhsa_next_free_vgpr {vgpr}
  .amdhsa_next_free_sgpr 96
  .amdhsa_accum_offset {vgpr}
  .amdhsa_group_segment_fixed_size 0
  .amdhsa_kernarg_size 80
  .amdhsa_user_sgpr_count 2
  .amdhsa_user_sgpr_kernarg_segment_ptr 1
  .amdhsa_system_sgpr_workgroup_id_x 1
{extra}.end_amdhsa_kernel
"""


def build(stamp=False):
    b1, v1 = k1(stamp)
    b2, v2 = k2(stamp)
    s = HDR.format(g1=2 * NCH, g2=256 if 'map' in X else 2 * NBK, lds2=LDS2)
    s += kernel("egc_prep_kernel", b1) + kernel("egc_main_kernel", b2)
    s += '.section .rodata,"a"\n'
    s += desc("egc_prep_kernel", v1, "  .amdhsa_float_denorm_mode_32 0\n  .amdhsa_fp16_overflow 1\n")
    s += desc("egc_main_kernel", v2, "  .amdhsa_float_denorm_mode_32 3\n")
    return s


if __name__ == "__main__":
    out = sys.argv[1]
    open(out, "w").write(build(stamp="--stamp" in sys.argv))
```

```python
import sys, os
X = set(os.environ.get('X', '').split('+')) | {'map'}

STF = 'sc1' if 'sc1' in X else 'nt' if 'nt' in X else ''
LNT = 'nt' if 'ldnt' in X else ''
XNT = 'nt' if 'xnt' in X else ''
N, E = 10000, 320000
NB = 80
NBK = 125
CH = 1280
NCH = 250
T_HALF = N * 256
WS_B = 0xF000000 if 'wsend' in X else 0
WS_T = WS_B
WS_REC = WS_B + 0x500000
WS_OFF = WS_B + 0xA00000
WS_STAMP = 0xB00000
NLOG2E = 0xBFB8AA3B
KA = dict(x=0, e=8, src=16, dst=24, u=32, v=40, g=48, out=56, dbg=64, ws=72)


class Asm:
    def __init__(self):
        self.l = []

    def __call__(self, s):
        for ln in s.strip("\n").split("\n"):
            ln = ln.strip()
            if not ln:
                continue
            self.l.append(ln if ln.endswith(":") else "    " + ln)

    def text(self):
        return "\n".join(self.l) + "\n"


def vr(a, n):
    return f"v[{a}:{a+n-1}]" if n > 1 else f"v{a}"


def sr(a, n):
    return f"s[{a}:{a+n-1}]" if n > 1 else f"s{a}"


def srd(a, d, base, off, size):
    if off is None:
        a(f"s_mov_b32 s{d}, s{base}\ns_mov_b32 s{d+1}, s{base+1}")
    else:
        a(f"s_add_u32 s{d}, s{base}, {off}\ns_addc_u32 s{d+1}, s{base+1}, 0")
    a(f"s_mov_b32 s{d+2}, {size}\ns_mov_b32 s{d+3}, 0x20000")


def scan64(a, v):
    for ctl in ("row_shr:1", "row_shr:2", "row_shr:4", "row_shr:8"):
        a(f"s_nop 1\nv_add_u32_dpp v{v}, v{v}, v{v} {ctl} row_mask:0xf bank_mask:0xf")
    a(f"s_nop 1\nv_add_u32_dpp v{v}, v{v}, v{v} row_bcast:15 row_mask:0xa bank_mask:0xf")
    a(f"s_nop 1\nv_add_u32_dpp v{v}, v{v}, v{v} row_bcast:31 row_mask:0xc bank_mask:0xf")


class Stamps:
    def __init__(self, on, first_sgpr, slot_base):
        self.on, self.s0, self.n, self.base = on, first_sgpr, 0, slot_base

    def mark(self, a):
        if self.on:
            a(f"s_memrealtime s[{self.s0+2*self.n}:{self.s0+2*self.n+1}]\ns_waitcnt lgkmcnt(0)")
            self.n += 1

    def cyc(self, a):
        if self.on:
            a(f"s_memtime s[{self.s0+2*self.n}:{self.s0+2*self.n+1}]\ns_waitcnt lgkmcnt(0)")
            self.n += 1

    def flush(self, a, ws, wave_sgpr, wg="s2"):
        if not self.on:
            return
        a(f"s_lshl_b32 s3, {wg}, 4\ns_add_u32 s3, s3, {wave_sgpr}\ns_lshl_b32 s3, s3, 6\ns_add_u32 s3, s3, {self.base}")
        a("s_mov_b64 exec, 1\nv_mov_b32 v1, s3")
        for i in range(self.n):
            a(f"v_mov_b32 v2, s{self.s0+2*i}\nglobal_store_dword v1, v2, s[{ws}:{ws+1}] offset:{4*i}")
        a("s_waitcnt vmcnt(0)")


def w_src_off(a, vdst0, vdst1, lane, tmp, half_sgpr_128):
    a(f"""
    v_lshrrev_b32 v{vdst0}, 3, v{lane}
    v_lshlrev_b32 v{vdst0}, 8, v{vdst0}
    v_and_b32 v{tmp}, 7, v{lane}
    v_lshlrev_b32 v{tmp}, 4, v{tmp}
    v_and_b32 v{vdst1}, 16, v{lane}
    v_lshlrev_b32 v{vdst1}, 1, v{vdst1}           ; -> bit 5
    v_xor_b32 v{tmp}, v{tmp}, v{vdst1}
    v_add3_u32 v{vdst0}, v{vdst0}, v{tmp}, {half_sgpr_128}
    v_xor_b32 v{vdst1}, 64, v{vdst0}
    """)


def w_frag_addr(a, vA, lane, tmp, base):
    a(f"""
    v_lshrrev_b32 v{vA}, 4, v{lane}               ; sigma
    v_lshlrev_b32 v{vA}, 10, v{vA}                ; 8 rows * 128 B
    v_bfe_u32 v{tmp}, v{lane}, 2, 2               ; rho
    v_lshl_add_u32 v{vA}, v{tmp}, 7, v{vA}
    v_and_b32 v{tmp}, 3, v{lane}
    v_lshl_add_u32 v{vA}, v{tmp}, 3, v{vA}
    v_bfe_u32 v{tmp}, v{lane}, 3, 2
    v_lshlrev_b32 v{tmp}, 5, v{tmp}
    v_add3_u32 v{vA}, v{vA}, v{tmp}, {base}
    v_xor_b32 v{vA+1}, 32, v{vA}
    v_xor_b32 v{vA+2}, 64, v{vA}
    v_xor_b32 v{vA+3}, 0x60, v{vA}
    """)


def gemm(a, nmat, vA, vX, vRing, nslot, vAcc):
    steps = [(ks, m, t) for ks in range(4) for m in range(nmat) for t in range(4)]
    n = len(steps)
    depth = nslot - 1

    def rd(s):
        ks, m, t = steps[s]
        r = vRing + 4 * (s % nslot)
        o = m * 16384 + ks * 4096
        a(f"ds_read_b64_tr_b16 {vr(r,2)}, v{vA+t} offset:{o}")
        a(f"ds_read_b64_tr_b16 {vr(r+2,2)}, v{vA+t} offset:{o+512}")

    for s in range(depth):
        rd(s)
    for s in range(n):
        ks, m, t = steps[s]
        issued = min(n, s + depth)
        a(f"s_waitcnt lgkmcnt({2*(issued-s-1)})")
        acc = vAcc + (m * 4 + t) * 4
        c = "0" if ks == 0 else vr(acc, 4)
        a(f"v_mfma_f32_16x16x32_bf16 {vr(acc,4)}, {vr(vX+4*ks,4)}, {vr(vRing+4*(s%nslot),4)}, {c}")
        if s + depth < n:
            rd(s + depth)


def k1(stamp):
    a = Asm()
    st = Stamps(stamp, 60, WS_STAMP)
    HIST, START, STAGE = 20480, 20992, 0
    a(f"""
    s_cmp_ge_u32 s2, {2*NCH}
    s_cbranch_scc1 K1_END
    """)
    st.mark(a)
    a(f"""
    s_load_dwordx8 s[4:11], s[0:1], 0
    s_load_dwordx4 s[12:15], s[0:1], {KA['v']}    ; v_w, g_w
    s_load_dwordx2 s[16:17], s[0:1], {KA['ws']}
    v_lshrrev_b32 v2, 6, v0
    v_and_b32 v1, 63, v0                          ; lane
    v_readfirstlane_b32 s18, v2                   ; wave
    s_cmp_ge_u32 s2, {NCH}
    s_cbranch_scc1 K1_GEMM
    """)
    a(f"""
    s_mul_i32 s19, s2, {CH*4}
    v_lshl_add_u32 v2, v0, 4, s19
    v_lshlrev_b32 v3, 1, v2
    v_lshlrev_b32 v28, 2, v0
    v_mov_b32 v29, 0
    s_waitcnt lgkmcnt(0)
    global_load_dwordx4 v[4:7], v2, s[10:11] {LNT}
    global_load_dwordx4 v[8:11], v2, s[8:9] {LNT}
    global_load_dwordx4 v[12:15], v3, s[6:7] {LNT}
    global_load_dwordx4 v[16:19], v3, s[6:7] offset:16 {LNT}
    ds_write_b32 v28, v29 offset:{HIST}
    s_mov_b32 s20, 52429
    s_mov_b32 s21, {-NB*256}
    v_mov_b32 v29, 1
    s_waitcnt lgkmcnt(0)
    s_barrier
    s_waitcnt vmcnt(3)
    """)
    st.mark(a)
    for i in range(4):
        a(f"""
        v_mul_u32_u24 v{30+i}, s20, v{4+i}
        v_lshrrev_b32 v{30+i}, 22, v{30+i}        ; bucket
        v_lshlrev_b32 v{4+i}, 8, v{4+i}
        v_mad_i32_i24 v{21+2*i}, v{30+i}, s21, v{4+i}   ; node*256
        v_lshlrev_b32 v{30+i}, 2, v{30+i}
        ds_add_rtn_u32 v{34+i}, v{30+i}, v29 offset:{HIST}
        """)
    a(f"""
    v_lshlrev_b32 v28, 3, v1
    s_waitcnt lgkmcnt(0)
    s_barrier
    ds_read_b64 v[38:39], v28 offset:{HIST}
    s_waitcnt vmcnt(2)
    """)
    for i in range(4):
        a(f"v_lshlrev_b32 v{20+2*i}, 8, v{8+i}            ; src*256")
    a("""
    s_waitcnt lgkmcnt(0)
    v_add_u32 v40, v38, v39
    v_mov_b32 v41, v40
    """)
    scan64(a, 41)
    a(f"""
    v_sub_u32 v42, v41, v40
    v_add_u32 v43, v42, v38
    ds_write_b64 v28, v[42:43] offset:{START}
    """)
    for i in range(4):
        a(f"ds_read_b32 v{44+i}, v{30+i} offset:{START}")
    a(f"""
    s_cmp_lg_u32 s18, 0
    s_cbranch_scc1 K1_NOOFF
    s_lshl_b32 s19, s2, 9
    s_add_u32 s19, s19, {WS_OFF}
    v_lshl_or_b32 v42, v38, 16, v42
    v_lshl_or_b32 v43, v39, 16, v43
    v_add_u32 v28, s19, v28
    global_store_dwordx2 v28, v[42:43], s[16:17] {STF}
    s_waitcnt vmcnt(1)
    s_branch K1_OFFD
    K1_NOOFF:
    s_waitcnt vmcnt(0)
    K1_OFFD:
    """)
    for i in range(4):
        a(f"""
        s_waitcnt lgkmcnt({3 if i else 3})
        v_add_lshl_u32 v{44+i}, v{44+i}, v{34+i}, 4
        ds_write2_b64 v{44+i}, {vr(20+2*i,2)}, {vr(12+2*i,2)} offset0:0 offset1:1
        """)
    a(f"""
    v_lshlrev_b32 v2, 4, v0
    s_mul_i32 s19, s2, {CH*16}
    s_add_u32 s19, s19, {WS_REC}
    s_add_u32 s16, s16, s19
    s_addc_u32 s17, s17, 0
    v_add_u32 v3, 5120, v2
    v_add_u32 v48, 10240, v2
    v_add_u32 v49, 15360, v2
    s_waitcnt lgkmcnt(0)
    s_barrier
    """)
    st.mark(a)
    for i in range(4):
        a(f"ds_read_b128 {vr(4+4*i,4)}, v2 offset:{5120*i}")
    for i, ad in enumerate((2, 3, 48, 49)):
        a(f"s_waitcnt lgkmcnt({3-i})")
        if "norec" not in X:
            a(f"global_store_dwordx4 v{ad}, {vr(4+4*i,4)}, s[16:17] {STF}")
    if stamp:
        a("s_sub_u32 s16, s16, s19\ns_subb_u32 s17, s17, 0\ns_waitcnt vmcnt(0)")
        st.mark(a)
        st.flush(a, 16, "s18")
    a("s_endpgm")
    st.n = 1 if stamp else 0
    vX, vRing, vAcc, vA = 8, 24, 56, 88
    a(f"""
    K1_GEMM:
    s_sub_u32 s19, s2, {NCH}
    s_and_b32 s20, s19, 1                         ; half
    s_lshr_b32 s19, s19, 1
    s_lshl_b32 s21, s20, 7                        ; half*128
    s_mul_i32 s19, s19, {NB}
    s_lshl_b32 s22, s18, 4
    s_add_u32 s19, s19, s22
    s_lshl_b32 s19, s19, 8                        ; *256 B
    v_and_b32 v2, 15, v1
    v_lshlrev_b32 v2, 8, v2
    v_and_b32 v3, 48, v1
    v_add3_u32 v2, v2, v3, s19                    ; x fragment offset
    """)
    w_src_off(a, 4, 5, 1, 6, "s21")
    a(f"""
    s_waitcnt lgkmcnt(0)
    s_cmp_eq_u32 s18, 4
    s_cbranch_scc1 K1_NODMA
    s_add_u32 s14, s14, {128*256}
    s_addc_u32 s15, s15, 0
    s_cmp_lt_u32 s18, 2
    s_cselect_b32 s24, s14, s12
    s_cselect_b32 s25, s15, s13
    s_mov_b32 s26, {128*256}
    s_mov_b32 s27, 0x20000
    s_and_b32 s22, s18, 1
    s_lshl_b32 s22, s22, 14
    s_lshl_b32 s23, s18, 13
    """)
    for i in range(8):
        a(f"""
        s_mov_b32 m0, s23
        s_add_u32 s23, s23, 1024
        buffer_load_dwordx4 v{4+(i&1)}, s[24:27], s22 offen lds
        s_add_u32 s22, s22, 2048
        """)
    a("K1_NODMA:")
    for ks in range(4):
        a(f"global_load_dwordx4 {vr(vX+4*ks,4)}, v2, s[4:5] offset:{64*ks} {XNT}")
    w_frag_addr(a, vA, 1, 6, "0")
    a(f"""
    s_mul_i32 s20, s20, {T_HALF}
    s_add_u32 s19, s19, s20
    s_add_u32 s19, s19, {WS_T}
    v_lshrrev_b32 v2, 4, v1
    v_lshlrev_b32 v2, 10, v2
    v_and_b32 v3, 15, v1
    v_lshlrev_b32 v3, 4, v3
    v_add3_u32 v2, v2, v3, s19
    s_mov_b32 s28, {hex(NLOG2E)}
    s_mov_b32 s29, 0xffff
    s_waitcnt vmcnt(0)
    s_barrier
    """)
    st.mark(a)
    gemm(a, 2, vA, vX, vRing, 8, vAcc)
    st.mark(a)
    a("s_nop 7")
    for i in range(4):
        P = vRing + 4 * i
        for t in range(4):
            b, h = vAcc + 4 * t + i, vAcc + 16 + 4 * t + i
            a(f"""
            v_mul_f32 v{b}, s28, v{b}
            v_add_f32 v{h}, 0, v{h}               ; -0 / denormal -> +0
            v_cvt_f16_f32 v{b}, v{b}
            v_add_u32 v{h}, 0x8000, v{h}
            v_sub_u32_e64 v{h}, v{h}, v{b} clamp
            v_bfi_b32 v{P+t}, s29, v{b}, v{h}
            """)
        if "noT" not in X:
            a(f"global_store_dwordx4 v2, {vr(P,4)}, s[16:17] offset:{256*i} {STF}")
    if stamp:
        a("s_waitcnt vmcnt(0)")
        st.mark(a)
        st.flush(a, 16, "s18")
    a("K1_END:")
    return a.text(), 96


LA, LAGG, LCNT, LFLAG, LQST, LCW, LLIST = 0, 20480, 61440, 61952, 62464, 62976, 63488
KMAX = 7
KSMALL = 3
QCAP = 832
LDS2 = LLIST + QCAP * 64 + 256
DUMMY = 0x400000


def k2(stamp):
    a = Asm()
    st = Stamps(stamp, 70, WS_STAMP + 0x80000)
    sX, sU, sG, sOUT, sWS = 4, 6, 10, 12, 16
    sW, sH, sB = 18, 19, 20
    SRD_T, SRD_R, SRD_W = 24, 28, 32
    sM = 36
    sN, sNG, sT0, sFIRST = 50, 51, 52, 53
    sMB = 54
    sMORE, sK = 58, 59
    sINC = 60
    s12 = 62
    sADV = 64
    vL = 1
    vLO = 2
    vSel, vSelA, vCw = 104, 120, 124
    vRO, vRem = 126, 127
    vRec, vRank = 72, 64
    vX, vRing, vAcc, vA = 8, 24, 48, 100
    vAdr = 8
    a(f"""
    s_cmp_ge_u32 s2, {256 if 'map' in X else 2*NBK}
    s_cbranch_scc1 K2_END
    """)
    if 'map' in X:
        a(f"""
        s_bfe_u32 s21, s2, 0x20001
        s_lshl_b32 s21, s21, 5
        s_lshr_b32 s{sB}, s2, 3
        s_add_u32 s{sB}, s{sB}, s21
        s_cmp_ge_u32 s{sB}, {NBK}
        s_cbranch_scc1 K2_END
        """)
    else:
        a(f"s_lshr_b32 s{sB}, s2, 1")
    st.mark(a)
    if stamp:
        a("s_memtime s[94:95]\ns_waitcnt lgkmcnt(0)")
    a(f"""
    s_load_dwordx2 s[{sWS}:{sWS+1}], s[0:1], {KA['ws']}
    s_load_dwordx2 s[{sX}:{sX+1}], s[0:1], {KA['x']}
    s_load_dwordx2 s[{sU}:{sU+1}], s[0:1], {KA['u']}
    s_load_dwordx2 s[{sG}:{sG+1}], s[0:1], {KA['g']}
    s_load_dwordx2 s[{sOUT}:{sOUT+1}], s[0:1], {KA['out']}
    v_lshrrev_b32 v4, 6, v0
    v_and_b32 v{vL}, 63, v0
    v_readfirstlane_b32 s{sW}, v4
    s_and_b32 s21, s2, 1
    s_lshl_b32 s{sH}, s21, 7
    v_lshrrev_b32 v4, 2, v0                       ; chunk
    s_lshl_b32 s22, s{sB}, 2
    v_lshl_add_u32 v5, v4, 9, s22
    s_mul_i32 s21, s21, {T_HALF}
    s_add_u32 s21, s21, {WS_T}
    s_waitcnt lgkmcnt(0)
    """)
    srd(a, SRD_T, sWS, WS_OFF, NCH * 512)
    a(f"buffer_load_dword v{vRem}, v5, s[{SRD_T}:{SRD_T+3}], 0 offen")
    w_src_off(a, 6, 7, vL, 5, f"s{sH}")
    a(f"""
    s_cmp_lt_u32 s{sW}, 8
    s_cselect_b32 s{SRD_W}, s{sG}, s{sU}
    s_cselect_b32 s{SRD_W+1}, s{sG+1}, s{sU+1}
    s_mov_b32 s{SRD_W+2}, {128*256}
    s_mov_b32 s{SRD_W+3}, 0x20000
    s_and_b32 s22, s{sW}, 7
    s_lshl_b32 s22, s22, 12                       ; 16 rows * 256
    s_lshl_b32 s23, s{sW}, 11
    s_add_u32 s23, s23, {LLIST}
    s_mov_b32 m0, s23
    s_add_u32 s23, s23, 1024
    buffer_load_dwordx4 v6, s[{SRD_W}:{SRD_W+3}], s22 offen lds
    s_add_u32 s22, s22, 2048
    s_mov_b32 m0, s23
    v_mul_u32_u24 v{vRO}, {CH*16}, v4
    buffer_load_dwordx4 v7, s[{SRD_W}:{SRD_W+3}], s22 offen lds
    s_cmp_lt_u32 s{sW}, 10
    s_cbranch_scc0 K2_NOX
    ; x fragments of node tile (wave % 5)
    s_cmp_ge_u32 s{sW}, 5
    s_cselect_b32 s22, 5, 0
    s_cselect_b32 s{sK}, {LLIST+16384}, {LLIST & 0}
    s_sub_u32 s22, s{sW}, s22
    s_lshl_b32 s{sT0}, s22, 12
    s_mul_i32 s23, s{sB}, {NB*256}
    s_add_u32 s23, s23, s{sT0}
    v_and_b32 v4, 15, v{vL}
    v_lshlrev_b32 v4, 8, v4
    v_and_b32 v7, 48, v{vL}
    v_add3_u32 v4, v4, v7, s23
    s_max_u32 s{sK}, s{sK}, {LLIST}
    """)
    for ks in range(4):
        a(f"global_load_dwordx4 {vr(vX+4*ks,4)}, v4, s[{sX}:{sX+1}] offset:{64*ks}")
    w_frag_addr(a, vA, vL, 5, f"s{sK}")
    a(f"""
    s_branch K2_XD
    K2_NOX:
    v_lshrrev_b32 v4, 3, v{vL}
    v_lshlrev_b32 v4, 8, v4
    v_and_b32 v5, 7, v{vL}
    v_lshlrev_b32 v5, 4, v5
    s_add_u32 s22, s{sH}, {256*256}
    v_add3_u32 v4, v4, v5, s22
    s_mov_b32 m0, {LCW}
    s_mov_b32 exec_hi, 0
    global_load_lds_dwordx4 v4, s[{sG}:{sG+1}]
    s_mov_b32 exec_hi, -1
    v_lshlrev_b32 v5, 2, v0
    v_mov_b32 v6, 0
    ds_write_b32 v5, v6 offset:{LCNT-2560}
    K2_XD:
    """)
    srd(a, SRD_T, sWS, "s21", T_HALF)
    srd(a, SRD_R, sWS, WS_REC, E * 16)
    a(f"""
    s_mov_b32 s{sMB}, 15
    s_mov_b32 s{sMB+1}, 0xf0
    v_mov_b32 v5, 0x3f803f80
    """)
    for t in range(4):
        a(f"s_lshl_b64 s[{sMB+2}:{sMB+3}], s[{sMB}:{sMB+1}], {8*t}\nv_cndmask_b32 v{vSelA+t}, 0, v5, s[{sMB+2}:{sMB+3}]")
    a(f"""
    v_and_b32 v{vLO+1}, 15, v{vL}
    v_lshlrev_b32 v{vLO}, 4, v{vLO+1}
    v_lshlrev_b32 v{vLO+1}, 3, v{vLO+1}
    v_add_u32 v{vLO+1}, {LAGG}, v{vLO+1}
    s_mov_b32 s{s12}, 1.0
    s_mov_b32 s{s12+1}, 2.0
    s_mov_b32 s{sADV}, {4*KMAX}
    s_mov_b32 s{sINC}, 128
    s_mov_b32 s{sINC+1}, 128
    s_mov_b32 s{sFIRST}, 1
    v_and_b32 v4, 3, v0
    s_cmp_lt_u32 s{sW}, 10
    s_cbranch_scc0 K2_W3
    s_waitcnt vmcnt(6)
    s_branch K2_WD
    K2_W3:
    s_waitcnt vmcnt(3)
    K2_WD:
    """)
    st.mark(a)
    a(f"""
    v_and_b32 v5, 0xffff, v{vRem}
    v_lshrrev_b32 v{vRem}, 16, v{vRem}
    v_add_u32 v5, v5, v4
    v_sub_u32 v{vRem}, v{vRem}, v4
    v_lshl_add_u32 v{vRO}, v5, 4, v{vRO}
    K2_BATCH:
    """)
    for k in range(KMAX):
        a(f"v_cmp_lt_i32 s[{sM+2*k}:{sM+2*k+1}], {4*k}, v{vRem}")
    a(f"s_cmp_eq_u32 s{sADV}, {4*KMAX}\ns_cselect_b64 s[{sM+2*KSMALL}:{sM+2*KSMALL+1}], s[{sM+2*KSMALL}:{sM+2*KSMALL+1}], 0")
    for k in range(KMAX):
        a(f"s_mov_b64 exec, s[{sM+2*k}:{sM+2*k+1}]\ns_cbranch_execz K2_RL{k}")
        a(f"buffer_load_dwordx4 {vr(vRec+4*k,4)}, v{vRO}, s[{SRD_R}:{SRD_R+3}], 0 offen offset:{64*k}")
    a(f"s_waitcnt vmcnt({KMAX})\ns_branch K2_RLD")
    for k in range(KMAX - 1, -1, -1):
        a(f"K2_RL{k}:\ns_waitcnt vmcnt({k})")
        if k:
            a("s_branch K2_RLD")
    a(f"""
    K2_RLD:
    s_mov_b64 exec, -1
    s_lshr_b32 s22, s2, 3
    s_mul_i32 s22, s22, {646*128}
    v_mul_u32_u24 v4, 84, v0
    s_waitcnt lgkmcnt(0)
    s_barrier
    buffer_load_dword v71, v4, s[{SRD_T}:{SRD_T+3}], s22 offen
    """)
    st.mark(a)
    a(f"""
    v_bfe_u32 v4, v{vL}, 2, 2
    v_lshlrev_b32 v4, 7, v4
    v_lshrrev_b32 v5, 4, v{vL}
    v_lshl_add_u32 v4, v5, 5, v4
    v_and_b32 v5, 3, v{vL}
    v_lshl_add_u32 v4, v5, 3, v4
    ds_read_b64_tr_b16 v[6:7], v4 offset:{LCW}
    s_mov_b32 s{sMB}, {hex(NLOG2E)}
    s_mov_b32 s{sMB+1}, 0xffff0000
    s_waitcnt lgkmcnt(0)
    v_lshlrev_b32 v4, 16, v6
    v_and_b32 v6, s{sMB+1}, v6
    v_lshlrev_b32 v5, 16, v7
    v_and_b32 v7, s{sMB+1}, v7
    v_mul_f32 v4, s{sMB}, v4
    v_mul_f32 v6, s{sMB}, v6
    v_mul_f32 v5, s{sMB}, v5
    v_mul_f32 v7, s{sMB}, v7
    v_cvt_pk_bf16_f32 v{vCw}, v4, v6
    v_cvt_pk_bf16_f32 v{vCw+1}, v5, v7
    s_cmp_lt_u32 s{sW}, 10
    s_cselect_b32 s22, s{sFIRST}, 0
    s_cmp_eq_u32 s22, 0
    s_cbranch_scc1 K2_GD
    """)
    gemm(a, 1, vA, vX, vRing, 6, vAcc)
    a(f"""
    v_lshrrev_b32 v4, 4, v{vL}
    v_lshlrev_b32 v4, 10, v4
    s_cmp_lt_u32 s{sW}, 5
    s_cbranch_scc0 K2_GU
    v_add3_u32 v4, v4, v{vLO}, s{sT0}
    s_nop 3
    """)
    for i in range(4):
        P = vRing + 4 * i
        for t in range(4):
            c = vAcc + 4 * t + i
            a(f"""
            v_mul_f32 v{c}, s{sMB}, v{c}
            v_and_b32 v{P+t}, s{sMB+1}, v{c}
            v_sub_f32 v{c}, v{c}, v{P+t}
            v_cvt_pk_bf16_f32 v{P+t}, v{c}, v{P+t}
            """)
        a(f"ds_write_b128 v4, {vr(P,4)} offset:{LA+256*i}")
    a(f"""
    s_branch K2_GD
    K2_GU:
    v_add_u32 v4, s{sT0}, v4
    v_lshl_add_u32 v4, v4, 1, v{vLO+1}
    s_nop 2
    """)
    for i in range(4):
        for t in range(4):
            a(f"v_cvt_f64_f32 {vr(vX+8*i+2*t,2)}, v{vAcc+4*t+i}")
        for t in (0, 2):
            a(f"ds_write2_b64 v4, {vr(vX+8*i+2*t,2)}, {vr(vX+8*i+2*t+2,2)} offset0:{64*i+16*t} offset1:{64*i+16*t+16}")
    a(f"""
    K2_GD:
    s_mov_b32 s{sFIRST}, 0
    v_mov_b32 v4, 1
    v_cmp_lt_i32 vcc, s{sADV}, v{vRem}
    v_mov_b32 v5, {LFLAG}
    s_and_saveexec_b64 s[{sMB}:{sMB+1}], vcc
    s_cbranch_execz K2_NOMORE
    ds_write_b32 v5, v4
    K2_NOMORE:
    s_waitcnt vmcnt(1)
    """)
    st.mark(a)
    for k in range(KMAX):
        a(f"""
        s_mov_b64 exec, s[{sM+2*k}:{sM+2*k+1}]
        s_cbranch_execz K2_HD
        v_lshrrev_b32 v{vAdr+k}, 6, v{vRec+4*k+1}
        ds_add_rtn_u32 v{vRank+k}, v{vAdr+k}, v4 offset:{LCNT}
        """)
    a(f"""
    K2_HD:
    s_mov_b64 exec, -1
    v_lshlrev_b32 v7, 3, v{vL}
    s_waitcnt lgkmcnt(0)
    s_barrier
    ds_read_b64 v[16:17], v7 offset:{LCNT}
    ds_read_b32 v18, v5
    v_and_b32 v24, -4, v0
    v_and_b32 v25, 3, v0
    ds_read_b32 v26, v24 offset:{LCNT}
    s_waitcnt lgkmcnt(2)
    v_add_u32 v16, 3, v16
    v_add_u32 v17, 3, v17
    v_lshrrev_b32 v16, 2, v16
    v_lshrrev_b32 v17, 2, v17
    v_add_u32 v19, v16, v17
    v_mov_b32 v20, v19
    """)
    scan64(a, 20)
    a(f"""
    v_sub_u32 v22, v20, v19
    v_add_u32 v23, v22, v16
    v_readlane_b32 s{sNG}, v20, 63
    s_mov_b32 s22, {LLIST}
    v_lshl_add_u32 v22, v22, 6, s22
    v_lshl_add_u32 v23, v23, 6, s22
    s_cmp_gt_u32 s{sNG}, {QCAP-3}
    s_cbranch_scc1 K2_OVER
    ds_write_b64 v7, v[22:23] offset:{LQST}
    """)
    for k in range(KMAX):
        a(f"""
        s_mov_b64 exec, s[{sM+2*k}:{sM+2*k+1}]
        s_cbranch_execz K2_SD
        ds_read_b32 v{vAdr+k}, v{vAdr+k} offset:{LQST}
        """)
    a(f"""
    K2_SD:
    s_mov_b64 exec, -1
    s_cmp_lt_u32 s{sW}, 6
    s_cbranch_scc0 K2_NOPAD
    ds_read_b32 v27, v24 offset:{LQST}
    v_mov_b32 v28, {DUMMY}
    v_mov_b32 v29, 0
    v_mov_b32 v30, 0
    v_mov_b32 v31, 0
    v_subrev_u32 v24, {4*NB}, v24                 ; (node-80)*4
    v_cmp_gt_u32 s[{sMB}:{sMB+1}], 12, v24
    s_waitcnt lgkmcnt(0)
    v_sub_u32 v32, 0, v26
    v_and_b32 v32, 3, v32
    v_cmp_lt_u32 vcc, v25, v32
    v_cndmask_b32 v26, v26, v24, s[{sMB}:{sMB+1}]
    v_add_u32 v26, v26, v25
    v_lshl_add_u32 v27, v26, 4, v27
    s_or_b64 exec, vcc, s[{sMB}:{sMB+1}]
    ds_write_b128 v27, v[28:31]
    s_mov_b64 exec, -1
    K2_NOPAD:
    s_waitcnt lgkmcnt(0)
    v_readfirstlane_b32 s{sMORE}, v18
    """)
    for k in range(KMAX):
        a(f"""
        s_mov_b64 exec, s[{sM+2*k}:{sM+2*k+1}]
        s_cbranch_execz K2_CD
        v_lshl_add_u32 v{vAdr+k}, v{vRank+k}, 4, v{vAdr+k}
        ds_write_b128 v{vAdr+k}, {vr(vRec+4*k,4)}
        """)
    vW = (8, 24)
    vZ, vT, vE, vAp, vS, vN = 40, 56, 76, 80, 84, 88
    vNA = (90, 92)
    vQ = 94
    vD = 96
    vDn, vNm, vAa, vCk = 72, 104, 108, 78
    sTHR = 66
    a(f"""
    K2_CD:
    s_mov_b64 exec, -1
    s_add_u32 s{sNG}, s{sNG}, 3
    s_lshr_b32 s{sNG}, s{sNG}, 2                  ; groups
    s_lshr_b32 s22, s{sNG}, 4
    s_and_b32 s23, s{sNG}, 15
    s_mul_i32 s{sMB}, s22, s{sW}
    s_min_u32 s{sMB+1}, s{sW}, s23
    s_add_u32 s{sMB}, s{sMB}, s{sMB+1}
    s_cmp_lt_u32 s{sW}, s23
    s_addc_u32 s{sN}, s22, 0                      ; group count
    s_lshl_b32 s{sMB}, s{sMB}, 6
    s_add_u32 s{sMB}, s{sMB}, {LLIST}
    s_lshl_b32 s{sNG}, s{sNG}, 6
    s_mov_b32 s{sTHR}, 0
    s_mov_b32 s{sTHR+1}, 0x5f800000
    v_lshrrev_b32 v4, 4, v{vL}
    v_bfe_u32 v5, v{vL}, 2, 2
    v_mov_b32 v6, s{sMB}
    v_and_b32 v7, 3, v{vL}
    s_waitcnt lgkmcnt(0)
    v_mad_u32_u24 v{vQ}, v4, s{sNG}, v6
    v_mad_u32_u24 v{vQ+1}, v5, s{sNG}, v6
    v_lshl_add_u32 v{vQ+1}, v7, 4, v{vQ+1}
    s_barrier
    """)
    st.mark(a)
    if stamp:
        a("s_memtime s[90:91]\ns_waitcnt lgkmcnt(0)")

    def meta(off, S, Nn):
        d = off // 4
        a(f"""
        ds_read2_b32 {vr(S,2)}, v{vQ} offset0:{d} offset1:{d+4}
        ds_read2_b32 {vr(S+2,2)}, v{vQ} offset0:{d+8} offset1:{d+12}
        ds_read_b32 v{Nn}, v{vQ} offset:{off+4}
        """)

    def saddr(S):
        a(f"""
        v_pk_add_f32 {vr(S,2)}, {vr(S,2)}, {vr(vLO,2)} op_sel_hi:[1,0]
        v_pk_add_f32 {vr(S+2,2)}, {vr(S+2,2)}, {vr(vLO,2)} op_sel_hi:[1,0]
        """)

    def loads(p, S, loop=False):
        if loop and "noload" in X:
            return
        for g in range(4):
            a(f"buffer_load_dwordx4 {vr(vW[p]+4*g,4)}, v{S+g}, s[{SRD_T}:{SRD_T+3}], 0 offen")

    def naddr(p, Nn):
        a(f"v_pk_fma_f32 {vr(vNA[p],2)}, {vr(Nn,2)}, s[{s12}:{s12+1}], {vr(vLO,2)} op_sel_hi:[0,1,1]")

    m4 = f"v_mfma_f32_16x16x4_4b_bf16 {vr(vZ,16)}, {vr(vE,2)}, {vr(vCw,2)}, 0"
    mA = f"v_mfma_f32_32x32x16_bf16 {vr(vZ,16)}, {vr(vSelA,4)}, {vr(vAp,4)}, {vr(vZ,16)}"
    a(f"""
    s_cmp_eq_u32 s{sN}, 0
    s_cbranch_scc1 K2_LD
    """)
    if "noprio" not in X:
        a("s_setprio 3")
    meta(0, vT, vT + 4)
    meta(64, vT + 6, vT + 10)
    a(f"ds_read_b64 {vr(vE,2)}, v{vQ+1} offset:8\ns_waitcnt lgkmcnt(4)")
    saddr(vT)
    naddr(0, vT + 4)
    loads(0, vT)
    a(f"ds_read_b128 {vr(vAp,4)}, v{vNA[0]} offset:{LA}")
    meta(128, vS, vN)
    a(f"""
    s_cmp_eq_u32 s{sN}, 1
    s_waitcnt lgkmcnt(3)
    s_cbranch_scc1 K2_ONE
    """)
    saddr(vT + 6)
    naddr(1, vT + 10)
    loads(1, vT + 6)
    a(f"""
    {m4}
    {mA}
    ds_read_b64 {vr(vE,2)}, v{vQ+1} offset:{64+8}
    s_nop 3
    ds_read_b128 {vr(vAp,4)}, v{vNA[1]} offset:{LA}
    s_nop 7
    """)
    for p in range(2):
        W = vW[p]
        a(f"""
        K2_L{p}:
        s_waitcnt vmcnt(4)
        """)
        for g in range(4):
            for t in range(4):
                a(f"v_fma_mix_f32 v{vT+4*g+t}, v{W+4*g+t}, 1.0, v{vZ+4*t+g} op_sel_hi:[1,0,0]")
        a("s_waitcnt lgkmcnt(0)")
        for i in range(16):
            if i == 0:
                a(m4)
            if i == 4:
                a(mA)
            a(f"v_exp_f32 v{vT+i}, v{vT+i}")
        saddr(vS)
        for h in range(2):
            a(f"v_pk_add_f32 {vr(vDn+2*h,2)}, {vr(vT+2*h,2)}, 1.0 op_sel_hi:[1,0]")
        for g in range(1, 4):
            for h in range(2):
                src = vr(W + 2 * h, 2) if g == 1 else vr(vNm + 2 * h, 2)
                a(f"v_pk_fma_f32 {vr(vAa+2*h,2)}, {src}, {vr(vT+4*g+2*h,2)}, {src}")
            for h in range(2):
                a(f"v_pk_fma_f32 {vr(vNm+2*h,2)}, {vr(W+4*g+2*h,2)}, {vr(vDn+2*h,2)}, {vr(vAa+2*h,2)}")
            for h in range(2):
                a(f"v_pk_fma_f32 {vr(vDn+2*h,2)}, {vr(vDn+2*h,2)}, {vr(vT+4*g+2*h,2)}, {vr(vDn+2*h,2)}")
        a(f"""
        v_pk_fma_f32 {vr(vCk,2)}, {vr(vDn,2)}, {vr(vDn+2,2)}, s[{sTHR}:{sTHR+1}] neg_hi:[1,0,0]
        v_rcp_f32 v{vDn}, v{vDn}
        v_cmp_nle_f32 vcc, v{vCk}, v{vCk+1}
        v_rcp_f32 v{vDn+1}, v{vDn+1}
        v_rcp_f32 v{vDn+2}, v{vDn+2}
        v_rcp_f32 v{vDn+3}, v{vDn+3}
        s_cmp_le_u32 s{sN}, 2
        s_cbranch_vccnz K2_SAFE{p}
        v_pk_mul_f32 {vr(vNm,2)}, {vr(vNm,2)}, {vr(vDn,2)}
        v_pk_mul_f32 {vr(vNm+2,2)}, {vr(vNm+2,2)}, {vr(vDn+2,2)}
        K2_SB{p}:
        s_cbranch_scc1 K2_TAIL{p}
        """)
        loads(p, vS, True)
        for t in range(4):
            a(f"v_cvt_f64_f32 {vr(vD+2*t,2)}, v{vNm+t}")
        for t in range(4):
            a(f"ds_add_f64 v{vNA[p]+1}, {vr(vD+2*t,2)} offset:{128*t}")
        naddr(p, vN)
        a(f"""
        ds_read_b64 {vr(vE,2)}, v{vQ+1} offset:{128+64*p+8}
        ds_read_b128 {vr(vAp,4)}, v{vNA[p]} offset:{LA}
        """)
        meta(192 + 64 * p, vS, vN)
        if p == 1:
            a(f"v_pk_add_f32 {vr(vQ,2)}, {vr(vQ,2)}, s[{sINC}:{sINC+1}]")
        a(f"s_sub_u32 s{sN}, s{sN}, 1")
        if "noprio" not in X:
            a(f"""
            s_cmp_eq_u32 s{sN}, 4
            s_cbranch_scc1 K2_PR{p}
            """)
        if p == 1:
            a("s_branch K2_L0")
    for p in range(2):
        W = vW[p]
        a(f"""
        K2_PR{p}:
        s_setprio 2
        s_branch K2_L{p^1}
        K2_TAIL{p}:
        """)
        for t in range(4):
            a(f"v_cvt_f64_f32 {vr(vD+2*t,2)}, v{vNm+t}")
        for t in range(4):
            a(f"ds_add_f64 v{vNA[p]+1}, {vr(vD+2*t,2)} offset:{128*t}")
        a(f"""
        s_setprio 0
        s_sub_u32 s{sN}, s{sN}, 1
        s_cmp_eq_u32 s{sN}, 0
        s_cbranch_scc1 K2_LD
        s_waitcnt vmcnt(0)
        s_branch K2_L{p^1}
        K2_SAFE{p}:
        """)
        for i in range(8):
            a(f"v_pk_add_f32 {vr(vT+2*i,2)}, {vr(vT+2*i,2)}, 1.0 op_sel_hi:[1,0]")
        for i in range(16):
            a(f"v_rcp_f32 v{vT+i}, v{vT+i}")
        for g in range(4):
            for h in range(2):
                o = 4 * g + 2 * h
                if g == 0:
                    a(f"v_pk_mul_f32 {vr(vNm+2*h,2)}, {vr(vT+o,2)}, {vr(W+o,2)}")
                else:
                    a(f"v_pk_fma_f32 {vr(vNm+2*h,2)}, {vr(vT+o,2)}, {vr(W+o,2)}, {vr(vNm+2*h,2)}")
        a(f"s_branch K2_SB{p}")
    a(f"""
    K2_ONE:
    {m4}
    {mA}
    s_nop 7
    s_waitcnt vmcnt(0)
    s_nop 3
    s_branch K2_L0
    """)
    a(f"""
    K2_LD:
    s_waitcnt vmcnt(0) lgkmcnt(0)
    """)
    st.mark(a)
    if stamp:
        a("s_memtime s[92:93]\ns_waitcnt lgkmcnt(0)\ns_sub_u32 s92, s92, s90")
    a(f"""
    s_barrier
    s_cmp_eq_u32 s{sMORE}, 0
    s_cbranch_scc1 K2_FIN
    s_lshl_b32 s22, s{sADV}, 4
    v_subrev_u32 v{vRem}, s{sADV}, v{vRem}
    v_add_u32 v{vRO}, s22, v{vRO}
    K2_AGAIN:
    s_cmp_lt_u32 s{sW}, 10
    s_cbranch_scc1 K2_BATCH
    v_lshlrev_b32 v5, 2, v0
    v_mov_b32 v6, 0
    ds_write_b32 v5, v6 offset:{LCNT-2560}
    s_branch K2_BATCH
    K2_OVER:
    ; batch does not fit the list: redo it with fewer records per segment
    s_mov_b32 s{sADV}, {4*KSMALL}
    s_waitcnt vmcnt(0) lgkmcnt(0)
    s_barrier
    s_branch K2_AGAIN
    K2_FIN:
    s_cmp_lt_u32 s{sW}, 10
    s_cbranch_scc0 K2_STORED
    v_lshlrev_b32 v4, 6, v0
    ds_read_b128 v[24:27], v4 offset:{LAGG}
    ds_read_b128 v[28:31], v4 offset:{LAGG+16}
    ds_read_b128 v[32:35], v4 offset:{LAGG+32}
    ds_read_b128 v[36:39], v4 offset:{LAGG+48}
    s_mov_b32 s22, {hex(NLOG2E)}
    s_mul_i32 s23, s{sB}, {NB*256}
    s_add_u32 s23, s23, s{sH}
    v_lshrrev_b32 v5, 3, v0
    v_lshlrev_b32 v5, 8, v5
    v_and_b32 v6, 7, v0
    v_lshlrev_b32 v6, 4, v6
    v_add3_u32 v5, v5, v6, s23
    s_waitcnt lgkmcnt(0)
    """)
    for i in range(8):
        a(f"v_cvt_f32_f64 v{8+i}, {vr(24+2*i,2)}")
    for i in range(8):
        a(f"v_mul_f32 v{16+i}, s22, v{8+i}")
    for i in range(8):
        a(f"v_exp_f32 v{16+i}, v{16+i}")
    for i in range(4):
        a(f"v_pk_add_f32 {vr(16+2*i,2)}, {vr(16+2*i,2)}, 1.0 op_sel_hi:[1,0]")
    for i in range(8):
        a(f"v_rcp_f32 v{16+i}, v{16+i}")
    for i in range(4):
        a(f"v_pk_mul_f32 {vr(16+2*i,2)}, {vr(16+2*i,2)}, {vr(8+2*i,2)}")
    for i in range(4):
        a(f"v_cvt_pk_bf16_f32 v{8+i}, v{16+2*i}, v{17+2*i}")
    a(f"""
    global_store_dwordx4 v5, v[8:11], s[{sOUT}:{sOUT+1}]
    K2_STORED:
    """)
    if stamp:
        a("s_waitcnt vmcnt(0)")
        st.mark(a)
        a(f"s_mov_b32 s{st.s0+2*st.n}, s92\ns_sub_u32 s{st.s0+2*st.n+2}, s90, s94")
        st.n += 2
        st.flush(a, sWS, f"s{sW}")
    a("K2_END:")
    return a.text(), 128


HDR = """; Kernarg layout (80 bytes, pointers): x, e_attr, src, dst, u_w, v_w, g_w, out, debug, ws
; @launch kernel=egc_prep_kernel grid=({g1},1,1) block=(320,1,1) lds=32768
; @launch kernel=egc_main_kernel grid=({g2},1,1) block=(1024,1,1) lds={lds2}
.amdgcn_target "amdgcn-amd-amdhsa--gfx950"
.text
"""


def kernel(name, body):
    return f""".globl {name}
.p2align 8
.type {name},@function
{name}:
{body}    s_endpgm
"""


def desc(name, vgpr, extra=""):
    return f""".p2align 6
.amdhsa_kernel {name}
  .amdhsa_next_free_vgpr {vgpr}
  .amdhsa_next_free_sgpr 96
  .amdhsa_accum_offset {vgpr}
  .amdhsa_group_segment_fixed_size 0
  .amdhsa_kernarg_size 80
  .amdhsa_user_sgpr_count 2
  .amdhsa_user_sgpr_kernarg_segment_ptr 1
  .amdhsa_system_sgpr_workgroup_id_x 1
{extra}.end_amdhsa_kernel
"""


def build(stamp=False):
    b1, v1 = k1(stamp)
    b2, v2 = k2(stamp)
    s = HDR.format(g1=2 * NCH, g2=256 if 'map' in X else 2 * NBK, lds2=LDS2)
    s += kernel("egc_prep_kernel", b1) + kernel("egc_main_kernel", b2)
    s += '.section .rodata,"a"\n'
    s += desc("egc_prep_kernel", v1, "  .amdhsa_float_denorm_mode_32 0\n  .amdhsa_fp16_overflow 1\n")
    s += desc("egc_main_kernel", v2, "  .amdhsa_float_denorm_mode_32 3\n")
    return s


if __name__ == "__main__":
    out = sys.argv[1]
    open(out, "w").write(build(stamp="--stamp" in sys.argv))
```

```python
import sys, os
X = set(os.environ.get('X', '').split('+'))
NAME = "standalone__edge_featured_mpnn_egc__graph_kernel"
N, E = 10000, 320000
NB, NBK, CH, NCH = 80, 125, 1280, 250
T_HALF = N * 256
RB = 12
WS_T, WS_REC, WS_OFF, WS_EPOCH, WS_STAMP = 0, 0x500000, 0xA00000, 0xA80000, 0xB00000
NLOG2E = 0xBFB8AA3B
KA = dict(x=0, e=8, src=16, dst=24, u=32, v=40, g=48, out=56, dbg=64, ws=72)
LA, LAGG = 0, 20480
LHIST, LCNT, LFLAG, LDUM = 61440, 61952, 62464, 62480
LSTART, LQS, LCW = 62720, 63232, 63744
LW = 64256
LX = LW + 65536
LDS = LX + 20480
LSLOT, SLOTB, CAP = LW, 784, 64
LTA, LTE = LX, LX + 10496
KMAX = 7
DUMMY = 0x400000
SPIN = 1 << 17
assert LW % 256 == 0 and LDS <= 163840


class Asm:
    def __init__(self):
        self.l = []

    def __call__(self, s):
        for ln in s.strip("\n").split("\n"):
            ln = ln.strip()
            if ln:
                self.l.append(ln if ln.endswith(":") else "    " + ln)

    def text(self):
        return "\n".join(self.l) + "\n"


def vr(a, n):
    return f"v[{a}:{a+n-1}]" if n > 1 else f"v{a}"


def sp(a):
    return f"s[{a}:{a+1}]"


def sq(a):
    return f"s[{a}:{a+3}]"


def srd(a, d, base, off, size):
    a(f"s_add_u32 s{d}, s{base}, {off}\ns_addc_u32 s{d+1}, s{base+1}, 0")
    a(f"s_mov_b32 s{d+2}, {size}\ns_mov_b32 s{d+3}, 0x20000")


def scan64(a, v):
    for ctl in ("row_shr:1", "row_shr:2", "row_shr:4", "row_shr:8"):
        a(f"s_nop 1\nv_add_u32_dpp v{v}, v{v}, v{v} {ctl} row_mask:0xf bank_mask:0xf")
    a(f"s_nop 1\nv_add_u32_dpp v{v}, v{v}, v{v} row_bcast:15 row_mask:0xa bank_mask:0xf")
    a(f"s_nop 1\nv_add_u32_dpp v{v}, v{v}, v{v} row_bcast:31 row_mask:0xc bank_mask:0xf")


def gemm(a, nmat, vA, vX, vRing, nslot, vAcc):
    steps = [(ks, m, t) for m in range(nmat) for ks in range(4) for t in range(4)]
    n, depth = len(steps), nslot - 1

    def rd(s):
        ks, m, t = steps[s]
        r = vRing + 4 * (s % nslot)
        o = m * 16384 + ks * 4096
        a(f"ds_read_b64_tr_b16 {vr(r,2)}, v{vA+t} offset:{o}")
        a(f"ds_read_b64_tr_b16 {vr(r+2,2)}, v{vA+t} offset:{o+512}")

    return steps, rd, n, depth


def kernel(stamp):
    a = Asm()
    NST = [0]

    def mark():
        if stamp:
            a(f"s_memrealtime s[92:93]\ns_waitcnt lgkmcnt(0)\nv_writelane_b32 v107, s92, {NST[0]}")
            NST[0] += 1

    sX, sE, sSRC, sDST, sU, sV, sG, sOUT, sDBG, sWS = 4, 6, 8, 10, 12, 14, 16, 18, 20, 22
    SRD_T, SRD_R, SRD_W = 24, 28, 32
    sM = 36
    sN, sNG, sT0, sFIRST = 50, 51, 52, 53
    t0, t1, t2, t3 = 54, 55, 56, 57
    sMORE, sW = 58, 59
    sINC, s12, sTHR, sEM = 60, 62, 64, 66
    sH, sB, sC, sEP, sTAG, sTAGB, sSPIN, sLG = 68, 69, 70, 71, 72, 73, 74, 75
    sU5, sU4 = 76, 78
    vL, vLO, vAo, vCw, vRO, vRem = 1, 2, 108, 124, 126, 127
    vJ = 100
    a(f"""
    s_cmp_ge_u32 s2, 256
    s_cbranch_scc1 L_END
    s_bfe_u32 s{t0}, s2, 0x20001
    s_lshl_b32 s{t0}, s{t0}, 5
    s_lshr_b32 s{sB}, s2, 3
    s_add_u32 s{sB}, s{sB}, s{t0}                 ; bucket
    s_cmp_ge_u32 s{sB}, {NBK}
    s_cbranch_scc1 L_END
    """)
    mark()
    a(f"""
    s_load_dwordx16 s[4:19], s[0:1], 0
    s_load_dwordx4 s[20:23], s[0:1], {KA['dbg']}
    v_lshrrev_b32 v4, 6, v0
    v_and_b32 v{vL}, 63, v0
    v_readfirstlane_b32 s{sW}, v4
    s_and_b32 s{t0}, s2, 1
    s_lshl_b32 s{sH}, s{t0}, 7                    ; half*128
    s_lshl_b32 s{sC}, s{sB}, 1
    s_add_u32 s{sC}, s{sC}, s{t0}                 ; chunk
    s_mul_i32 s{t1}, s{sC}, {CH*4}
    v_lshl_add_u32 v12, v0, 3, s{t1}
    v_lshlrev_b32 v13, 1, v12
    s_cmp_lt_u32 s{sW}, 10
    s_cbranch_scc0 L_NOEDGE
    s_waitcnt lgkmcnt(0)
    global_load_dwordx2 v[4:5], v12, {sp(sDST)}
    global_load_dwordx2 v[6:7], v12, {sp(sSRC)}
    global_load_dwordx4 v[8:11], v13, {sp(sE)}
    s_branch L_EDGED
    L_NOEDGE:
    v_lshlrev_b32 v12, 2, v0
    v_mov_b32 v14, 32
    v_cmp_eq_u32 vcc, {640 + 128 + NB}, v0
    v_mov_b32 v15, {DUMMY}
    v_lshrrev_b32 v16, 2, v0
    v_cndmask_b32 v13, 0, v14, vcc
    v_cmp_eq_u32 vcc, {(640 + 260) // 4}, v16
    s_cmp_eq_u32 s{sW}, 15
    s_cbranch_scc1 L_NOZ
    v_cndmask_b32 v13, v13, v15, vcc
    ds_write_b32 v12, v13 offset:{LHIST - 2560}
    L_NOZ:
    s_waitcnt lgkmcnt(0)
    L_EDGED:
    s_add_u32 s{t2}, s{sWS}, {WS_EPOCH}
    s_addc_u32 s{t3}, s{sWS+1}, 0
    s_load_dword s{sEP}, {sp(t2)}, 0
    v_lshrrev_b32 v26, 3, v{vL}
    v_lshlrev_b32 v26, 8, v26
    v_and_b32 v28, 7, v{vL}
    v_lshlrev_b32 v28, 4, v28
    v_and_b32 v27, 16, v{vL}
    v_lshlrev_b32 v27, 1, v27
    v_xor_b32 v28, v28, v27
    v_add3_u32 v26, v26, v28, s{sH}
    v_xor_b32 v27, 64, v26
    s_add_u32 s{SRD_W}, s{sG}, {128*256}
    s_addc_u32 s{SRD_W+1}, s{sG+1}, 0
    s_cmp_ge_u32 s{sW}, 4
    s_cselect_b64 {sp(SRD_W)}, {sp(sV)}, {sp(SRD_W)}
    s_cmp_ge_u32 s{sW}, 8
    s_cselect_b64 {sp(SRD_W)}, {sp(sG)}, {sp(SRD_W)}
    s_cmp_ge_u32 s{sW}, 12
    s_cselect_b64 {sp(SRD_W)}, {sp(sU)}, {sp(SRD_W)}
    s_mov_b32 s{SRD_W+2}, {128*256}
    s_mov_b32 s{SRD_W+3}, 0x20000
    s_and_b32 s{t0}, s{sW}, 3
    s_lshl_b32 s{t0}, s{t0}, 13
    s_lshl_b32 s{t1}, s{sW}, 12
    s_add_u32 s{t1}, s{t1}, {LW}
    s_cmp_ge_u32 s{sW}, 5
    s_cselect_b32 s{sT0}, 5, 0
    s_cmp_ge_u32 s{sW}, 10
    s_cselect_b32 s{sT0}, 10, s{sT0}
    s_cmp_ge_u32 s{sW}, 13
    s_cselect_b32 s{sT0}, 11, s{sT0}
    s_sub_u32 s{sT0}, s{sW}, s{sT0}
    s_lshl_b32 s{sT0}, s{sT0}, 12                 ; tile*16*256
    s_barrier                                     ; B1
    s_cmp_lt_u32 s{sW}, 10
    s_cbranch_scc1 L_XD
    s_cmp_eq_u32 s{sW}, 12
    s_cbranch_scc1 L_CW
    v_lshrrev_b32 v4, 4, v{vL}
    v_and_b32 v5, 15, v{vL}
    v_xor_b32 v5, v5, v4
    v_lshlrev_b32 v5, 4, v5
    s_mul_i32 s{t2}, s{sB}, {NB*256}
    s_add_u32 s{t2}, s{t2}, s{sT0}
    v_lshlrev_b32 v4, 8, v4
    v_add3_u32 v4, v4, v5, s{t2}
    s_add_u32 s{t3}, s{sT0}, {LX}
    s_mov_b32 m0, s{t3}
    v_xor_b32 v5, 64, v4
    v_xor_b32 v6, 0x80, v4
    v_xor_b32 v7, 0xc0, v4
    """)
    for i in range(4):
        a(f"global_load_lds_dwordx4 v{4+i}, {sp(sX)} offset:{1024*i}")
    a(f"""
    s_branch L_XD
    L_CW:
    v_lshrrev_b32 v4, 3, v{vL}
    v_lshlrev_b32 v4, 8, v4
    v_and_b32 v5, 7, v{vL}
    v_lshlrev_b32 v5, 4, v5
    s_add_u32 s{t2}, s{sH}, {256*256}
    v_add3_u32 v4, v4, v5, s{t2}
    s_mov_b32 m0, {LCW}
    s_mov_b32 exec_hi, 0
    global_load_lds_dwordx4 v4, {sp(sG)}
    s_mov_b32 exec_hi, -1
    L_XD:
    s_mov_b32 m0, s{t1}
    s_add_u32 s{t1}, s{t0}, 1024
    s_add_u32 s{t2}, s{t0}, 2048
    s_add_u32 s{t3}, s{t0}, 3072
    """)
    for i in range(4):
        a(f"buffer_load_dwordx4 v{26+(i&1)}, {sq(SRD_W)}, s{t0+i} offen offset:{1024*i} lds")
    a(f"""
    s_cmp_lt_u32 s{sW}, 10
    s_cbranch_scc0 L_NOH
    s_mov_b32 s{t0}, 52429
    s_mov_b32 s{t1}, {-NB}
    v_mov_b32 v18, 1
    s_waitcnt vmcnt(6)
    """)
    mark()
    for i in range(2):
        a(f"""
        v_mul_u32_u24 v{12+i}, s{t0}, v{4+i}
        v_lshrrev_b32 v{12+i}, 22, v{12+i}
        v_mad_i32_i24 v{14+i}, v{12+i}, s{t1}, v{4+i}
        v_lshlrev_b32 v{12+i}, 2, v{12+i}
        ds_add_rtn_u32 v{16+i}, v{12+i}, v18 offset:{LHIST}
        """)
    a(f"""
    L_NOH:
    v_lshlrev_b32 v29, 3, v{vL}
    s_waitcnt lgkmcnt(0)
    s_barrier                                     ; B2
    s_cmp_lt_u32 s{sW}, 10
    s_cbranch_scc0 L_NOS
    ds_read_b64 v[18:19], v29 offset:{LHIST}
    s_waitcnt lgkmcnt(0)
    v_add_u32 v20, v18, v19
    v_mov_b32 v21, v20
    """)
    scan64(a, 21)
    a(f"""
    v_sub_u32 v22, v21, v20
    v_add_u32 v23, v22, v18
    v_mul_u32_u24 v22, {RB}, v22
    v_mul_u32_u24 v23, {RB}, v23
    ds_write_b64 v29, v[22:23] offset:{LSTART}
    ds_read_b32 v12, v12 offset:{LSTART}
    ds_read_b32 v13, v13 offset:{LSTART}
    s_waitcnt vmcnt(4)
    v_lshl_or_b32 v14, v6, 8, v14
    v_lshl_or_b32 v15, v7, 8, v15
    s_waitcnt lgkmcnt(0)
    v_mad_u32_u24 v12, v16, {RB}, v12
    v_mad_u32_u24 v13, v17, {RB}, v13
    ds_write2_b32 v12, v8, v9 offset0:0 offset1:1
    ds_write_b32 v12, v14 offset:8
    ds_write2_b32 v13, v10, v11 offset0:0 offset1:1
    ds_write_b32 v13, v15 offset:8
    L_NOS:
    s_add_u32 s{sEP}, s{sEP}, 1
    s_mul_i32 s{sTAG}, s{sEP}, 0x9E3779B1
    s_mul_i32 s{sTAGB}, s{sEP}, 0x85EBCA6B
    s_lshr_b32 s{sTAGB}, s{sTAGB}, 25
    s_waitcnt lgkmcnt(0)
    s_barrier                                     ; B3
    """)
    mark()
    vX, vRing, vAcc, vA = 8, 24, 56, 88
    a(f"""
    s_cmp_eq_u32 s{sW}, 12
    s_cbranch_scc0 L_NOCOPY
    v_lshlrev_b32 v4, 4, v{vL}
    s_mul_i32 s{t0}, s{sC}, {CH*RB}
    s_add_u32 s{t0}, s{t0}, {WS_REC}
    """)
    srd(a, SRD_W, sWS, f"s{t0}", CH * RB)
    NCP = CH * RB // 1024
    for i in range(NCP):
        a(f"ds_read_b128 {vr(32+4*i,4)}, v4 offset:{1024*i}")
    a(f"s_mov_b32 s{t0}, 4096\ns_mov_b32 s{t1}, 8192\ns_mov_b32 s{t2}, 12288")
    for i in range(NCP):
        so = "0" if i < 4 else f"s{t0 + i // 4 - 1}"
        a(f"s_waitcnt lgkmcnt({NCP-1-i})\nbuffer_store_dwordx4 {vr(32+4*i,4)}, v4, {sq(SRD_W)}, {so} offen offset:{1024*(i%4)} sc1")
    a(f"""
    ds_read_b64 v[8:9], v29 offset:{LHIST}
    ds_read_b64 v[10:11], v29 offset:{LSTART}
    s_lshl_b32 s{t0}, s{sTAGB}, 25
    s_lshl_b32 s{t1}, s{sC}, 10
    s_add_u32 s{t1}, s{t1}, {WS_OFF}
    v_add_u32 v5, s{t1}, v4
    v_mov_b32 v13, s{sTAG}
    v_mov_b32 v15, s{sTAG}
    s_waitcnt lgkmcnt(0)
    v_lshl_or_b32 v12, v8, 14, v10
    v_lshl_or_b32 v14, v9, 14, v11
    v_or_b32 v12, s{t0}, v12
    v_or_b32 v14, s{t0}, v14
    s_waitcnt vmcnt({NCP})
    s_barrier                                     ; B4
    s_waitcnt vmcnt(0)
    global_store_dwordx4 v5, v[12:15], {sp(sWS)} sc1
    s_branch L_GD
    L_NOCOPY:
    s_cmp_ge_u32 s{sW}, 5
    s_cselect_b32 s{t0}, 2, 0
    s_cmp_ge_u32 s{sW}, 10
    s_cselect_b32 s{t0}, 3, s{t0}
    s_lshl_b32 s{t0}, s{t0}, 14
    s_add_u32 s{t0}, s{t0}, {LW}
    v_lshrrev_b32 v4, 4, v{vL}                    ; sigma
    v_lshlrev_b32 v{vA}, 10, v4
    v_bfe_u32 v5, v{vL}, 2, 2
    v_lshl_add_u32 v{vA}, v5, 7, v{vA}
    v_and_b32 v5, 3, v{vL}
    v_lshl_add_u32 v{vA}, v5, 3, v{vA}
    v_bfe_u32 v5, v{vL}, 3, 2
    v_lshlrev_b32 v5, 5, v5
    v_add3_u32 v{vA}, v{vA}, v5, s{t0}
    v_xor_b32 v{vA+1}, 32, v{vA}
    v_xor_b32 v{vA+2}, 64, v{vA}
    v_xor_b32 v{vA+3}, 0x60, v{vA}
    v_and_b32 v5, 15, v{vL}
    v_xor_b32 v6, v5, v4
    v_lshlrev_b32 v6, 4, v6
    s_add_u32 s{t1}, s{sT0}, {LX}
    v_lshlrev_b32 v7, 8, v5
    v_add3_u32 v92, v6, v7, s{t1}
    v_xor_b32 v93, 64, v92
    v_xor_b32 v94, 0x80, v92
    v_xor_b32 v95, 0xc0, v92
    v_lshlrev_b32 v4, 10, v4
    v_add_u32 v4, s{sT0}, v4
    s_mov_b32 s{sLG}, {hex(NLOG2E)}
    s_waitcnt vmcnt(0)
    s_barrier                                     ; B4
    """)
    for ks in range(4):
        a(f"ds_read_b128 {vr(vX+4*ks,4)}, v{92+ks}")
    steps, rd, n, depth = gemm(a, 2, vA, vX, vRing, 6, vAcc)

    def mf(s):
        ks, m, t = steps[s]
        acc = vAcc + (m * 4 + t) * 4
        c = "0" if ks == 0 else vr(acc, 4)
        a(f"v_mfma_f32_16x16x32_bf16 {vr(acc,4)}, {vr(vX+4*ks,4)}, {vr(vRing+4*(s%6),4)}, {c}")

    for s in range(depth):
        rd(s)
    for s in range(n):
        if s == 16:
            a(f"s_cmp_ge_u32 s{sW}, 5\ns_cbranch_scc1 L_GAU")
        issued = min(n, s + depth)
        a(f"s_waitcnt lgkmcnt({2*(issued-s-1)})")
        mf(s)
        if s + depth < n:
            rd(s + depth)
    a(f"""
    s_mul_i32 s{t0}, s{sH}, {T_HALF//128}
    s_mul_i32 s{t1}, s{sB}, {NB*256}
    s_add_u32 s{t0}, s{t0}, s{t1}
    v_lshlrev_b32 v5, 4, v5
    v_add3_u32 v4, v4, v5, s{t0}
    s_mov_b32 s{t1}, 0x07060302
    s_setreg_imm32_b32 hwreg(HW_REG_MODE, 4, 2), 0
    """)
    for i in range(4):
        P = vRing + 4 * i
        b = [vAcc + 4 * t + i for t in range(4)]
        h = [vAcc + 16 + 4 * t + i for t in range(4)]
        for t in range(4):
            a(f"v_mul_f32 v{b[t]}, s{sLG}, v{b[t]}")
        for t in (0, 1, 3):
            a(f"v_add_f32 v{h[t]}, 0, v{h[t]}")
        for t in (2, 0, 3, 1):
            a(f"v_add_u32 v{h[t]}, 0x8000, v{h[t]}")
        SD = "clamp dst_sel:DWORD dst_unused:UNUSED_PAD src0_sel:DWORD src1_sel:WORD_1"
        a(f"""
        v_sub_u32_sdwa v{h[0]}, v{h[0]}, v{h[2]} {SD}
        v_cvt_pk_bf16_f32 v{P+2}, v{b[0]}, v{b[1]}
        v_sub_u32_sdwa v{h[3]}, v{h[3]}, v{h[0]} {SD}
        v_cvt_pk_bf16_f32 v{P+3}, v{b[2]}, v{b[3]}
        v_sub_u32_sdwa v{h[1]}, v{h[1]}, v{h[3]} {SD}
        v_perm_b32 v{P}, v{h[0]}, v{h[2]}, s{t1}
        v_perm_b32 v{P+1}, v{h[1]}, v{h[3]}, s{t1}
        global_store_dwordx4 v4, {vr(P,4)}, {sp(sWS)} offset:{256*i} sc1
        """)
    a(f"""
    s_setreg_imm32_b32 hwreg(HW_REG_MODE, 4, 2), 3
    s_branch L_GD
    L_GAU:
    s_waitcnt lgkmcnt(0)
    s_cmp_ge_u32 s{sW}, 10
    s_cbranch_scc1 L_GU
    v_lshl_add_u32 v4, v5, 4, v4
    s_nop 3
    """)
    for i in range(4):
        P = vRing + 4 * i
        for t in range(4):
            a(f"v_mul_f32 v{P+t}, s{sLG}, v{vAcc+4*t+i}")
        a(f"ds_write_b128 v4, {vr(P,4)} offset:{LA+256*i}")
    a(f"""
    s_branch L_GD
    L_GU:
    v_lshl_add_u32 v4, v5, 2, v4
    v_lshlrev_b32 v4, 1, v4
    v_add_u32 v4, {LAGG}, v4
    s_nop 1
    """)
    for i in range(4):
        for t in range(4):
            a(f"v_cvt_f64_f32 {vr(vX+8*i+2*t,2)}, v{vAcc+4*t+i}")
        for t in (0, 2):
            a(f"ds_write2_b64 v4, {vr(vX+8*i+2*t,2)}, {vr(vX+8*i+2*t+2,2)} offset0:{64*i+16*t} offset1:{64*i+16*t+16}")
    a("L_GD:")
    mark()
    srd(a, SRD_R, sWS, WS_OFF, NCH * 1024)
    a(f"""
    v_lshrrev_b32 v40, 2, v0
    s_lshl_b32 s{t0}, s{sB}, 3
    v_lshl_add_u32 v41, v40, 10, s{t0}
    buffer_load_dwordx2 v[42:43], v41, {sq(SRD_R)}, 0 offen sc1
    """)
    a(f"""
    v_bfe_u32 v4, v{vL}, 2, 2
    v_lshrrev_b32 v5, 4, v{vL}
    v_and_b32 v6, 3, v{vL}
    v_lshlrev_b32 v7, 7, v4
    v_lshl_add_u32 v7, v5, 5, v7
    v_lshl_add_u32 v7, v6, 3, v7
    ds_read_b64_tr_b16 v[44:45], v7 offset:{LCW}
    v_cmp_eq_u32 vcc, v5, v4
    v_mov_b32 v7, 0x3f80
    v_cmp_eq_u32 {sp(sEM)}, v5, v6
    v_cndmask_b32 v{vAo}, 0, v7, vcc
    v_mov_b32 v{vAo+1}, 0
    v_lshlrev_b32 v6, 4, v6
    v_lshlrev_b64 {vr(vAo,2)}, v6, {vr(vAo,2)}
    """)
    for g in range(4):
        if g:
            a(f"v_mov_b64 {vr(vAo+4*g,2)}, {vr(vAo,2)}")
        a(f"v_mov_b64 {vr(vAo+4*g+2,2)}, 0")
    a(f"""
    v_and_b32 v{vLO+1}, 15, v{vL}
    v_lshlrev_b32 v{vLO}, 4, v{vLO+1}
    v_lshlrev_b32 v{vLO+1}, 3, v{vLO+1}
    v_add_u32 v{vLO+1}, {LAGG}, v{vLO+1}
    s_mov_b32 s{sLG}, {hex(NLOG2E)}
    s_mov_b32 s{t1}, 0xffff0000
    s_mov_b32 s{s12}, 1.0
    s_mov_b32 s{s12+1}, 2.0
    s_mov_b32 s{sINC}, 16
    s_mov_b32 s{sINC+1}, 8
    s_mov_b32 s{sTHR}, 0
    s_mov_b32 s{sTHR+1}, 0x5f800000
    s_mov_b32 s{sFIRST}, 1
    s_mov_b32 s{sSPIN}, {SPIN}
    v_mul_u32_u24 v{vRO}, {CH*RB}, v40
    v_and_b32 v46, 3, v0
    v_mad_u32_u24 v{vRO}, v46, {RB}, v{vRO}
    s_waitcnt lgkmcnt(0)
    v_lshlrev_b32 v4, 16, v44
    v_and_b32 v44, s{t1}, v44
    v_lshlrev_b32 v5, 16, v45
    v_and_b32 v45, s{t1}, v45
    v_mul_f32 v4, s{sLG}, v4
    v_mul_f32 v44, s{sLG}, v44
    v_mul_f32 v5, s{sLG}, v5
    v_mul_f32 v45, s{sLG}, v45
    v_cvt_pk_bf16_f32 v{vCw}, v4, v44
    v_cvt_pk_bf16_f32 v{vCw+1}, v5, v45
    v_cmp_gt_u32 vcc, {NCH}, v40
    s_mov_b64 exec, vcc
    L_POLL:
    s_waitcnt vmcnt(0)
    v_lshrrev_b32 v4, 25, v42
    v_cmp_ne_u32 vcc, s{sTAG}, v43
    v_cmp_ne_u32 {sp(t0)}, s{sTAGB}, v4
    s_or_b64 exec, vcc, {sp(t0)}
    s_cbranch_execz L_POLLED
    s_sub_u32 s{sSPIN}, s{sSPIN}, 1
    s_cbranch_scc1 L_POLLX
    buffer_load_dwordx2 v[42:43], v41, {sq(SRD_R)}, 0 offen sc1
    s_branch L_POLL
    L_POLLX:
    v_mov_b32 v42, 0
    L_POLLED:
    s_mov_b64 exec, -1
    """)
    mark()
    srd(a, SRD_R, sWS, WS_REC, E * RB)
    a(f"""
    v_bfe_u32 v{vRem}, v42, 14, 11
    v_and_b32 v42, 0x3fff, v42
    v_sub_u32 v{vRem}, v{vRem}, v46
    v_add_u32 v{vRO}, v{vRO}, v42
    L_WINDOW:
    """)
    vRec = 8
    vCa, vNb = 36, 44
    for k in range(KMAX):
        a(f"v_cmp_lt_i32 {sp(sM+2*k)}, {4*k}, v{vRem}")
    a(f"""
    L_ROUND:
    s_or_b64 {sp(sU5)}, {sp(sM+10)}, {sp(sM+12)}
    s_or_b64 {sp(sU4)}, {sp(sU5)}, {sp(sM+8)}
    """)

    def kloop(done, body):
        for k in range(KMAX):
            if k == 4:
                a(f"s_cmp_eq_u64 {sp(sU4)}, 0\ns_cbranch_scc1 {done}")
            if k == 5:
                a(f"s_cmp_eq_u64 {sp(sU5)}, 0\ns_cbranch_scc1 {done}")
            a(f"s_mov_b64 exec, {sp(sM+2*k)}")
            body(k)
        a(f"{done}:\ns_mov_b64 exec, -1")

    kloop("L_RL", lambda k: a(f"buffer_load_dwordx3 {vr(vRec+4*k,3)}, v{vRO}, {sq(SRD_R)}, 0 offen offset:{48*k} sc1"))
    a(f"""
    ; table job of this thread: node = tid/12, i = tid%12
    v_mul_u32_u24 v4, 5462, v0
    v_lshrrev_b32 v4, 16, v4
    v_mad_i32_i24 v5, v4, -12, v0
    v_lshlrev_b32 v{vJ}, 2, v4
    v_lshlrev_b32 v{vJ+1}, 2, v5
    s_mov_b32 s{t0}, {SLOTB}
    v_mov_b32 v6, {LSLOT}
    v_mad_u32_u24 v{vJ+5}, v4, s{t0}, v6
    v_lshl_add_u32 v{vJ+2}, v5, 4, v{vJ+5}
    v_lshlrev_b32 v{vJ+3}, 8, v4
    v_lshl_add_u32 v{vJ+4}, v5, 5, v{vJ+5}
    v_cmp_le_u32 vcc, {NB}, v4
    v_mov_b32 v7, {LDUM}
    s_mul_i32 s{t1}, s{sH}, {T_HALF//128}
    v_cndmask_b32 v{vJ+2}, v{vJ+2}, v7, vcc
    v_cndmask_b32 v{vJ+3}, v{vJ+3}, 0, vcc
    v_cndmask_b32 v{vJ+4}, v{vJ+4}, v6, vcc
    """)
    srd(a, SRD_T, sWS, f"s{t1}", T_HALF)
    a(f"""
    v_mov_b32 v4, 1
    s_mov_b32 s{t0}, {SLOTB//4}
    s_mov_b32 s{t1}, 0xffffff00
    s_waitcnt lgkmcnt(0)
    s_barrier                                     ; B5
    s_cmp_eq_u32 s{sW}, 12
    s_cselect_b32 s{t2}, s{sFIRST}, 0
    s_cmp_eq_u32 s{t2}, 0
    s_cbranch_scc1 L_NOSIG
    s_bfe_u32 s{t2}, s2, 0x10003
    s_lshl_b32 s{t2}, s{t2}, 6
    s_add_u32 s{t2}, s{t2}, s{sH}
    v_mov_b32 v5, s{t2}
    s_mov_b64 exec, 1
    global_atomic_add v5, v4, {sp(sDBG)} sc1
    s_waitcnt vmcnt(1)
    s_branch L_SIGD
    L_NOSIG:
    s_waitcnt vmcnt(0)
    L_SIGD:
    """)
    mark()

    def hist(k):
        a(f"""
        v_lshlrev_b32_sdwa v{vCa+k}, 2, v{vRec+4*k+2} dst_sel:DWORD dst_unused:UNUSED_PAD src0_sel:DWORD src1_sel:BYTE_0
        v_and_b32 v{vRec+4*k+2}, s{t1}, v{vRec+4*k+2}
        ds_add_rtn_u32 v{vRec+4*k+3}, v{vCa+k}, v4 offset:{LCNT}
        v_mad_u32_u24 v{vNb+k}, v{vCa+k}, s{t0}, v6
        """)

    kloop("L_HD", hist)
    a("s_waitcnt lgkmcnt(0)")

    def scat(k):
        a(f"""
        v_cmpx_gt_u32 vcc, {CAP}, v{vRec+4*k+3}
        v_lshl_add_u32 v{vCa+k}, v{vRec+4*k+3}, 2, v{vNb+k}
        v_lshl_add_u32 v{vNb+k}, v{vRec+4*k+3}, 3, v{vNb+k}
        s_andn2_b64 {sp(sM+2*k)}, {sp(sM+2*k)}, vcc
        ds_write_b32 v{vCa+k}, v{vRec+4*k+2}
        ds_write_b64 v{vNb+k}, {vr(vRec+4*k,2)} offset:256
        """)

    kloop("L_SD", scat)
    a(f"""
    v_cmp_lt_i32 vcc, {4*KMAX}, v{vRem}
    s_or_b64 {sp(sU4)}, {sp(sM)}, {sp(sM+2)}
    s_or_b64 {sp(sU5)}, {sp(sM+4)}, {sp(sM+6)}
    s_or_b64 {sp(sU4)}, {sp(sU4)}, {sp(sM+8)}
    s_or_b64 {sp(sU5)}, {sp(sU5)}, {sp(sM+10)}
    s_or_b64 {sp(sU4)}, {sp(sU4)}, {sp(sM+12)}
    s_or_b64 {sp(sU4)}, {sp(sU4)}, {sp(sU5)}
    v_mov_b32 v5, {LFLAG}
    v_lshlrev_b32 v7, 3, v{vL}
    s_or_b64 exec, vcc, {sp(sU4)}
    ds_write_b32 v5, v4
    s_mov_b64 exec, -1
    s_waitcnt lgkmcnt(0)
    s_barrier                                     ; B6
    """)
    mark()
    vW = (8, 32)
    a(f"""
    ds_read_b64 v[56:57], v7 offset:{LCNT}
    ds_read_b32 v58, v5
    """)
    for k in range(8):
        a(f"v_mov_b64 {vr(vW[0]+6*k+4,2)}, {vr(vCw,2)}")
    a(f"""
    s_waitcnt lgkmcnt(0)
    v_min_u32 v56, {CAP}, v56
    v_min_u32 v57, {CAP}, v57
    v_readfirstlane_b32 s{sMORE}, v58
    v_add_u32 v60, 3, v56
    v_add_u32 v61, 3, v57
    v_lshrrev_b32 v60, 2, v60
    v_lshrrev_b32 v61, 2, v61
    v_add_u32 v62, v60, v61
    v_mov_b32 v63, v62
    """)
    scan64(a, 63)
    a(f"""
    v_sub_u32 v64, v63, v62
    v_add_u32 v65, v64, v60
    v_lshl_or_b32 v56, v64, 8, v56
    v_lshl_or_b32 v57, v65, 8, v57
    ds_write_b64 v7, v[56:57] offset:{LQS}
    ds_read_b32 v56, v{vJ} offset:{LQS}
    v_readlane_b32 s{sNG}, v64, {NB//2}
    v_lshrrev_b32 v4, 4, v{vL}
    v_bfe_u32 v5, v{vL}, 2, 2
    v_mov_b32 v59, {DUMMY}
    s_add_u32 s{sNG}, s{sNG}, 3
    s_lshr_b32 s{sNG}, s{sNG}, 2                  ; groups
    s_lshr_b32 s{t0}, s{sNG}, 4
    s_and_b32 s{t1}, s{sNG}, 15
    s_mul_i32 s{t2}, s{t0}, s{sW}
    s_min_u32 s{t3}, s{sW}, s{t1}
    s_add_u32 s{t2}, s{t2}, s{t3}
    s_cmp_lt_u32 s{sW}, s{t1}
    s_addc_u32 s{sN}, s{t0}, 0
    s_mov_b32 s{t0}, {LTA}
    s_mov_b32 s{t1}, {LTE}
    s_waitcnt lgkmcnt(0)
    v_and_b32 v57, 0xff, v56                      ; count
    v_lshrrev_b32 v56, 6, v56
    v_and_b32 v56, -4, v56
    v_add_u32 v56, v56, v{vJ+1}
    v_sub_u32 v60, 0, v57
    v_and_b32 v60, 3, v60
    v_lshlrev_b32 v60, 2, v60
    v_cmp_lt_u32 {sp(sU5)}, v{vJ+1}, v60
    v_lshl_add_u32 v61, v57, 2, v{vJ+1}
    v_add_u32 v61, v61, v{vJ+5}
    v_lshl_add_u32 v62, v56, 1, s{t0}
    v_add_u32 v63, s{t1}, v56
    v_cmpx_lt_u32 vcc, v{vJ+1}, v57
    v_add_u32 v64, 48, v{vJ+1}
    ds_write_b64 v62, {vr(vJ+2,2)}
    ds_write_b32 v63, v{vJ+4}
    v_cmp_lt_u32 vcc, v64, v57
    s_cbranch_vccnz L_BIG
    L_BIGD:
    s_mov_b64 exec, {sp(sU5)}
    ds_write_b32 v61, v59
    s_mov_b64 exec, -1
    """)
    vT, vAp, vS = 56, 80, 84
    vTQ = (88, 76)
    vNA = (90, 92)
    vP = 94
    vSh, vQE = 96, 106
    vDn, vNm, vAa, vCk = 72, 100, 4, 78
    vSh2 = 104
    vD = (78, 124, 4, 6)

    def sh(g):
        return (96, 98, 104, 124)[g]

    a(f"""
    v_mov_b32 v6, s{t2}
    v_mad_u32_u24 v4, v4, s{sNG}, v6
    v_mad_u32_u24 v5, v5, s{sNG}, v6
    v_lshl_add_u32 v{vP}, v4, 3, s{t0}
    v_lshl_add_u32 v{vP+1}, v5, 2, s{t1}
    s_cmp_eq_u32 s{sW}, 12
    s_cselect_b32 s{t2}, s{sFIRST}, 0
    s_cmp_eq_u32 s{t2}, 0
    s_cbranch_scc1 L_TRDY
    v_lshl_add_u32 v4, v{vL}, 6, s{sH}
    s_mov_b32 s{sSPIN}, {SPIN}
    s_mov_b64 exec, 3
    L_TPOLL:
    global_load_dword v5, v4, {sp(sDBG)} sc1
    s_sub_u32 s{sSPIN}, s{sSPIN}, 1
    s_cbranch_scc1 L_TX
    s_waitcnt vmcnt(0)
    v_readlane_b32 s{t2}, v5, 0
    v_readlane_b32 s{t3}, v5, 1
    s_add_u32 s{t2}, s{t2}, s{t3}
    s_cmp_lt_u32 s{t2}, {NBK}
    s_cbranch_scc1 L_TPOLL
    L_TX:
    s_mov_b64 exec, -1
    L_TRDY:
    s_mov_b32 s{sFIRST}, 0
    s_waitcnt vmcnt(0) lgkmcnt(0)
    s_barrier                                     ; B7
    """)
    mark()
    if stamp:
        a("s_memtime s[90:91]\ns_waitcnt lgkmcnt(0)")

    def saddr(S):
        a(f"""
        v_pk_add_f32 {vr(S,2)}, {vr(S,2)}, {vr(vLO,2)} op_sel_hi:[1,0]
        v_pk_add_f32 {vr(S+2,2)}, {vr(S+2,2)}, {vr(vLO,2)} op_sel_hi:[1,0]
        """)

    def loads(p, S):
        for g in range(4):
            a(f"buffer_load_dwordx4 {vr(vW[p]+6*g,4)}, v{S+g}, {sq(SRD_T)}, 0 offen sc1")

    def naddr(p, TQ):
        a(f"v_pk_fma_f32 {vr(vNA[p],2)}, {vr(TQ,2)}, {sp(s12)}, {vr(vLO,2)} op_sel:[1,0,0] op_sel_hi:[1,1,1]")

    def eread(q):
        a(f"s_mov_b64 exec, {sp(sEM)}")
        for g in range(4):
            a(f"ds_read_b64 {vr(vAo+4*g+2,2)}, v{q} offset:{256+8*g}")
        a("s_mov_b64 exec, -1")

    def hv(W, g, h):
        return vr(W + 6 * g, 2) if h == 0 else vr(sh(g), 2)

    def mfma(p, g):
        return f"v_mfma_f32_16x16x32_bf16 {vr(vT+4*g,4)}, {vr(vAo+4*g,4)}, {vr(vW[p]+6*g+2,4)}, {vr(vAp,4)}"

    def flush(p):
        a(f"""
        v_pk_mul_f32 {vr(vNm,2)}, {vr(vNm,2)}, {vr(vDn,2)}
        v_pk_mul_f32 {vr(vNm+2,2)}, {vr(vNm+2,2)}, {vr(vDn+2,2)}
        """)
        for t in range(4):
            a(f"v_cvt_f64_f32 {vr(vD[t],2)}, v{vNm+t}")
        for t in range(4):
            a(f"ds_add_f64 v{vNA[p]+1}, {vr(vD[t],2)} offset:{128*t}")

    a(f"""
    s_cmp_eq_u32 s{sN}, 0
    s_cbranch_scc1 L_LD
    s_setprio 3
    ds_read_b64 {vr(vT,2)}, v{vP}
    ds_read_b64 {vr(vTQ[1],2)}, v{vP} offset:8
    ds_read_b32 v{vT+2}, v{vP+1}
    ds_read_b64 {vr(vTQ[0],2)}, v{vP} offset:16
    ds_read_b32 v{vQE}, v{vP+1} offset:4
    v_mov_b32 v{vNA[1]+1}, v{vLO+1}
    v_mov_b64 {vr(vNm,2)}, 0
    v_mov_b64 {vr(vNm+2,2)}, 0
    s_waitcnt lgkmcnt(4)
    ds_read_b128 {vr(vT+4,4)}, v{vT}
    """)
    naddr(0, vT)
    a(f"""
    s_waitcnt lgkmcnt(3)
    ds_read_b128 {vr(vS,4)}, v{vTQ[1]}
    ds_read_b128 {vr(vAp,4)}, v{vNA[0]} offset:{LA}
    """)
    eread(vT + 2)
    for t in range(4):
        a(f"v_mov_b32 v{vDn+t}, 1.0")
    a("s_waitcnt lgkmcnt(6)")
    saddr(vT + 4)
    loads(0, vT + 4)
    a(f"""
    s_add_u32 s{sN}, s{sN}, 1
    s_branch L_SB1
    """)
    for p in range(2):
        W = vW[p]
        a(f"""
        L_L{p}:
        ds_read_b128 {vr(vS,4)}, v{vTQ[p]}
        """)
        for i in range(16):
            a(f"v_exp_f32 v{vT+i}, v{vT+i}")
            if i == 7:
                eread(vQE)
                a(f"ds_read_b32 v{vQE}, v{vP+1} offset:{8+4*p}")
        flush(p ^ 1)
        naddr(p ^ 1, vTQ[p ^ 1])
        for g in range(4):
            a(f"v_lshlrev_b64 {vr(sh(g),2)}, 16, {vr(W+6*g,2)}")
            if g == 0:
                a(f"ds_read_b128 {vr(vAp,4)}, v{vNA[p^1]} offset:{LA}")
                a(f"ds_read_b64 {vr(vTQ[p^1],2)}, v{vP} offset:{24+8*p}")
        if p == 1:
            a(f"v_pk_add_f32 {vr(vP,2)}, {vr(vP,2)}, {sp(sINC)}")
        for h in range(2):
            a(f"v_pk_add_f32 {vr(vDn+2*h,2)}, {vr(vT+2*h,2)}, 1.0 op_sel_hi:[1,0]")
        for g in range(1, 4):
            for h in range(2):
                src = hv(W, 0, h) if g == 1 else vr(vNm + 2 * h, 2)
                a(f"v_pk_fma_f32 {vr(vAa+2*h,2)}, {src}, {vr(vT+4*g+2*h,2)}, {src}")
            for h in range(2):
                a(f"v_pk_fma_f32 {vr(vNm+2*h,2)}, {hv(W,g,h)}, {vr(vDn+2*h,2)}, {vr(vAa+2*h,2)}")
            for h in range(2):
                a(f"v_pk_fma_f32 {vr(vDn+2*h,2)}, {vr(vDn+2*h,2)}, {vr(vT+4*g+2*h,2)}, {vr(vDn+2*h,2)}")
        a(f"""
        v_pk_fma_f32 {vr(vCk,2)}, {vr(vDn,2)}, {vr(vDn+2,2)}, {sp(sTHR)} neg_hi:[1,0,0]
        v_cmp_nle_f32 vcc, v{vCk}, v{vCk+1}
        s_cbranch_vccnz L_SAFE{p}
        L_SB{p}:
        s_cmp_le_u32 s{sN}, 2
        s_waitcnt lgkmcnt(0)
        """)
        saddr(vS)
        a(f"s_cbranch_scc1 L_TAIL{p}")
        loads(p, vS)
        a(f"""
        s_waitcnt vmcnt(4)
        L_M{p}:
        """)
        for g in range(4):
            a(mfma(p ^ 1, g))
            a(f"v_rcp_f32 v{vDn+g}, v{vDn+g}")
        a(f"""
        s_sub_u32 s{sN}, s{sN}, 1
        s_cmp_eq_u32 s{sN}, 4
        s_cbranch_scc1 L_PR{p}
        """)
        if p == 1:
            a("s_branch L_L0")
    for p in range(2):
        a(f"""
        L_PR{p}:
        s_setprio 2
        s_branch L_L{p^1}
        L_TAIL{p}:
        s_setprio 0
        s_cmp_eq_u32 s{sN}, 2
        s_waitcnt vmcnt(0)
        s_cbranch_scc1 L_M{p}
        """)
        for g in range(4):
            a(f"v_rcp_f32 v{vDn+g}, v{vDn+g}")
        a("s_nop 0")
        flush(p)
        if p == 0:
            a("s_branch L_LD")
    a(f"""
    L_LD:
    s_waitcnt lgkmcnt(0)
    """)
    mark()
    if stamp:
        a("s_memtime s[94:95]\ns_waitcnt lgkmcnt(0)\ns_sub_u32 s94, s94, s90\nv_writelane_b32 v107, s94, 15")
    a(f"""
    s_barrier                                     ; B8
    s_cmp_eq_u32 s{sMORE}, 0
    s_cbranch_scc0 L_MORE
    s_cmp_lt_u32 s{sW}, 10
    s_cbranch_scc0 L_EPO
    v_lshlrev_b32 v4, 6, v0
    ds_read_b128 v[24:27], v4 offset:{LAGG}
    ds_read_b128 v[28:31], v4 offset:{LAGG+16}
    ds_read_b128 v[32:35], v4 offset:{LAGG+32}
    ds_read_b128 v[36:39], v4 offset:{LAGG+48}
    s_mul_i32 s{t1}, s{sB}, {NB*256}
    s_add_u32 s{t1}, s{t1}, s{sH}
    v_lshrrev_b32 v5, 3, v0
    v_lshlrev_b32 v5, 8, v5
    v_and_b32 v6, 7, v0
    v_lshlrev_b32 v6, 4, v6
    v_add3_u32 v5, v5, v6, s{t1}
    s_waitcnt lgkmcnt(0)
    """)
    for i in range(8):
        a(f"v_cvt_f32_f64 v{8+i}, {vr(24+2*i,2)}")
    for i in range(8):
        a(f"v_mul_f32 v{16+i}, s{sLG}, v{8+i}")
    for i in range(8):
        a(f"v_exp_f32 v{16+i}, v{16+i}")
    for i in range(4):
        a(f"v_pk_add_f32 {vr(16+2*i,2)}, {vr(16+2*i,2)}, 1.0 op_sel_hi:[1,0]")
    for i in range(8):
        a(f"v_rcp_f32 v{16+i}, v{16+i}")
    for i in range(4):
        a(f"v_pk_mul_f32 {vr(16+2*i,2)}, {vr(16+2*i,2)}, {vr(8+2*i,2)}")
    for i in range(4):
        a(f"v_cvt_pk_bf16_f32 v{8+i}, v{16+2*i}, v{17+2*i}")
    a(f"""
    global_store_dwordx4 v5, v[8:11], {sp(sOUT)}
    s_branch L_FIN
    L_EPO:
    s_lshl_b32 s{t0}, s2, 4
    s_add_u32 s{t0}, s{t0}, s{sW}
    s_cmp_eq_u32 s{t0}, 12
    s_cbranch_scc0 L_FIN
    v_mov_b32 v4, {WS_EPOCH}
    v_mov_b32 v5, s{sEP}
    s_mov_b64 exec, 1
    global_store_dword v4, v5, {sp(sWS)} sc1
    s_mov_b64 exec, -1
    L_FIN:
    """)
    if stamp:
        a("s_waitcnt vmcnt(0)")
        mark()
        a(f"""
        s_lshl_b32 s3, s2, 4
        s_add_u32 s3, s3, s{sW}
        s_lshl_b32 s3, s3, 6
        s_add_u32 s3, s3, {WS_STAMP}
        v_lshl_add_u32 v4, v{vL}, 2, s3
        s_mov_b64 exec, 0xffff
        global_store_dword v4, v107, {sp(sWS)}
        """)
    a("s_endpgm")
    for p in range(2):
        W = vW[p]
        a(f"L_SAFE{p}:")
        for i in range(8):
            a(f"v_pk_add_f32 {vr(vT+2*i,2)}, {vr(vT+2*i,2)}, 1.0 op_sel_hi:[1,0]")
        for i in range(16):
            a(f"v_rcp_f32 v{vT+i}, v{vT+i}")
        for t in range(4):
            a(f"v_mov_b32 v{vDn+t}, 1.0")
        for g in range(4):
            for h in range(2):
                o = 4 * g + 2 * h
                if g == 0:
                    a(f"v_pk_mul_f32 {vr(vNm+2*h,2)}, {vr(vT+o,2)}, {hv(W,g,h)}")
                else:
                    a(f"v_pk_fma_f32 {vr(vNm+2*h,2)}, {vr(vT+o,2)}, {hv(W,g,h)}, {vr(vNm+2*h,2)}")
        a(f"s_branch L_SB{p}")
    a(f"""
    L_BIG:
    s_mov_b64 exec, vcc
    v_add_u32 v{vJ+2}, {12*16}, v{vJ+2}
    v_add_u32 v{vJ+4}, {12*32}, v{vJ+4}
    ds_write_b64 v62, {vr(vJ+2,2)} offset:{12*8}
    ds_write_b32 v63, v{vJ+4} offset:{12*4}
    s_branch L_BIGD
    L_MORE:
    v_mov_b64 {vr(vCw,2)}, {vr(vW[0]+4,2)}
    s_cmp_lt_u32 s{sW}, 3
    s_cbranch_scc0 L_MORE2
    v_lshlrev_b32 v4, 2, v0
    v_cmp_eq_u32 vcc, {NB}, v0
    v_mov_b32 v6, 32
    s_nop 0
    v_cndmask_b32 v5, 0, v6, vcc
    v_cmp_gt_u32 vcc, 132, v0
    s_mov_b64 exec, vcc
    ds_write_b32 v4, v5 offset:{LCNT}
    s_mov_b64 exec, -1
    L_MORE2:
    s_cmp_eq_u64 {sp(sU4)}, 0
    s_cbranch_scc0 L_ROUND
    v_subrev_u32 v{vRem}, {4*KMAX}, v{vRem}
    v_add_u32 v{vRO}, {48*KMAX}, v{vRO}
    s_branch L_WINDOW
    L_END:
    """)
    return a.text(), NST[0]


def build(stamp=False):
    body, nst = kernel(stamp)
    return f"""; Kernarg layout (80 bytes, pointers): x, e_attr, src, dst, u_w, v_w, g_w, out, debug, ws
; @launch grid=(256,1,1) block=(1024,1,1) lds={LDS}
.amdgcn_target "amdgcn-amd-amdhsa--gfx950"
.text
.globl {NAME}
.p2align 8
.type {NAME},@function
{NAME}:
{body}    s_endpgm
.section .rodata,"a"
.p2align 6
.amdhsa_kernel {NAME}
  .amdhsa_next_free_vgpr 128
  .amdhsa_next_free_sgpr 96
  .amdhsa_accum_offset 128
  .amdhsa_group_segment_fixed_size 0
  .amdhsa_kernarg_size 80
  .amdhsa_user_sgpr_count 2
  .amdhsa_user_sgpr_kernarg_segment_ptr 1
  .amdhsa_system_sgpr_workgroup_id_x 1
  .amdhsa_float_denorm_mode_32 3
.end_amdhsa_kernel
"""


if __name__ == "__main__":
    open(sys.argv[1], "w").write(build(stamp="--stamp" in sys.argv))
```

```python
import sys, os
X = set(os.environ.get('X', '').split('+'))
NAME = "standalone__edge_featured_mpnn_egc__graph_kernel"
N, E = 10000, 320000
NB, NBK, CH, NCH = 80, 125, 1280, 250
T_HALF = N * 256
RB = 12
WS_T, WS_REC, WS_OFF, WS_EPOCH, WS_STAMP = 0, 0x500000, 0xA00000, 0xA80000, 0xB00000
NLOG2E = 0xBFB8AA3B
KA = dict(x=0, e=8, src=16, dst=24, u=32, v=40, g=48, out=56, dbg=64, ws=72)
LA, LAGG = 0, 20480
LHIST, LCNT, LFLAG, LDUM = 61440, 61952, 62464, 62480
LSTART, LQS, LCW = 62720, 63232, 63744
LW = 64256
LX = LW + 65536
LDS = LX + 20480
LSLOT, SLOTB, CAP = LW, 784, 64
LTA, LTE = LX, LX + 10496
KMAX = 7
DUMMY = 0x400000
SPIN = 1 << 17
assert LW % 256 == 0 and LDS <= 163840


class Asm:
    def __init__(self):
        self.l = []

    def __call__(self, s):
        for ln in s.strip("\n").split("\n"):
            ln = ln.strip()
            if ln:
                self.l.append(ln if ln.endswith(":") else "    " + ln)

    def text(self):
        return "\n".join(self.l) + "\n"


def vr(a, n):
    return f"v[{a}:{a+n-1}]" if n > 1 else f"v{a}"


def sp(a):
    return f"s[{a}:{a+1}]"


def sq(a):
    return f"s[{a}:{a+3}]"


def srd(a, d, base, off, size):
    a(f"s_add_u32 s{d}, s{base}, {off}\ns_addc_u32 s{d+1}, s{base+1}, 0")
    a(f"s_mov_b32 s{d+2}, {size}\ns_mov_b32 s{d+3}, 0x20000")


def scan64(a, v):
    for ctl in ("row_shr:1", "row_shr:2", "row_shr:4", "row_shr:8"):
        a(f"s_nop 1\nv_add_u32_dpp v{v}, v{v}, v{v} {ctl} row_mask:0xf bank_mask:0xf")
    a(f"s_nop 1\nv_add_u32_dpp v{v}, v{v}, v{v} row_bcast:15 row_mask:0xa bank_mask:0xf")
    a(f"s_nop 1\nv_add_u32_dpp v{v}, v{v}, v{v} row_bcast:31 row_mask:0xc bank_mask:0xf")


def gemm(a, nmat, vA, vX, vRing, nslot, vAcc):
    steps = [(ks, m, t) for m in range(nmat) for ks in range(4) for t in range(4)]
    n, depth = len(steps), nslot - 1

    def rd(s):
        ks, m, t = steps[s]
        r = vRing + 4 * (s % nslot)
        o = m * 16384 + ks * 4096
        a(f"ds_read_b64_tr_b16 {vr(r,2)}, v{vA+t} offset:{o}")
        a(f"ds_read_b64_tr_b16 {vr(r+2,2)}, v{vA+t} offset:{o+512}")

    return steps, rd, n, depth


def kernel(stamp):
    a = Asm()
    NST = [0]

    PROBE = [int(x) for x in os.environ["PROBE"].split(",")] if os.environ.get("PROBE") else None

    def mark():
        if stamp:
            a(f"s_memrealtime s[92:93]\ns_waitcnt lgkmcnt(0)\nv_writelane_b32 v107, s92, {NST[0]}")
        if PROBE and NST[0] in PROBE[1:]:
            r = 80 + 2 * PROBE[1:].index(NST[0])
            a(f"s_memrealtime s[{r}:{r+1}]\ns_waitcnt lgkmcnt(0)")
        NST[0] += 1

    sX, sE, sSRC, sDST, sU, sV, sG, sOUT, sDBG, sWS = 4, 6, 8, 10, 12, 14, 16, 18, 20, 22
    SRD_T, SRD_R, SRD_W = 24, 28, 32
    sM = 36
    sN, sNG, sT0, sFIRST = 50, 51, 52, 53
    t0, t1, t2, t3 = 54, 55, 56, 57
    sMORE, sW = 58, 59
    sINC, s12, sTHR, sEM = 60, 62, 64, 66
    sH, sB, sC, sEP, sTAG, sTAGB, sSPIN, sLG = 68, 69, 70, 71, 72, 73, 74, 75
    sU5, sU4 = 76, 78
    vL, vLO, vAo, vCw, vRO, vRem = 1, 2, 108, 124, 126, 127
    vJ = 100
    a(f"""
    s_cmp_ge_u32 s2, 256
    s_cbranch_scc1 L_END
    s_bfe_u32 s{t0}, s2, 0x20001
    s_lshl_b32 s{t0}, s{t0}, 5
    s_lshr_b32 s{sB}, s2, 3
    s_add_u32 s{sB}, s{sB}, s{t0}                 ; bucket
    s_cmp_ge_u32 s{sB}, {NBK}
    s_cbranch_scc1 L_END
    """)
    mark()
    a(f"""
    s_load_dwordx16 s[4:19], s[0:1], 0
    s_load_dwordx4 s[20:23], s[0:1], {KA['dbg']}
    v_lshrrev_b32 v4, 6, v0
    v_and_b32 v{vL}, 63, v0
    v_readfirstlane_b32 s{sW}, v4
    s_and_b32 s{t0}, s2, 1
    s_lshl_b32 s{sH}, s{t0}, 7                    ; half*128
    s_lshl_b32 s{sC}, s{sB}, 1
    s_add_u32 s{sC}, s{sC}, s{t0}                 ; chunk
    s_mul_i32 s{t1}, s{sC}, {CH*4}
    v_lshl_add_u32 v12, v0, 3, s{t1}
    v_lshlrev_b32 v13, 1, v12
    """)
    if os.environ.get("WTEST"):
        off = int(os.environ["WTEST"], 0)
        a(f"""
        s_waitcnt lgkmcnt(0)
        s_mul_i32 s{t2}, s{sC}, 16384
        s_add_u32 s{t2}, s{t2}, {off}
        v_lshl_add_u32 v20, v0, 4, s{t2}
        s_memrealtime s[80:81]
        global_store_dwordx4 v20, v[12:15], {sp(sWS)} sc1
        s_waitcnt vmcnt(0)
        s_barrier
        s_memrealtime s[82:83]
        s_waitcnt lgkmcnt(0)
        """)
        if stamp:
            a("v_writelane_b32 v107, s80, 10\nv_writelane_b32 v107, s82, 11")
    a(f"""
    s_cmp_lt_u32 s{sW}, 10
    s_cbranch_scc0 L_NOEDGE
    s_waitcnt lgkmcnt(0)
    global_load_dwordx2 v[4:5], v12, {sp(sDST)}
    global_load_dwordx2 v[6:7], v12, {sp(sSRC)}
    global_load_dwordx4 v[8:11], v13, {sp(sE)}
    s_branch L_EDGED
    L_NOEDGE:
    v_lshlrev_b32 v12, 2, v0
    v_mov_b32 v14, 32
    v_cmp_eq_u32 vcc, {640 + 128 + NB}, v0
    v_mov_b32 v15, {DUMMY}
    v_lshrrev_b32 v16, 2, v0
    v_cndmask_b32 v13, 0, v14, vcc
    v_cmp_eq_u32 vcc, {(640 + 260) // 4}, v16
    s_cmp_eq_u32 s{sW}, 15
    s_cbranch_scc1 L_NOZ
    v_cndmask_b32 v13, v13, v15, vcc
    ds_write_b32 v12, v13 offset:{LHIST - 2560}
    L_NOZ:
    s_waitcnt lgkmcnt(0)
    L_EDGED:
    s_add_u32 s{t2}, s{sWS}, {WS_EPOCH}
    s_addc_u32 s{t3}, s{sWS+1}, 0
    s_load_dword s{sEP}, {sp(t2)}, 0
    v_lshrrev_b32 v26, 3, v{vL}
    v_lshlrev_b32 v26, 8, v26
    v_and_b32 v28, 7, v{vL}
    v_lshlrev_b32 v28, 4, v28
    v_and_b32 v27, 16, v{vL}
    v_lshlrev_b32 v27, 1, v27
    v_xor_b32 v28, v28, v27
    v_add3_u32 v26, v26, v28, s{sH}
    v_xor_b32 v27, 64, v26
    s_add_u32 s{SRD_W}, s{sG}, {128*256}
    s_addc_u32 s{SRD_W+1}, s{sG+1}, 0
    s_cmp_ge_u32 s{sW}, 4
    s_cselect_b64 {sp(SRD_W)}, {sp(sV)}, {sp(SRD_W)}
    s_cmp_ge_u32 s{sW}, 8
    s_cselect_b64 {sp(SRD_W)}, {sp(sG)}, {sp(SRD_W)}
    s_cmp_ge_u32 s{sW}, 12
    s_cselect_b64 {sp(SRD_W)}, {sp(sU)}, {sp(SRD_W)}
    s_mov_b32 s{SRD_W+2}, {128*256}
    s_mov_b32 s{SRD_W+3}, 0x20000
    s_and_b32 s{t0}, s{sW}, 3
    s_lshl_b32 s{t0}, s{t0}, 13
    s_lshl_b32 s{t1}, s{sW}, 12
    s_add_u32 s{t1}, s{t1}, {LW}
    s_cmp_ge_u32 s{sW}, 5
    s_cselect_b32 s{sT0}, 5, 0
    s_cmp_ge_u32 s{sW}, 10
    s_cselect_b32 s{sT0}, 10, s{sT0}
    s_cmp_ge_u32 s{sW}, 13
    s_cselect_b32 s{sT0}, 11, s{sT0}
    s_sub_u32 s{sT0}, s{sW}, s{sT0}
    s_lshl_b32 s{sT0}, s{sT0}, 12                 ; tile*16*256
    s_barrier                                     ; B1
    s_cmp_lt_u32 s{sW}, 10
    s_cbranch_scc1 L_XD
    s_cmp_eq_u32 s{sW}, 12
    s_cbranch_scc1 L_CW
    v_lshrrev_b32 v4, 4, v{vL}
    v_and_b32 v5, 15, v{vL}
    v_xor_b32 v5, v5, v4
    v_lshlrev_b32 v5, 4, v5
    s_mul_i32 s{t2}, s{sB}, {NB*256}
    s_add_u32 s{t2}, s{t2}, s{sT0}
    v_lshlrev_b32 v4, 8, v4
    v_add3_u32 v4, v4, v5, s{t2}
    s_add_u32 s{t3}, s{sT0}, {LX}
    s_mov_b32 m0, s{t3}
    v_xor_b32 v5, 64, v4
    v_xor_b32 v6, 0x80, v4
    v_xor_b32 v7, 0xc0, v4
    """)
    for i in range(4):
        a(f"global_load_lds_dwordx4 v{4+i}, {sp(sX)} offset:{1024*i}")
    a(f"""
    s_branch L_XD
    L_CW:
    v_lshrrev_b32 v4, 3, v{vL}
    v_lshlrev_b32 v4, 8, v4
    v_and_b32 v5, 7, v{vL}
    v_lshlrev_b32 v5, 4, v5
    s_add_u32 s{t2}, s{sH}, {256*256}
    v_add3_u32 v4, v4, v5, s{t2}
    s_mov_b32 m0, {LCW}
    s_mov_b32 exec_hi, 0
    global_load_lds_dwordx4 v4, {sp(sG)}
    s_mov_b32 exec_hi, -1
    L_XD:
    s_mov_b32 m0, s{t1}
    s_add_u32 s{t1}, s{t0}, 1024
    s_add_u32 s{t2}, s{t0}, 2048
    s_add_u32 s{t3}, s{t0}, 3072
    """)
    for i in range(4):
        a(f"buffer_load_dwordx4 v{26+(i&1)}, {sq(SRD_W)}, s{t0+i} offen offset:{1024*i} lds")
    a(f"""
    s_cmp_lt_u32 s{sW}, 10
    s_cbranch_scc0 L_NOH
    s_mov_b32 s{t0}, 52429
    s_mov_b32 s{t1}, {-NB}
    v_mov_b32 v18, 1
    s_waitcnt vmcnt(6)
    """)
    mark()
    for i in range(2):
        a(f"""
        v_mul_u32_u24 v{12+i}, s{t0}, v{4+i}
        v_lshrrev_b32 v{12+i}, 22, v{12+i}
        v_mad_i32_i24 v{14+i}, v{12+i}, s{t1}, v{4+i}
        v_lshlrev_b32 v{12+i}, 2, v{12+i}
        ds_add_rtn_u32 v{16+i}, v{12+i}, v18 offset:{LHIST}
        """)
    a(f"""
    L_NOH:
    v_lshlrev_b32 v29, 3, v{vL}
    s_waitcnt lgkmcnt(0)
    s_barrier                                     ; B2
    s_cmp_lt_u32 s{sW}, 10
    s_cbranch_scc0 L_NOS
    ds_read_b64 v[18:19], v29 offset:{LHIST}
    s_waitcnt lgkmcnt(0)
    v_add_u32 v20, v18, v19
    v_mov_b32 v21, v20
    """)
    scan64(a, 21)
    a(f"""
    v_sub_u32 v22, v21, v20
    v_add_u32 v23, v22, v18
    v_mul_u32_u24 v22, {RB}, v22
    v_mul_u32_u24 v23, {RB}, v23
    ds_write_b64 v29, v[22:23] offset:{LSTART}
    ds_read_b32 v12, v12 offset:{LSTART}
    ds_read_b32 v13, v13 offset:{LSTART}
    s_waitcnt vmcnt(4)
    v_lshl_or_b32 v14, v6, 8, v14
    v_lshl_or_b32 v15, v7, 8, v15
    s_waitcnt lgkmcnt(0)
    v_mad_u32_u24 v12, v16, {RB}, v12
    v_mad_u32_u24 v13, v17, {RB}, v13
    ds_write2_b32 v12, v8, v9 offset0:0 offset1:1
    ds_write_b32 v12, v14 offset:8
    ds_write2_b32 v13, v10, v11 offset0:0 offset1:1
    ds_write_b32 v13, v15 offset:8
    L_NOS:
    s_add_u32 s{sEP}, s{sEP}, 1
    s_mul_i32 s{sTAG}, s{sEP}, 0x9E3779B1
    s_mul_i32 s{sTAGB}, s{sEP}, 0x85EBCA6B
    s_lshr_b32 s{sTAGB}, s{sTAGB}, 25
    s_waitcnt lgkmcnt(0)
    s_barrier                                     ; B3
    """)
    mark()
    vX, vRing, vAcc, vA = 8, 24, 56, 88
    a(f"""
    s_cmp_eq_u32 s{sW}, 12
    s_cbranch_scc0 L_NOCOPY
    v_lshlrev_b32 v4, 4, v{vL}
    s_mul_i32 s{t0}, s{sC}, {CH*RB}
    s_add_u32 s{t0}, s{t0}, {WS_REC}
    """)
    srd(a, SRD_W, sWS, f"s{t0}", CH * RB)
    NCP = CH * RB // 1024
    for i in range(NCP):
        a(f"ds_read_b128 {vr(32+4*i,4)}, v4 offset:{1024*i}")
    a(f"s_mov_b32 s{t0}, 4096\ns_mov_b32 s{t1}, 8192\ns_mov_b32 s{t2}, 12288")
    for i in range(NCP):
        so = "0" if i < 4 else f"s{t0 + i // 4 - 1}"
        a(f"s_waitcnt lgkmcnt({NCP-1-i})\nbuffer_store_dwordx4 {vr(32+4*i,4)}, v4, {sq(SRD_W)}, {so} offen offset:{1024*(i%4)} sc1")
    a(f"""
    ds_read_b64 v[8:9], v29 offset:{LHIST}
    ds_read_b64 v[10:11], v29 offset:{LSTART}
    s_lshl_b32 s{t0}, s{sTAGB}, 25
    s_lshl_b32 s{t1}, s{sC}, 10
    s_add_u32 s{t1}, s{t1}, {WS_OFF}
    v_add_u32 v5, s{t1}, v4
    v_mov_b32 v13, s{sTAG}
    v_mov_b32 v15, s{sTAG}
    s_waitcnt lgkmcnt(0)
    v_lshl_or_b32 v12, v8, 14, v10
    v_lshl_or_b32 v14, v9, 14, v11
    v_or_b32 v12, s{t0}, v12
    v_or_b32 v14, s{t0}, v14
    s_waitcnt vmcnt({NCP})
    s_barrier                                     ; B4
    s_waitcnt vmcnt(0)
    global_store_dwordx4 v5, v[12:15], {sp(sWS)} sc1
    s_branch L_GD
    L_NOCOPY:
    s_cmp_ge_u32 s{sW}, 5
    s_cselect_b32 s{t0}, 2, 0
    s_cmp_ge_u32 s{sW}, 10
    s_cselect_b32 s{t0}, 3, s{t0}
    s_lshl_b32 s{t0}, s{t0}, 14
    s_add_u32 s{t0}, s{t0}, {LW}
    v_lshrrev_b32 v4, 4, v{vL}                    ; sigma
    v_lshlrev_b32 v{vA}, 10, v4
    v_bfe_u32 v5, v{vL}, 2, 2
    v_lshl_add_u32 v{vA}, v5, 7, v{vA}
    v_and_b32 v5, 3, v{vL}
    v_lshl_add_u32 v{vA}, v5, 3, v{vA}
    v_bfe_u32 v5, v{vL}, 3, 2
    v_lshlrev_b32 v5, 5, v5
    v_add3_u32 v{vA}, v{vA}, v5, s{t0}
    v_xor_b32 v{vA+1}, 32, v{vA}
    v_xor_b32 v{vA+2}, 64, v{vA}
    v_xor_b32 v{vA+3}, 0x60, v{vA}
    v_and_b32 v5, 15, v{vL}
    v_xor_b32 v6, v5, v4
    v_lshlrev_b32 v6, 4, v6
    s_add_u32 s{t1}, s{sT0}, {LX}
    v_lshlrev_b32 v7, 8, v5
    v_add3_u32 v92, v6, v7, s{t1}
    v_xor_b32 v93, 64, v92
    v_xor_b32 v94, 0x80, v92
    v_xor_b32 v95, 0xc0, v92
    v_lshlrev_b32 v4, 10, v4
    v_add_u32 v4, s{sT0}, v4
    s_mov_b32 s{sLG}, {hex(NLOG2E)}
    s_waitcnt vmcnt(0)
    s_barrier                                     ; B4
    """)
    for ks in range(4):
        a(f"ds_read_b128 {vr(vX+4*ks,4)}, v{92+ks}")
    steps, rd, n, depth = gemm(a, 2, vA, vX, vRing, 6, vAcc)

    def mf(s):
        ks, m, t = steps[s]
        acc = vAcc + (m * 4 + t) * 4
        c = "0" if ks == 0 else vr(acc, 4)
        a(f"v_mfma_f32_16x16x32_bf16 {vr(acc,4)}, {vr(vX+4*ks,4)}, {vr(vRing+4*(s%6),4)}, {c}")

    for s in range(depth):
        rd(s)
    for s in range(n):
        if s == 16:
            a(f"s_cmp_ge_u32 s{sW}, 5\ns_cbranch_scc1 L_GAU")
        issued = min(n, s + depth)
        a(f"s_waitcnt lgkmcnt({2*(issued-s-1)})")
        mf(s)
        if s + depth < n:
            rd(s + depth)
    a(f"""
    s_mul_i32 s{t0}, s{sH}, {T_HALF//128}
    s_mul_i32 s{t1}, s{sB}, {NB*256}
    s_add_u32 s{t0}, s{t0}, s{t1}
    v_lshlrev_b32 v5, 4, v5
    v_add3_u32 v4, v4, v5, s{t0}
    s_mov_b32 s{t1}, 0x07060302
    s_setreg_imm32_b32 hwreg(HW_REG_MODE, 4, 2), 0
    """)
    for i in range(4):
        P = vRing + 4 * i
        b = [vAcc + 4 * t + i for t in range(4)]
        h = [vAcc + 16 + 4 * t + i for t in range(4)]
        for t in range(4):
            a(f"v_mul_f32 v{b[t]}, s{sLG}, v{b[t]}")
        for t in (0, 1, 3):
            a(f"v_add_f32 v{h[t]}, 0, v{h[t]}")
        for t in (2, 0, 3, 1):
            a(f"v_add_u32 v{h[t]}, 0x8000, v{h[t]}")
        SD = "clamp dst_sel:DWORD dst_unused:UNUSED_PAD src0_sel:DWORD src1_sel:WORD_1"
        a(f"""
        v_sub_u32_sdwa v{h[0]}, v{h[0]}, v{h[2]} {SD}
        v_cvt_pk_bf16_f32 v{P+2}, v{b[0]}, v{b[1]}
        v_sub_u32_sdwa v{h[3]}, v{h[3]}, v{h[0]} {SD}
        v_cvt_pk_bf16_f32 v{P+3}, v{b[2]}, v{b[3]}
        v_sub_u32_sdwa v{h[1]}, v{h[1]}, v{h[3]} {SD}
        v_perm_b32 v{P}, v{h[0]}, v{h[2]}, s{t1}
        v_perm_b32 v{P+1}, v{h[1]}, v{h[3]}, s{t1}
        global_store_dwordx4 v4, {vr(P,4)}, {sp(sWS)} offset:{256*i} sc1
        """)
    a(f"""
    s_setreg_imm32_b32 hwreg(HW_REG_MODE, 4, 2), 3
    s_branch L_GD
    L_GAU:
    s_waitcnt lgkmcnt(0)
    s_cmp_ge_u32 s{sW}, 10
    s_cbranch_scc1 L_GU
    v_lshl_add_u32 v4, v5, 4, v4
    s_nop 3
    """)
    for i in range(4):
        P = vRing + 4 * i
        for t in range(4):
            a(f"v_mul_f32 v{P+t}, s{sLG}, v{vAcc+4*t+i}")
        a(f"ds_write_b128 v4, {vr(P,4)} offset:{LA+256*i}")
    a(f"""
    s_branch L_GD
    L_GU:
    v_lshl_add_u32 v4, v5, 2, v4
    v_lshlrev_b32 v4, 1, v4
    v_add_u32 v4, {LAGG}, v4
    s_nop 1
    """)
    for i in range(4):
        for t in range(4):
            a(f"v_cvt_f64_f32 {vr(vX+8*i+2*t,2)}, v{vAcc+4*t+i}")
        for t in (0, 2):
            a(f"ds_write2_b64 v4, {vr(vX+8*i+2*t,2)}, {vr(vX+8*i+2*t+2,2)} offset0:{64*i+16*t} offset1:{64*i+16*t+16}")
    a("L_GD:")
    mark()
    srd(a, SRD_R, sWS, WS_OFF, NCH * 1024)
    a(f"""
    v_lshrrev_b32 v40, 2, v0
    s_lshl_b32 s{t0}, s{sB}, 3
    v_lshl_add_u32 v41, v40, 10, s{t0}
    buffer_load_dwordx2 v[42:43], v41, {sq(SRD_R)}, 0 offen sc1
    """)
    a(f"""
    v_bfe_u32 v4, v{vL}, 2, 2
    v_lshrrev_b32 v5, 4, v{vL}
    v_and_b32 v6, 3, v{vL}
    v_lshlrev_b32 v7, 7, v4
    v_lshl_add_u32 v7, v5, 5, v7
    v_lshl_add_u32 v7, v6, 3, v7
    ds_read_b64_tr_b16 v[44:45], v7 offset:{LCW}
    v_cmp_eq_u32 vcc, v5, v4
    v_mov_b32 v7, 0x3f80
    v_cmp_eq_u32 {sp(sEM)}, v5, v6
    v_cndmask_b32 v{vAo}, 0, v7, vcc
    v_mov_b32 v{vAo+1}, 0
    v_lshlrev_b32 v6, 4, v6
    v_lshlrev_b64 {vr(vAo,2)}, v6, {vr(vAo,2)}
    """)
    for g in range(4):
        if g:
            a(f"v_mov_b64 {vr(vAo+4*g,2)}, {vr(vAo,2)}")
        a(f"v_mov_b64 {vr(vAo+4*g+2,2)}, 0")
    a(f"""
    v_and_b32 v{vLO+1}, 15, v{vL}
    v_lshlrev_b32 v{vLO}, 4, v{vLO+1}
    v_lshlrev_b32 v{vLO+1}, 3, v{vLO+1}
    v_add_u32 v{vLO+1}, {LAGG}, v{vLO+1}
    s_mov_b32 s{sLG}, {hex(NLOG2E)}
    s_mov_b32 s{t1}, 0xffff0000
    s_mov_b32 s{s12}, 1.0
    s_mov_b32 s{s12+1}, 2.0
    s_mov_b32 s{sINC}, 16
    s_mov_b32 s{sINC+1}, 8
    s_mov_b32 s{sTHR}, 0
    s_mov_b32 s{sTHR+1}, 0x5f800000
    s_mov_b32 s{sFIRST}, 1
    s_mov_b32 s{sSPIN}, {SPIN}
    v_mul_u32_u24 v{vRO}, {CH*RB}, v40
    v_and_b32 v46, 3, v0
    v_mad_u32_u24 v{vRO}, v46, {RB}, v{vRO}
    s_waitcnt lgkmcnt(0)
    v_lshlrev_b32 v4, 16, v44
    v_and_b32 v44, s{t1}, v44
    v_lshlrev_b32 v5, 16, v45
    v_and_b32 v45, s{t1}, v45
    v_mul_f32 v4, s{sLG}, v4
    v_mul_f32 v44, s{sLG}, v44
    v_mul_f32 v5, s{sLG}, v5
    v_mul_f32 v45, s{sLG}, v45
    v_cvt_pk_bf16_f32 v{vCw}, v4, v44
    v_cvt_pk_bf16_f32 v{vCw+1}, v5, v45
    v_cmp_gt_u32 vcc, {NCH}, v40
    s_mov_b64 exec, vcc
    L_POLL:
    s_waitcnt vmcnt(0)
    v_lshrrev_b32 v4, 25, v42
    v_cmp_ne_u32 vcc, s{sTAG}, v43
    v_cmp_ne_u32 {sp(t0)}, s{sTAGB}, v4
    s_or_b64 exec, vcc, {sp(t0)}
    s_cbranch_execz L_POLLED
    s_sub_u32 s{sSPIN}, s{sSPIN}, 1
    s_cbranch_scc1 L_POLLX
    buffer_load_dwordx2 v[42:43], v41, {sq(SRD_R)}, 0 offen sc1
    s_branch L_POLL
    L_POLLX:
    v_mov_b32 v42, 0
    L_POLLED:
    s_mov_b64 exec, -1
    """)
    mark()
    srd(a, SRD_R, sWS, WS_REC, E * RB)
    a(f"""
    v_bfe_u32 v{vRem}, v42, 14, 11
    v_and_b32 v42, 0x3fff, v42
    v_sub_u32 v{vRem}, v{vRem}, v46
    v_add_u32 v{vRO}, v{vRO}, v42
    L_WINDOW:
    """)
    vRec = 8
    vCa, vNb = 36, 44
    for k in range(KMAX):
        a(f"v_cmp_lt_i32 {sp(sM+2*k)}, {4*k}, v{vRem}")
    a(f"""
    L_ROUND:
    s_or_b64 {sp(sU5)}, {sp(sM+10)}, {sp(sM+12)}
    s_or_b64 {sp(sU4)}, {sp(sU5)}, {sp(sM+8)}
    """)

    def kloop(done, body):
        for k in range(KMAX):
            if k == 4:
                a(f"s_cmp_eq_u64 {sp(sU4)}, 0\ns_cbranch_scc1 {done}")
            if k == 5:
                a(f"s_cmp_eq_u64 {sp(sU5)}, 0\ns_cbranch_scc1 {done}")
            a(f"s_mov_b64 exec, {sp(sM+2*k)}")
            body(k)
        a(f"{done}:\ns_mov_b64 exec, -1")

    kloop("L_RL", lambda k: a(f"buffer_load_dwordx3 {vr(vRec+4*k,3)}, v{vRO}, {sq(SRD_R)}, 0 offen offset:{48*k} sc1"))
    a(f"""
    ; table job of this thread: node = tid/12, i = tid%12
    v_mul_u32_u24 v4, 5462, v0
    v_lshrrev_b32 v4, 16, v4
    v_mad_i32_i24 v5, v4, -12, v0
    v_lshlrev_b32 v{vJ}, 2, v4
    v_lshlrev_b32 v{vJ+1}, 2, v5
    s_mov_b32 s{t0}, {SLOTB}
    v_mov_b32 v6, {LSLOT}
    v_mad_u32_u24 v{vJ+5}, v4, s{t0}, v6
    v_lshl_add_u32 v{vJ+2}, v5, 4, v{vJ+5}
    v_lshlrev_b32 v{vJ+3}, 8, v4
    v_lshl_add_u32 v{vJ+4}, v5, 5, v{vJ+5}
    v_cmp_le_u32 vcc, {NB}, v4
    v_mov_b32 v7, {LDUM}
    s_mul_i32 s{t1}, s{sH}, {T_HALF//128}
    v_cndmask_b32 v{vJ+2}, v{vJ+2}, v7, vcc
    v_cndmask_b32 v{vJ+3}, v{vJ+3}, 0, vcc
    v_cndmask_b32 v{vJ+4}, v{vJ+4}, v6, vcc
    """)
    srd(a, SRD_T, sWS, f"s{t1}", T_HALF)
    a(f"""
    v_mov_b32 v4, 1
    s_mov_b32 s{t0}, {SLOTB//4}
    s_mov_b32 s{t1}, 0xffffff00
    s_waitcnt lgkmcnt(0)
    s_barrier                                     ; B5
    s_cmp_eq_u32 s{sW}, 12
    s_cselect_b32 s{t2}, s{sFIRST}, 0
    s_cmp_eq_u32 s{t2}, 0
    s_cbranch_scc1 L_NOSIG
    s_bfe_u32 s{t2}, s2, 0x10003
    s_lshl_b32 s{t2}, s{t2}, 6
    s_add_u32 s{t2}, s{t2}, s{sH}
    v_mov_b32 v5, s{t2}
    s_mov_b64 exec, 1
    global_atomic_add v5, v4, {sp(sDBG)} sc1
    s_waitcnt vmcnt(1)
    s_branch L_SIGD
    L_NOSIG:
    s_waitcnt vmcnt(0)
    L_SIGD:
    """)
    mark()

    def hist(k):
        a(f"""
        v_lshlrev_b32_sdwa v{vCa+k}, 2, v{vRec+4*k+2} dst_sel:DWORD dst_unused:UNUSED_PAD src0_sel:DWORD src1_sel:BYTE_0
        v_and_b32 v{vRec+4*k+2}, s{t1}, v{vRec+4*k+2}
        ds_add_rtn_u32 v{vRec+4*k+3}, v{vCa+k}, v4 offset:{LCNT}
        v_mad_u32_u24 v{vNb+k}, v{vCa+k}, s{t0}, v6
        """)

    kloop("L_HD", hist)
    a("s_waitcnt lgkmcnt(0)")

    def scat(k):
        a(f"""
        v_cmpx_gt_u32 vcc, {CAP}, v{vRec+4*k+3}
        v_lshl_add_u32 v{vCa+k}, v{vRec+4*k+3}, 2, v{vNb+k}
        v_lshl_add_u32 v{vNb+k}, v{vRec+4*k+3}, 3, v{vNb+k}
        s_andn2_b64 {sp(sM+2*k)}, {sp(sM+2*k)}, vcc
        ds_write_b32 v{vCa+k}, v{vRec+4*k+2}
        ds_write_b64 v{vNb+k}, {vr(vRec+4*k,2)} offset:256
        """)

    kloop("L_SD", scat)
    a(f"""
    v_cmp_lt_i32 vcc, {4*KMAX}, v{vRem}
    s_or_b64 {sp(sU4)}, {sp(sM)}, {sp(sM+2)}
    s_or_b64 {sp(sU5)}, {sp(sM+4)}, {sp(sM+6)}
    s_or_b64 {sp(sU4)}, {sp(sU4)}, {sp(sM+8)}
    s_or_b64 {sp(sU5)}, {sp(sU5)}, {sp(sM+10)}
    s_or_b64 {sp(sU4)}, {sp(sU4)}, {sp(sM+12)}
    s_or_b64 {sp(sU4)}, {sp(sU4)}, {sp(sU5)}
    v_mov_b32 v5, {LFLAG}
    v_lshlrev_b32 v7, 3, v{vL}
    s_or_b64 exec, vcc, {sp(sU4)}
    ds_write_b32 v5, v4
    s_mov_b64 exec, -1
    s_waitcnt lgkmcnt(0)
    s_barrier                                     ; B6
    """)
    mark()
    vW = (8, 32)
    a(f"""
    ds_read_b64 v[56:57], v7 offset:{LCNT}
    ds_read_b32 v58, v5
    """)
    for k in range(8):
        a(f"v_mov_b64 {vr(vW[0]+6*k+4,2)}, {vr(vCw,2)}")
    a(f"""
    s_waitcnt lgkmcnt(0)
    v_min_u32 v56, {CAP}, v56
    v_min_u32 v57, {CAP}, v57
    v_readfirstlane_b32 s{sMORE}, v58
    v_add_u32 v60, 3, v56
    v_add_u32 v61, 3, v57
    v_lshrrev_b32 v60, 2, v60
    v_lshrrev_b32 v61, 2, v61
    v_add_u32 v62, v60, v61
    v_mov_b32 v63, v62
    """)
    scan64(a, 63)
    a(f"""
    v_sub_u32 v64, v63, v62
    v_add_u32 v65, v64, v60
    v_lshl_or_b32 v56, v64, 8, v56
    v_lshl_or_b32 v57, v65, 8, v57
    ds_write_b64 v7, v[56:57] offset:{LQS}
    ds_read_b32 v56, v{vJ} offset:{LQS}
    v_readlane_b32 s{sNG}, v64, {NB//2}
    v_lshrrev_b32 v4, 4, v{vL}
    v_bfe_u32 v5, v{vL}, 2, 2
    v_mov_b32 v59, {DUMMY}
    s_add_u32 s{sNG}, s{sNG}, 3
    s_lshr_b32 s{sNG}, s{sNG}, 2                  ; groups
    s_lshr_b32 s{t0}, s{sNG}, 4
    s_and_b32 s{t1}, s{sNG}, 15
    s_mul_i32 s{t2}, s{t0}, s{sW}
    s_min_u32 s{t3}, s{sW}, s{t1}
    s_add_u32 s{t2}, s{t2}, s{t3}
    s_cmp_lt_u32 s{sW}, s{t1}
    s_addc_u32 s{sN}, s{t0}, 0
    s_mov_b32 s{t0}, {LTA}
    s_mov_b32 s{t1}, {LTE}
    s_waitcnt lgkmcnt(0)
    v_and_b32 v57, 0xff, v56                      ; count
    v_lshrrev_b32 v56, 6, v56
    v_and_b32 v56, -4, v56
    v_add_u32 v56, v56, v{vJ+1}
    v_sub_u32 v60, 0, v57
    v_and_b32 v60, 3, v60
    v_lshlrev_b32 v60, 2, v60
    v_cmp_lt_u32 {sp(sU5)}, v{vJ+1}, v60
    v_lshl_add_u32 v61, v57, 2, v{vJ+1}
    v_add_u32 v61, v61, v{vJ+5}
    v_lshl_add_u32 v62, v56, 1, s{t0}
    v_add_u32 v63, s{t1}, v56
    v_cmpx_lt_u32 vcc, v{vJ+1}, v57
    v_add_u32 v64, 48, v{vJ+1}
    ds_write_b64 v62, {vr(vJ+2,2)}
    ds_write_b32 v63, v{vJ+4}
    v_cmp_lt_u32 vcc, v64, v57
    s_cbranch_vccnz L_BIG
    L_BIGD:
    s_mov_b64 exec, {sp(sU5)}
    ds_write_b32 v61, v59
    s_mov_b64 exec, -1
    """)
    vT, vAp, vS = 56, 80, 84
    vTQ = (88, 76)
    vNA = (90, 92)
    vP = 94
    vSh, vQE = 96, 106
    vDn, vNm, vAa, vCk = 72, 100, 4, 78
    vSh2 = 104
    vD = (78, 124, 4, 6)

    def sh(g):
        return (96, 98, 104, 124)[g]

    a(f"""
    v_mov_b32 v6, s{t2}
    v_mad_u32_u24 v4, v4, s{sNG}, v6
    v_mad_u32_u24 v5, v5, s{sNG}, v6
    v_lshl_add_u32 v{vP}, v4, 3, s{t0}
    v_lshl_add_u32 v{vP+1}, v5, 2, s{t1}
    s_cmp_eq_u32 s{sW}, 12
    s_cselect_b32 s{t2}, s{sFIRST}, 0
    s_cmp_eq_u32 s{t2}, 0
    s_cbranch_scc1 L_TRDY
    v_lshl_add_u32 v4, v{vL}, 6, s{sH}
    s_mov_b32 s{sSPIN}, {SPIN}
    s_mov_b64 exec, 3
    L_TPOLL:
    global_load_dword v5, v4, {sp(sDBG)} sc1
    s_sub_u32 s{sSPIN}, s{sSPIN}, 1
    s_cbranch_scc1 L_TX
    s_waitcnt vmcnt(0)
    v_readlane_b32 s{t2}, v5, 0
    v_readlane_b32 s{t3}, v5, 1
    s_add_u32 s{t2}, s{t2}, s{t3}
    s_cmp_lt_u32 s{t2}, {NBK}
    s_cbranch_scc1 L_TPOLL
    L_TX:
    s_mov_b64 exec, -1
    L_TRDY:
    s_mov_b32 s{sFIRST}, 0
    s_waitcnt vmcnt(0) lgkmcnt(0)
    s_barrier                                     ; B7
    """)
    mark()
    if stamp:
        a("s_memtime s[90:91]\ns_waitcnt lgkmcnt(0)")

    def saddr(S):
        a(f"""
        v_pk_add_f32 {vr(S,2)}, {vr(S,2)}, {vr(vLO,2)} op_sel_hi:[1,0]
        v_pk_add_f32 {vr(S+2,2)}, {vr(S+2,2)}, {vr(vLO,2)} op_sel_hi:[1,0]
        """)

    def loads(p, S):
        for g in range(4):
            a(f"buffer_load_dwordx4 {vr(vW[p]+6*g,4)}, v{S+g}, {sq(SRD_T)}, 0 offen sc1")

    def naddr(p, TQ):
        a(f"v_pk_fma_f32 {vr(vNA[p],2)}, {vr(TQ,2)}, {sp(s12)}, {vr(vLO,2)} op_sel:[1,0,0] op_sel_hi:[1,1,1]")

    def eread(q):
        a(f"s_mov_b64 exec, {sp(sEM)}")
        for g in range(4):
            a(f"ds_read_b64 {vr(vAo+4*g+2,2)}, v{q} offset:{256+8*g}")
        a("s_mov_b64 exec, -1")

    def hv(W, g, h):
        return vr(W + 6 * g, 2) if h == 0 else vr(sh(g), 2)

    def mfma(p, g):
        return f"v_mfma_f32_16x16x32_bf16 {vr(vT+4*g,4)}, {vr(vAo+4*g,4)}, {vr(vW[p]+6*g+2,4)}, {vr(vAp,4)}"

    def flush(p):
        a(f"""
        v_pk_mul_f32 {vr(vNm,2)}, {vr(vNm,2)}, {vr(vDn,2)}
        v_pk_mul_f32 {vr(vNm+2,2)}, {vr(vNm+2,2)}, {vr(vDn+2,2)}
        """)
        for t in range(4):
            a(f"v_cvt_f64_f32 {vr(vD[t],2)}, v{vNm+t}")
        for t in range(4):
            a(f"ds_add_f64 v{vNA[p]+1}, {vr(vD[t],2)} offset:{128*t}")

    a(f"""
    s_cmp_eq_u32 s{sN}, 0
    s_cbranch_scc1 L_LD
    s_setprio 3
    ds_read_b64 {vr(vT,2)}, v{vP}
    ds_read_b64 {vr(vTQ[1],2)}, v{vP} offset:8
    ds_read_b32 v{vT+2}, v{vP+1}
    ds_read_b64 {vr(vTQ[0],2)}, v{vP} offset:16
    ds_read_b32 v{vQE}, v{vP+1} offset:4
    v_mov_b32 v{vNA[1]+1}, v{vLO+1}
    v_mov_b64 {vr(vNm,2)}, 0
    v_mov_b64 {vr(vNm+2,2)}, 0
    s_waitcnt lgkmcnt(4)
    ds_read_b128 {vr(vT+4,4)}, v{vT}
    """)
    naddr(0, vT)
    a(f"""
    s_waitcnt lgkmcnt(3)
    ds_read_b128 {vr(vS,4)}, v{vTQ[1]}
    ds_read_b128 {vr(vAp,4)}, v{vNA[0]} offset:{LA}
    """)
    eread(vT + 2)
    for t in range(4):
        a(f"v_mov_b32 v{vDn+t}, 1.0")
    a("s_waitcnt lgkmcnt(6)")
    saddr(vT + 4)
    loads(0, vT + 4)
    a(f"""
    s_add_u32 s{sN}, s{sN}, 1
    s_branch L_SB1
    """)
    for p in range(2):
        W = vW[p]
        a(f"""
        L_L{p}:
        ds_read_b128 {vr(vS,4)}, v{vTQ[p]}
        """)
        for i in range(16):
            a(f"v_exp_f32 v{vT+i}, v{vT+i}")
            if i == 7:
                eread(vQE)
                a(f"ds_read_b32 v{vQE}, v{vP+1} offset:{8+4*p}")
        flush(p ^ 1)
        naddr(p ^ 1, vTQ[p ^ 1])
        for g in range(4):
            a(f"v_lshlrev_b64 {vr(sh(g),2)}, 16, {vr(W+6*g,2)}")
            if g == 0:
                a(f"ds_read_b128 {vr(vAp,4)}, v{vNA[p^1]} offset:{LA}")
                a(f"ds_read_b64 {vr(vTQ[p^1],2)}, v{vP} offset:{24+8*p}")
        if p == 1:
            a(f"v_pk_add_f32 {vr(vP,2)}, {vr(vP,2)}, {sp(sINC)}")
        for h in range(2):
            a(f"v_pk_add_f32 {vr(vDn+2*h,2)}, {vr(vT+2*h,2)}, 1.0 op_sel_hi:[1,0]")
        for g in range(1, 4):
            for h in range(2):
                src = hv(W, 0, h) if g == 1 else vr(vNm + 2 * h, 2)
                a(f"v_pk_fma_f32 {vr(vAa+2*h,2)}, {src}, {vr(vT+4*g+2*h,2)}, {src}")
            for h in range(2):
                a(f"v_pk_fma_f32 {vr(vNm+2*h,2)}, {hv(W,g,h)}, {vr(vDn+2*h,2)}, {vr(vAa+2*h,2)}")
            for h in range(2):
                a(f"v_pk_fma_f32 {vr(vDn+2*h,2)}, {vr(vDn+2*h,2)}, {vr(vT+4*g+2*h,2)}, {vr(vDn+2*h,2)}")
        a(f"""
        v_pk_fma_f32 {vr(vCk,2)}, {vr(vDn,2)}, {vr(vDn+2,2)}, {sp(sTHR)} neg_hi:[1,0,0]
        v_cmp_nle_f32 vcc, v{vCk}, v{vCk+1}
        s_cbranch_vccnz L_SAFE{p}
        L_SB{p}:
        s_cmp_le_u32 s{sN}, 2
        s_waitcnt lgkmcnt(0)
        """)
        saddr(vS)
        a(f"s_cbranch_scc1 L_TAIL{p}")
        loads(p, vS)
        a(f"""
        s_waitcnt vmcnt(4)
        L_M{p}:
        """)
        for g in range(4):
            a(mfma(p ^ 1, g))
            a(f"v_rcp_f32 v{vDn+g}, v{vDn+g}")
        a(f"""
        s_sub_u32 s{sN}, s{sN}, 1
        s_cmp_eq_u32 s{sN}, 4
        s_cbranch_scc1 L_PR{p}
        """)
        if p == 1:
            a("s_branch L_L0")
    for p in range(2):
        a(f"""
        L_PR{p}:
        s_setprio 2
        s_branch L_L{p^1}
        L_TAIL{p}:
        s_setprio 0
        s_cmp_eq_u32 s{sN}, 2
        s_waitcnt vmcnt(0)
        s_cbranch_scc1 L_M{p}
        """)
        for g in range(4):
            a(f"v_rcp_f32 v{vDn+g}, v{vDn+g}")
        a("s_nop 0")
        flush(p)
        if p == 0:
            a("s_branch L_LD")
    a(f"""
    L_LD:
    s_waitcnt lgkmcnt(0)
    """)
    mark()
    if stamp:
        a("s_memtime s[94:95]\ns_waitcnt lgkmcnt(0)\ns_sub_u32 s94, s94, s90\nv_writelane_b32 v107, s94, 15")
    a(f"""
    s_barrier                                     ; B8
    s_cmp_eq_u32 s{sMORE}, 0
    s_cbranch_scc0 L_MORE
    s_cmp_lt_u32 s{sW}, 10
    s_cbranch_scc0 L_EPO
    v_lshlrev_b32 v4, 6, v0
    ds_read_b128 v[24:27], v4 offset:{LAGG}
    ds_read_b128 v[28:31], v4 offset:{LAGG+16}
    ds_read_b128 v[32:35], v4 offset:{LAGG+32}
    ds_read_b128 v[36:39], v4 offset:{LAGG+48}
    s_mul_i32 s{t1}, s{sB}, {NB*256}
    s_add_u32 s{t1}, s{t1}, s{sH}
    v_lshrrev_b32 v5, 3, v0
    v_lshlrev_b32 v5, 8, v5
    v_and_b32 v6, 7, v0
    v_lshlrev_b32 v6, 4, v6
    v_add3_u32 v5, v5, v6, s{t1}
    s_waitcnt lgkmcnt(0)
    """)
    for i in range(8):
        a(f"v_cvt_f32_f64 v{8+i}, {vr(24+2*i,2)}")
    for i in range(8):
        a(f"v_mul_f32 v{16+i}, s{sLG}, v{8+i}")
    for i in range(8):
        a(f"v_exp_f32 v{16+i}, v{16+i}")
    for i in range(4):
        a(f"v_pk_add_f32 {vr(16+2*i,2)}, {vr(16+2*i,2)}, 1.0 op_sel_hi:[1,0]")
    for i in range(8):
        a(f"v_rcp_f32 v{16+i}, v{16+i}")
    for i in range(4):
        a(f"v_pk_mul_f32 {vr(16+2*i,2)}, {vr(16+2*i,2)}, {vr(8+2*i,2)}")
    for i in range(4):
        a(f"v_cvt_pk_bf16_f32 v{8+i}, v{16+2*i}, v{17+2*i}")
    a(f"""
    global_store_dwordx4 v5, v[8:11], {sp(sOUT)}
    s_branch L_FIN
    L_EPO:
    s_lshl_b32 s{t0}, s2, 4
    s_add_u32 s{t0}, s{t0}, s{sW}
    s_cmp_eq_u32 s{t0}, 12
    s_cbranch_scc0 L_FIN
    v_mov_b32 v4, {WS_EPOCH}
    v_mov_b32 v5, s{sEP}
    s_mov_b64 exec, 1
    global_store_dword v4, v5, {sp(sWS)} sc1
    s_mov_b64 exec, -1
    L_FIN:
    """)
    if PROBE:
        a(f"""
        s_lshl_b32 s{t0}, s2, 4
        s_add_u32 s{t0}, s{t0}, s{sW}
        s_cmp_eq_u32 s{t0}, {PROBE[0]}
        s_cbranch_scc0 L_PX
        s_memrealtime s[84:85]
        s_sub_u32 s82, s82, s80
        s_lshl_b32 s82, s82, 3
        s_min_u32 s82, s82, 100000
        s_waitcnt lgkmcnt(0)
        L_PS:
        s_memrealtime s[86:87]
        s_waitcnt lgkmcnt(0)
        s_sub_u32 s86, s86, s84
        s_cmp_lt_u32 s86, s82
        s_cbranch_scc1 L_PS
        L_PX:
        """)
    if stamp:
        a("s_waitcnt vmcnt(0)")
        mark()
        a(f"""
        s_lshl_b32 s3, s2, 4
        s_add_u32 s3, s3, s{sW}
        s_lshl_b32 s3, s3, 6
        s_add_u32 s3, s3, {WS_STAMP}
        v_lshl_add_u32 v4, v{vL}, 2, s3
        s_mov_b64 exec, 0xffff
        global_store_dword v4, v107, {sp(sWS)}
        """)
    a("s_endpgm")
    for p in range(2):
        W = vW[p]
        a(f"L_SAFE{p}:")
        for i in range(8):
            a(f"v_pk_add_f32 {vr(vT+2*i,2)}, {vr(vT+2*i,2)}, 1.0 op_sel_hi:[1,0]")
        for i in range(16):
            a(f"v_rcp_f32 v{vT+i}, v{vT+i}")
        for t in range(4):
            a(f"v_mov_b32 v{vDn+t}, 1.0")
        for g in range(4):
            for h in range(2):
                o = 4 * g + 2 * h
                if g == 0:
                    a(f"v_pk_mul_f32 {vr(vNm+2*h,2)}, {vr(vT+o,2)}, {hv(W,g,h)}")
                else:
                    a(f"v_pk_fma_f32 {vr(vNm+2*h,2)}, {vr(vT+o,2)}, {hv(W,g,h)}, {vr(vNm+2*h,2)}")
        a(f"s_branch L_SB{p}")
    a(f"""
    L_BIG:
    s_mov_b64 exec, vcc
    v_add_u32 v{vJ+2}, {12*16}, v{vJ+2}
    v_add_u32 v{vJ+4}, {12*32}, v{vJ+4}
    ds_write_b64 v62, {vr(vJ+2,2)} offset:{12*8}
    ds_write_b32 v63, v{vJ+4} offset:{12*4}
    s_branch L_BIGD
    L_MORE:
    v_mov_b64 {vr(vCw,2)}, {vr(vW[0]+4,2)}
    s_cmp_lt_u32 s{sW}, 3
    s_cbranch_scc0 L_MORE2
    v_lshlrev_b32 v4, 2, v0
    v_cmp_eq_u32 vcc, {NB}, v0
    v_mov_b32 v6, 32
    s_nop 0
    v_cndmask_b32 v5, 0, v6, vcc
    v_cmp_gt_u32 vcc, 132, v0
    s_mov_b64 exec, vcc
    ds_write_b32 v4, v5 offset:{LCNT}
    s_mov_b64 exec, -1
    L_MORE2:
    s_cmp_eq_u64 {sp(sU4)}, 0
    s_cbranch_scc0 L_ROUND
    v_subrev_u32 v{vRem}, {4*KMAX}, v{vRem}
    v_add_u32 v{vRO}, {48*KMAX}, v{vRO}
    s_branch L_WINDOW
    L_END:
    """)
    return a.text(), NST[0]


def build(stamp=False):
    body, nst = kernel(stamp)
    return f"""; Kernarg layout (80 bytes, pointers): x, e_attr, src, dst, u_w, v_w, g_w, out, debug, ws
; @launch grid=(256,1,1) block=(1024,1,1) lds={LDS}
.amdgcn_target "amdgcn-amd-amdhsa--gfx950"
.text
.globl {NAME}
.p2align 8
.type {NAME},@function
{NAME}:
{body}    s_endpgm
.section .rodata,"a"
.p2align 6
.amdhsa_kernel {NAME}
  .amdhsa_next_free_vgpr 128
  .amdhsa_next_free_sgpr 96
  .amdhsa_accum_offset 128
  .amdhsa_group_segment_fixed_size 0
  .amdhsa_kernarg_size 80
  .amdhsa_user_sgpr_count 2
  .amdhsa_user_sgpr_kernarg_segment_ptr 1
  .amdhsa_system_sgpr_workgroup_id_x 1
  .amdhsa_float_denorm_mode_32 3
.end_amdhsa_kernel
"""


if __name__ == "__main__":
    open(sys.argv[1], "w").write(build(stamp="--stamp" in sys.argv))
```

```python
import sys, os
X = set(os.environ.get('X', '').split('+'))
NAME = "standalone__edge_featured_mpnn_egc__graph_kernel"
N, E = 10000, 320000
NB, NBK, CH, NCH = 80, 125, 1280, 250
T_HALF = N * 256
RB = 12
WS_T, WS_REC, WS_OFF, WS_EPOCH, WS_STAMP = 0, 0x500000, 0xA00000, 0xA80000, 0xB00000
NLOG2E = 0xBFB8AA3B
KA = dict(x=0, e=8, src=16, dst=24, u=32, v=40, g=48, out=56, dbg=64, ws=72)
LA, LAGG = 0, 20480
LHIST, LCNT, LFLAG, LDUM = 61440, 61952, 62464, 62480
LSTART, LQS, LCW = 62720, 63232, 63744
LW = 64256
LX = LW + 65536
LDS = LX + 20480
LSLOT, SLOTB, CAP = LW, 784, 64
LTA, LTE = LX, LX + 10496
KMAX = 7
DUMMY = 0x400000
SPIN = 1 << 17
assert LW % 256 == 0 and LDS <= 163840


class Asm:
    def __init__(self):
        self.l = []

    def __call__(self, s):
        for ln in s.strip("\n").split("\n"):
            ln = ln.strip()
            if ln:
                self.l.append(ln if ln.endswith(":") else "    " + ln)

    def text(self):
        return "\n".join(self.l) + "\n"


def vr(a, n):
    return f"v[{a}:{a+n-1}]" if n > 1 else f"v{a}"


def sp(a):
    return f"s[{a}:{a+1}]"


def sq(a):
    return f"s[{a}:{a+3}]"


def srd(a, d, base, off, size):
    a(f"s_add_u32 s{d}, s{base}, {off}\ns_addc_u32 s{d+1}, s{base+1}, 0")
    a(f"s_mov_b32 s{d+2}, {size}\ns_mov_b32 s{d+3}, 0x20000")


def scan64(a, v):
    for ctl in ("row_shr:1", "row_shr:2", "row_shr:4", "row_shr:8"):
        a(f"s_nop 1\nv_add_u32_dpp v{v}, v{v}, v{v} {ctl} row_mask:0xf bank_mask:0xf")
    a(f"s_nop 1\nv_add_u32_dpp v{v}, v{v}, v{v} row_bcast:15 row_mask:0xa bank_mask:0xf")
    a(f"s_nop 1\nv_add_u32_dpp v{v}, v{v}, v{v} row_bcast:31 row_mask:0xc bank_mask:0xf")


def gemm(a, nmat, vA, vX, vRing, nslot, vAcc):
    steps = [(ks, m, t) for m in range(nmat) for ks in range(4) for t in range(4)]
    n, depth = len(steps), nslot - 1

    def rd(s):
        ks, m, t = steps[s]
        r = vRing + 4 * (s % nslot)
        o = m * 16384 + ks * 4096
        a(f"ds_read_b64_tr_b16 {vr(r,2)}, v{vA+t} offset:{o}")
        a(f"ds_read_b64_tr_b16 {vr(r+2,2)}, v{vA+t} offset:{o+512}")

    return steps, rd, n, depth


def kernel(stamp):
    a = Asm()
    NST = [0]

    PROBE = [int(x) for x in os.environ["PROBE"].split(",")] if os.environ.get("PROBE") else None

    def mark():
        if stamp:
            a(f"s_memrealtime s[92:93]\ns_waitcnt lgkmcnt(0)\nv_writelane_b32 v107, s92, {NST[0]}")
        if PROBE and NST[0] in PROBE[1:]:
            r = 80 + 2 * PROBE[1:].index(NST[0])
            a(f"s_memrealtime s[{r}:{r+1}]\ns_waitcnt lgkmcnt(0)")
        NST[0] += 1

    sX, sE, sSRC, sDST, sU, sV, sG, sOUT, sDBG, sWS = 4, 6, 8, 10, 12, 14, 16, 18, 20, 22
    SRD_T, SRD_R, SRD_W = 24, 28, 32
    sM = 36
    sN, sNG, sT0, sFIRST = 50, 51, 52, 53
    t0, t1, t2, t3 = 54, 55, 56, 57
    sMORE, sW = 58, 59
    sINC, s12, sTHR, sEM = 60, 62, 64, 66
    sH, sB, sC, sEP, sTAG, sTAGB, sSPIN, sLG = 68, 69, 70, 71, 72, 73, 74, 75
    sU5, sU4 = 76, 78
    vL, vLO, vAo, vCw, vRO, vRem = 1, 2, 108, 124, 126, 127
    vJ = 100
    a(f"""
    s_cmp_ge_u32 s2, 256
    s_cbranch_scc1 L_END
    s_bfe_u32 s{t0}, s2, 0x20001
    s_lshl_b32 s{t0}, s{t0}, 5
    s_lshr_b32 s{sB}, s2, 3
    s_add_u32 s{sB}, s{sB}, s{t0}                 ; bucket
    s_cmp_ge_u32 s{sB}, {NBK}
    s_cbranch_scc1 L_END
    """)
    mark()
    a(f"""
    s_load_dwordx16 s[4:19], s[0:1], 0
    s_load_dwordx4 s[20:23], s[0:1], {KA['dbg']}
    v_lshrrev_b32 v4, 6, v0
    v_and_b32 v{vL}, 63, v0
    v_readfirstlane_b32 s{sW}, v4
    s_and_b32 s{t0}, s2, 1
    s_lshl_b32 s{sH}, s{t0}, 7                    ; half*128
    s_lshl_b32 s{sC}, s{sB}, 1
    s_add_u32 s{sC}, s{sC}, s{t0}                 ; chunk
    s_mul_i32 s{t1}, s{sC}, {CH*4}
    v_lshl_add_u32 v12, v0, 3, s{t1}
    v_lshlrev_b32 v13, 1, v12
    """)
    if os.environ.get("WTEST"):
        off = int(os.environ["WTEST"], 0)
        a(f"""
        s_waitcnt lgkmcnt(0)
        s_mul_i32 s{t2}, s{sC}, 16384
        s_add_u32 s{t2}, s{t2}, {off}
        v_lshl_add_u32 v20, v0, 4, s{t2}
        s_memrealtime s[80:81]
        global_store_dwordx4 v20, v[12:15], {sp(sWS)} sc1
        s_waitcnt vmcnt(0)
        s_barrier
        s_memrealtime s[82:83]
        s_waitcnt lgkmcnt(0)
        """)
        if stamp:
            a("v_writelane_b32 v107, s80, 10\nv_writelane_b32 v107, s82, 11")
    a(f"""
    s_cmp_lt_u32 s{sW}, 10
    s_cbranch_scc0 L_NOEDGE
    s_waitcnt lgkmcnt(0)
    global_load_dwordx2 v[4:5], v12, {sp(sDST)}
    global_load_dwordx2 v[6:7], v12, {sp(sSRC)}
    global_load_dwordx4 v[8:11], v13, {sp(sE)}
    s_branch L_EDGED
    L_NOEDGE:
    v_lshlrev_b32 v12, 2, v0
    v_mov_b32 v14, 32
    v_cmp_eq_u32 vcc, {640 + 128 + NB}, v0
    v_mov_b32 v15, {DUMMY}
    v_lshrrev_b32 v16, 2, v0
    v_cndmask_b32 v13, 0, v14, vcc
    v_cmp_eq_u32 vcc, {(640 + 260) // 4}, v16
    s_cmp_eq_u32 s{sW}, 15
    s_cbranch_scc1 L_NOZ
    v_cndmask_b32 v13, v13, v15, vcc
    ds_write_b32 v12, v13 offset:{LHIST - 2560}
    L_NOZ:
    s_waitcnt lgkmcnt(0)
    L_EDGED:
    s_add_u32 s{t2}, s{sWS}, {WS_EPOCH}
    s_addc_u32 s{t3}, s{sWS+1}, 0
    s_load_dword s{sEP}, {sp(t2)}, 0
    v_lshrrev_b32 v26, 3, v{vL}
    v_lshlrev_b32 v26, 8, v26
    v_and_b32 v28, 7, v{vL}
    v_lshlrev_b32 v28, 4, v28
    v_and_b32 v27, 16, v{vL}
    v_lshlrev_b32 v27, 1, v27
    v_xor_b32 v28, v28, v27
    v_add3_u32 v26, v26, v28, s{sH}
    v_xor_b32 v27, 64, v26
    s_add_u32 s{SRD_W}, s{sG}, {128*256}
    s_addc_u32 s{SRD_W+1}, s{sG+1}, 0
    s_cmp_ge_u32 s{sW}, 4
    s_cselect_b64 {sp(SRD_W)}, {sp(sV)}, {sp(SRD_W)}
    s_cmp_ge_u32 s{sW}, 8
    s_cselect_b64 {sp(SRD_W)}, {sp(sG)}, {sp(SRD_W)}
    s_cmp_ge_u32 s{sW}, 12
    s_cselect_b64 {sp(SRD_W)}, {sp(sU)}, {sp(SRD_W)}
    s_mov_b32 s{SRD_W+2}, {128*256}
    s_mov_b32 s{SRD_W+3}, 0x20000
    s_and_b32 s{t0}, s{sW}, 3
    s_lshl_b32 s{t0}, s{t0}, 13
    s_lshl_b32 s{t1}, s{sW}, 12
    s_add_u32 s{t1}, s{t1}, {LW}
    s_cmp_ge_u32 s{sW}, 5
    s_cselect_b32 s{sT0}, 5, 0
    s_cmp_ge_u32 s{sW}, 10
    s_cselect_b32 s{sT0}, 10, s{sT0}
    s_cmp_ge_u32 s{sW}, 13
    s_cselect_b32 s{sT0}, 11, s{sT0}
    s_sub_u32 s{sT0}, s{sW}, s{sT0}
    s_lshl_b32 s{sT0}, s{sT0}, 12                 ; tile*16*256
    s_barrier                                     ; B1
    s_cmp_lt_u32 s{sW}, 10
    s_cbranch_scc1 L_XD
    s_cmp_eq_u32 s{sW}, 12
    s_cbranch_scc1 L_CW
    v_lshrrev_b32 v4, 4, v{vL}
    v_and_b32 v5, 15, v{vL}
    v_xor_b32 v5, v5, v4
    v_lshlrev_b32 v5, 4, v5
    s_mul_i32 s{t2}, s{sB}, {NB*256}
    s_add_u32 s{t2}, s{t2}, s{sT0}
    v_lshlrev_b32 v4, 8, v4
    v_add3_u32 v4, v4, v5, s{t2}
    s_add_u32 s{t3}, s{sT0}, {LX}
    s_mov_b32 m0, s{t3}
    v_xor_b32 v5, 64, v4
    v_xor_b32 v6, 0x80, v4
    v_xor_b32 v7, 0xc0, v4
    """)
    for i in range(4):
        a(f"global_load_lds_dwordx4 v{4+i}, {sp(sX)} offset:{1024*i}")
    a(f"""
    s_branch L_XD
    L_CW:
    v_lshrrev_b32 v4, 3, v{vL}
    v_lshlrev_b32 v4, 8, v4
    v_and_b32 v5, 7, v{vL}
    v_lshlrev_b32 v5, 4, v5
    s_add_u32 s{t2}, s{sH}, {256*256}
    v_add3_u32 v4, v4, v5, s{t2}
    s_mov_b32 m0, {LCW}
    s_mov_b32 exec_hi, 0
    global_load_lds_dwordx4 v4, {sp(sG)}
    s_mov_b32 exec_hi, -1
    L_XD:
    s_mov_b32 m0, s{t1}
    s_add_u32 s{t1}, s{t0}, 1024
    s_add_u32 s{t2}, s{t0}, 2048
    s_add_u32 s{t3}, s{t0}, 3072
    """)
    for i in range(4):
        a(f"buffer_load_dwordx4 v{26+(i&1)}, {sq(SRD_W)}, s{t0+i} offen offset:{1024*i} lds")
    a(f"""
    s_cmp_lt_u32 s{sW}, 10
    s_cbranch_scc0 L_NOH
    s_mov_b32 s{t0}, 52429
    s_mov_b32 s{t1}, {-NB}
    v_mov_b32 v18, 1
    s_waitcnt vmcnt(6)
    """)
    mark()
    for i in range(2):
        a(f"""
        v_mul_u32_u24 v{12+i}, s{t0}, v{4+i}
        v_lshrrev_b32 v{12+i}, 22, v{12+i}
        v_mad_i32_i24 v{14+i}, v{12+i}, s{t1}, v{4+i}
        v_lshlrev_b32 v{12+i}, 2, v{12+i}
        ds_add_rtn_u32 v{16+i}, v{12+i}, v18 offset:{LHIST}
        """)
    a(f"""
    L_NOH:
    v_lshlrev_b32 v29, 3, v{vL}
    s_waitcnt lgkmcnt(0)
    s_barrier                                     ; B2
    s_cmp_lt_u32 s{sW}, 10
    s_cbranch_scc0 L_NOS
    ds_read_b64 v[18:19], v29 offset:{LHIST}
    s_waitcnt lgkmcnt(0)
    v_add_u32 v20, v18, v19
    v_mov_b32 v21, v20
    """)
    scan64(a, 21)
    a(f"""
    v_sub_u32 v22, v21, v20
    v_add_u32 v23, v22, v18
    v_mul_u32_u24 v22, {RB}, v22
    v_mul_u32_u24 v23, {RB}, v23
    ds_write_b64 v29, v[22:23] offset:{LSTART}
    ds_read_b32 v12, v12 offset:{LSTART}
    ds_read_b32 v13, v13 offset:{LSTART}
    s_waitcnt vmcnt(4)
    v_lshl_or_b32 v14, v6, 8, v14
    v_lshl_or_b32 v15, v7, 8, v15
    s_waitcnt lgkmcnt(0)
    v_mad_u32_u24 v12, v16, {RB}, v12
    v_mad_u32_u24 v13, v17, {RB}, v13
    ds_write2_b32 v12, v8, v9 offset0:0 offset1:1
    ds_write_b32 v12, v14 offset:8
    ds_write2_b32 v13, v10, v11 offset0:0 offset1:1
    ds_write_b32 v13, v15 offset:8
    L_NOS:
    s_add_u32 s{sEP}, s{sEP}, 1
    s_mul_i32 s{sTAG}, s{sEP}, 0x9E3779B1
    s_mul_i32 s{sTAGB}, s{sEP}, 0x85EBCA6B
    s_lshr_b32 s{sTAGB}, s{sTAGB}, 25
    s_waitcnt lgkmcnt(0)
    s_barrier                                     ; B3
    """)
    mark()
    vX, vRing, vAcc, vA = 8, 24, 56, 88
    a(f"""
    s_cmp_eq_u32 s{sW}, 12
    s_cbranch_scc0 L_NOCOPY
    v_lshlrev_b32 v4, 4, v{vL}
    s_mul_i32 s{t0}, s{sC}, {CH*RB}
    s_add_u32 s{t0}, s{t0}, {WS_REC}
    """)
    srd(a, SRD_W, sWS, f"s{t0}", CH * RB)
    NCP = CH * RB // 1024
    for i in range(NCP):
        a(f"ds_read_b128 {vr(32+4*i,4)}, v4 offset:{1024*i}")
    a(f"s_mov_b32 s{t0}, 4096\ns_mov_b32 s{t1}, 8192\ns_mov_b32 s{t2}, 12288")
    for i in range(NCP):
        so = "0" if i < 4 else f"s{t0 + i // 4 - 1}"
        a(f"s_waitcnt lgkmcnt({NCP-1-i})\nbuffer_store_dwordx4 {vr(32+4*i,4)}, v4, {sq(SRD_W)}, {so} offen offset:{1024*(i%4)} sc1")
    a(f"""
    ds_read_b64 v[8:9], v29 offset:{LHIST}
    ds_read_b64 v[10:11], v29 offset:{LSTART}
    s_lshl_b32 s{t0}, s{sTAGB}, 25
    s_lshl_b32 s{t1}, s{sC}, 10
    s_add_u32 s{t1}, s{t1}, {WS_OFF}
    v_add_u32 v5, s{t1}, v4
    v_mov_b32 v13, s{sTAG}
    v_mov_b32 v15, s{sTAG}
    s_waitcnt lgkmcnt(0)
    v_lshl_or_b32 v12, v8, 14, v10
    v_lshl_or_b32 v14, v9, 14, v11
    v_or_b32 v12, s{t0}, v12
    v_or_b32 v14, s{t0}, v14
    s_waitcnt vmcnt({NCP})
    s_barrier                                     ; B4
    s_waitcnt vmcnt(0)
    global_store_dwordx4 v5, v[12:15], {sp(sWS)} sc1
    s_branch L_GD
    L_NOCOPY:
    s_cmp_ge_u32 s{sW}, 5
    s_cselect_b32 s{t0}, 2, 0
    s_cmp_ge_u32 s{sW}, 10
    s_cselect_b32 s{t0}, 3, s{t0}
    s_lshl_b32 s{t0}, s{t0}, 14
    s_add_u32 s{t0}, s{t0}, {LW}
    v_lshrrev_b32 v4, 4, v{vL}                    ; sigma
    v_lshlrev_b32 v{vA}, 10, v4
    v_bfe_u32 v5, v{vL}, 2, 2
    v_lshl_add_u32 v{vA}, v5, 7, v{vA}
    v_and_b32 v5, 3, v{vL}
    v_lshl_add_u32 v{vA}, v5, 3, v{vA}
    v_bfe_u32 v5, v{vL}, 3, 2
    v_lshlrev_b32 v5, 5, v5
    v_add3_u32 v{vA}, v{vA}, v5, s{t0}
    v_xor_b32 v{vA+1}, 32, v{vA}
    v_xor_b32 v{vA+2}, 64, v{vA}
    v_xor_b32 v{vA+3}, 0x60, v{vA}
    v_and_b32 v5, 15, v{vL}
    v_xor_b32 v6, v5, v4
    v_lshlrev_b32 v6, 4, v6
    s_add_u32 s{t1}, s{sT0}, {LX}
    v_lshlrev_b32 v7, 8, v5
    v_add3_u32 v92, v6, v7, s{t1}
    v_xor_b32 v93, 64, v92
    v_xor_b32 v94, 0x80, v92
    v_xor_b32 v95, 0xc0, v92
    v_lshlrev_b32 v4, 10, v4
    v_add_u32 v4, s{sT0}, v4
    s_mov_b32 s{sLG}, {hex(NLOG2E)}
    s_waitcnt vmcnt(0)
    s_barrier                                     ; B4
    """)
    for ks in range(4):
        a(f"ds_read_b128 {vr(vX+4*ks,4)}, v{92+ks}")
    steps, rd, n, depth = gemm(a, 2, vA, vX, vRing, 6, vAcc)

    def mf(s):
        ks, m, t = steps[s]
        acc = vAcc + (m * 4 + t) * 4
        c = "0" if ks == 0 else vr(acc, 4)
        a(f"v_mfma_f32_16x16x32_bf16 {vr(acc,4)}, {vr(vX+4*ks,4)}, {vr(vRing+4*(s%6),4)}, {c}")

    for s in range(depth):
        rd(s)
    for s in range(n):
        if s == 16:
            a(f"s_cmp_ge_u32 s{sW}, 5\ns_cbranch_scc1 L_GAU")
        issued = min(n, s + depth)
        a(f"s_waitcnt lgkmcnt({2*(issued-s-1)})")
        mf(s)
        if s + depth < n:
            rd(s + depth)
    a(f"""
    s_mul_i32 s{t0}, s{sH}, {T_HALF//128}
    s_mul_i32 s{t1}, s{sB}, {NB*256}
    s_add_u32 s{t0}, s{t0}, s{t1}
    v_lshlrev_b32 v5, 4, v5
    v_add3_u32 v4, v4, v5, s{t0}
    s_mov_b32 s{t1}, 0x07060302
    s_setreg_imm32_b32 hwreg(HW_REG_MODE, 4, 2), 0
    """)
    for i in range(4):
        P = vRing + 4 * i
        b = [vAcc + 4 * t + i for t in range(4)]
        h = [vAcc + 16 + 4 * t + i for t in range(4)]
        for t in range(4):
            a(f"v_mul_f32 v{b[t]}, s{sLG}, v{b[t]}")
        for t in (0, 1, 3):
            a(f"v_add_f32 v{h[t]}, 0, v{h[t]}")
        for t in (2, 0, 3, 1):
            a(f"v_add_u32 v{h[t]}, 0x8000, v{h[t]}")
        SD = "clamp dst_sel:DWORD dst_unused:UNUSED_PAD src0_sel:DWORD src1_sel:WORD_1"
        a(f"""
        v_sub_u32_sdwa v{h[0]}, v{h[0]}, v{h[2]} {SD}
        v_cvt_pk_bf16_f32 v{P+2}, v{b[0]}, v{b[1]}
        v_sub_u32_sdwa v{h[3]}, v{h[3]}, v{h[0]} {SD}
        v_cvt_pk_bf16_f32 v{P+3}, v{b[2]}, v{b[3]}
        v_sub_u32_sdwa v{h[1]}, v{h[1]}, v{h[3]} {SD}
        v_perm_b32 v{P}, v{h[0]}, v{h[2]}, s{t1}
        v_perm_b32 v{P+1}, v{h[1]}, v{h[3]}, s{t1}
        global_store_dwordx4 v4, {vr(P,4)}, {sp(sWS)} offset:{256*i} sc1
        """)
    a(f"""
    s_setreg_imm32_b32 hwreg(HW_REG_MODE, 4, 2), 3
    s_branch L_GD
    L_GAU:
    s_waitcnt lgkmcnt(0)
    s_cmp_ge_u32 s{sW}, 10
    s_cbranch_scc1 L_GU
    v_lshl_add_u32 v4, v5, 4, v4
    s_nop 3
    """)
    for i in range(4):
        P = vRing + 4 * i
        for t in range(4):
            a(f"v_mul_f32 v{P+t}, s{sLG}, v{vAcc+4*t+i}")
        a(f"ds_write_b128 v4, {vr(P,4)} offset:{LA+256*i}")
    a(f"""
    s_branch L_GD
    L_GU:
    v_lshl_add_u32 v4, v5, 2, v4
    v_lshlrev_b32 v4, 1, v4
    v_add_u32 v4, {LAGG}, v4
    s_nop 1
    """)
    for i in range(4):
        for t in range(4):
            a(f"v_cvt_f64_f32 {vr(vX+8*i+2*t,2)}, v{vAcc+4*t+i}")
        for t in (0, 2):
            a(f"ds_write2_b64 v4, {vr(vX+8*i+2*t,2)}, {vr(vX+8*i+2*t+2,2)} offset0:{64*i+16*t} offset1:{64*i+16*t+16}")
    a("L_GD:")
    mark()
    srd(a, SRD_R, sWS, WS_OFF, NCH * 1024)
    a(f"""
    v_lshrrev_b32 v40, 2, v0
    s_lshl_b32 s{t0}, s{sB}, 3
    v_lshl_add_u32 v41, v40, 10, s{t0}
    buffer_load_dwordx2 v[42:43], v41, {sq(SRD_R)}, 0 offen sc1
    """)
    a(f"""
    v_bfe_u32 v4, v{vL}, 2, 2
    v_lshrrev_b32 v5, 4, v{vL}
    v_and_b32 v6, 3, v{vL}
    v_lshlrev_b32 v7, 7, v4
    v_lshl_add_u32 v7, v5, 5, v7
    v_lshl_add_u32 v7, v6, 3, v7
    ds_read_b64_tr_b16 v[44:45], v7 offset:{LCW}
    v_cmp_eq_u32 vcc, v5, v4
    v_mov_b32 v7, 0x3f80
    v_cmp_eq_u32 {sp(sEM)}, v5, v6
    v_cndmask_b32 v{vAo}, 0, v7, vcc
    v_mov_b32 v{vAo+1}, 0
    v_lshlrev_b32 v6, 4, v6
    v_lshlrev_b64 {vr(vAo,2)}, v6, {vr(vAo,2)}
    """)
    for g in range(4):
        if g:
            a(f"v_mov_b64 {vr(vAo+4*g,2)}, {vr(vAo,2)}")
        a(f"v_mov_b64 {vr(vAo+4*g+2,2)}, 0")
    a(f"""
    v_and_b32 v{vLO+1}, 15, v{vL}
    v_lshlrev_b32 v{vLO}, 4, v{vLO+1}
    v_lshlrev_b32 v{vLO+1}, 3, v{vLO+1}
    v_add_u32 v{vLO+1}, {LAGG}, v{vLO+1}
    s_mov_b32 s{sLG}, {hex(NLOG2E)}
    s_mov_b32 s{t1}, 0xffff0000
    s_mov_b32 s{s12}, 1.0
    s_mov_b32 s{s12+1}, 2.0
    s_mov_b32 s{sINC}, 16
    s_mov_b32 s{sINC+1}, 8
    s_mov_b32 s{sTHR}, 0
    s_mov_b32 s{sTHR+1}, 0x5f800000
    s_mov_b32 s{sFIRST}, 1
    s_mov_b32 s{sSPIN}, {SPIN}
    v_mul_u32_u24 v{vRO}, {CH*RB}, v40
    v_and_b32 v46, 3, v0
    v_mad_u32_u24 v{vRO}, v46, {RB}, v{vRO}
    s_waitcnt lgkmcnt(0)
    v_lshlrev_b32 v4, 16, v44
    v_and_b32 v44, s{t1}, v44
    v_lshlrev_b32 v5, 16, v45
    v_and_b32 v45, s{t1}, v45
    v_mul_f32 v4, s{sLG}, v4
    v_mul_f32 v44, s{sLG}, v44
    v_mul_f32 v5, s{sLG}, v5
    v_mul_f32 v45, s{sLG}, v45
    v_cvt_pk_bf16_f32 v{vCw}, v4, v44
    v_cvt_pk_bf16_f32 v{vCw+1}, v5, v45
    v_cmp_gt_u32 vcc, {NCH}, v40
    s_mov_b64 exec, vcc
    L_POLL:
    s_waitcnt vmcnt(0)
    v_lshrrev_b32 v4, 25, v42
    v_cmp_ne_u32 vcc, s{sTAG}, v43
    v_cmp_ne_u32 {sp(t0)}, s{sTAGB}, v4
    s_or_b64 exec, vcc, {sp(t0)}
    s_cbranch_execz L_POLLED
    s_sub_u32 s{sSPIN}, s{sSPIN}, 1
    s_cbranch_scc1 L_POLLX
    buffer_load_dwordx2 v[42:43], v41, {sq(SRD_R)}, 0 offen sc1
    s_branch L_POLL
    L_POLLX:
    v_mov_b32 v42, 0
    L_POLLED:
    s_mov_b64 exec, -1
    """)
    mark()
    srd(a, SRD_R, sWS, WS_REC, E * RB)
    a(f"""
    v_bfe_u32 v{vRem}, v42, 14, 11
    v_and_b32 v42, 0x3fff, v42
    v_sub_u32 v{vRem}, v{vRem}, v46
    v_add_u32 v{vRO}, v{vRO}, v42
    L_WINDOW:
    """)
    vRec = 8
    vCa, vNb = 36, 44
    for k in range(KMAX):
        a(f"v_cmp_lt_i32 {sp(sM+2*k)}, {4*k}, v{vRem}")
    a(f"""
    L_ROUND:
    s_or_b64 {sp(sU5)}, {sp(sM+10)}, {sp(sM+12)}
    s_or_b64 {sp(sU4)}, {sp(sU5)}, {sp(sM+8)}
    """)

    def kloop(done, body):
        for k in range(KMAX):
            if k == 4:
                a(f"s_cmp_eq_u64 {sp(sU4)}, 0\ns_cbranch_scc1 {done}")
            if k == 5:
                a(f"s_cmp_eq_u64 {sp(sU5)}, 0\ns_cbranch_scc1 {done}")
            a(f"s_mov_b64 exec, {sp(sM+2*k)}")
            body(k)
        a(f"{done}:\ns_mov_b64 exec, -1")

    kloop("L_RL", lambda k: a(f"buffer_load_dwordx3 {vr(vRec+4*k,3)}, v{vRO}, {sq(SRD_R)}, 0 offen offset:{48*k} sc1"))
    a(f"""
    ; table job of this thread: node = tid/12, i = tid%12
    v_mul_u32_u24 v4, 5462, v0
    v_lshrrev_b32 v4, 16, v4
    v_mad_i32_i24 v5, v4, -12, v0
    v_lshlrev_b32 v{vJ}, 2, v4
    v_lshlrev_b32 v{vJ+1}, 2, v5
    s_mov_b32 s{t0}, {SLOTB}
    v_mov_b32 v6, {LSLOT}
    v_mad_u32_u24 v{vJ+5}, v4, s{t0}, v6
    v_lshl_add_u32 v{vJ+2}, v5, 4, v{vJ+5}
    v_lshlrev_b32 v{vJ+3}, 8, v4
    v_lshl_add_u32 v{vJ+4}, v5, 5, v{vJ+5}
    v_cmp_le_u32 vcc, {NB}, v4
    v_mov_b32 v7, {LDUM}
    s_mul_i32 s{t1}, s{sH}, {T_HALF//128}
    v_cndmask_b32 v{vJ+2}, v{vJ+2}, v7, vcc
    v_cndmask_b32 v{vJ+3}, v{vJ+3}, 0, vcc
    v_cndmask_b32 v{vJ+4}, v{vJ+4}, v6, vcc
    """)
    srd(a, SRD_T, sWS, f"s{t1}", T_HALF)
    a(f"""
    v_mov_b32 v4, 1
    s_mov_b32 s{t0}, {SLOTB//4}
    s_mov_b32 s{t1}, 0xffffff00
    s_waitcnt lgkmcnt(0)
    s_barrier                                     ; B5
    s_cmp_eq_u32 s{sW}, 12
    s_cselect_b32 s{t2}, s{sFIRST}, 0
    s_cmp_eq_u32 s{t2}, 0
    s_cbranch_scc1 L_NOSIG
    s_bfe_u32 s{t2}, s2, 0x10003
    s_lshl_b32 s{t2}, s{t2}, 6
    s_add_u32 s{t2}, s{t2}, s{sH}
    v_mov_b32 v5, s{t2}
    s_mov_b64 exec, 1
    global_atomic_add v5, v4, {sp(sDBG)} sc1
    s_waitcnt vmcnt(1)
    s_branch L_SIGD
    L_NOSIG:
    s_waitcnt vmcnt(0)
    L_SIGD:
    """)
    mark()

    def hist(k):
        a(f"""
        v_lshlrev_b32_sdwa v{vCa+k}, 2, v{vRec+4*k+2} dst_sel:DWORD dst_unused:UNUSED_PAD src0_sel:DWORD src1_sel:BYTE_0
        v_and_b32 v{vRec+4*k+2}, s{t1}, v{vRec+4*k+2}
        ds_add_rtn_u32 v{vRec+4*k+3}, v{vCa+k}, v4 offset:{LCNT}
        v_mad_u32_u24 v{vNb+k}, v{vCa+k}, s{t0}, v6
        """)

    kloop("L_HD", hist)
    a("s_waitcnt lgkmcnt(0)")

    def scat(k):
        a(f"""
        v_cmpx_gt_u32 vcc, {CAP}, v{vRec+4*k+3}
        v_lshl_add_u32 v{vCa+k}, v{vRec+4*k+3}, 2, v{vNb+k}
        v_lshl_add_u32 v{vNb+k}, v{vRec+4*k+3}, 3, v{vNb+k}
        s_andn2_b64 {sp(sM+2*k)}, {sp(sM+2*k)}, vcc
        ds_write_b32 v{vCa+k}, v{vRec+4*k+2}
        ds_write_b64 v{vNb+k}, {vr(vRec+4*k,2)} offset:256
        """)

    kloop("L_SD", scat)
    a(f"""
    v_cmp_lt_i32 vcc, {4*KMAX}, v{vRem}
    s_or_b64 {sp(sU4)}, {sp(sM)}, {sp(sM+2)}
    s_or_b64 {sp(sU5)}, {sp(sM+4)}, {sp(sM+6)}
    s_or_b64 {sp(sU4)}, {sp(sU4)}, {sp(sM+8)}
    s_or_b64 {sp(sU5)}, {sp(sU5)}, {sp(sM+10)}
    s_or_b64 {sp(sU4)}, {sp(sU4)}, {sp(sM+12)}
    s_or_b64 {sp(sU4)}, {sp(sU4)}, {sp(sU5)}
    v_mov_b32 v5, {LFLAG}
    v_lshlrev_b32 v7, 3, v{vL}
    s_or_b64 exec, vcc, {sp(sU4)}
    ds_write_b32 v5, v4
    s_mov_b64 exec, -1
    s_waitcnt lgkmcnt(0)
    s_barrier                                     ; B6
    """)
    mark()
    vW = (8, 32)
    a(f"""
    ds_read_b64 v[56:57], v7 offset:{LCNT}
    ds_read_b32 v58, v5
    """)
    for k in range(8):
        a(f"v_mov_b64 {vr(vW[0]+6*k+4,2)}, {vr(vCw,2)}")
    a(f"""
    s_waitcnt lgkmcnt(0)
    v_min_u32 v56, {CAP}, v56
    v_min_u32 v57, {CAP}, v57
    v_readfirstlane_b32 s{sMORE}, v58
    v_add_u32 v60, 3, v56
    v_add_u32 v61, 3, v57
    v_lshrrev_b32 v60, 2, v60
    v_lshrrev_b32 v61, 2, v61
    v_add_u32 v62, v60, v61
    v_mov_b32 v63, v62
    """)
    scan64(a, 63)
    a(f"""
    v_sub_u32 v64, v63, v62
    v_add_u32 v65, v64, v60
    v_lshl_or_b32 v56, v64, 8, v56
    v_lshl_or_b32 v57, v65, 8, v57
    ds_write_b64 v7, v[56:57] offset:{LQS}
    ds_read_b32 v56, v{vJ} offset:{LQS}
    v_readlane_b32 s{sNG}, v64, {NB//2}
    v_lshrrev_b32 v4, 4, v{vL}
    v_bfe_u32 v5, v{vL}, 2, 2
    v_mov_b32 v59, {DUMMY}
    s_add_u32 s{sNG}, s{sNG}, 3
    s_lshr_b32 s{sNG}, s{sNG}, 2                  ; groups
    s_lshr_b32 s{t0}, s{sNG}, 4
    s_and_b32 s{t1}, s{sNG}, 15
    s_mul_i32 s{t2}, s{t0}, s{sW}
    s_min_u32 s{t3}, s{sW}, s{t1}
    s_add_u32 s{t2}, s{t2}, s{t3}
    s_cmp_lt_u32 s{sW}, s{t1}
    s_addc_u32 s{sN}, s{t0}, 0
    s_mov_b32 s{t0}, {LTA}
    s_mov_b32 s{t1}, {LTE}
    s_waitcnt lgkmcnt(0)
    v_and_b32 v57, 0xff, v56                      ; count
    v_lshrrev_b32 v56, 6, v56
    v_and_b32 v56, -4, v56
    v_add_u32 v56, v56, v{vJ+1}
    v_sub_u32 v60, 0, v57
    v_and_b32 v60, 3, v60
    v_lshlrev_b32 v60, 2, v60
    v_cmp_lt_u32 {sp(sU5)}, v{vJ+1}, v60
    v_lshl_add_u32 v61, v57, 2, v{vJ+1}
    v_add_u32 v61, v61, v{vJ+5}
    v_lshl_add_u32 v62, v56, 1, s{t0}
    v_add_u32 v63, s{t1}, v56
    v_cmpx_lt_u32 vcc, v{vJ+1}, v57
    v_add_u32 v64, 48, v{vJ+1}
    ds_write_b64 v62, {vr(vJ+2,2)}
    ds_write_b32 v63, v{vJ+4}
    v_cmp_lt_u32 vcc, v64, v57
    s_cbranch_vccnz L_BIG
    L_BIGD:
    s_mov_b64 exec, {sp(sU5)}
    ds_write_b32 v61, v59
    s_mov_b64 exec, -1
    """)
    vT, vAp, vS = 56, 80, 84
    vTQ = (88, 76)
    vNA = (90, 92)
    vP = 94
    vSh, vQE = 96, 106
    vDn, vNm, vAa, vCk = 72, 100, 4, 78
    vSh2 = 104
    vD = (78, 124, 4, 6)

    def sh(g):
        return (96, 98, 104, 124)[g]

    a(f"""
    v_mov_b32 v6, s{t2}
    v_mad_u32_u24 v4, v4, s{sNG}, v6
    v_mad_u32_u24 v5, v5, s{sNG}, v6
    v_lshl_add_u32 v{vP}, v4, 3, s{t0}
    v_lshl_add_u32 v{vP+1}, v5, 2, s{t1}
    s_cmp_eq_u32 s{sW}, 12
    s_cselect_b32 s{t2}, s{sFIRST}, 0
    s_cmp_eq_u32 s{t2}, 0
    s_cbranch_scc1 L_TRDY
    v_lshl_add_u32 v4, v{vL}, 6, s{sH}
    s_mov_b32 s{sSPIN}, {SPIN}
    s_mov_b64 exec, 3
    L_TPOLL:
    global_load_dword v5, v4, {sp(sDBG)} sc1
    s_sub_u32 s{sSPIN}, s{sSPIN}, 1
    s_cbranch_scc1 L_TX
    s_waitcnt vmcnt(0)
    v_readlane_b32 s{t2}, v5, 0
    v_readlane_b32 s{t3}, v5, 1
    s_add_u32 s{t2}, s{t2}, s{t3}
    s_cmp_lt_u32 s{t2}, {NBK}
    s_cbranch_scc1 L_TPOLL
    L_TX:
    s_mov_b64 exec, -1
    L_TRDY:
    s_mov_b32 s{sFIRST}, 0
    s_waitcnt vmcnt(0) lgkmcnt(0)
    s_barrier                                     ; B7
    """)
    mark()
    if stamp:
        a("s_memtime s[90:91]\ns_waitcnt lgkmcnt(0)")

    def saddr(S):
        a(f"""
        v_pk_add_f32 {vr(S,2)}, {vr(S,2)}, {vr(vLO,2)} op_sel_hi:[1,0]
        v_pk_add_f32 {vr(S+2,2)}, {vr(S+2,2)}, {vr(vLO,2)} op_sel_hi:[1,0]
        """)

    def loads(p, S):
        for g in range(4):
            a(f"buffer_load_dwordx4 {vr(vW[p]+6*g,4)}, v{S+g}, {sq(SRD_T)}, 0 offen sc1")

    def naddr(p, TQ):
        a(f"v_pk_fma_f32 {vr(vNA[p],2)}, {vr(TQ,2)}, {sp(s12)}, {vr(vLO,2)} op_sel:[1,0,0] op_sel_hi:[1,1,1]")

    def eread(q):
        a(f"s_mov_b64 exec, {sp(sEM)}")
        for g in range(4):
            a(f"ds_read_b64 {vr(vAo+4*g+2,2)}, v{q} offset:{256+8*g}")
        a("s_mov_b64 exec, -1")

    def hv(W, g, h):
        return vr(W + 6 * g, 2) if h == 0 else vr(sh(g), 2)

    def mfma(p, g):
        return f"v_mfma_f32_16x16x32_bf16 {vr(vT+4*g,4)}, {vr(vAo+4*g,4)}, {vr(vW[p]+6*g+2,4)}, {vr(vAp,4)}"

    def flush(p):
        a(f"""
        v_pk_mul_f32 {vr(vNm,2)}, {vr(vNm,2)}, {vr(vDn,2)}
        v_pk_mul_f32 {vr(vNm+2,2)}, {vr(vNm+2,2)}, {vr(vDn+2,2)}
        """)
        for t in range(4):
            a(f"v_cvt_f64_f32 {vr(vD[t],2)}, v{vNm+t}")
        for t in range(4):
            a(f"ds_add_f64 v{vNA[p]+1}, {vr(vD[t],2)} offset:{128*t}")

    a(f"""
    s_cmp_eq_u32 s{sN}, 0
    s_cbranch_scc1 L_LD
    s_setprio 3
    ds_read_b64 {vr(vT,2)}, v{vP}
    ds_read_b64 {vr(vTQ[1],2)}, v{vP} offset:8
    ds_read_b32 v{vT+2}, v{vP+1}
    ds_read_b64 {vr(vTQ[0],2)}, v{vP} offset:16
    ds_read_b32 v{vQE}, v{vP+1} offset:4
    v_mov_b32 v{vNA[1]+1}, v{vLO+1}
    v_mov_b64 {vr(vNm,2)}, 0
    v_mov_b64 {vr(vNm+2,2)}, 0
    s_waitcnt lgkmcnt(4)
    ds_read_b128 {vr(vT+4,4)}, v{vT}
    """)
    naddr(0, vT)
    a(f"""
    s_waitcnt lgkmcnt(3)
    ds_read_b128 {vr(vS,4)}, v{vTQ[1]}
    ds_read_b128 {vr(vAp,4)}, v{vNA[0]} offset:{LA}
    """)
    eread(vT + 2)
    for t in range(4):
        a(f"v_mov_b32 v{vDn+t}, 1.0")
    a("s_waitcnt lgkmcnt(6)")
    saddr(vT + 4)
    loads(0, vT + 4)
    a(f"""
    s_add_u32 s{sN}, s{sN}, 1
    s_branch L_SB1
    """)
    for p in range(2):
        W = vW[p]
        a(f"""
        L_L{p}:
        ds_read_b128 {vr(vS,4)}, v{vTQ[p]}
        """)
        for i in range(16):
            a(f"v_exp_f32 v{vT+i}, v{vT+i}")
            if i == 7:
                eread(vQE)
                a(f"ds_read_b32 v{vQE}, v{vP+1} offset:{8+4*p}")
        flush(p ^ 1)
        naddr(p ^ 1, vTQ[p ^ 1])
        for g in range(4):
            a(f"v_lshlrev_b64 {vr(sh(g),2)}, 16, {vr(W+6*g,2)}")
            if g == 0:
                a(f"ds_read_b128 {vr(vAp,4)}, v{vNA[p^1]} offset:{LA}")
                a(f"ds_read_b64 {vr(vTQ[p^1],2)}, v{vP} offset:{24+8*p}")
        if p == 1:
            a(f"v_pk_add_f32 {vr(vP,2)}, {vr(vP,2)}, {sp(sINC)}")
        for h in range(2):
            a(f"v_pk_add_f32 {vr(vDn+2*h,2)}, {vr(vT+2*h,2)}, 1.0 op_sel_hi:[1,0]")
        for g in range(1, 4):
            for h in range(2):
                src = hv(W, 0, h) if g == 1 else vr(vNm + 2 * h, 2)
                a(f"v_pk_fma_f32 {vr(vAa+2*h,2)}, {src}, {vr(vT+4*g+2*h,2)}, {src}")
            for h in range(2):
                a(f"v_pk_fma_f32 {vr(vNm+2*h,2)}, {hv(W,g,h)}, {vr(vDn+2*h,2)}, {vr(vAa+2*h,2)}")
            for h in range(2):
                a(f"v_pk_fma_f32 {vr(vDn+2*h,2)}, {vr(vDn+2*h,2)}, {vr(vT+4*g+2*h,2)}, {vr(vDn+2*h,2)}")
        a(f"""
        v_pk_fma_f32 {vr(vCk,2)}, {vr(vDn,2)}, {vr(vDn+2,2)}, {sp(sTHR)} neg_hi:[1,0,0]
        v_cmp_nle_f32 vcc, v{vCk}, v{vCk+1}
        s_cbranch_vccnz L_SAFE{p}
        L_SB{p}:
        s_cmp_le_u32 s{sN}, 2
        s_waitcnt lgkmcnt(0)
        """)
        saddr(vS)
        a(f"s_cbranch_scc1 L_TAIL{p}")
        loads(p, vS)
        a(f"""
        s_waitcnt vmcnt(4)
        L_M{p}:
        """)
        for g in range(4):
            a(mfma(p ^ 1, g))
            a(f"v_rcp_f32 v{vDn+g}, v{vDn+g}")
        a(f"""
        s_sub_u32 s{sN}, s{sN}, 1
        s_cmp_eq_u32 s{sN}, 4
        s_cbranch_scc1 L_PR{p}
        """)
        if p == 1:
            a("s_branch L_L0")
    for p in range(2):
        a(f"""
        L_PR{p}:
        s_setprio 2
        s_branch L_L{p^1}
        L_TAIL{p}:
        s_setprio 0
        s_cmp_eq_u32 s{sN}, 2
        s_waitcnt vmcnt(0)
        s_cbranch_scc1 L_M{p}
        """)
        for g in range(4):
            a(f"v_rcp_f32 v{vDn+g}, v{vDn+g}")
        a("s_nop 0")
        flush(p)
        if p == 0:
            a("s_branch L_LD")
    a(f"""
    L_LD:
    s_waitcnt lgkmcnt(0)
    """)
    mark()
    if stamp:
        a("s_memtime s[94:95]\ns_waitcnt lgkmcnt(0)\ns_sub_u32 s94, s94, s90\nv_writelane_b32 v107, s94, 15")
    a(f"""
    s_barrier                                     ; B8
    s_cmp_eq_u32 s{sMORE}, 0
    s_cbranch_scc0 L_MORE
    s_cmp_lt_u32 s{sW}, 10
    s_cbranch_scc0 L_EPO
    v_lshlrev_b32 v4, 6, v0
    ds_read_b128 v[24:27], v4 offset:{LAGG}
    ds_read_b128 v[28:31], v4 offset:{LAGG+16}
    ds_read_b128 v[32:35], v4 offset:{LAGG+32}
    ds_read_b128 v[36:39], v4 offset:{LAGG+48}
    s_mul_i32 s{t1}, s{sB}, {NB*256}
    s_add_u32 s{t1}, s{t1}, s{sH}
    v_lshrrev_b32 v5, 3, v0
    v_lshlrev_b32 v5, 8, v5
    v_and_b32 v6, 7, v0
    v_lshlrev_b32 v6, 4, v6
    v_add3_u32 v5, v5, v6, s{t1}
    s_waitcnt lgkmcnt(0)
    """)
    for i in range(8):
        a(f"v_cvt_f32_f64 v{8+i}, {vr(24+2*i,2)}")
    for i in range(8):
        a(f"v_mul_f32 v{16+i}, s{sLG}, v{8+i}")
    for i in range(8):
        a(f"v_exp_f32 v{16+i}, v{16+i}")
    for i in range(4):
        a(f"v_pk_add_f32 {vr(16+2*i,2)}, {vr(16+2*i,2)}, 1.0 op_sel_hi:[1,0]")
    for i in range(8):
        a(f"v_rcp_f32 v{16+i}, v{16+i}")
    for i in range(4):
        a(f"v_pk_mul_f32 {vr(16+2*i,2)}, {vr(16+2*i,2)}, {vr(8+2*i,2)}")
    for i in range(4):
        a(f"v_cvt_pk_bf16_f32 v{8+i}, v{16+2*i}, v{17+2*i}")
    a(f"""
    global_store_dwordx4 v5, v[8:11], {sp(sOUT)}
    s_branch L_FIN
    L_EPO:
    s_lshl_b32 s{t0}, s2, 4
    s_add_u32 s{t0}, s{t0}, s{sW}
    s_cmp_eq_u32 s{t0}, 12
    s_cbranch_scc0 L_FIN
    v_mov_b32 v4, {WS_EPOCH}
    v_mov_b32 v5, s{sEP}
    s_mov_b64 exec, 1
    global_store_dword v4, v5, {sp(sWS)} sc1
    s_mov_b64 exec, -1
    L_FIN:
    """)
    if os.environ.get("PERSIST"):
        off = int(os.environ["PERSIST"], 0)
        a(f"""
        s_lshl_b32 s{t0}, s2, 4
        s_add_u32 s{t0}, s{t0}, s{sW}
        s_cmp_eq_u32 s{t0}, 13
        s_cbranch_scc0 L_QX
        v_mov_b32 v4, {off}
        v_mov_b32 v6, 0x1234abcd
        s_mov_b64 exec, 1
        global_load_dword v5, v4, {sp(sWS)} sc1
        s_waitcnt vmcnt(0)
        global_store_dword v4, v6, {sp(sWS)} sc1
        v_cmp_eq_u32 vcc, v5, v6
        s_cbranch_vccz L_QX
        s_memrealtime s[84:85]
        s_waitcnt lgkmcnt(0)
        L_QS:
        s_memrealtime s[86:87]
        s_waitcnt lgkmcnt(0)
        s_sub_u32 s86, s86, s84
        s_cmp_lt_u32 s86, 5000
        s_cbranch_scc1 L_QS
        L_QX:
        """)
    if PROBE:
        a(f"""
        s_lshl_b32 s{t0}, s2, 4
        s_add_u32 s{t0}, s{t0}, s{sW}
        s_cmp_eq_u32 s{t0}, {PROBE[0]}
        s_cbranch_scc0 L_PX
        s_memrealtime s[84:85]
        s_sub_u32 s82, s82, s80
        s_lshl_b32 s82, s82, 3
        s_min_u32 s82, s82, 100000
        s_waitcnt lgkmcnt(0)
        L_PS:
        s_memrealtime s[86:87]
        s_waitcnt lgkmcnt(0)
        s_sub_u32 s86, s86, s84
        s_cmp_lt_u32 s86, s82
        s_cbranch_scc1 L_PS
        L_PX:
        """)
    if stamp:
        a("s_waitcnt vmcnt(0)")
        mark()
        a(f"""
        s_lshl_b32 s3, s2, 4
        s_add_u32 s3, s3, s{sW}
        s_lshl_b32 s3, s3, 6
        s_add_u32 s3, s3, {WS_STAMP}
        v_lshl_add_u32 v4, v{vL}, 2, s3
        s_mov_b64 exec, 0xffff
        global_store_dword v4, v107, {sp(sWS)}
        """)
    a("s_endpgm")
    for p in range(2):
        W = vW[p]
        a(f"L_SAFE{p}:")
        for i in range(8):
            a(f"v_pk_add_f32 {vr(vT+2*i,2)}, {vr(vT+2*i,2)}, 1.0 op_sel_hi:[1,0]")
        for i in range(16):
            a(f"v_rcp_f32 v{vT+i}, v{vT+i}")
        for t in range(4):
            a(f"v_mov_b32 v{vDn+t}, 1.0")
        for g in range(4):
            for h in range(2):
                o = 4 * g + 2 * h
                if g == 0:
                    a(f"v_pk_mul_f32 {vr(vNm+2*h,2)}, {vr(vT+o,2)}, {hv(W,g,h)}")
                else:
                    a(f"v_pk_fma_f32 {vr(vNm+2*h,2)}, {vr(vT+o,2)}, {hv(W,g,h)}, {vr(vNm+2*h,2)}")
        a(f"s_branch L_SB{p}")
    a(f"""
    L_BIG:
    s_mov_b64 exec, vcc
    v_add_u32 v{vJ+2}, {12*16}, v{vJ+2}
    v_add_u32 v{vJ+4}, {12*32}, v{vJ+4}
    ds_write_b64 v62, {vr(vJ+2,2)} offset:{12*8}
    ds_write_b32 v63, v{vJ+4} offset:{12*4}
    s_branch L_BIGD
    L_MORE:
    v_mov_b64 {vr(vCw,2)}, {vr(vW[0]+4,2)}
    s_cmp_lt_u32 s{sW}, 3
    s_cbranch_scc0 L_MORE2
    v_lshlrev_b32 v4, 2, v0
    v_cmp_eq_u32 vcc, {NB}, v0
    v_mov_b32 v6, 32
    s_nop 0
    v_cndmask_b32 v5, 0, v6, vcc
    v_cmp_gt_u32 vcc, 132, v0
    s_mov_b64 exec, vcc
    ds_write_b32 v4, v5 offset:{LCNT}
    s_mov_b64 exec, -1
    L_MORE2:
    s_cmp_eq_u64 {sp(sU4)}, 0
    s_cbranch_scc0 L_ROUND
    v_subrev_u32 v{vRem}, {4*KMAX}, v{vRem}
    v_add_u32 v{vRO}, {48*KMAX}, v{vRO}
    s_branch L_WINDOW
    L_END:
    """)
    return a.text(), NST[0]


def build(stamp=False):
    body, nst = kernel(stamp)
    return f"""; Kernarg layout (80 bytes, pointers): x, e_attr, src, dst, u_w, v_w, g_w, out, debug, ws
; @launch grid=(256,1,1) block=(1024,1,1) lds={LDS}
.amdgcn_target "amdgcn-amd-amdhsa--gfx950"
.text
.globl {NAME}
.p2align 8
.type {NAME},@function
{NAME}:
{body}    s_endpgm
.section .rodata,"a"
.p2align 6
.amdhsa_kernel {NAME}
  .amdhsa_next_free_vgpr 128
  .amdhsa_next_free_sgpr 96
  .amdhsa_accum_offset 128
  .amdhsa_group_segment_fixed_size 0
  .amdhsa_kernarg_size 80
  .amdhsa_user_sgpr_count 2
  .amdhsa_user_sgpr_kernarg_segment_ptr 1
  .amdhsa_system_sgpr_workgroup_id_x 1
  .amdhsa_float_denorm_mode_32 3
.end_amdhsa_kernel
"""


if __name__ == "__main__":
    open(sys.argv[1], "w").write(build(stamp="--stamp" in sys.argv))
```

```python
import sys, os
X = set(os.environ.get('X', '').split('+'))
NAME = "standalone__edge_featured_mpnn_egc__graph_kernel"
N, E = 10000, 320000
NB, NBK, CH, NCH = 80, 125, 1280, 250
T_HALF = N * 256
RB = 12
WS_T, WS_REC, WS_OFF, WS_TF, WS_EPOCH, WS_STAMP = 0, 0x500000, 0xA00000, 0xA40000, 0xA80000, 0xB00000
NLOG2E = 0xBFB8AA3B
KA = dict(x=0, e=8, src=16, dst=24, u=32, v=40, g=48, out=56, dbg=64, ws=72)
AST, GST = 272, 528
LA, LAGG = 0, NB * AST
LHIST = LAGG + NB * GST
LCNT, LFLAG, LDUM = LHIST + 512, LHIST + 1024, LHIST + 1056
F_MORE, F_NQ, F_PUB, F_RV, F_LAND, F_TD = 0, 4, 8, 12, 16, 20
LSTART, LCW = LHIST + 1280, LHIST + 1792
LW = LHIST + 2304
LX = LW + 65536
UST = 136
LU = LX + 20480
LDS = LU + NB * UST
LSLOT, SLOTB, CAP = LW, 784, 64
LTAB = LX
assert LSTART < 65536
KMAX = 7
DUMMY = 0x400000
SPIN = 1 << 17
assert LW % 256 == 0 and LDS <= 163840


class Asm:
    def __init__(self):
        self.l = []

    def __call__(self, s):
        for ln in s.strip("\n").split("\n"):
            ln = ln.strip()
            if ln:
                self.l.append(ln if ln.endswith(":") else "    " + ln)

    def text(self):
        return "\n".join(self.l) + "\n"


def f2h(f):
    import struct
    return hex(struct.unpack('<I', struct.pack('<f', f))[0])


def vr(a, n):
    return f"v[{a}:{a+n-1}]" if n > 1 else f"v{a}"


def sp(a):
    return f"s[{a}:{a+1}]"


def sq(a):
    return f"s[{a}:{a+3}]"


def srd(a, d, base, off, size):
    a(f"s_add_u32 s{d}, s{base}, {off}\ns_addc_u32 s{d+1}, s{base+1}, 0")
    a(f"s_mov_b32 s{d+2}, {size}\ns_mov_b32 s{d+3}, 0x20000")


def scan64(a, v):
    for ctl in ("row_shr:1", "row_shr:2", "row_shr:4", "row_shr:8"):
        a(f"s_nop 1\nv_add_u32_dpp v{v}, v{v}, v{v} {ctl} row_mask:0xf bank_mask:0xf")
    a(f"s_nop 1\nv_add_u32_dpp v{v}, v{v}, v{v} row_bcast:15 row_mask:0xa bank_mask:0xf")
    a(f"s_nop 1\nv_add_u32_dpp v{v}, v{v}, v{v} row_bcast:31 row_mask:0xc bank_mask:0xf")


def kernel(stamp):
    a = Asm()
    PROBE = [int(x) for x in os.environ["PROBE"].split(",")] if os.environ.get("PROBE") else None
    MARKS = set(int(x) for x in os.environ["MARKS"].split(",")) if os.environ.get("MARKS") else None

    FREE = [4, 6, 8, 10, 12, 14, 16, 20, 98]
    SLOT = {0: 94}
    if stamp:
        for m_ in sorted((MARKS or set()) - {0}):
            SLOT[m_] = FREE.pop(0)

    def mark(n):
        if stamp and n in SLOT:
            a(f"s_memrealtime s[{SLOT[n]}:{SLOT[n]+1}]")
        if PROBE and n in PROBE[1:]:
            r = 94 + 2 * PROBE[1:].index(n)
            a(f"s_memrealtime s[{r}:{r+1}]\ns_waitcnt lgkmcnt(0)")

    sRW = 3
    sX, sE, sSRC, sDST, sU, sV, sG, sOUT, sDBG, sWS = 4, 6, 8, 10, 12, 14, 16, 18, 20, 22
    SRD_T, SRD_R, SRD_W = 24, 28, 32
    sM = 36
    sN, sBIN, sT0, sFIRST = 50, 51, 52, 53
    t0, t1, t2, t3 = 54, 55, 56, 57
    sMORE, sW = 58, 59
    sINC, s12, sTHR, sEM = 60, 62, 64, 66
    sH, sB, sC, sEP, sTAG, sTAG2, sSPIN, sLG = 68, 69, 70, 71, 72, 73, 74, 75
    sTAGB = 100
    sU5, sU4 = 76, 78
    sO = 80
    vL, vLO, vAo, vRO, vRem = 1, 2, 108, 126, 127
    vF, vONE = 124, 125
    vWf, vXb, vAcc, vPk, vA, vXa, vRow, vJn = 8, 40, 72, 88, 100, 96, 101, 102
    vOFFa, vR4, vCwa = 103, 104, 105
    LNT = "" if "nont" in X else "nt"
    XNT = "nt" if "xnt" in X else ""

    def spin(label, off, cond, val, slp=0):
        a(f"""
        {label}:
        s_sub_u32 s{sSPIN}, s{sSPIN}, 1
        s_cbranch_scc1 L_END
        {f"s_sleep {slp}" if slp else ""}
        ds_read_b32 v7, v{vF} offset:{off}
        s_waitcnt lgkmcnt(0)
        """)
        if cond == "lowne":
            a(f"v_and_b32 v7, 0xff, v7\nv_cmp_ne_u32 vcc, {val}, v7")
        elif cond == "midne":
            a(f"v_cmp_ne_u32 vcc, {val}, v7")
        else:
            a(f"v_cmp_{cond}_u32 vcc, {val}, v7")
        a(f"s_cbranch_vccnz {label}")

    a(f"""
    s_cmp_ge_u32 s2, 256
    s_cbranch_scc1 L_END
    s_bfe_u32 s{t0}, s2, 0x20001
    s_lshl_b32 s{t0}, s{t0}, 5
    s_lshr_b32 s{sB}, s2, 3
    s_add_u32 s{sB}, s{sB}, s{t0}                 ; bucket
    s_cmp_ge_u32 s{sB}, {NBK}
    s_cbranch_scc1 L_END
    """)
    mark(0)
    a(f"""
    s_load_dwordx16 s[4:19], s[0:1], 0
    s_load_dwordx4 s[20:23], s[0:1], {KA['dbg']}
    v_lshrrev_b32 v4, 6, v0
    v_and_b32 v{vL}, 63, v0
    v_readfirstlane_b32 s{sW}, v4
    s_and_b32 s{t0}, s2, 1
    s_lshl_b32 s{sH}, s{t0}, 7                    ; half*128
    s_lshl_b32 s{sC}, s{sB}, 1
    s_add_u32 s{sC}, s{sC}, s{t0}                 ; chunk
    s_sub_u32 s{sRW}, s{sW}, 5
    s_cmp_lt_u32 s{sRW}, 5
    s_cbranch_scc0 L_NOBIN
    s_mul_i32 s{t1}, s{sC}, {CH*4}
    s_sub_u32 s{t1}, s{t1}, {320*16}
    v_lshl_add_u32 v20, v0, 4, s{t1}
    v_lshlrev_b32 v21, 1, v20
    s_setprio 3
    s_mov_b32 s{sBIN}, 1
    s_waitcnt lgkmcnt(0)
    global_load_dwordx4 v[4:7], v20, {sp(sDST)} {LNT}
    s_barrier                                     ; B1
    global_load_dwordx4 v[8:11], v20, {sp(sSRC)} {LNT}
    global_load_dwordx4 v[12:15], v21, {sp(sE)} {LNT}
    global_load_dwordx4 v[16:19], v21, {sp(sE)} offset:16 {LNT}
    s_mul_i32 s{t0}, s{sC}, {CH*RB}
    s_add_u32 s{t0}, s{t0}, {WS_REC}
    """)
    srd(a, SRD_W, sWS, f"s{t0}", CH * RB)
    a(f"""
    s_branch L_SETUP
    L_NOBIN:
    s_mov_b32 s{sBIN}, 0
    s_cmp_lt_u32 s{sW}, 10
    s_cbranch_scc1 L_B1
    s_cmp_eq_u32 s{sW}, 15
    s_cbranch_scc1 L_WARM
    v_lshlrev_b32 v12, 2, v0
    v_lshrrev_b32 v16, 2, v0
    v_cmp_eq_u32 vcc, {(640 + (LDUM - LHIST) // 4) // 4}, v16
    v_mov_b32 v15, {DUMMY}
    s_nop 0
    v_cndmask_b32 v13, 0, v15, vcc
    ds_write_b32 v12, v13 offset:{LHIST - 2560}
    s_branch L_B1
    L_WARM:
    s_getpc_b64 {sp(t0)}
    L_PC:
    s_sub_u32 s{t0}, s{t0}, L_PC-{NAME}
    s_subb_u32 s{t1}, s{t1}, 0
    s_lshr_b32 s{t2}, s2, 3
    s_mul_i32 s{t3}, s{t2}, 384
    v_lshl_add_u32 v6, v{vL}, 7, s{t3}
    v_min_u32 v6, L_END-{NAME}, v6
    s_mov_b64 exec, 7
    global_load_dword v9, v6, {sp(t0)}
    s_mov_b64 exec, -1
    s_mul_i32 s{t2}, s{t2}, 9
    v_add_u32 v6, s{t2}, v{vL}
    v_min_u32 v8, 259, v6
    v_lshl_add_u32 v8, v8, 8, s{sH}
    s_lshr_b32 s{t2}, s{t2}, 1
    v_add_u32 v6, s{t2}, v{vL}
    v_min_u32 v6, 127, v6
    v_lshl_add_u32 v6, v6, 8, s{sH}
    v_lshrrev_b32 v4, 4, v{vL}
    v_and_b32 v5, 15, v{vL}
    v_lshl_add_u32 v4, v5, 2, v4
    s_add_u32 s{t2}, s{sH}, {256*256}
    v_lshl_add_u32 v4, v4, 1, s{t2}
    s_waitcnt lgkmcnt(0)
    s_mov_b64 exec, 0x1ff
    global_load_dword v9, v8, {sp(sG)}
    s_mov_b64 exec, 31
    global_load_dword v9, v6, {sp(sV)}
    global_load_dword v9, v6, {sp(sU)}
    s_mov_b64 exec, -1
    global_load_short_d16_hi v10, v4, {sp(sG)}
    global_load_short_d16_hi v11, v4, {sp(sG)} offset:256
    global_load_short_d16_hi v12, v4, {sp(sG)} offset:512
    global_load_short_d16_hi v13, v4, {sp(sG)} offset:768
    L_B1:
    s_waitcnt lgkmcnt(0)
    s_barrier                                     ; B1
    s_cmp_lt_u32 s{sW}, 2
    s_cbranch_scc1 L_XL
    s_cmp_lt_u32 s{sW}, 5
    s_cselect_b32 s{sRW}, 2, 7
    s_sub_u32 s{sRW}, s{sW}, s{sRW}
    v_lshrrev_b32 v26, 3, v{vL}
    v_lshlrev_b32 v26, 8, v26
    v_and_b32 v28, 7, v{vL}
    v_lshlrev_b32 v28, 4, v28
    v_and_b32 v27, 16, v{vL}
    v_lshlrev_b32 v27, 1, v27
    v_xor_b32 v28, v28, v27
    v_add3_u32 v26, v26, v28, s{sH}
    v_xor_b32 v27, 64, v26
    s_add_u32 s{SRD_W}, s{sG}, {128*256}
    s_addc_u32 s{SRD_W+1}, s{sG+1}, 0
    s_cmp_ge_u32 s{sRW}, 2
    s_cselect_b64 {sp(SRD_W)}, {sp(sV)}, {sp(SRD_W)}
    s_cmp_ge_u32 s{sRW}, 4
    s_cselect_b64 {sp(SRD_W)}, {sp(sG)}, {sp(SRD_W)}
    s_cmp_ge_u32 s{sRW}, 6
    s_cselect_b64 {sp(SRD_W)}, {sp(sU)}, {sp(SRD_W)}
    s_mov_b32 s{SRD_W+2}, {128*256}
    s_mov_b32 s{SRD_W+3}, 0x20000
    s_cmp_ge_u32 s{sRW}, 4
    s_cbranch_scc0 L_WE
    v_lshlrev_b32 v17, 4, v0
    v_mov_b64 v[20:21], 0
    v_mov_b64 v[22:23], 0
    v_min_u32 v18, {11264 + NB * GST - 8 * 5120 - 16}, v17
    """)
    for i in range(9):
        a(f"ds_write_b128 v{17 if i < 8 else 18}, v[20:23] offset:{LAGG - 11264 + 5120 * i}")
    a("s_branch L_SETUP\nL_WE:")

    def wdma(lab):
        a(f"""
        s_and_b32 s{t0}, s{sRW}, 1
        s_lshl_b32 s{t0}, s{t0}, 14
        s_lshl_b32 s{t1}, s{sRW}, 13
        s_add_u32 s{t1}, s{t1}, {LW}
        s_mov_b32 s{t2}, 4
        {lab}:
        s_mov_b32 m0, s{t1}
        s_add_u32 s{t3}, s{t0}, 1024
        buffer_load_dwordx4 v26, {sq(SRD_W)}, s{t0} offen lds
        buffer_load_dwordx4 v27, {sq(SRD_W)}, s{t3} offen offset:1024 lds
        s_add_u32 s{t0}, s{t0}, 4096
        s_add_u32 s{t1}, s{t1}, 2048
        s_sub_u32 s{t2}, s{t2}, 1
        s_cmp_lg_u32 s{t2}, 0
        s_cbranch_scc1 {lab}
        """)

    wdma("L_WL")
    a(f"""
    s_branch L_SETUP
    L_XL:
    v_lshrrev_b32 v4, 4, v{vL}
    v_and_b32 v5, 15, v{vL}
    v_xor_b32 v5, v5, v4
    v_lshlrev_b32 v5, 4, v5
    s_lshl_b32 s{t1}, s{sW}, 7
    v_xor_b32 v5, s{t1}, v5
    s_mul_i32 s{t0}, s{sW}, 10240
    s_mul_i32 s{t2}, s{sB}, {NB*256}
    s_add_u32 s{t2}, s{t2}, s{t0}
    v_lshl_add_u32 v4, v4, 8, v5
    s_add_u32 s{t1}, s{t0}, {LX}
    v_xor_b32 v5, 64, v4
    v_xor_b32 v6, 0x80, v4
    v_xor_b32 v7, 0xc0, v4
    v_mov_b32 v26, 0
    v_mov_b32 v27, 0
    """)
    srd(a, SRD_W, sX, f"s{t2}", 10240)
    a(f"s_mov_b32 s{t0}, 0\ns_mov_b32 s{sRW}, 0")
    for i in range(10):
        if i % 4 == 0:
            a(f"s_mov_b32 m0, s{t1}\ns_add_u32 s{t1}, s{t1}, 4096")
        a(f"buffer_load_dwordx4 v{4+i%4}, {sq(SRD_W)}, s{t0} offen offset:{1024*(i%4)} {XNT} lds")
        if i % 4 == 3:
            a(f"s_add_u32 s{t0}, s{t0}, 4096")
    a(f"""
    L_SETUP:
    s_add_u32 s{t2}, s{sWS}, {WS_EPOCH}
    s_addc_u32 s{t3}, s{sWS+1}, 0
    s_load_dword s{sEP}, {sp(t2)}, 0
    s_and_b32 s{sT0}, s{sW}, 3
    s_cmp_ge_u32 s{sW}, 12
    s_cselect_b32 s{t0}, {2*16384}, 0
    s_add_u32 s{t0}, s{t0}, {LW}
    s_mov_b32 s{t1}, {LX}
    v_lshrrev_b32 v40, 4, v{vL}                   ; sigma
    v_bfe_u32 v41, v{vL}, 2, 2
    v_and_b32 v42, 3, v{vL}
    v_and_b32 v{vJn}, 15, v{vL}
    v_lshlrev_b32 v43, 10, v40
    v_lshlrev_b32 v44, 7, v41
    v_lshl_add_u32 v44, v42, 3, v44
    v_bfe_u32 v45, v{vL}, 3, 2
    v_xor_b32 v45, s{sT0}, v45
    v_lshl_add_u32 v45, v45, 5, v44
    v_add3_u32 v{vA}, v43, v45, s{t0}
    s_lshl_b32 s{t0}, s{sT0}, 2
    v_add_u32 v{vRow}, s{t0}, v40
    v_xor_b32 v43, v{vJn}, v40
    v_lshlrev_b32 v43, 4, v43
    v_lshlrev_b32 v44, 8, v{vJn}
    v_add3_u32 v{vXa}, v43, v44, s{t1}
    v_xor_b32 v{vXa+1}, 64, v{vXa}
    v_xor_b32 v{vXa+2}, 0x80, v{vXa}
    v_xor_b32 v{vXa+3}, 0xc0, v{vXa}
    s_mov_b32 s{t0}, {LCW}
    v_lshl_add_u32 v{vCwa}, v{vL}, 3, s{t0}
    v_cmp_eq_u32 vcc, v40, v41
    v_mov_b32 v43, 0x3f80
    v_cmp_eq_u32 {sp(sEM)}, v40, v42
    v_cndmask_b32 v{vAo}, 0, v43, vcc
    v_mov_b32 v{vAo+1}, 0
    v_lshlrev_b32 v42, 4, v42
    v_lshlrev_b64 {vr(vAo,2)}, v42, {vr(vAo,2)}
    """)
    for g in range(4):
        if g:
            a(f"v_mov_b64 {vr(vAo+4*g,2)}, {vr(vAo,2)}")
        a(f"v_mov_b64 {vr(vAo+4*g+2,2)}, 0")
    a(f"""
    v_lshlrev_b32 v{vLO}, 4, v{vJn}
    v_lshlrev_b32 v{vLO+1}, 3, v{vJn}
    v_add_u32 v{vLO+1}, {LAGG}, v{vLO+1}
    v_lshrrev_b32 v40, 2, v0
    s_lshl_b32 s{t0}, s{sB}, 3
    v_lshl_add_u32 v{vOFFa}, v40, 10, s{t0}
    v_mul_u32_u24 v{vRO}, {CH*RB}, v40
    v_cmp_gt_u32 vcc, {NCH}, v40
    v_mov_b32 v{vF}, {LFLAG}
    v_mov_b32 v{vONE}, 1
    s_mov_b64 {sp(sM)}, vcc
    s_mov_b32 s{sLG}, {hex(NLOG2E)}
    s_mov_b32 s{s12}, {f2h(AST/256)}
    s_mov_b32 s{s12+1}, {f2h(GST/256)}
    s_mov_b32 s{sINC}, 1024
    s_mov_b32 s{sINC+1}, 1024
    s_mov_b32 s{sTHR}, 0
    s_mov_b32 s{sTHR+1}, 0x5f800000
    s_mov_b32 s{sFIRST}, 1
    s_mov_b32 s{sSPIN}, {SPIN*8}
    s_mul_i32 s{t1}, s{sH}, {T_HALF//128}
    """)
    srd(a, SRD_T, sWS, f"s{t1}", T_HALF)
    srd(a, SRD_R, sWS, WS_REC, E * RB)
    a(f"""
    s_cmp_eq_u32 s{sBIN}, 0
    s_cbranch_scc1 L_STG
    s_mov_b32 s{t0}, 52429
    s_mov_b32 s{t1}, {-NB}
    v_lshlrev_b32 v33, 3, v{vL}
    s_mul_i32 s{t2}, s{sRW}, 3072
    v_lshl_add_u32 v32, v{vL}, 4, s{t2}
    s_waitcnt vmcnt(3)
    """)
    mark(1)
    for i in range(4):
        a(f"""
        v_mul_u32_u24 v{20+i}, s{t0}, v{4+i}
        v_lshrrev_b32 v{20+i}, 22, v{20+i}
        v_mad_i32_i24 v{24+i}, v{20+i}, s{t1}, v{4+i}
        v_lshlrev_b32 v{20+i}, 2, v{20+i}
        ds_add_rtn_u32 v{28+i}, v{20+i}, v{vONE} offset:{LHIST}
        """)
    a(f"""
    s_mov_b64 exec, 1
    ds_add_u32 v{vF}, v{vONE} offset:{F_RV}
    """)
    spin("L_BS1", F_RV, "gt", 5)
    a(f"""
    s_mov_b64 exec, -1
    ds_read_b64 v[34:35], v33 offset:{LHIST}
    s_add_u32 s{sEP}, s{sEP}, 1
    s_mul_i32 s{sTAG}, s{sEP}, 0x9E3779B1
    s_mul_i32 s{sTAG2}, s{sEP}, 0x85EBCA6B
    s_lshr_b32 s{sTAGB}, s{sTAG2}, 25
    s_waitcnt lgkmcnt(0)
    v_add_u32 v36, v34, v35
    v_mov_b32 v37, v36
    """)
    scan64(a, 37)
    a(f"""
    v_sub_u32 v38, v37, v36
    v_add_u32 v39, v38, v34
    v_mul_u32_u24 v38, {RB}, v38
    v_mul_u32_u24 v39, {RB}, v39
    ds_write_b64 v33, v[38:39] offset:{LSTART}
    """)
    for i in range(4):
        a(f"ds_read_b32 v{20+i}, v{20+i} offset:{LSTART}")
    a(f"""
    s_lshl_b32 s{t0}, s{sTAGB}, 25
    s_lshl_b32 s{t1}, s{sC}, 10
    s_add_u32 s{t1}, s{t1}, {WS_OFF}
    v_lshl_or_b32 v48, v34, 14, v38
    v_lshl_or_b32 v50, v35, 14, v39
    v_or_b32 v48, s{t0}, v48
    v_or_b32 v50, s{t0}, v50
    v_mov_b32 v49, s{sTAG}
    v_mov_b32 v51, s{sTAG}
    v_lshl_add_u32 v52, v{vL}, 4, s{t1}
    s_waitcnt vmcnt(2) lgkmcnt(0)
    """)
    for i in range(4):
        a(f"""
        v_mad_u32_u24 v{20+i}, v{28+i}, {RB}, v{20+i}
        v_lshl_or_b32 v{24+i}, v{8+i}, 8, v{24+i}
        ds_write_b32 v{20+i}, v{24+i} offset:8
        """)
    for i in range(4):
        if i % 2 == 0:
            a(f"s_waitcnt vmcnt({1 - i // 2})")
        a(f"ds_write2_b32 v{20+i}, v{12+2*i}, v{13+2*i} offset0:0 offset1:1")
    mark(13)
    a(f"""
    s_mov_b64 exec, 1
    ds_add_u32 v{vF}, v{vONE} offset:{F_RV}
    """)
    spin("L_BS2", F_RV, "gt", 10)
    a("s_mov_b64 exec, -1")
    for i in range(3):
        a(f"ds_read_b128 {vr(8+4*i,4)}, v32 offset:{1024*i}")
    for i in range(3):
        a(f"s_waitcnt lgkmcnt({2-i})\nbuffer_store_dwordx4 {vr(8+4*i,4)}, v32, {sq(SRD_W)}, 0 offen offset:{1024*i} sc1")
    a(f"""
    s_mov_b64 exec, 1
    ds_add_u32 v{vF}, v{vONE} offset:{F_RV}
    """)
    mark(2)
    a(f"""
    s_waitcnt vmcnt(0)
    ds_add_rtn_u32 v7, v{vF}, v{vONE} offset:{F_PUB}
    s_waitcnt lgkmcnt(0)
    v_cmp_eq_u32 vcc, 4, v7
    s_mov_b64 exec, -1
    s_cbranch_vccz L_NOPUB
    global_store_dwordx4 v52, v[48:51], {sp(sWS)} sc1
    L_NOPUB:
    s_setprio 0
    """)
    mark(4)
    a(f"""
    s_branch L_GD
    L_STG:
    s_waitcnt lgkmcnt(0)
    s_add_u32 s{sEP}, s{sEP}, 1
    s_mul_i32 s{sTAG}, s{sEP}, 0x9E3779B1
    s_mul_i32 s{sTAG2}, s{sEP}, 0x85EBCA6B
    s_lshr_b32 s{sTAGB}, s{sTAG2}, 25
    v_mov_b32 v6, 1
    s_cmp_lt_u32 s{sRW}, 4
    s_cbranch_scc1 L_EARLY
    s_cmp_eq_u32 s{sRW}, 8
    s_cbranch_scc1 L_GC
    s_mov_b64 exec, 1
    """)
    spin("L_BS3", F_RV, "gt", 15, 1)
    a("s_mov_b64 exec, -1")
    wdma("L_WL2")
    a(f"""
    v_mov_b32 v6, 0x100
    L_EARLY:
    s_mov_b64 exec, 1
    s_waitcnt vmcnt(0)
    ds_add_u32 v{vF}, v6 offset:{F_LAND}
    """)
    mark(13)
    a(f"""
    s_cmp_ge_u32 s{sW}, 12
    s_cbranch_scc1 L_LAND2
    s_cmp_ge_u32 s{sW}, 4
    s_cbranch_scc1 L_GD
    """)
    spin("L_LAND1", F_LAND, "lowne", 6)
    a("s_mov_b64 exec, -1")
    mark(3)

    def gemm(epi, pre):
        def xr(n, ks):
            a(f"ds_read_b128 {vr(vXb+16*(n&1)+4*ks,4)}, v{vXa+ks} offset:{4096*n}")
        for ks in range(4):
            xr(0, ks)
            for m in range(2):
                o = m * 16384 + ks * 4096
                r = vWf + 16 * m + 4 * ks
                a(f"ds_read_b64_tr_b16 {vr(r,2)}, v{vA} offset:{o}")
                a(f"ds_read_b64_tr_b16 {vr(r+2,2)}, v{vA} offset:{o+512}")
            if ks == 1:
                pre()
                a("s_waitcnt lgkmcnt(4)")
        a("s_waitcnt lgkmcnt(9)")
        for ks in range(4):
            xr(1, ks)
        for n in range(6):
            ops = epi(n - 1) if n else []
            if n == 5:
                a("s_nop 7")
                for o in ops:
                    a(o)
                break
            a(f"s_waitcnt lgkmcnt({4 if n < 4 else 0})")
            if n == 0:
                mark(21)
            per = -(-len(ops) // 5)
            for ks in range(4):
                for m in range(2):
                    acc = vAcc + 8 * (n & 1) + 4 * m
                    c = "0" if ks == 0 else vr(acc, 4)
                    a(f"v_mfma_f32_16x16x32_bf16 {vr(acc,4)}, {vr(vWf+16*m+4*ks,4)}, {vr(vXb+16*(n&1)+4*ks,4)}, {c}")
                    if 2 * ks + m >= 3:
                        for o in ops[:per]:
                            a(o)
                        ops = ops[per:]
            assert not ops
            if n + 2 < 5:
                for ks in range(4):
                    xr(n + 2, ks)
            elif n == 3:
                a("s_nop 3")

    def t_pre():
        a(f"""
        s_mul_i32 s{t0}, s{sB}, {NB*256}
        v_lshlrev_b32 v4, 8, v{vJn}
        v_lshl_add_u32 v4, v{vRow}, 4, v4
        s_mov_b32 s{t1}, 0x07060302
        s_setreg_imm32_b32 hwreg(HW_REG_MODE, 4, 2), 0
        """)

    def t_epi(n):
        P = vPk + 4 * (n & 1)
        b = [vAcc + 8 * (n & 1) + t for t in range(4)]
        h = [vAcc + 8 * (n & 1) + 4 + t for t in range(4)]
        SD = "clamp dst_sel:DWORD dst_unused:UNUSED_PAD src0_sel:DWORD src1_sel:WORD_1"
        o = [f"v_mul_f32 v{b[t]}, s{sLG}, v{b[t]}" for t in range(4)]
        o += [f"v_add_f32 v{h[t]}, 0, v{h[t]}" for t in (0, 1, 3)]
        o += [f"v_add_u32 v{h[t]}, 0x8000, v{h[t]}" for t in (2, 0, 3, 1)]
        o += [f"v_sub_u32_sdwa v{h[0]}, v{h[0]}, v{h[2]} {SD}",
              f"v_cvt_pk_bf16_f32 v{P+2}, v{b[0]}, v{b[1]}",
              f"v_sub_u32_sdwa v{h[3]}, v{h[3]}, v{h[0]} {SD}",
              f"v_cvt_pk_bf16_f32 v{P+3}, v{b[2]}, v{b[3]}",
              f"v_sub_u32_sdwa v{h[1]}, v{h[1]}, v{h[3]} {SD}",
              f"v_perm_b32 v{P}, v{h[0]}, v{h[2]}, s{t1}",
              f"v_perm_b32 v{P+1}, v{h[1]}, v{h[3]}, s{t1}",
              f"buffer_store_dwordx4 {vr(P,4)}, v4, {sq(SRD_T)}, s{t0} offen sc1",
              f"s_add_u32 s{t0}, s{t0}, 4096"]
        return o

    gemm(t_epi, t_pre)
    a(f"""
    s_setreg_imm32_b32 hwreg(HW_REG_MODE, 4, 2), 3
    s_waitcnt vmcnt(0)
    s_branch L_GD
    L_GC:
    s_mov_b32 s{t0}, 0xffff0000
    s_waitcnt vmcnt(0)
    """)
    for q in range(4):
        a(f"v_and_b32 v{10+q}, s{t0}, v{10+q}")
    for q in range(4):
        a(f"v_mul_f32 v{10+q}, s{sLG}, v{10+q}")
    a(f"""
    v_cvt_pk_bf16_f32 v10, v10, v11
    v_cvt_pk_bf16_f32 v11, v12, v13
    ds_write_b64 v{vCwa}, v[10:11]
    s_mov_b64 exec, 1
    """)
    spin("L_LAND2", F_LAND, "ne", 0x406)
    a("s_mov_b64 exec, -1")
    mark(3)

    def au_pre():
        a(f"""
        s_mov_b32 s{t0}, {AST}
        s_mov_b32 s{t1}, {UST}
        s_mov_b32 s{t2}, {LU}
        v_lshlrev_b32 v4, 4, v{vRow}
        v_lshl_add_u32 v5, v{vRow}, 3, s{t2}
        v_mad_u32_u24 v4, v{vJn}, s{t0}, v4
        v_mad_u32_u24 v5, v{vJn}, s{t1}, v5
        """)

    def au_epi(n):
        A = vAcc + 8 * (n & 1)
        o = [f"v_mul_f32 v{A+t}, s{sLG}, v{A+t}" for t in range(4)]
        o += [f"v_cvt_pk_bf16_f32 v{A+4}, v{A+4}, v{A+5}", f"v_cvt_pk_bf16_f32 v{A+5}, v{A+6}, v{A+7}"]
        o += [f"ds_write_b128 v4, {vr(A,4)} offset:{LA+16*AST*n}"]
        o += [f"ds_write_b64 v5, {vr(A+4,2)} offset:{16*UST*n}"]
        return o

    gemm(au_epi, au_pre)
    vW = (8, 32)
    vPr = 56
    REC = (8, 14, 20, 26, 32, 38, 44)

    def rec(k):
        return REC[k]

    vP, vTFa = 94, 100
    a("L_GD:\ns_mov_b64 exec, -1")
    mark(5)
    srd(a, SRD_W, sWS, WS_OFF, NCH * 1024)
    a(f"""
    s_cmp_eq_u32 s{sW}, 0
    s_waitcnt lgkmcnt(0)
    s_barrier
    """)
    mark(22)
    a(f"""
    s_cbranch_scc1 L_TSIG
    L_TSD:
    {"s_sleep " + os.environ["PDELAY"] if os.environ.get("PDELAY") else ""}
    buffer_load_dwordx2 v[70:71], v{vOFFa}, {sq(SRD_W)}, 0 offen sc1
    L_FILL:
    v_lshrrev_b32 v4, 4, v0
    v_and_b32 v5, 15, v0
    s_mov_b32 s{t0}, {SLOTB}
    v_mov_b32 v6, {LSLOT}
    v_mad_u32_u24 v4, v4, s{t0}, v6
    v_mad_u32_u24 v4, v5, 48, v4
    v_mov_b32 v56, {DUMMY}
    v_mov_b32 v57, {DUMMY}
    v_mov_b64 v[58:59], v[56:57]
    s_cmp_lt_u32 s{sW}, 4
    ds_write_b128 v4, v[56:59]
    s_cbranch_scc0 L_FT
    ds_write_b128 v4, v[56:59] offset:{64*SLOTB}
    s_branch L_FD
    L_FT:
    s_mov_b32 s{t1}, {LTAB - 4096}
    v_mov_b32 v60, {LDUM}
    v_mov_b32 v61, 0
    v_lshl_add_u32 v5, v0, 4, s{t1}
    v_mov_b64 v[62:63], v[60:61]
    ds_write_b128 v5, v[60:63]
    L_FD:
    s_cmp_eq_u32 s{sFIRST}, 0
    s_waitcnt lgkmcnt(0)
    s_barrier                                     ; B5b
    s_cbranch_scc1 L_AGAIN
    """)
    mark(14)
    a(f"""
    s_mov_b32 s{sSPIN}, {SPIN}
    s_mov_b64 exec, {sp(sM)}
    L_POLL:
    s_waitcnt vmcnt(0)
    v_lshrrev_b32 v4, 25, v70
    v_cmp_ne_u32 vcc, s{sTAG}, v71
    v_cmp_ne_u32 {sp(t0)}, s{sTAGB}, v4
    s_or_b64 exec, vcc, {sp(t0)}
    s_cbranch_execnz L_POLL2
    L_POLLED:
    s_mov_b64 exec, -1
    """)
    mark(6)
    a(f"""
    v_bfe_u32 v{vRem}, v70, 14, 11
    v_and_b32 v4, 0x3fff, v70
    v_add_u32 v{vRO}, v{vRO}, v4
    """)
    a(f"""
    L_WINDOW:
    v_and_b32 v4, 15, v{vL}
    v_and_b32 v5, 3, v{vL}
    v_sub_u32 v5, v{vRem}, v5
    """)
    for k in range(4):
        a(f"v_sub_u32_dpp v{64+k}, v{vRem}, v4 row_newbcast:{4*k} row_mask:0xf bank_mask:0xf")
    for k in range(4):
        a(f"v_cmp_lt_i32 {sp(sM+2*k)}, 0, v{64+k}")
    for k in range(4, KMAX):
        a(f"v_cmp_lt_i32 {sp(sM+2*k)}, {4*k}, v5")
    a(f"""
    L_LOADS:
    v_and_b32 v4, 15, v{vL}
    v_and_b32 v5, 3, v{vL}
    v_mul_u32_u24 v4, {RB}, v4
    v_mad_u32_u24 v5, v5, {RB}, v{vRO}
    s_or_b64 {sp(sU5)}, {sp(sM+10)}, {sp(sM+12)}
    s_or_b64 {sp(sU4)}, {sp(sU5)}, {sp(sM+8)}
    """)
    for k in range(4):
        a(f"v_add_u32_dpp v{rec(k)+3}, v{vRO}, v4 row_newbcast:{4*k} row_mask:0xf bank_mask:0xf")

    def kloop(done, body, mask=sM):
        for k in range(KMAX):
            if k == 4:
                a(f"s_cmp_eq_u64 {sp(sU4)}, 0\ns_cbranch_scc1 {done}")
            if k == 5:
                a(f"s_cmp_eq_u64 {sp(sU5)}, 0\ns_cbranch_scc1 {done}")
            a(f"s_mov_b64 exec, {sp(mask+2*k)}")
            body(k)
        a(f"{done}:")

    RF = "" if "recplain" in X else "sc1"

    def rload(k):
        if k < 4:
            a(f"buffer_load_dwordx3 {vr(rec(k),3)}, v{rec(k)+3}, {sq(SRD_R)}, 0 offen {RF}")
        else:
            a(f"buffer_load_dwordx3 {vr(rec(k),3)}, v5, {sq(SRD_R)}, 0 offen offset:{48*k} {RF}")

    kloop("L_RL", rload)
    mark(23)
    a(f"""
    s_mov_b64 exec, -1
    s_mov_b32 s{t0}, {LCW}
    v_lshl_add_u32 v4, v{vL}, 3, s{t0}
    """)
    for k in range(8):
        a(f"ds_read_b64 {vr(vW[0]+6*k+4,2)}, v4")
    a(f"""
    s_lshl_b32 s{t0}, s{sW}, 5
    s_add_u32 s{t0}, s{t0}, {LTAB}
    v_lshrrev_b32 v4, 4, v{vL}
    v_bfe_u32 v5, v{vL}, 2, 2
    v_lshl_add_u32 v{vP}, v4, 3, s{t0}
    v_lshl_add_u32 v{vP+1}, v5, 3, s{t0}
    s_lshl_b32 s{t0}, s{sW}, 3
    v_add_u32 v4, s{t0}, v{vL}
    v_min_u32 v4, {NBK-1}, v4
    v_add_u32 v4, s{sH}, v4
    s_mov_b32 s{t1}, {WS_TF}
    v_lshl_add_u32 v{vTFa}, v4, 7, s{t1}
    s_mov_b32 s{t0}, {SLOTB//4}
    s_mov_b32 s{t1}, 0xffffff00
    """)
    mark(12)
    a("s_waitcnt vmcnt(0)")
    mark(7)
    SB = "dst_sel:DWORD dst_unused:UNUSED_PAD src0_sel:DWORD src1_sel:BYTE_0"

    def hist(k):
        a(f"""
        v_lshlrev_b32_sdwa v4, 2, v{rec(k)+2} {SB}
        v_lshlrev_b32_sdwa v{vPr+2*k+1}, 8, v{rec(k)+2} {SB}
        ds_add_rtn_u32 v{rec(k)+3}, v4, v{vONE} offset:{LCNT}
        v_mad_u32_u24 v{vPr+2*k}, v4, s{t0}, v6
        v_and_b32 v{rec(k)+2}, s{t1}, v{rec(k)+2}
        """)

    kloop("L_HD", hist)
    a(f"s_mov_b32 s{t2}, 0\ns_waitcnt lgkmcnt(0)")
    mark(24)

    def scat(k):
        r = rec(k)
        a(f"""
        v_cmpx_gt_u32 vcc, {CAP}, v{r+3}
        v_lshrrev_b32 v4, 2, v{r+3}
        v_and_b32 v{r+3}, 3, v{r+3}
        s_andn2_b64 {sp(sM+2*k)}, {sp(sM+2*k)}, vcc
        v_mad_u32_u24 v{vPr+2*k}, v4, 48, v{vPr+2*k}
        v_cmp_eq_u32 {sp(sO+2*k)}, 0, v{r+3}
        v_lshl_add_u32 v4, v{r+3}, 2, v{vPr+2*k}
        v_lshl_add_u32 v5, v{r+3}, 3, v{vPr+2*k}
        ds_write_b32 v4, v{r+2}
        ds_write_b64 v5, {vr(r,2)} offset:16
        s_and_b64 {sp(sO+2*k)}, {sp(sO+2*k)}, exec
        s_bcnt1_i32_b64 s{t3}, {sp(sO+2*k)}
        s_add_u32 s{t2}, s{t2}, s{t3}
        """)

    kloop("L_SD", scat)
    mark(25)
    a(f"""
    s_mov_b64 exec, 0xff
    global_load_dwordx2 v[70:71], v{vTFa}, {sp(sWS)} sc1
    s_mov_b64 exec, 1
    v_mov_b32 v4, s{t2}
    ds_add_rtn_u32 v5, v{vF}, v4 offset:{F_NQ}
    s_mov_b64 exec, -1
    v_cmp_lt_i32 vcc, {4*KMAX}, v{vRem}
    s_or_b64 {sp(t0)}, {sp(sM)}, {sp(sM+2)}
    s_or_b64 {sp(t2)}, {sp(sM+4)}, {sp(sM+6)}
    s_or_b64 {sp(t0)}, {sp(t0)}, {sp(sM+8)}
    s_or_b64 {sp(t2)}, {sp(t2)}, {sp(sM+10)}
    s_or_b64 {sp(t0)}, {sp(t0)}, {sp(sM+12)}
    s_or_b64 {sp(t0)}, {sp(t0)}, {sp(t2)}
    s_cselect_b32 s{sBIN}, 1, 0
    s_or_b64 exec, vcc, {sp(t0)}
    ds_write_b32 v{vF}, v{vONE} offset:{F_MORE}
    s_waitcnt lgkmcnt(0)
    v_readlane_b32 s{t2}, v5, 0
    s_lshl_b32 s{t2}, s{t2}, 3
    s_add_u32 s{t2}, s{t2}, {LTAB}
    """)

    def tab(k):
        a(f"""
        v_mbcnt_lo_u32_b32 v4, exec_lo, 0
        v_mbcnt_hi_u32_b32 v4, exec_hi, v4
        v_lshl_add_u32 v4, v4, 3, s{t2}
        s_bcnt1_i32_b64 s{t3}, exec
        s_lshl3_add_u32 s{t2}, s{t3}, s{t2}
        ds_write_b64 v4, {vr(vPr+2*k,2)}
        """)

    kloop("L_TD", tab, sO)
    mark(26)
    a(f"""
    s_mov_b64 exec, 0xff
    L_TP:
    s_waitcnt vmcnt(0)
    v_cmp_ne_u64 vcc, {sp(sTAG)}, v[70:71]
    s_cbranch_vccnz L_TP2
    L_TRDY:
    s_mov_b64 exec, -1
    s_mov_b32 s{sFIRST}, 0
    s_waitcnt lgkmcnt(0)
    """)
    mark(8)
    a("s_barrier                                     ; B6")
    mark(9)
    if stamp:
        a("s_memtime s[96:97]")
    vT, vAp, vS = 56, 80, 84
    vTQ = (88, 76)
    vNA = (90, 92)
    vQE = 106
    vDn, vNm, vAa, vCk = 72, 100, 4, 78
    vD = (78, 124, 4, 6)

    def sh(g):
        return (96, 98, 104, 124)[g]

    def saddr(S):
        a(f"""
        v_pk_add_f32 {vr(S,2)}, {vr(S,2)}, {vr(vLO,2)} op_sel_hi:[1,0]
        v_pk_add_f32 {vr(S+2,2)}, {vr(S+2,2)}, {vr(vLO,2)} op_sel_hi:[1,0]
        """)

    def loads(p, S):
        for g in range(4):
            a(f"buffer_load_dwordx4 {vr(vW[p]+6*g,4)}, v{S+g}, {sq(SRD_T)}, 0 offen sc1")

    def naddr(p, TQ):
        a(f"v_pk_fma_f32 {vr(vNA[p],2)}, {vr(TQ,2)}, {sp(s12)}, {vr(vLO,2)} op_sel:[1,0,0] op_sel_hi:[1,1,1]")

    def eread(q):
        a(f"s_mov_b64 exec, {sp(sEM)}")
        for g in range(4):
            a(f"ds_read_b64 {vr(vAo+4*g+2,2)}, v{q} offset:{16+8*g}")
        a("s_mov_b64 exec, -1")

    def hv(W, g, h):
        return vr(W + 6 * g, 2) if h == 0 else vr(sh(g), 2)

    def mfma(p, g):
        return f"v_mfma_f32_16x16x32_bf16 {vr(vT+4*g,4)}, {vr(vAo+4*g,4)}, {vr(vW[p]+6*g+2,4)}, {vr(vAp,4)}"

    def flush(p):
        a(f"""
        v_pk_mul_f32 {vr(vNm,2)}, {vr(vNm,2)}, {vr(vDn,2)}
        v_pk_mul_f32 {vr(vNm+2,2)}, {vr(vNm+2,2)}, {vr(vDn+2,2)}
        """)
        for t in range(4):
            a(f"v_cvt_f64_f32 {vr(vD[t],2)}, v{vNm+t}")
        for t in range(4):
            a(f"ds_add_f64 v{vNA[p]+1}, {vr(vD[t],2)} offset:{128*t}")

    a(f"""
    ds_read_b64 {vr(vT,2)}, v{vP}
    ds_read_b64 {vr(vTQ[1],2)}, v{vP} offset:512
    ds_read_b32 v{vT+2}, v{vP+1}
    ds_read_b64 v[4:5], v{vF} offset:{F_MORE}
    ds_read_b64 {vr(vTQ[0],2)}, v{vP} offset:1024
    ds_read_b32 v{vQE}, v{vP+1} offset:512
    s_setprio 3
    v_mov_b32 v{vNA[1]+1}, v{vLO+1}
    v_mov_b64 {vr(vNm,2)}, 0
    v_mov_b64 {vr(vNm+2,2)}, 0
    s_waitcnt lgkmcnt(5)
    ds_read_b128 {vr(vT+4,4)}, v{vT}
    """)
    naddr(0, vT)
    a(f"""
    s_waitcnt lgkmcnt(3)
    ds_read_b128 {vr(vS,4)}, v{vTQ[1]}
    ds_read_b128 {vr(vAp,4)}, v{vNA[0]} offset:{LA}
    v_readfirstlane_b32 s{sN}, v5
    v_readfirstlane_b32 s{sMORE}, v4
    """)
    eread(vT + 2)
    for t in range(4):
        a(f"v_mov_b32 v{vDn+t}, 1.0")
    a(f"""
    s_add_u32 s{sN}, s{sN}, 3
    s_lshr_b32 s{sN}, s{sN}, 2                    ; groups
    s_sub_u32 s{sN}, s{sN}, s{sW}
    s_add_u32 s{sN}, s{sN}, 31
    s_lshr_b32 s{sN}, s{sN}, 4
    s_cmp_eq_u32 s{sN}, 1
    s_cbranch_scc1 L_LD
    s_waitcnt lgkmcnt(6)
    """)
    saddr(vT + 4)
    loads(0, vT + 4)
    a("s_branch L_SB1")
    for p in range(2):
        W = vW[p]
        a(f"""
        L_L{p}:
        ds_read_b128 {vr(vS,4)}, v{vTQ[p]}
        """)
        for i in range(16):
            a(f"v_exp_f32 v{vT+i}, v{vT+i}")
            if i == 7:
                eread(vQE)
                a(f"ds_read_b32 v{vQE}, v{vP+1} offset:{512*(2+p)}")
        flush(p ^ 1)
        naddr(p ^ 1, vTQ[p ^ 1])
        for g in range(4):
            a(f"v_lshlrev_b64 {vr(sh(g),2)}, 16, {vr(W+6*g,2)}")
            if g == 0:
                a(f"ds_read_b128 {vr(vAp,4)}, v{vNA[p^1]} offset:{LA}")
                a(f"ds_read_b64 {vr(vTQ[p^1],2)}, v{vP} offset:{512*(3+p)}")
        if p == 1:
            a(f"v_pk_add_f32 {vr(vP,2)}, {vr(vP,2)}, {sp(sINC)}")
        for h in range(2):
            a(f"v_pk_add_f32 {vr(vDn+2*h,2)}, {vr(vT+2*h,2)}, 1.0 op_sel_hi:[1,0]")
        for g in range(1, 4):
            for h in range(2):
                src = hv(W, 0, h) if g == 1 else vr(vNm + 2 * h, 2)
                a(f"v_pk_fma_f32 {vr(vAa+2*h,2)}, {src}, {vr(vT+4*g+2*h,2)}, {src}")
            for h in range(2):
                a(f"v_pk_fma_f32 {vr(vNm+2*h,2)}, {hv(W,g,h)}, {vr(vDn+2*h,2)}, {vr(vAa+2*h,2)}")
            for h in range(2):
                a(f"v_pk_fma_f32 {vr(vDn+2*h,2)}, {vr(vDn+2*h,2)}, {vr(vT+4*g+2*h,2)}, {vr(vDn+2*h,2)}")
        a(f"""
        v_pk_fma_f32 {vr(vCk,2)}, {vr(vDn,2)}, {vr(vDn+2,2)}, {sp(sTHR)} neg_hi:[1,0,0]
        v_cmp_nle_f32 vcc, v{vCk}, v{vCk+1}
        s_cbranch_vccnz L_SAFE{p}
        L_SB{p}:
        s_cmp_le_u32 s{sN}, 2
        s_waitcnt lgkmcnt(0)
        """)
        saddr(vS)
        a(f"s_cbranch_scc1 L_TAIL{p}")
        loads(p, vS)
        a(f"""
        s_waitcnt vmcnt(4)
        L_M{p}:
        """)
        for g in range(4):
            a(mfma(p ^ 1, g))
            a(f"v_rcp_f32 v{vDn+g}, v{vDn+g}")
        a(f"""
        s_sub_u32 s{sN}, s{sN}, 1
        s_cmp_eq_u32 s{sN}, 4
        s_cbranch_scc1 L_PR{p}
        """)
        if p == 1:
            a("s_branch L_L0")
    for p in range(2):
        a(f"""
        L_PR{p}:
        s_setprio 2
        s_branch L_L{p^1}
        L_TAIL{p}:
        s_setprio 0
        s_cmp_eq_u32 s{sN}, 2
        s_waitcnt vmcnt(0)
        s_cbranch_scc1 L_M{p}
        """)
        for g in range(4):
            a(f"v_rcp_f32 v{vDn+g}, v{vDn+g}")
        a("s_nop 0")
        flush(p)
        if p == 0:
            a("s_branch L_LD")
    a(f"""
    L_LD:
    s_waitcnt lgkmcnt(0)
    """)
    mark(10)
    if stamp:
        a("s_memtime s[92:93]\ns_waitcnt lgkmcnt(0)\ns_sub_u32 s92, s92, s96\nv_mov_b32 v107, 0\nv_writelane_b32 v107, s92, 15")
    a(f"""
    s_barrier                                     ; B8
    s_cmp_eq_u32 s{sMORE}, 0
    s_cbranch_scc0 L_MORE
    s_cmp_lt_u32 s{sW}, 10
    s_cbranch_scc0 L_EPO
    v_lshrrev_b32 v5, 3, v0
    v_and_b32 v6, 7, v0
    s_mov_b32 s{t0}, {GST}
    v_lshlrev_b32 v6, 4, v6
    v_mad_u32_u24 v4, v5, s{t0}, v6
    s_mov_b32 s{t0}, {UST}
    v_add_u32 v7, {LU}, v6
    v_mad_u32_u24 v7, v5, s{t0}, v7
    ds_read2_b64 v[40:43], v7 offset0:0 offset1:1
    ds_read_b128 v[24:27], v4 offset:{LAGG}
    ds_read_b128 v[28:31], v4 offset:{LAGG+128}
    ds_read_b128 v[32:35], v4 offset:{LAGG+256}
    ds_read_b128 v[36:39], v4 offset:{LAGG+384}
    s_mul_i32 s{t1}, s{sB}, {NB*256}
    s_add_u32 s{t1}, s{t1}, s{sH}
    v_lshlrev_b32 v5, 8, v5
    v_add3_u32 v5, v5, v6, s{t1}
    s_mov_b32 s{t0}, 0xffff0000
    s_waitcnt lgkmcnt(4)
    """)
    for i in range(4):
        a(f"v_lshlrev_b32 v{44+2*i}, 16, v{40+i}\nv_and_b32 v{45+2*i}, s{t0}, v{40+i}")
    for t in range(4):
        a(f"s_waitcnt lgkmcnt({3-t})")
        for u in range(2):
            a(f"v_cvt_f32_f64 v{8+4*u+t}, {vr(24+4*t+2*u,2)}")
    for i in range(4):
        a(f"v_pk_add_f32 {vr(8+2*i,2)}, {vr(8+2*i,2)}, {vr(44+2*i,2)}")
    for i in range(8):
        a(f"v_mul_f32 v{16+i}, s{sLG}, v{8+i}")
    for i in range(8):
        a(f"v_exp_f32 v{16+i}, v{16+i}")
    for i in range(4):
        a(f"v_pk_add_f32 {vr(16+2*i,2)}, {vr(16+2*i,2)}, 1.0 op_sel_hi:[1,0]")
    for i in range(8):
        a(f"v_rcp_f32 v{16+i}, v{16+i}")
    for i in range(4):
        a(f"v_pk_mul_f32 {vr(16+2*i,2)}, {vr(16+2*i,2)}, {vr(8+2*i,2)}")
    for i in range(4):
        a(f"v_cvt_pk_bf16_f32 v{8+i}, v{16+2*i}, v{17+2*i}")
    a(f"""
    global_store_dwordx4 v5, v[8:11], {sp(sOUT)}
    s_branch L_FIN
    L_EPO:
    s_lshl_b32 s{t0}, s2, 4
    s_add_u32 s{t0}, s{t0}, s{sW}
    s_cmp_eq_u32 s{t0}, 12
    s_cbranch_scc0 L_FIN
    v_mov_b32 v4, {WS_EPOCH}
    v_mov_b32 v5, s{sEP}
    s_mov_b64 exec, 1
    global_store_dword v4, v5, {sp(sWS)} sc1
    s_mov_b64 exec, -1
    L_FIN:
    """)
    if PROBE:
        a(f"""
        s_lshl_b32 s{t0}, s2, 4
        s_add_u32 s{t0}, s{t0}, s{sW}
        s_cmp_eq_u32 s{t0}, {PROBE[0]}
        s_cbranch_scc0 L_PX
        s_memrealtime s[84:85]
        s_sub_u32 s96, s96, s94
        s_lshl_b32 s96, s96, 3
        s_min_u32 s96, s96, 100000
        s_waitcnt lgkmcnt(0)
        L_PS:
        s_memrealtime s[86:87]
        s_waitcnt lgkmcnt(0)
        s_sub_u32 s86, s86, s84
        s_cmp_lt_u32 s86, s96
        s_cbranch_scc1 L_PS
        L_PX:
        """)
    if stamp:
        a("s_waitcnt vmcnt(0)")
        mark(11)
        a("s_waitcnt lgkmcnt(0)")
        for i_, m_ in enumerate(sorted(SLOT)):
            a(f"v_writelane_b32 v107, s{SLOT[m_]}, {i_}")
        a(f"""
        s_lshl_b32 s3, s2, 4
        s_add_u32 s3, s3, s{sW}
        s_lshl_b32 s3, s3, 6
        s_add_u32 s3, s3, {WS_STAMP}
        v_lshl_add_u32 v4, v{vL}, 2, s3
        s_mov_b64 exec, 0xffff
        global_store_dword v4, v107, {sp(sWS)}
        """)
    a("s_endpgm")
    a(f"""
    L_POLL2:
    s_sub_u32 s{sSPIN}, s{sSPIN}, 1
    s_cbranch_scc1 L_POLLX
    s_sleep 2
    buffer_load_dwordx2 v[70:71], v{vOFFa}, {sq(SRD_W)}, 0 offen sc1
    s_branch L_POLL
    L_POLLX:
    v_mov_b32 v70, 0
    s_mov_b32 s{sSPIN}, 0
    s_branch L_POLLED
    L_TSIG:
    s_add_u32 s{t2}, s{sH}, s{sB}
    s_lshl_b32 s{t2}, s{t2}, 7
    s_add_u32 s{t2}, s{t2}, {WS_TF}
    v_mov_b32 v8, s{t2}
    v_mov_b32 v4, s{sTAG}
    v_mov_b32 v5, s{sTAG2}
    s_mov_b64 exec, 1
    global_store_dwordx2 v8, v[4:5], {sp(sWS)} sc1
    s_mov_b64 exec, -1
    s_branch L_TSD
    L_TP2:
    s_sub_u32 s{sSPIN}, s{sSPIN}, 1
    s_cbranch_scc1 L_TX
    s_sleep 2
    global_load_dwordx2 v[70:71], v{vTFa}, {sp(sWS)} sc1
    s_branch L_TP
    L_TX:
    s_mov_b32 s{sSPIN}, 0
    s_branch L_TRDY
    """)
    for p in range(2):
        W = vW[p]
        a(f"L_SAFE{p}:")
        for i in range(8):
            a(f"v_pk_add_f32 {vr(vT+2*i,2)}, {vr(vT+2*i,2)}, 1.0 op_sel_hi:[1,0]")
        for i in range(16):
            a(f"v_rcp_f32 v{vT+i}, v{vT+i}")
        for t in range(4):
            a(f"v_mov_b32 v{vDn+t}, 1.0")
        for g in range(4):
            for h in range(2):
                o = 4 * g + 2 * h
                if g == 0:
                    a(f"v_pk_mul_f32 {vr(vNm+2*h,2)}, {vr(vT+o,2)}, {hv(W,g,h)}")
                else:
                    a(f"v_pk_fma_f32 {vr(vNm+2*h,2)}, {vr(vT+o,2)}, {hv(W,g,h)}, {vr(vNm+2*h,2)}")
        a(f"s_branch L_SB{p}")
    a(f"""
    L_MORE:
    s_setprio 0
    v_mov_b32 v{vF}, {LFLAG}
    v_mov_b32 v{vONE}, 1
    v_lshlrev_b32 v4, 2, v0
    v_mov_b32 v5, 0
    v_cmp_gt_u32 vcc, 130, v0
    s_mov_b64 exec, vcc
    ds_write_b32 v4, v5 offset:{LCNT}
    s_mov_b64 exec, -1
    s_branch L_FILL
    L_AGAIN:
    s_cmp_eq_u32 s{sBIN}, 0
    s_cbranch_scc0 L_LOADS
    v_subrev_u32 v{vRem}, {4*KMAX}, v{vRem}
    v_add_u32 v{vRO}, {48*KMAX}, v{vRO}
    s_branch L_WINDOW
    L_END:
    """)
    return a.text()


def build(stamp=False):
    body = kernel(stamp)
    return f"""; Kernarg layout (80 bytes, pointers): x, e_attr, src, dst, u_w, v_w, g_w, out, debug, ws
; @launch grid=(256,1,1) block=(1024,1,1) lds={LDS}
.amdgcn_target "amdgcn-amd-amdhsa--gfx950"
.text
.globl {NAME}
.p2align 8
.type {NAME},@function
{NAME}:
{body}    s_endpgm
.section .rodata,"a"
.p2align 6
.amdhsa_kernel {NAME}
  .amdhsa_next_free_vgpr 128
  .amdhsa_next_free_sgpr 102
  .amdhsa_accum_offset 128
  .amdhsa_group_segment_fixed_size 0
  .amdhsa_kernarg_size 80
  .amdhsa_user_sgpr_count 2
  .amdhsa_user_sgpr_kernarg_segment_ptr 1
  .amdhsa_system_sgpr_workgroup_id_x 1
  .amdhsa_float_denorm_mode_32 3
.end_amdhsa_kernel
"""


if __name__ == "__main__":
    open(sys.argv[1], "w").write(build(stamp="--stamp" in sys.argv))
```

```python
import sys, os
X = set(os.environ.get('X', '').split('+'))
NAME = "standalone__edge_featured_mpnn_egc__graph_kernel"
N, E = 10000, 320000
NB, NBK, CH, NCH = 80, 125, 1280, 250
T_HALF = N * 256
RB = 12
WS_T, WS_REC, WS_OFF, WS_TF, WS_EPOCH, WS_STAMP = 0, 0x500000, 0xA00000, 0xA40000, 0xA80000, 0xB00000
NLOG2E = 0xBFB8AA3B
KA = dict(x=0, e=8, src=16, dst=24, u=32, v=40, g=48, out=56, dbg=64, ws=72)
AST, GST = 272, 528
LA, LAGG = 0, NB * AST
LHIST = LAGG + NB * GST
LCNT, LFLAG, LDUM = LHIST + 512, LHIST + 1024, LHIST + 1056
F_MORE, F_NQ, F_PUB, F_RV, F_LAND, F_TD = 0, 4, 8, 12, 16, 20
LSTART, LCW = LHIST + 1280, LHIST + 1792
LW = LHIST + 2304
LX = LW + 65536
UST = 136
LU = LX + 20480
LDS = LU + NB * UST
LSLOT, SLOTB, CAP = LW, 784, 64
LTAB = LX
assert LSTART < 65536
KMAX = 7
DUMMY = 0x400000
SPIN = 1 << 17
assert LW % 256 == 0 and LDS <= 163840


class Asm:
    def __init__(self):
        self.l = []

    def __call__(self, s):
        for ln in s.strip("\n").split("\n"):
            ln = ln.strip()
            if ln:
                self.l.append(ln if ln.endswith(":") else "    " + ln)

    def text(self):
        return "\n".join(self.l) + "\n"


def f2h(f):
    import struct
    return hex(struct.unpack('<I', struct.pack('<f', f))[0])


def vr(a, n):
    return f"v[{a}:{a+n-1}]" if n > 1 else f"v{a}"


def sp(a):
    return f"s[{a}:{a+1}]"


def sq(a):
    return f"s[{a}:{a+3}]"


def srd(a, d, base, off, size):
    a(f"s_add_u32 s{d}, s{base}, {off}\ns_addc_u32 s{d+1}, s{base+1}, 0")
    a(f"s_mov_b32 s{d+2}, {size}\ns_mov_b32 s{d+3}, 0x20000")


def scan64(a, v):
    for ctl in ("row_shr:1", "row_shr:2", "row_shr:4", "row_shr:8"):
        a(f"s_nop 1\nv_add_u32_dpp v{v}, v{v}, v{v} {ctl} row_mask:0xf bank_mask:0xf")
    a(f"s_nop 1\nv_add_u32_dpp v{v}, v{v}, v{v} row_bcast:15 row_mask:0xa bank_mask:0xf")
    a(f"s_nop 1\nv_add_u32_dpp v{v}, v{v}, v{v} row_bcast:31 row_mask:0xc bank_mask:0xf")


def kernel(stamp):
    a = Asm()
    PROBE = [int(x) for x in os.environ["PROBE"].split(",")] if os.environ.get("PROBE") else None
    MARKS = set(int(x) for x in os.environ["MARKS"].split(",")) if os.environ.get("MARKS") else None

    FREE = [4, 6, 8, 10, 12, 14, 16, 20, 98]
    SLOT = {0: 94}
    if stamp:
        for m_ in sorted((MARKS or set()) - {0}):
            SLOT[m_] = FREE.pop(0)

    def mark(n):
        if stamp and n in SLOT:
            a(f"s_memrealtime s[{SLOT[n]}:{SLOT[n]+1}]")
        if PROBE and n in PROBE[1:]:
            r = 94 + 2 * PROBE[1:].index(n)
            a(f"s_memrealtime s[{r}:{r+1}]\ns_waitcnt lgkmcnt(0)")

    sRW = 3
    sX, sE, sSRC, sDST, sU, sV, sG, sOUT, sDBG, sWS = 4, 6, 8, 10, 12, 14, 16, 18, 20, 22
    SRD_T, SRD_R, SRD_W = 24, 28, 32
    sM = 36
    sN, sBIN, sT0, sFIRST = 50, 51, 52, 53
    t0, t1, t2, t3 = 54, 55, 56, 57
    sMORE, sW = 58, 59
    sINC, s12, sTHR, sEM = 60, 62, 64, 66
    sH, sB, sC, sEP, sTAG, sTAG2, sSPIN, sLG = 68, 69, 70, 71, 72, 73, 74, 75
    sTAGB = 100
    sU5, sU4 = 76, 78
    sO = 80
    vL, vLO, vAo, vRO, vRem = 1, 2, 108, 126, 127
    vF, vONE = 124, 125
    vWf, vXb, vAcc, vPk, vA, vXa, vRow, vJn = 8, 40, 72, 88, 100, 96, 101, 102
    vOFFa, vR4, vCwa = 103, 104, 105
    LNT = "" if "nont" in X else "nt"
    XNT = "nt" if "xnt" in X else ""

    def spin(label, off, cond, val, slp=0):
        a(f"""
        {label}:
        s_sub_u32 s{sSPIN}, s{sSPIN}, 1
        s_cbranch_scc1 L_END
        {f"s_sleep {slp}" if slp else ""}
        ds_read_b32 v7, v{vF} offset:{off}
        s_waitcnt lgkmcnt(0)
        """)
        if cond == "lowne":
            a(f"v_and_b32 v7, 0xff, v7\nv_cmp_ne_u32 vcc, {val}, v7")
        elif cond == "midne":
            a(f"v_cmp_ne_u32 vcc, {val}, v7")
        else:
            a(f"v_cmp_{cond}_u32 vcc, {val}, v7")
        a(f"s_cbranch_vccnz {label}")

    mark(0)
    if os.environ.get("GAP"):
        a("s_memrealtime s[94:95]")
    a(f"""
    s_load_dwordx16 s[4:19], s[0:1], 0
    s_load_dwordx4 s[20:23], s[0:1], {KA['dbg']}
    s_lshr_b32 s{sB}, s2, 3
    """)
    if "latewarm" not in X:
        a(f"""
        s_getpc_b64 {sp(t0)}
        L_PC:
        s_mul_i32 s{t3}, s{sB}, 384
        v_lshl_add_u32 v6, v0, 7, s{t3}
        v_cmp_gt_u32 vcc, 3, v0
        v_min_u32 v6, L_END-L_PC, v6
        s_cbranch_vccz L_NOCW
        s_mov_b64 exec, vcc
        global_load_dword v9, v6, {sp(t0)}
        s_mov_b64 exec, -1
        L_NOCW:
        """)
    a(f"""
    s_bfe_u32 s{t0}, s2, 0x20001
    s_lshl_b32 s{t0}, s{t0}, 5
    s_cmp_ge_u32 s2, 256
    s_cselect_b32 s{t0}, 128, s{t0}
    s_add_u32 s{sB}, s{sB}, s{t0}                 ; bucket
    s_cmp_ge_u32 s{sB}, {NBK}
    s_cbranch_scc1 L_END
    v_lshrrev_b32 v4, 6, v0
    v_and_b32 v{vL}, 63, v0
    v_readfirstlane_b32 s{sW}, v4
    s_and_b32 s{t0}, s2, 1
    s_lshl_b32 s{sH}, s{t0}, 7                    ; half*128
    s_lshl_b32 s{sC}, s{sB}, 1
    s_add_u32 s{sC}, s{sC}, s{t0}                 ; chunk
    s_sub_u32 s{sRW}, s{sW}, 5
    s_cmp_lt_u32 s{sRW}, 5
    s_cbranch_scc0 L_NOBIN
    s_mul_i32 s{t1}, s{sC}, {CH*4}
    s_sub_u32 s{t1}, s{t1}, {320*16}
    v_lshl_add_u32 v20, v0, 4, s{t1}
    v_lshlrev_b32 v21, 1, v20
    s_setprio 3
    s_mov_b32 s{sBIN}, 1
    s_waitcnt lgkmcnt(0)
    global_load_dwordx4 v[4:7], v20, {sp(sDST)} {LNT}
    s_barrier                                     ; B1
    global_load_dwordx4 v[8:11], v20, {sp(sSRC)} {LNT}
    global_load_dwordx4 v[12:15], v21, {sp(sE)} {LNT}
    global_load_dwordx4 v[16:19], v21, {sp(sE)} offset:16 {LNT}
    s_mul_i32 s{t0}, s{sC}, {CH*RB}
    s_add_u32 s{t0}, s{t0}, {WS_REC}
    """)
    srd(a, SRD_W, sWS, f"s{t0}", CH * RB)
    a(f"""
    s_branch L_SETUP
    L_NOBIN:
    s_mov_b32 s{sBIN}, 0
    s_cmp_lt_u32 s{sW}, 10
    s_cbranch_scc1 L_B1
    s_cmp_eq_u32 s{sW}, 15
    s_cbranch_scc1 L_WARM
    v_lshlrev_b32 v12, 2, v0
    v_lshrrev_b32 v16, 2, v0
    v_cmp_eq_u32 vcc, {(640 + (LDUM - LHIST) // 4) // 4}, v16
    v_mov_b32 v15, {DUMMY}
    s_mov_b64 {sp(t0)}, vcc
    v_cmp_eq_u32 vcc, {(640 + (LDUM - LHIST) // 4) // 4 + 3}, v16
    s_or_b64 vcc, vcc, {sp(t0)}
    v_cndmask_b32 v13, 0, v15, vcc
    ds_write_b32 v12, v13 offset:{LHIST - 2560}
    s_branch L_B1
    L_WARM:
    """)
    if "latewarm" in X:
        a(f"""
        s_getpc_b64 {sp(t0)}
        L_PC:
        s_sub_u32 s{t0}, s{t0}, L_PC-{NAME}
        s_subb_u32 s{t1}, s{t1}, 0
        s_lshr_b32 s{t2}, s2, 3
        s_mul_i32 s{t3}, s{t2}, 384
        v_lshl_add_u32 v6, v{vL}, 7, s{t3}
        v_min_u32 v6, L_END-{NAME}, v6
        s_mov_b64 exec, 7
        global_load_dword v9, v6, {sp(t0)}
        s_mov_b64 exec, -1
        """)
    a(f"""
    s_lshr_b32 s{t2}, s2, 3
    s_mul_i32 s{t2}, s{t2}, 9
    v_add_u32 v6, s{t2}, v{vL}
    v_min_u32 v8, 259, v6
    v_lshl_add_u32 v8, v8, 8, s{sH}
    s_lshr_b32 s{t2}, s{t2}, 1
    v_add_u32 v6, s{t2}, v{vL}
    v_min_u32 v6, 127, v6
    v_lshl_add_u32 v6, v6, 8, s{sH}
    v_lshrrev_b32 v4, 4, v{vL}
    v_and_b32 v5, 15, v{vL}
    v_lshl_add_u32 v4, v5, 2, v4
    s_add_u32 s{t2}, s{sH}, {256*256}
    v_lshl_add_u32 v4, v4, 1, s{t2}
    s_waitcnt lgkmcnt(0)
    s_mov_b64 exec, 0x1ff
    global_load_dword v9, v8, {sp(sG)}
    s_mov_b64 exec, 31
    global_load_dword v9, v6, {sp(sV)}
    global_load_dword v9, v6, {sp(sU)}
    s_mov_b64 exec, -1
    global_load_short_d16_hi v10, v4, {sp(sG)}
    global_load_short_d16_hi v11, v4, {sp(sG)} offset:256
    global_load_short_d16_hi v12, v4, {sp(sG)} offset:512
    global_load_short_d16_hi v13, v4, {sp(sG)} offset:768
    L_B1:
    s_waitcnt lgkmcnt(0)
    s_barrier                                     ; B1
    """)
    if "xlate" in X:
        a(f"""
        s_cmp_eq_u32 s{sW}, 10
        s_cselect_b32 s{sRW}, 1, 0
        s_cbranch_scc1 L_XL
        s_cmp_eq_u32 s{sW}, 4
        s_cbranch_scc1 L_XL
        """)
    else:
        a(f"""
        s_mov_b32 s{sRW}, s{sW}
        s_cmp_lt_u32 s{sW}, 2
        s_cbranch_scc1 L_XL
        """)
    a(f"""
    s_cmp_lt_u32 s{sW}, 5
    s_cselect_b32 s{sRW}, {0 if "xlate" in X else 2}, 7
    s_sub_u32 s{sRW}, s{sW}, s{sRW}
    v_lshrrev_b32 v26, 3, v{vL}
    v_lshlrev_b32 v26, 8, v26
    v_and_b32 v28, 7, v{vL}
    v_lshlrev_b32 v28, 4, v28
    v_and_b32 v27, 16, v{vL}
    v_lshlrev_b32 v27, 1, v27
    v_xor_b32 v28, v28, v27
    v_add3_u32 v26, v26, v28, s{sH}
    v_xor_b32 v27, 64, v26
    s_add_u32 s{SRD_W}, s{sG}, {128*256}
    s_addc_u32 s{SRD_W+1}, s{sG+1}, 0
    s_cmp_ge_u32 s{sRW}, 2
    s_cselect_b64 {sp(SRD_W)}, {sp(sV)}, {sp(SRD_W)}
    s_cmp_ge_u32 s{sRW}, 4
    s_cselect_b64 {sp(SRD_W)}, {sp(sG)}, {sp(SRD_W)}
    s_cmp_ge_u32 s{sRW}, 6
    s_cselect_b64 {sp(SRD_W)}, {sp(sU)}, {sp(SRD_W)}
    s_mov_b32 s{SRD_W+2}, {128*256}
    s_mov_b32 s{SRD_W+3}, 0x20000
    s_cmp_ge_u32 s{sRW}, 4
    s_cbranch_scc0 L_WE
    v_lshlrev_b32 v17, 4, v0
    v_mov_b64 v[20:21], 0
    v_mov_b64 v[22:23], 0
    v_min_u32 v18, {11264 + NB * GST - 8 * 5120 - 16}, v17
    """)
    for i in range(9):
        a(f"ds_write_b128 v{17 if i < 8 else 18}, v[20:23] offset:{LAGG - 11264 + 5120 * i}")
    a("s_branch L_SETUP\nL_WE:")

    def wdma(lab):
        a(f"""
        s_and_b32 s{t0}, s{sRW}, 1
        s_lshl_b32 s{t0}, s{t0}, 14
        s_lshl_b32 s{t1}, s{sRW}, 13
        s_add_u32 s{t1}, s{t1}, {LW}
        s_mov_b32 s{t2}, 4
        {lab}:
        s_mov_b32 m0, s{t1}
        s_add_u32 s{t3}, s{t0}, 1024
        buffer_load_dwordx4 v26, {sq(SRD_W)}, s{t0} offen lds
        buffer_load_dwordx4 v27, {sq(SRD_W)}, s{t3} offen offset:1024 lds
        s_add_u32 s{t0}, s{t0}, 4096
        s_add_u32 s{t1}, s{t1}, 2048
        s_sub_u32 s{t2}, s{t2}, 1
        s_cmp_lg_u32 s{t2}, 0
        s_cbranch_scc1 {lab}
        """)

    wdma("L_WL")
    a(f"""
    s_branch L_SETUP
    L_XL:
    v_lshrrev_b32 v4, 4, v{vL}
    v_and_b32 v5, 15, v{vL}
    v_xor_b32 v5, v5, v4
    v_lshlrev_b32 v5, 4, v5
    s_lshl_b32 s{t1}, s{sRW}, 7
    v_xor_b32 v5, s{t1}, v5
    s_mul_i32 s{t0}, s{sRW}, 10240
    s_mul_i32 s{t2}, s{sB}, {NB*256}
    s_add_u32 s{t2}, s{t2}, s{t0}
    v_lshl_add_u32 v4, v4, 8, v5
    s_add_u32 s{t1}, s{t0}, {LX}
    v_xor_b32 v5, 64, v4
    v_xor_b32 v6, 0x80, v4
    v_xor_b32 v7, 0xc0, v4
    v_mov_b32 v26, 0
    v_mov_b32 v27, 0
    """)
    srd(a, SRD_W, sX, f"s{t2}", 10240)
    a(f"s_mov_b32 s{t0}, 0\ns_mov_b32 s{sRW}, 0")
    for i in range(10):
        if i % 4 == 0:
            a(f"s_mov_b32 m0, s{t1}\ns_add_u32 s{t1}, s{t1}, 4096")
        a(f"buffer_load_dwordx4 v{4+i%4}, {sq(SRD_W)}, s{t0} offen offset:{1024*(i%4)} {XNT} lds")
        if i % 4 == 3:
            a(f"s_add_u32 s{t0}, s{t0}, 4096")
    a(f"""
    L_SETUP:
    s_add_u32 s{t2}, s{sWS}, {WS_EPOCH}
    s_addc_u32 s{t3}, s{sWS+1}, 0
    s_load_dword s{sEP}, {sp(t2)}, 0
    s_and_b32 s{sT0}, s{sW}, 3
    s_cmp_ge_u32 s{sW}, 12
    s_cselect_b32 s{t0}, {2*16384}, 0
    s_add_u32 s{t0}, s{t0}, {LW}
    s_mov_b32 s{t1}, {LX}
    v_lshrrev_b32 v40, 4, v{vL}                   ; sigma
    v_bfe_u32 v41, v{vL}, 2, 2
    v_and_b32 v42, 3, v{vL}
    v_and_b32 v{vJn}, 15, v{vL}
    v_lshlrev_b32 v43, 10, v40
    v_lshlrev_b32 v44, 7, v41
    v_lshl_add_u32 v44, v42, 3, v44
    v_bfe_u32 v45, v{vL}, 3, 2
    v_xor_b32 v45, s{sT0}, v45
    v_lshl_add_u32 v45, v45, 5, v44
    v_add3_u32 v{vA}, v43, v45, s{t0}
    s_lshl_b32 s{t0}, s{sT0}, 2
    v_add_u32 v{vRow}, s{t0}, v40
    v_xor_b32 v43, v{vJn}, v40
    v_lshlrev_b32 v43, 4, v43
    v_lshlrev_b32 v44, 8, v{vJn}
    v_add3_u32 v{vXa}, v43, v44, s{t1}
    v_xor_b32 v{vXa+1}, 64, v{vXa}
    v_xor_b32 v{vXa+2}, 0x80, v{vXa}
    v_xor_b32 v{vXa+3}, 0xc0, v{vXa}
    s_mov_b32 s{t0}, {LCW}
    v_lshl_add_u32 v{vCwa}, v{vL}, 3, s{t0}
    v_cmp_eq_u32 vcc, v40, v41
    v_mov_b32 v43, 0x3f80
    v_cmp_eq_u32 {sp(sEM)}, v40, v42
    v_cndmask_b32 v{vAo}, 0, v43, vcc
    v_mov_b32 v{vAo+1}, 0
    v_lshlrev_b32 v42, 4, v42
    v_lshlrev_b64 {vr(vAo,2)}, v42, {vr(vAo,2)}
    """)
    for g in range(4):
        if g:
            a(f"v_mov_b64 {vr(vAo+4*g,2)}, {vr(vAo,2)}")
        a(f"v_mov_b64 {vr(vAo+4*g+2,2)}, 0")
    a(f"""
    v_lshlrev_b32 v{vLO}, 4, v{vJn}
    v_lshlrev_b32 v{vLO+1}, 3, v{vJn}
    v_add_u32 v{vLO+1}, {LAGG}, v{vLO+1}
    v_lshrrev_b32 v40, 2, v0
    s_lshl_b32 s{t0}, s{sB}, 3
    v_lshl_add_u32 v{vOFFa}, v40, 10, s{t0}
    v_mul_u32_u24 v{vRO}, {CH*RB}, v40
    v_cmp_gt_u32 vcc, {NCH}, v40
    v_mov_b32 v{vF}, {LFLAG}
    v_mov_b32 v{vONE}, 1
    s_mov_b64 {sp(sM)}, vcc
    s_mov_b32 s{sLG}, {hex(NLOG2E)}
    s_mov_b32 s{s12}, {f2h(AST/256)}
    s_mov_b32 s{s12+1}, {f2h(GST/256)}
    s_mov_b32 s{sINC}, 512
    s_mov_b32 s{sINC+1}, 512
    s_mov_b32 s{sTHR}, 0x5f800000
    s_mov_b32 s{sFIRST}, 1
    s_mov_b32 s{sSPIN}, {SPIN*8}
    s_mul_i32 s{t1}, s{sH}, {T_HALF//128}
    """)
    srd(a, SRD_T, sWS, f"s{t1}", T_HALF)
    srd(a, SRD_R, sWS, WS_REC, E * RB)
    a(f"""
    s_cmp_eq_u32 s{sBIN}, 0
    s_cbranch_scc1 L_STG
    s_mov_b32 s{t0}, 52429
    s_mov_b32 s{t1}, {-NB}
    v_lshlrev_b32 v33, 3, v{vL}
    s_mul_i32 s{t2}, s{sRW}, 3072
    v_lshl_add_u32 v32, v{vL}, 4, s{t2}
    s_waitcnt vmcnt(3)
    """)
    mark(1)
    for i in range(4):
        a(f"""
        v_mul_u32_u24 v{20+i}, s{t0}, v{4+i}
        v_lshrrev_b32 v{20+i}, 22, v{20+i}
        v_mad_i32_i24 v{24+i}, v{20+i}, s{t1}, v{4+i}
        v_lshlrev_b32 v{20+i}, 2, v{20+i}
        ds_add_rtn_u32 v{28+i}, v{20+i}, v{vONE} offset:{LHIST}
        """)
    a(f"""
    s_mov_b64 exec, 1
    ds_add_u32 v{vF}, v{vONE} offset:{F_RV}
    """)
    spin("L_BS1", F_RV, "gt", 5)
    a(f"""
    s_mov_b64 exec, -1
    ds_read_b64 v[34:35], v33 offset:{LHIST}
    s_add_u32 s{sEP}, s{sEP}, 1
    s_mul_i32 s{sTAG}, s{sEP}, 0x9E3779B1
    s_mul_i32 s{sTAG2}, s{sEP}, 0x85EBCA6B
    s_lshr_b32 s{sTAGB}, s{sTAG2}, 25
    s_waitcnt lgkmcnt(0)
    v_add_u32 v36, v34, v35
    v_mov_b32 v37, v36
    """)
    scan64(a, 37)
    a(f"""
    v_sub_u32 v38, v37, v36
    v_add_u32 v39, v38, v34
    v_mul_u32_u24 v38, {RB}, v38
    v_mul_u32_u24 v39, {RB}, v39
    ds_write_b64 v33, v[38:39] offset:{LSTART}
    """)
    for i in range(4):
        a(f"ds_read_b32 v{20+i}, v{20+i} offset:{LSTART}")
    a(f"""
    s_lshl_b32 s{t0}, s{sTAGB}, 25
    s_lshl_b32 s{t1}, s{sC}, 10
    s_add_u32 s{t1}, s{t1}, {WS_OFF}
    v_lshl_or_b32 v48, v34, 14, v38
    v_lshl_or_b32 v50, v35, 14, v39
    v_or_b32 v48, s{t0}, v48
    v_or_b32 v50, s{t0}, v50
    v_mov_b32 v49, s{sTAG}
    v_mov_b32 v51, s{sTAG}
    v_lshl_add_u32 v52, v{vL}, 4, s{t1}
    s_waitcnt vmcnt(2) lgkmcnt(0)
    """)
    for i in range(4):
        a(f"""
        v_mad_u32_u24 v{20+i}, v{28+i}, {RB}, v{20+i}
        v_lshl_or_b32 v{24+i}, v{8+i}, 8, v{24+i}
        ds_write_b32 v{20+i}, v{24+i} offset:8
        """)
    for i in range(4):
        if i % 2 == 0:
            a(f"s_waitcnt vmcnt({1 - i // 2})")
        a(f"ds_write2_b32 v{20+i}, v{12+2*i}, v{13+2*i} offset0:0 offset1:1")
    mark(13)
    a(f"""
    s_mov_b64 exec, 1
    ds_add_u32 v{vF}, v{vONE} offset:{F_RV}
    """)
    spin("L_BS2", F_RV, "gt", 10)
    a("s_mov_b64 exec, -1")
    for i in range(3):
        a(f"ds_read_b128 {vr(8+4*i,4)}, v32 offset:{1024*i}")
    for i in range(3):
        a(f"s_waitcnt lgkmcnt({2-i})\nbuffer_store_dwordx4 {vr(8+4*i,4)}, v32, {sq(SRD_W)}, 0 offen offset:{1024*i} sc1")
    a(f"""
    s_mov_b64 exec, 1
    ds_add_u32 v{vF}, v{vONE} offset:{F_RV}
    """)
    mark(2)
    a(f"""
    s_waitcnt vmcnt(0)
    ds_add_rtn_u32 v7, v{vF}, v{vONE} offset:{F_PUB}
    s_waitcnt lgkmcnt(0)
    v_cmp_eq_u32 vcc, 4, v7
    s_mov_b64 exec, -1
    s_cbranch_vccz L_NOPUB
    global_store_dwordx4 v52, v[48:51], {sp(sWS)} sc1
    L_NOPUB:
    s_setprio 0
    """)
    mark(4)
    a(f"""
    s_branch L_GD
    L_STG:
    s_waitcnt lgkmcnt(0)
    s_add_u32 s{sEP}, s{sEP}, 1
    s_mul_i32 s{sTAG}, s{sEP}, 0x9E3779B1
    s_mul_i32 s{sTAG2}, s{sEP}, 0x85EBCA6B
    s_lshr_b32 s{sTAGB}, s{sTAG2}, 25
    v_mov_b32 v6, 1
    s_cmp_lt_u32 s{sRW}, 4
    s_cbranch_scc1 L_EARLY
    s_cmp_eq_u32 s{sRW}, 8
    s_cbranch_scc1 L_GC
    s_mov_b64 exec, 1
    """)
    spin("L_BS3", F_RV, "gt", 15, int(os.environ.get("SL3", 4)))
    a("s_mov_b64 exec, -1")
    wdma("L_WL2")
    a(f"""
    v_mov_b32 v6, 0x100
    L_EARLY:
    s_mov_b64 exec, 1
    s_waitcnt vmcnt(0)
    ds_add_u32 v{vF}, v6 offset:{F_LAND}
    """)
    mark(13)
    a(f"""
    s_cmp_ge_u32 s{sW}, 12
    s_cbranch_scc1 L_LAND2
    s_cmp_ge_u32 s{sW}, 4
    s_cbranch_scc1 L_GD
    """)
    spin("L_LAND1", F_LAND, "lowne", 6, int(os.environ.get("SL1", 0)))
    a("s_mov_b64 exec, -1")
    mark(3)

    def gemm(epi, pre, post=None):
        def xr(n, ks):
            a(f"ds_read_b128 {vr(vXb+16*(n&1)+4*ks,4)}, v{vXa+ks} offset:{4096*n}")
        for ks in range(4):
            xr(0, ks)
            for m in range(2):
                o = m * 16384 + ks * 4096
                r = vWf + 16 * m + 4 * ks
                a(f"ds_read_b64_tr_b16 {vr(r,2)}, v{vA} offset:{o}")
                a(f"ds_read_b64_tr_b16 {vr(r+2,2)}, v{vA} offset:{o+512}")
            if ks == 1:
                pre()
                a("s_waitcnt lgkmcnt(4)")
        a("s_waitcnt lgkmcnt(9)")
        for ks in range(4):
            xr(1, ks)
        for n in range(6):
            ops = epi(n - 1) if n else []
            if n == 5:
                if post:
                    a("s_nop 3")
                    for o in ops[:-4]:
                        a(o)
                    a("s_waitcnt lgkmcnt(0)")
                    post(3)
                    for o in ops[-4:]:
                        a(o)
                    a("s_waitcnt lgkmcnt(0)")
                    post(4)
                    break
                a("s_nop 7")
                for o in ops:
                    a(o)
                break
            late = post and n >= 2
            a(f"s_waitcnt lgkmcnt({(4 if n < 4 else 0) + (4 if late else 0)})")
            if n == 0:
                mark(21)
            per = -(-len(ops) // 5)
            for ks in range(4):
                for m in range(2):
                    acc = vAcc + 8 * (n & 1) + 4 * m
                    c = "0" if ks == 0 else vr(acc, 4)
                    a(f"v_mfma_f32_16x16x32_bf16 {vr(acc,4)}, {vr(vWf+16*m+4*ks,4)}, {vr(vXb+16*(n&1)+4*ks,4)}, {c}")
                    if late and 2 * ks + m == 3:
                        a(f"s_waitcnt lgkmcnt({4 if n < 4 else 0})")
                        post(n - 2)
                    if 2 * ks + m >= 3:
                        for o in ops[:per]:
                            a(o)
                        ops = ops[per:]
            assert not ops
            if n + 2 < 5:
                for ks in range(4):
                    xr(n + 2, ks)
            elif n == 3:
                a("s_nop 3")

    def t_pre():
        a(f"""
        s_mul_i32 s{t0}, s{sB}, {NB*256}
        """)
        if "nobp" in X:
            a(f"""
            v_lshlrev_b32 v4, 8, v{vJn}
            v_lshl_add_u32 v4, v{vRow}, 4, v4
            """)
        else:
            a(f"""
            v_lshrrev_b32 v6, 2, v{vL}
            v_and_b32 v7, 3, v{vL}
            s_lshl_b32 s{t1}, s{sT0}, 6
            v_lshl_add_u32 v4, v6, 8, s{t1}
            v_lshl_add_u32 v4, v7, 4, v4
            v_lshl_add_u32 v5, v7, 4, v6
            v_lshlrev_b32 v5, 2, v5
            """)
        a(f"""
        s_mov_b32 s{t1}, 0x07060302
        s_setreg_imm32_b32 hwreg(HW_REG_MODE, 4, 2), 0
        """)

    def t_epi(n):
        P = vPk + 4 * (n & 1)
        b = [vAcc + 8 * (n & 1) + t for t in range(4)]
        h = [vAcc + 8 * (n & 1) + 4 + t for t in range(4)]
        SD = "clamp dst_sel:DWORD dst_unused:UNUSED_PAD src0_sel:DWORD src1_sel:WORD_1"
        o = [f"v_mul_f32 v{b[t]}, s{sLG}, v{b[t]}" for t in range(4)]
        o += [f"v_add_f32 v{h[t]}, 0, v{h[t]}" for t in (0, 1, 3)]
        o += [f"v_add_u32 v{h[t]}, 0x8000, v{h[t]}" for t in (2, 0, 3, 1)]
        o += [f"v_sub_u32_sdwa v{h[0]}, v{h[0]}, v{h[2]} {SD}",
              f"v_cvt_pk_bf16_f32 v{P+2}, v{b[0]}, v{b[1]}",
              f"v_sub_u32_sdwa v{h[3]}, v{h[3]}, v{h[0]} {SD}",
              f"v_cvt_pk_bf16_f32 v{P+3}, v{b[2]}, v{b[3]}",
              f"v_sub_u32_sdwa v{h[1]}, v{h[1]}, v{h[3]} {SD}",
              f"v_perm_b32 v{P}, v{h[0]}, v{h[2]}, s{t1}",
              f"v_perm_b32 v{P+1}, v{h[1]}, v{h[3]}, s{t1}"]
        if "nobp" in X:
            o += [f"buffer_store_dwordx4 {vr(P,4)}, v4, {sq(SRD_T)}, s{t0} offen sc1",
                  f"s_add_u32 s{t0}, s{t0}, 4096"]
        else:
            o += [f"ds_bpermute_b32 v{P+u}, v5, v{P+u}" for u in (2, 3, 0, 1)]
        return o

    def t_post(n):
        a(f"buffer_store_dwordx4 {vr(vPk+4*(n&1),4)}, v4, {sq(SRD_T)}, s{t0} offen sc1\ns_add_u32 s{t0}, s{t0}, 4096")

    gemm(t_epi, t_pre, None if "nobp" in X else t_post)
    a(f"""
    s_setreg_imm32_b32 hwreg(HW_REG_MODE, 4, 2), 3
    """)
    if "late_sig" not in X:
        a(f"""
        s_add_u32 s{t2}, s{sH}, s{sB}
        s_lshl_b32 s{t2}, s{t2}, 7
        s_add_u32 s{t2}, s{t2}, {WS_TF}
        v_mov_b32 v8, s{t2}
        v_mov_b32 v4, s{sTAG}
        v_mov_b32 v5, s{sTAG2}
        v_lshlrev_b32 v9, 7, v{vL}
        s_sub_u32 s{t0}, s{t0}, {NB*256}
        s_add_u32 s{t1}, s{t0}, 8192
        s_add_u32 s{t2}, s{t0}, 16384
        s_mov_b64 exec, 1
        s_waitcnt vmcnt(0)
        ds_add_rtn_u32 v7, v{vF}, v{vONE} offset:{F_TD}
        s_waitcnt lgkmcnt(0)
        v_cmp_eq_u32 vcc, 3, v7
        s_cbranch_vccz L_GD
        global_store_dwordx2 v8, v[4:5], {sp(sWS)} sc1
        """)
        if "noown" not in X:
            a(f"""
            s_mov_b64 exec, -1
            buffer_load_dword v10, v9, {sq(SRD_T)}, s{t0} offen sc1
            buffer_load_dword v10, v9, {sq(SRD_T)}, s{t1} offen sc1
            s_mov_b32 exec_hi, 0
            buffer_load_dword v10, v9, {sq(SRD_T)}, s{t2} offen sc1
            """)
    a(f"""
    s_branch L_GD
    L_GC:
    s_mov_b32 s{t0}, 0xffff0000
    s_waitcnt vmcnt(0)
    """)
    for q in range(4):
        a(f"v_and_b32 v{10+q}, s{t0}, v{10+q}")
    for q in range(4):
        a(f"v_mul_f32 v{10+q}, s{sLG}, v{10+q}")
    a(f"""
    v_cvt_pk_bf16_f32 v10, v10, v11
    v_cvt_pk_bf16_f32 v11, v12, v13
    ds_write_b64 v{vCwa}, v[10:11]
    s_mov_b64 exec, 1
    """)
    if "w15slp" in X:
        spin("L_BS5", F_LAND, "gt", 0x100, 4)
    spin("L_LAND2", F_LAND, "ne", 0x406)
    a("s_mov_b64 exec, -1")
    mark(3)

    def au_pre():
        a(f"""
        s_mov_b32 s{t0}, {AST}
        s_mov_b32 s{t1}, {UST}
        s_mov_b32 s{t2}, {LU}
        v_lshlrev_b32 v4, 4, v{vRow}
        v_lshl_add_u32 v5, v{vRow}, 3, s{t2}
        v_mad_u32_u24 v4, v{vJn}, s{t0}, v4
        v_mad_u32_u24 v5, v{vJn}, s{t1}, v5
        """)

    def au_epi(n):
        A = vAcc + 8 * (n & 1)
        o = [f"v_mul_f32 v{A+t}, s{sLG}, v{A+t}" for t in range(4)]
        o += [f"v_cvt_pk_bf16_f32 v{A+4}, v{A+4}, v{A+5}", f"v_cvt_pk_bf16_f32 v{A+5}, v{A+6}, v{A+7}"]
        o += [f"ds_write_b128 v4, {vr(A,4)} offset:{LA+16*AST*n}"]
        o += [f"ds_write_b64 v5, {vr(A+4,2)} offset:{16*UST*n}"]
        return o

    gemm(au_epi, au_pre)
    vW = (8, 32)
    vPr = 56
    REC = (8, 14, 20, 26, 32, 38, 44)

    def rec(k):
        return REC[k]

    vP, vTFa, vLf = 94, 100, 96 - 20
    a("L_GD:\ns_mov_b64 exec, -1")
    mark(5)
    srd(a, SRD_W, sWS, WS_OFF, NCH * 1024)
    a(f"""
    s_waitcnt lgkmcnt(0)
    s_barrier
    """)
    mark(22)
    a(f"""
    {"s_sleep " + os.environ["PDELAY"] if os.environ.get("PDELAY") else ""}
    buffer_load_dwordx2 v[70:71], v{vOFFa}, {sq(SRD_W)}, 0 offen sc1
    L_FILL:
    v_lshrrev_b32 v4, 4, v0
    v_and_b32 v5, 15, v0
    s_mov_b32 s{t0}, {SLOTB}
    v_mov_b32 v6, {LSLOT}
    v_mad_u32_u24 v4, v4, s{t0}, v6
    v_mad_u32_u24 v4, v5, 48, v4
    v_mov_b32 v56, {DUMMY}
    v_mov_b32 v57, {DUMMY}
    v_mov_b64 v[58:59], v[56:57]
    s_cmp_lt_u32 s{sW}, 4
    ds_write_b128 v4, v[56:59]
    s_cbranch_scc0 L_FT
    ds_write_b128 v4, v[56:59] offset:{64*SLOTB}
    s_branch L_FD
    L_FT:
    s_mov_b32 s{t1}, {LTAB - 4096}
    v_mov_b32 v60, {LDUM}
    v_mov_b32 v61, 0
    v_lshl_add_u32 v5, v0, 4, s{t1}
    v_mov_b64 v[62:63], v[60:61]
    ds_write_b128 v5, v[60:63]
    L_FD:
    s_cmp_eq_u32 s{sFIRST}, 0
    s_waitcnt lgkmcnt(0)
    s_barrier                                     ; B5b
    s_cbranch_scc1 L_AGAIN
    """)
    mark(14)
    a(f"""
    s_mov_b32 s{sSPIN}, {SPIN}
    {f"s_cmp_lt_u32 s{sW}, 4" if "late_sig" in X else ""}
    {"s_cbranch_scc1 L_TSIG" if "late_sig" in X else ""}
    L_POLL0:
    s_mov_b64 exec, {sp(sM)}
    L_POLL:
    s_waitcnt vmcnt(0)
    L_POLL1:
    v_lshrrev_b32 v4, 25, v70
    v_cmp_ne_u32 vcc, s{sTAG}, v71
    v_cmp_ne_u32 {sp(t0)}, s{sTAGB}, v4
    s_or_b64 exec, vcc, {sp(t0)}
    s_cbranch_execnz L_POLL2
    L_POLLED:
    s_mov_b64 exec, -1
    """)
    mark(6)
    a(f"""
    v_bfe_u32 v{vRem}, v70, 14, 11
    v_and_b32 v4, 0x3fff, v70
    v_add_u32 v{vRO}, v{vRO}, v4
    """)
    a(f"""
    L_WINDOW:
    v_and_b32 v4, 15, v{vL}
    v_and_b32 v5, 3, v{vL}
    v_sub_u32 v5, v{vRem}, v5
    """)
    for k in range(4):
        a(f"v_sub_u32_dpp v{64+k}, v{vRem}, v4 row_newbcast:{4*k} row_mask:0xf bank_mask:0xf")
    for k in range(4):
        a(f"v_cmp_lt_i32 {sp(sM+2*k)}, 0, v{64+k}")
    for k in range(4, KMAX):
        a(f"v_cmp_lt_i32 {sp(sM+2*k)}, {4*k}, v5")
    a(f"""
    L_LOADS:
    v_and_b32 v4, 15, v{vL}
    v_and_b32 v5, 3, v{vL}
    v_mul_u32_u24 v4, {RB}, v4
    v_mad_u32_u24 v5, v5, {RB}, v{vRO}
    s_or_b64 {sp(sU5)}, {sp(sM+10)}, {sp(sM+12)}
    s_or_b64 {sp(sU4)}, {sp(sU5)}, {sp(sM+8)}
    """)
    for k in range(4):
        a(f"v_add_u32_dpp v{rec(k)+3}, v{vRO}, v4 row_newbcast:{4*k} row_mask:0xf bank_mask:0xf")

    def kloop(done, body, mask=sM):
        for k in range(KMAX):
            if k == 4:
                a(f"s_cmp_eq_u64 {sp(sU4)}, 0\ns_cbranch_scc1 {done}")
            if k == 5:
                a(f"s_cmp_eq_u64 {sp(sU5)}, 0\ns_cbranch_scc1 {done}")
            a(f"s_mov_b64 exec, {sp(mask+2*k)}")
            body(k)
        a(f"{done}:")

    RF = "" if "recplain" in X else "sc1"

    def rload(k):
        if k < 4:
            a(f"buffer_load_dwordx3 {vr(rec(k),3)}, v{rec(k)+3}, {sq(SRD_R)}, 0 offen {RF}")
        else:
            a(f"buffer_load_dwordx3 {vr(rec(k),3)}, v5, {sq(SRD_R)}, 0 offen offset:{48*k} {RF}")

    kloop("L_RL", rload)
    mark(23)
    a(f"""
    s_mov_b64 exec, -1
    s_mov_b32 s{t0}, {LCW}
    v_lshl_add_u32 v4, v{vL}, 3, s{t0}
    """)
    for k in range(8):
        a(f"ds_read_b64 {vr(vW[0]+6*k+4,2)}, v4")
    a(f"""
    s_lshl_b32 s{t0}, s{sW}, 5
    s_add_u32 s{t0}, s{t0}, {LTAB}
    v_lshrrev_b32 v4, 4, v{vL}
    v_bfe_u32 v5, v{vL}, 2, 2
    v_lshl_add_u32 v{vP}, v4, 3, s{t0}
    v_lshl_add_u32 v{vP+1}, v5, 3, s{t0}
    s_lshl_b32 s{t0}, s{sW}, 3
    v_add_u32 v4, s{t0}, v{vL}
    v_min_u32 v4, {NBK-1}, v4
    v_add_u32 v4, s{sH}, v4
    s_mov_b32 s{t1}, {WS_TF}
    v_lshl_add_u32 v{vTFa}, v4, 7, s{t1}
    s_mov_b32 s{t0}, {2*SLOTB}
    v_mad_u32_u24 v{vLf}, v{vL}, s{t0}, v6
    v_lshlrev_b32 v{vLf+1}, 9, v{vL}
    v_add_u32 v{vLf+2}, {SLOTB}, v{vLf}
    v_add_u32 v{vLf+3}, 256, v{vLf+1}
    v_lshlrev_b32 v{vLf+4}, 3, v{vL}
    v_mov_b32 v6, {LSLOT-48}
    s_mov_b32 s{t0}, {SLOTB//4}
    s_mov_b32 s{t1}, 0xffffff00
    """)
    mark(12)
    a("s_waitcnt vmcnt(0)")
    mark(7)
    PFN = int(os.environ.get("PFN", "14"))
    if PFN:
        a(f"""
        s_mov_b64 exec, 0xff
        global_load_dwordx2 v[70:71], v{vTFa}, {sp(sWS)} sc1
        """)
    SB = "dst_sel:DWORD dst_unused:UNUSED_PAD src0_sel:DWORD src1_sel:BYTE_0"

    def hist(k):
        a(f"""
        v_lshlrev_b32_sdwa v4, 2, v{rec(k)+2} {SB}
        v_lshlrev_b32_sdwa v{vPr+2*k+1}, 8, v{rec(k)+2} {SB}
        ds_add_rtn_u32 v{rec(k)+3}, v4, v{vONE} offset:{LCNT}
        v_mad_u32_u24 v{vPr+2*k}, v4, s{t0}, v6
        v_and_b32 v{rec(k)+2}, s{t1}, v{rec(k)+2}
        """)

    kloop("L_HD", hist)
    a(f"s_mov_b32 s{t2}, 0\ns_waitcnt lgkmcnt(0)")
    mark(24)

    def scat(k):
        r = rec(k)
        a(f"""
        v_cmpx_gt_u32 vcc, {CAP}, v{r+3}
        v_lshrrev_b32 v4, 2, v{r+3}
        v_and_b32 v5, 7, v{r+3}
        v_and_b32 v{r+3}, 3, v{r+3}
        s_andn2_b64 {sp(sM+2*k)}, {sp(sM+2*k)}, vcc
        v_mad_u32_u24 v{vPr+2*k}, v4, 48, v{vPr+2*k}
        v_cmp_eq_u32 {sp(sO+2*k)}, 4, v5
        v_lshl_add_u32 v4, v{r+3}, 2, v{vPr+2*k}
        v_lshl_add_u32 v5, v{r+3}, 3, v{vPr+2*k}
        ds_write_b32 v4, v{r+2} offset:48
        ds_write_b64 v5, {vr(r,2)} offset:64
        s_and_b64 {sp(sO+2*k)}, {sp(sO+2*k)}, exec
        s_bcnt1_i32_b64 s{t3}, {sp(sO+2*k)}
        s_add_u32 s{t2}, s{t2}, s{t3}
        """)

    kloop("L_SD", scat)
    mark(25)
    if not PFN:
        a(f"""
        s_mov_b64 exec, 0xff
        global_load_dwordx2 v[70:71], v{vTFa}, {sp(sWS)} sc1
        """)
    a(f"""
    s_mov_b64 exec, 1
    v_mov_b32 v4, s{t2}
    ds_add_rtn_u32 v5, v{vF}, v4 offset:{F_NQ}
    s_mov_b64 exec, -1
    v_cmp_lt_i32 vcc, {4*KMAX}, v{vRem}
    s_or_b64 {sp(t0)}, {sp(sM)}, {sp(sM+2)}
    s_or_b64 {sp(t2)}, {sp(sM+4)}, {sp(sM+6)}
    s_or_b64 {sp(t0)}, {sp(t0)}, {sp(sM+8)}
    s_or_b64 {sp(t2)}, {sp(t2)}, {sp(sM+10)}
    s_or_b64 {sp(t0)}, {sp(t0)}, {sp(sM+12)}
    s_or_b64 {sp(t0)}, {sp(t0)}, {sp(t2)}
    s_cselect_b32 s{sBIN}, 1, 0
    s_or_b64 exec, vcc, {sp(t0)}
    ds_write_b32 v{vF}, v{vONE} offset:{F_MORE}
    s_waitcnt lgkmcnt(0)
    v_readlane_b32 s{t2}, v5, 0
    s_lshl_b32 s{t2}, s{t2}, 3
    s_add_u32 s{t2}, s{t2}, {LTAB}
    """)

    def tab(k):
        a(f"""
        v_mbcnt_lo_u32_b32 v4, exec_lo, 0
        v_mbcnt_hi_u32_b32 v4, exec_hi, v4
        v_lshl_add_u32 v4, v4, 3, s{t2}
        s_bcnt1_i32_b64 s{t3}, exec
        s_lshl3_add_u32 s{t2}, s{t3}, s{t2}
        ds_write_b64 v4, {vr(vPr+2*k,2)}
        """)

    kloop("L_TD", tab, sO)
    mark(26)
    a(f"""
    s_mov_b64 exec, 0xff
    L_TP:
    s_waitcnt vmcnt(0)
    v_cmp_ne_u64 vcc, {sp(sTAG)}, v[70:71]
    s_cbranch_vccnz L_TP2
    L_TRDY:
    """)
    if PFN:
        a(f"""
        s_mul_i32 s{t0}, s{sW}, {8*NB*256}
        s_lshr_b32 s{t1}, s2, 3
        s_mul_i32 s{t1}, s{t1}, {40*128}
        s_add_u32 s{t0}, s{t0}, s{t1}
        s_lshr_b32 s{t1}, s{sW}, 2
        s_lshr_b32 s{t2}, s{sB}, 5
        s_cmp_eq_u32 s{t1}, s{t2}
        s_cselect_b64 exec, {"1" if "late_sig" not in X and "noown" not in X else hex((1 << PFN) - 1)}, {hex((1 << PFN) - 1)}
        v_lshlrev_b32 v4, 7, v{vL}
        buffer_load_dword v70, v4, {sq(SRD_T)}, s{t0} offen sc1
        """)
    a(f"""
    s_mov_b64 exec, -1
    s_mov_b32 s{sFIRST}, 0
    s_waitcnt lgkmcnt(0)
    """)
    mark(8)
    a("s_barrier                                     ; B6")
    mark(9)
    if stamp:
        a("s_memtime s[96:97]\nv_mov_b32 v107, 0")
    vT, vAp, vS = 56, 80, 84
    vTQ, vNA, vFA, vQE = 88, 90, 92, 93
    vDn, vNm, vAa, vCk = 72, 100, 4, 106
    vD = (76, 78, 4, 6)
    sRET = sTHR + 1

    def sh(g):
        return (96, 98, 104, 124)[g]

    def saddr(S):
        a(f"""
        v_pk_add_f32 {vr(S,2)}, {vr(S,2)}, {vr(vLO,2)} op_sel_hi:[1,0]
        v_pk_add_f32 {vr(S+2,2)}, {vr(S+2,2)}, {vr(vLO,2)} op_sel_hi:[1,0]
        """)

    def loads(p, S, loop=False):
        for g in range(int(os.environ.get("NLD", 4)) if loop else 4):
            a(f"buffer_load_dwordx4 {vr(vW[p]+6*g,4)}, v{S+g}, {sq(SRD_T)}, 0 offen sc1")

    def naddr(dst, TQ):
        a(f"v_pk_fma_f32 {vr(dst,2)}, {vr(TQ,2)}, {sp(s12)}, {vr(vLO,2)} op_sel:[1,0,0] op_sel_hi:[1,1,1]")

    def eread(q, half):
        a(f"s_mov_b64 exec, {sp(sEM)}")
        for g in range(4):
            a(f"ds_read_b64 {vr(vAo+4*g+2,2)}, v{q} offset:{48*half+16+8*g}")
        a("s_mov_b64 exec, -1")

    def hv(W, g, h):
        return vr(W + 6 * g, 2) if h == 0 else vr(sh(g), 2)

    def mfma(p, g, c=vAp):
        return f"v_mfma_f32_16x16x32_bf16 {vr(vT+4*g,4)}, {vr(vAo+4*g,4)}, {vr(vW[p]+6*g+2,4)}, {vr(c,4)}"

    def flush(ad):
        a(f"""
        v_pk_mul_f32 {vr(vNm,2)}, {vr(vNm,2)}, {vr(vDn,2)}
        v_pk_mul_f32 {vr(vNm+2,2)}, {vr(vNm+2,2)}, {vr(vDn+2,2)}
        """)
        for t in range(4):
            a(f"v_cvt_f64_f32 {vr(vD[t],2)}, v{vNm+t}")
        for t in range(4):
            a(f"ds_add_f64 v{ad}, {vr(vD[t],2)} offset:{128*t}")

    def check(lab):
        a(f"""
        v_max3_f32 v{vCk}, v{vDn}, v{vDn+1}, v{vDn+2}
        v_max_f32 v{vCk}, v{vCk}, v{vDn+3}
        v_cmp_nge_f32 vcc, s{sTHR}, v{vCk}
        s_cbranch_vccnz {lab}
        """)

    def leftover():
        for u in range(2):
            a(f"""
            v_min_u32 v{96+u}, {CAP}, v{96+u}
            v_add_u32 v{98+u}, 7, v{96+u}
            v_lshrrev_b32 v{96+u}, 3, v{96+u}
            v_and_b32 v{98+u}, 7, v{98+u}
            """)
        a(f"""
        s_mov_b32 s{t3}, 96
        v_cmp_gt_u32 {sp(sO)}, 4, v98
        v_cmp_gt_u32 {sp(sO+2)}, 4, v99
        v_mad_u32_u24 v{vLf}, v96, s{t3}, v{vLf}
        v_mad_u32_u24 v{vLf+2}, v97, s{t3}, v{vLf+2}
        s_lshl3_add_u32 s{t2}, s{t0}, {LTAB}
        """)
        for u in range(2):
            a(f"""
            s_mov_b64 exec, {sp(sO+2*u)}
            v_mbcnt_lo_u32_b32 v96, exec_lo, 0
            v_mbcnt_hi_u32_b32 v96, exec_hi, v96
            v_lshl_add_u32 v96, v96, 3, s{t2}
            s_bcnt1_i32_b64 s{t3}, exec
            s_lshl3_add_u32 s{t2}, s{t3}, s{t2}
            ds_write_b64 v96, {vr(vLf+2*u,2)}
            """)
        a(f"""
        s_mov_b64 exec, -1
        s_sub_u32 s{t2}, s{t2}, {LTAB - 24}
        s_lshr_b32 s{t2}, s{t2}, 5                ; groups
        s_sub_u32 s{t2}, s{t2}, s{sW}
        s_add_u32 s{t2}, s{t2}, 15
        s_lshr_b32 s{t2}, s{t2}, 4
        s_lshl4_add_u32 s{t3}, s{t2}, s{sW}
        s_lshl_b32 s{t3}, s{t3}, 2
        s_add_u32 s{t1}, s{t0}, 64
        s_lshl_b32 s{sN}, s{t2}, 1
        s_cmp_lt_u32 s{t3}, s{t1}
        s_addc_u32 s{sN}, s{sN}, 0
        """)

    a(f"""
    ds_read_b64 v[4:5], v{vF} offset:{F_MORE}
    ds_read_b64 v[96:97], v{vLf+4} offset:{LCNT}
    L_PRE:
    ds_read_b64 {vr(vT,2)}, v{vP}
    ds_read_b32 v{vQE}, v{vP+1}
    ds_read_b64 {vr(vTQ,2)}, v{vP} offset:512
    s_setprio 3
    v_mov_b32 v{vFA}, v{vLO+1}
    v_mov_b64 {vr(vNm,2)}, 0
    v_mov_b64 {vr(vNm+2,2)}, 0
    s_waitcnt lgkmcnt(2)
    ds_read_b128 {vr(vT+4,4)}, v{vT}
    ds_read_b128 {vr(vS,4)}, v{vT} offset:48
    v_readfirstlane_b32 s{t0}, v5
    v_readfirstlane_b32 s{sMORE}, v4
    """)
    naddr(vNA, vT)
    a(f"""
    s_cmp_lt_u32 s{t0}, 128
    s_cbranch_scc1 L_FEW
    s_waitcnt lgkmcnt(1)
    """)
    saddr(vT + 4)
    loads(0, vT + 4)
    if os.environ.get("NLD"):
        loads(1, vT + 4)
    a(f"s_cmp_eq_u32 s{t0}, -1\ns_cbranch_scc1 L_PRE2")
    leftover()
    a(f"""
    L_PRE2:
    ds_read_b128 {vr(vAp,4)}, v{vNA} offset:{LA}
    """)
    eread(vQE, 0)
    for t in range(4):
        a(f"v_mov_b32 v{vDn+t}, 1.0")
    a("s_branch L_SB1")
    for p in range(2):
        W = vW[p]
        a(f"""
        L_L{p}:
        ds_read_b128 {vr(vS,4)}, v{vTQ} offset:{48*p}
        """)
        for i in range(16):
            a(f"v_exp_f32 v{vT+i}, v{vT+i}")
            if i == 7:
                eread(vQE, p ^ 1)
                if p == 0:
                    a(f"ds_read_b32 v{vQE}, v{vP+1} offset:512")
                else:
                    a(f"v_mov_b32 v{vFA}, v{vNA+1}")
        if p == 0:
            flush(vFA)
        else:
            naddr(vNA, vTQ)
        for g in range(4):
            a(f"v_lshlrev_b64 {vr(sh(g),2)}, 16, {vr(W+6*g,2)}")
            if g == 0 and p == 1:
                a(f"ds_read_b128 {vr(vAp,4)}, v{vNA} offset:{LA}")
                a(f"ds_read_b64 {vr(vTQ,2)}, v{vP} offset:1024")
        if p == 0:
            for h in range(2):
                a(f"v_pk_add_f32 {vr(vDn+2*h,2)}, {vr(vT+2*h,2)}, 1.0 op_sel_hi:[1,0]")
        for g in range(1 - p, 4):
            for h in range(2):
                src = hv(W, 0, h) if (g == 1 and p == 0) else vr(vNm + 2 * h, 2)
                a(f"v_pk_fma_f32 {vr(vAa+2*h,2)}, {src}, {vr(vT+4*g+2*h,2)}, {src}")
            for h in range(2):
                a(f"v_pk_fma_f32 {vr(vNm+2*h,2)}, {hv(W,g,h)}, {vr(vDn+2*h,2)}, {vr(vAa+2*h,2)}")
            for h in range(2):
                a(f"v_pk_fma_f32 {vr(vDn+2*h,2)}, {vr(vDn+2*h,2)}, {vr(vT+4*g+2*h,2)}, {vr(vDn+2*h,2)}")
        if p == 1:
            check("L_REDO1")
            a(f"L_RB1:\nv_pk_add_f32 {vr(vP,2)}, {vr(vP,2)}, {sp(sINC)}")
        a(f"""
        L_SB{p}:
        """)
        if "trace" in X:
            a(f"s_memtime s[92:93]\ns_add_u32 m0, s{sN}, 16")
        a(f"""
        s_cmp_le_u32 s{sN}, 2
        s_waitcnt lgkmcnt(0)
        """)
        if "trace" in X:
            a("v_writelane_b32 v107, s92, m0")
        saddr(vS)
        a(f"s_cbranch_scc1 L_TAIL{p}")
        loads(p, vS, True)
        a(f"""
        s_waitcnt vmcnt({os.environ.get("NLD", 4)})
        L_M{p}:
        """)
        for g in range(4):
            a(mfma(p ^ 1, g))
            if p == 1:
                a(f"v_rcp_f32 v{vDn+g}, v{vDn+g}")
        a(f"""
        s_sub_u32 s{sN}, s{sN}, 1
        s_cmp_eq_u32 s{sN}, 4
        s_cbranch_scc1 L_PR{p}
        """)
        a("s_branch L_L0" if p == 1 else "s_nop 0")
    for p in range(2):
        a(f"""
        L_PR{p}:
        s_setprio 2
        s_branch L_L{p^1}
        L_TAIL{p}:
        s_setprio 0
        s_cmp_eq_u32 s{sN}, 2
        s_waitcnt vmcnt(0)
        s_cbranch_scc1 L_M{p}
        """)
        if p == 0:
            check("L_REDO0")
            a(f"L_RB0:\nv_mov_b32 v{vFA}, v{vNA+1}\ns_branch L_LAST")
    a("L_LAST:")
    for g in range(4):
        a(f"v_rcp_f32 v{vDn+g}, v{vDn+g}")
    a("s_nop 0")
    flush(vFA)
    a(f"""
    L_LD:
    s_cmp_lt_u32 s{sW}, 10
    s_cbranch_scc0 L_LD2
    v_lshrrev_b32 v97, 3, v0
    v_and_b32 v98, 7, v0
    s_mov_b32 s{t0}, {UST}
    v_lshlrev_b32 v98, 4, v98
    v_add_u32 v99, {LU}, v98
    v_mad_u32_u24 v99, v97, s{t0}, v99
    ds_read2_b64 v[56:59], v99 offset0:0 offset1:1
    s_mov_b32 s{t0}, {GST}
    v_mad_u32_u24 v96, v97, s{t0}, v98
    s_mul_i32 s{t1}, s{sB}, {NB*256}
    s_add_u32 s{t1}, s{t1}, s{sH}
    v_lshlrev_b32 v97, 8, v97
    v_add3_u32 v97, v97, v98, s{t1}
    s_mov_b32 s{t0}, 0xffff0000
    s_mov_b32 s{t2}, s{sLG}
    s_mov_b32 s{t3}, s{sLG}
    s_waitcnt lgkmcnt(0)
    """)
    for i in range(4):
        a(f"v_lshlrev_b32 v{60+2*i}, 16, v{56+i}\nv_and_b32 v{61+2*i}, s{t0}, v{56+i}")
    a("L_LD2:\ns_waitcnt lgkmcnt(0)")
    mark(10)
    if stamp:
        a("s_memtime s[92:93]\ns_waitcnt lgkmcnt(0)\ns_sub_u32 s92, s92, s96\nv_writelane_b32 v107, s92, 15\nv_writelane_b32 v107, s96, 16")
    a(f"""
    s_cmp_eq_u32 s{sMORE}, 0
    s_barrier                                     ; B8
    s_cbranch_scc0 L_MORE
    s_cmp_lt_u32 s{sW}, 10
    s_cbranch_scc0 L_EPO
    ds_read_b128 v[24:27], v96 offset:{LAGG}
    ds_read_b128 v[28:31], v96 offset:{LAGG+128}
    ds_read_b128 v[32:35], v96 offset:{LAGG+256}
    ds_read_b128 v[36:39], v96 offset:{LAGG+384}
    """)
    for t in range(4):
        a(f"s_waitcnt lgkmcnt({3-t})")
        for u in range(2):
            a(f"v_cvt_f32_f64 v{8+4*u+t}, {vr(24+4*t+2*u,2)}")
    for i in range(4):
        a(f"v_pk_add_f32 {vr(8+2*i,2)}, {vr(8+2*i,2)}, {vr(60+2*i,2)}")
    for i in range(4):
        a(f"v_pk_mul_f32 {vr(16+2*i,2)}, {vr(8+2*i,2)}, {sp(t2)}")
    for i in range(8):
        a(f"v_exp_f32 v{16+i}, v{16+i}")
    for i in range(4):
        a(f"v_pk_add_f32 {vr(16+2*i,2)}, {vr(16+2*i,2)}, 1.0 op_sel_hi:[1,0]")
    for i in range(8):
        a(f"v_rcp_f32 v{16+i}, v{16+i}")
    for i in range(4):
        a(f"v_pk_mul_f32 {vr(16+2*i,2)}, {vr(16+2*i,2)}, {vr(8+2*i,2)}")
    for i in range(4):
        a(f"v_cvt_pk_bf16_f32 v{8+i}, v{16+2*i}, v{17+2*i}")
    a(f"""
    global_store_dwordx4 v97, v[8:11], {sp(sOUT)} {os.environ.get('OF', 'sc1')}
    s_branch L_FIN
    L_EPO:
    s_lshl_b32 s{t0}, s2, 4
    s_add_u32 s{t0}, s{t0}, s{sW}
    s_cmp_eq_u32 s{t0}, 12
    s_cbranch_scc0 L_FIN
    v_mov_b32 v4, {WS_EPOCH}
    v_mov_b32 v5, s{sEP}
    s_mov_b64 exec, 1
    global_store_dword v4, v5, {sp(sWS)} sc1
    s_mov_b64 exec, -1
    L_FIN:
    """)
    if os.environ.get("GAP"):
        a(f"""
        s_lshl_b32 s{t0}, s2, 4
        s_add_u32 s{t0}, s{t0}, s{sW}
        s_cmp_eq_u32 s{t0}, 13
        s_cbranch_scc0 L_QX
        v_mov_b32 v4, 0x4000000
        s_mov_b64 exec, 1
        global_load_dword v5, v4, {sp(sWS)} sc1
        s_memrealtime s[84:85]
        s_waitcnt vmcnt(0) lgkmcnt(0)
        v_readfirstlane_b32 s88, v5
        s_nop 3
        s_sub_u32 s88, s94, s88
        s_min_u32 s88, s88, 5000
        s_mul_i32 s88, s88, 4
        s_add_u32 s88, s88, 300
        L_QS:
        s_memrealtime s[86:87]
        s_waitcnt lgkmcnt(0)
        s_sub_u32 s89, s86, s84
        s_cmp_lt_u32 s89, s88
        s_cbranch_scc1 L_QS
        v_mov_b32 v6, s86
        global_store_dword v4, v6, {sp(sWS)} sc1
        L_QX:
        """)
    if PROBE:
        a(f"""
        s_lshl_b32 s{t0}, s2, 4
        s_add_u32 s{t0}, s{t0}, s{sW}
        s_cmp_eq_u32 s{t0}, {PROBE[0]}
        s_cbranch_scc0 L_PX
        s_memrealtime s[84:85]
        s_sub_u32 s96, s96, s94
        s_lshl_b32 s96, s96, 3
        s_min_u32 s96, s96, 100000
        s_waitcnt lgkmcnt(0)
        L_PS:
        s_memrealtime s[86:87]
        s_waitcnt lgkmcnt(0)
        s_sub_u32 s86, s86, s84
        s_cmp_lt_u32 s86, s96
        s_cbranch_scc1 L_PS
        L_PX:
        """)
    if stamp:
        a("s_waitcnt vmcnt(0)")
        mark(11)
        a("s_waitcnt lgkmcnt(0)")
        for i_, m_ in enumerate(sorted(SLOT)):
            a(f"v_writelane_b32 v107, s{SLOT[m_]}, {i_}")
        a(f"""
        s_lshl_b32 s3, s2, 4
        s_add_u32 s3, s3, s{sW}
        s_lshl_b32 s3, s3, 6
        s_add_u32 s3, s3, {WS_STAMP}
        v_lshl_add_u32 v4, v{vL}, 2, s3
        s_mov_b64 exec, 0xffff
        global_store_dword v4, v107, {sp(sWS)}
        s_mov_b64 exec, 0xffff0000
        v_add_u32 v4, {0x40000 - 64}, v4
        global_store_dword v4, v107, {sp(sWS)}
        """)
    a("s_endpgm")
    a(f"""
    L_POLL2:
    s_sub_u32 s{sSPIN}, s{sSPIN}, 1
    s_cbranch_scc1 L_POLLX
    s_sleep 2
    buffer_load_dwordx2 v[70:71], v{vOFFa}, {sq(SRD_W)}, 0 offen sc1
    s_branch L_POLL
    L_POLLX:
    v_mov_b32 v70, 0
    s_mov_b32 s{sSPIN}, 0
    s_branch L_POLLED
    """)
    if "late_sig" in X:
        a(f"""
    L_TSIG:
    s_add_u32 s{t2}, s{sH}, s{sB}
    s_lshl_b32 s{t2}, s{t2}, 7
    s_add_u32 s{t2}, s{t2}, {WS_TF}
    v_mov_b32 v8, s{t2}
    v_mov_b32 v4, s{sTAG}
    v_mov_b32 v5, s{sTAG2}
    s_mov_b64 exec, 1
    s_waitcnt vmcnt(1)
    ds_add_rtn_u32 v7, v{vF}, v{vONE} offset:{F_TD}
    s_waitcnt lgkmcnt(0)
    v_cmp_eq_u32 vcc, 3, v7
    s_cbranch_vccz L_POLL0
    global_store_dwordx2 v8, v[4:5], {sp(sWS)} sc1
    s_mov_b64 exec, {sp(sM)}
    s_waitcnt vmcnt(1)
    s_branch L_POLL1
    """)
    a(f"""
    L_TP2:
    s_sub_u32 s{sSPIN}, s{sSPIN}, 1
    s_cbranch_scc1 L_TX
    s_sleep 2
    global_load_dwordx2 v[70:71], v{vTFa}, {sp(sWS)} sc1
    s_branch L_TP
    L_TX:
    s_mov_b32 s{sSPIN}, 0
    s_branch L_TRDY
    """)
    a(f"""
    L_FEW:
    s_waitcnt lgkmcnt(0)
    """)
    leftover()
    a(f"""
    s_cmp_eq_u32 s{t2}, 0
    s_cbranch_scc1 L_LD
    v_mov_b32 v5, -1
    s_branch L_PRE
    L_REDO0:
    s_mov_b32 s{sRET}, 0
    s_branch L_REDO
    L_REDO1:
    s_mov_b32 s{sRET}, 1
    L_REDO:
    ds_read_b64 v[76:77], v{vP}
    ds_read_b32 v{vCk}, v{vP+1}
    v_mov_b64 {vr(vNm,2)}, 0
    v_mov_b64 {vr(vNm+2,2)}, 0
    s_mov_b32 s{t0}, 2
    s_waitcnt lgkmcnt(0)
    """)
    naddr(78, 76)
    a(f"""
    ds_read_b128 {vr(vDn,4)}, v78 offset:{LA}
    L_RD1:
    ds_read_b128 {vr(vAa,4)}, v76
    """)
    eread(vCk, 0)
    a("s_waitcnt lgkmcnt(0)")
    saddr(vAa)
    loads(1, vAa)
    a(f"""
    v_add_u32 v76, 48, v76
    v_add_u32 v{vCk}, 48, v{vCk}
    s_waitcnt vmcnt(0)
    """)
    for g in range(4):
        a(mfma(1, g, vDn))
    for g in range(4):
        a(f"v_lshlrev_b64 {vr(sh(g),2)}, 16, {vr(vW[1]+6*g,2)}")
    a("s_nop 3")
    for i in range(16):
        a(f"v_exp_f32 v{vT+i}, v{vT+i}")
    for i in range(8):
        a(f"v_pk_add_f32 {vr(vT+2*i,2)}, {vr(vT+2*i,2)}, 1.0 op_sel_hi:[1,0]")
    for i in range(16):
        a(f"v_rcp_f32 v{vT+i}, v{vT+i}")
    for g in range(4):
        for h in range(2):
            a(f"v_pk_fma_f32 {vr(vNm+2*h,2)}, {vr(vT+4*g+2*h,2)}, {hv(vW[1],g,h)}, {vr(vNm+2*h,2)}")
    a(f"""
    s_sub_u32 s{t0}, s{t0}, 1
    s_cmp_lg_u32 s{t0}, 0
    s_cbranch_scc1 L_RD1
    """)
    eread(vQE, 0)
    for t in range(4):
        a(f"v_mov_b32 v{vDn+t}, 1.0")
    a(f"""
    s_cmp_eq_u32 s{sRET}, 0
    s_cbranch_scc1 L_RB0
    s_branch L_RB1
    """)
    a(f"""
    L_MORE:
    s_setprio 0
    v_mov_b32 v{vF}, {LFLAG}
    v_mov_b32 v{vONE}, 1
    v_lshlrev_b32 v4, 2, v0
    v_mov_b32 v5, 0
    v_cmp_gt_u32 vcc, 130, v0
    s_mov_b64 exec, vcc
    ds_write_b32 v4, v5 offset:{LCNT}
    s_mov_b64 exec, -1
    s_branch L_FILL
    L_AGAIN:
    s_cmp_eq_u32 s{sBIN}, 0
    s_cbranch_scc0 L_LOADS
    v_subrev_u32 v{vRem}, {4*KMAX}, v{vRem}
    v_add_u32 v{vRO}, {48*KMAX}, v{vRO}
    s_branch L_WINDOW
    L_END:
    """)
    return a.text()


def build(stamp=False):
    body = kernel(stamp)
    return f"""; Kernarg layout (80 bytes, pointers): x, e_attr, src, dst, u_w, v_w, g_w, out, debug, ws
; @launch grid=(256,1,1) block=(1024,1,1) lds={LDS}
.amdgcn_target "amdgcn-amd-amdhsa--gfx950"
.text
.globl {NAME}
.p2align 8
.type {NAME},@function
{NAME}:
{body}    s_endpgm
.section .rodata,"a"
.p2align 6
.amdhsa_kernel {NAME}
  .amdhsa_next_free_vgpr 128
  .amdhsa_next_free_sgpr 102
  .amdhsa_accum_offset 128
  .amdhsa_group_segment_fixed_size 0
  .amdhsa_kernarg_size 80
  .amdhsa_user_sgpr_count 2
  .amdhsa_user_sgpr_kernarg_segment_ptr 1
  .amdhsa_system_sgpr_workgroup_id_x 1
  .amdhsa_float_denorm_mode_32 3
.end_amdhsa_kernel
"""


if __name__ == "__main__":
    open(sys.argv[1], "w").write(build(stamp="--stamp" in sys.argv))
```

```python
import sys, os
X = set(os.environ.get('X', '').split('+'))
NAME = "standalone__edge_featured_mpnn_egc__graph_kernel"
N, E = 10000, 320000
NB, NBK, CH, NCH = 80, 125, 1280, 250
T_HALF = N * 256
RB = 12
WS_T, WS_REC, WS_OFF, WS_TF, WS_EPOCH, WS_STAMP = 0, 0x500000, 0xA00000, 0xA40000, 0xA80000, 0xB00000
NLOG2E = 0xBFB8AA3B
KA = dict(x=0, e=8, src=16, dst=24, u=32, v=40, g=48, out=56, dbg=64, ws=72)
AST, GST = 272, 528
LA, LAGG = 0, NB * AST
LHIST = LAGG + NB * GST
LCNT, LFLAG, LDUM = LHIST + 512, LHIST + 1024, LHIST + 1056
F_MORE, F_NQ, F_PUB, F_RV, F_LAND, F_TD = 0, 4, 8, 12, 16, 20
LSTART, LCW = LHIST + 1280, LHIST + 1792
LW = LHIST + 2304
LX = LW + 65536
UST = 136
LU = LX + 20480
LDS = LU + NB * UST
LSLOT, SLOTB, CAP = LW, 784, 64
LTAB = LX
assert LSTART < 65536
KMAX = 7
DUMMY = 0x400000
SPIN = 1 << 17
assert LW % 256 == 0 and LDS <= 163840


class Asm:
    def __init__(self):
        self.l = []

    def __call__(self, s):
        for ln in s.strip("\n").split("\n"):
            ln = ln.strip()
            if ln:
                self.l.append(ln if ln.endswith(":") else "    " + ln)

    def text(self):
        return "\n".join(self.l) + "\n"


def f2h(f):
    import struct
    return hex(struct.unpack('<I', struct.pack('<f', f))[0])


def vr(a, n):
    return f"v[{a}:{a+n-1}]" if n > 1 else f"v{a}"


def sp(a):
    return f"s[{a}:{a+1}]"


def sq(a):
    return f"s[{a}:{a+3}]"


def srd(a, d, base, off, size):
    a(f"s_add_u32 s{d}, s{base}, {off}\ns_addc_u32 s{d+1}, s{base+1}, 0")
    a(f"s_mov_b32 s{d+2}, {size}\ns_mov_b32 s{d+3}, 0x20000")


def scan64(a, v):
    for ctl in ("row_shr:1", "row_shr:2", "row_shr:4", "row_shr:8"):
        a(f"s_nop 1\nv_add_u32_dpp v{v}, v{v}, v{v} {ctl} row_mask:0xf bank_mask:0xf")
    a(f"s_nop 1\nv_add_u32_dpp v{v}, v{v}, v{v} row_bcast:15 row_mask:0xa bank_mask:0xf")
    a(f"s_nop 1\nv_add_u32_dpp v{v}, v{v}, v{v} row_bcast:31 row_mask:0xc bank_mask:0xf")


def kernel(stamp):
    a = Asm()
    PROBE = [int(x) for x in os.environ["PROBE"].split(",")] if os.environ.get("PROBE") else None
    MARKS = set(int(x) for x in os.environ["MARKS"].split(",")) if os.environ.get("MARKS") else None

    FREE = [4, 6, 8, 10, 12, 14, 16, 20, 98]
    SLOT = {0: 94}
    if stamp:
        for m_ in sorted((MARKS or set()) - {0}):
            SLOT[m_] = FREE.pop(0)

    def mark(n):
        if stamp and n in SLOT:
            a(f"s_memrealtime s[{SLOT[n]}:{SLOT[n]+1}]")
        if PROBE and n in PROBE[1:]:
            r = 94 + 2 * PROBE[1:].index(n)
            a(f"s_memrealtime s[{r}:{r+1}]\ns_waitcnt lgkmcnt(0)")

    sRW = 3
    sX, sE, sSRC, sDST, sU, sV, sG, sOUT, sDBG, sWS = 4, 6, 8, 10, 12, 14, 16, 18, 20, 22
    SRD_T, SRD_R, SRD_W = 24, 28, 32
    sM = 36
    sN, sBIN, sT0, sFIRST = 50, 51, 52, 53
    t0, t1, t2, t3 = 54, 55, 56, 57
    sMORE, sW = 58, 59
    sINC, s12, sTHR, sEM = 60, 62, 64, 66
    sH, sB, sC, sEP, sTAG, sTAG2, sSPIN, sLG = 68, 69, 70, 71, 72, 73, 74, 75
    sTAGB = 100
    sU5, sU4 = 76, 78
    sO = 80
    vL, vLO, vAo, vRO, vRem = 1, 2, 108, 126, 127
    vF, vONE = 124, 125
    vWf, vXb, vAcc, vPk, vA, vXa, vRow, vJn = 8, 40, 72, 88, 100, 96, 101, 102
    vOFFa, vR4, vCwa = 103, 104, 105
    LNT = "" if "nont" in X else "nt"
    XNT = "nt" if "xnt" in X else ""

    def spin(label, off, cond, val, slp=0):
        a(f"""
        {label}:
        s_sub_u32 s{sSPIN}, s{sSPIN}, 1
        s_cbranch_scc1 L_END
        {f"s_sleep {slp}" if slp else ""}
        ds_read_b32 v7, v{vF} offset:{off}
        s_waitcnt lgkmcnt(0)
        """)
        if cond == "lowne":
            a(f"v_and_b32 v7, 0xff, v7\nv_cmp_ne_u32 vcc, {val}, v7")
        elif cond == "midne":
            a(f"v_cmp_ne_u32 vcc, {val}, v7")
        else:
            a(f"v_cmp_{cond}_u32 vcc, {val}, v7")
        a(f"s_cbranch_vccnz {label}")

    mark(0)
    if os.environ.get("GAP"):
        a("s_memrealtime s[94:95]")
    a(f"""
    s_load_dwordx16 s[4:19], s[0:1], 0
    s_load_dwordx4 s[20:23], s[0:1], {KA['dbg']}
    s_lshr_b32 s{sB}, s2, 3
    """)
    if "latewarm" not in X:
        a(f"""
        s_getpc_b64 {sp(t0)}
        L_PC:
        s_mul_i32 s{t3}, s{sB}, 384
        v_lshl_add_u32 v6, v0, 7, s{t3}
        v_cmp_gt_u32 vcc, 3, v0
        v_min_u32 v6, L_END-L_PC, v6
        s_cbranch_vccz L_NOCW
        s_mov_b64 exec, vcc
        global_load_dword v9, v6, {sp(t0)}
        s_mov_b64 exec, -1
        L_NOCW:
        """)
    a(f"""
    s_bfe_u32 s{t0}, s2, 0x20001
    s_lshl_b32 s{t0}, s{t0}, 5
    s_cmp_ge_u32 s2, 256
    s_cselect_b32 s{t0}, 128, s{t0}
    s_add_u32 s{sB}, s{sB}, s{t0}                 ; bucket
    s_cmp_ge_u32 s{sB}, {NBK}
    s_cbranch_scc1 L_END
    v_lshrrev_b32 v4, 6, v0
    v_and_b32 v{vL}, 63, v0
    v_readfirstlane_b32 s{sW}, v4
    s_and_b32 s{t0}, s2, 1
    s_lshl_b32 s{sH}, s{t0}, 7                    ; half*128
    s_lshl_b32 s{sC}, s{sB}, 1
    s_add_u32 s{sC}, s{sC}, s{t0}                 ; chunk
    s_sub_u32 s{sRW}, s{sW}, 5
    s_cmp_lt_u32 s{sRW}, 5
    s_cbranch_scc0 L_NOBIN
    s_mul_i32 s{t1}, s{sC}, {CH*4}
    s_sub_u32 s{t1}, s{t1}, {320*16}
    v_lshl_add_u32 v20, v0, 4, s{t1}
    v_lshlrev_b32 v21, 1, v20
    s_setprio 3
    s_mov_b32 s{sBIN}, 1
    s_waitcnt lgkmcnt(0)
    global_load_dwordx4 v[4:7], v20, {sp(sDST)} {LNT}
    s_barrier                                     ; B1
    global_load_dwordx4 v[8:11], v20, {sp(sSRC)} {LNT}
    global_load_dwordx4 v[12:15], v21, {sp(sE)} {LNT}
    global_load_dwordx4 v[16:19], v21, {sp(sE)} offset:16 {LNT}
    s_mul_i32 s{t0}, s{sC}, {CH*RB}
    s_add_u32 s{t0}, s{t0}, {WS_REC}
    """)
    srd(a, SRD_W, sWS, f"s{t0}", CH * RB)
    PT = 1 if "ptr" in X else 0
    if PT:
        a(f"""
        s_mul_i32 s{t2}, s{sRW}, 3072
        v_lshlrev_b32 v22, 7, v{vL}
        s_mov_b64 exec, 0xffffff
        buffer_store_dword v22, v22, {sq(SRD_W)}, s{t2} offen sc1
        s_mov_b64 exec, -1
        """)
    a(f"""
    s_branch L_SETUP
    L_NOBIN:
    s_mov_b32 s{sBIN}, 0
    s_cmp_lt_u32 s{sW}, 10
    s_cbranch_scc1 L_B1
    s_cmp_eq_u32 s{sW}, 15
    s_cbranch_scc1 L_WARM
    v_lshlrev_b32 v12, 2, v0
    v_lshrrev_b32 v16, 2, v0
    v_cmp_eq_u32 vcc, {(640 + (LDUM - LHIST) // 4) // 4}, v16
    v_mov_b32 v15, {DUMMY}
    s_mov_b64 {sp(t0)}, vcc
    v_cmp_eq_u32 vcc, {(640 + (LDUM - LHIST) // 4) // 4 + 3}, v16
    s_or_b64 vcc, vcc, {sp(t0)}
    v_cndmask_b32 v13, 0, v15, vcc
    ds_write_b32 v12, v13 offset:{LHIST - 2560}
    s_branch L_B1
    L_WARM:
    """)
    if "latewarm" in X:
        a(f"""
        s_getpc_b64 {sp(t0)}
        L_PC:
        s_sub_u32 s{t0}, s{t0}, L_PC-{NAME}
        s_subb_u32 s{t1}, s{t1}, 0
        s_lshr_b32 s{t2}, s2, 3
        s_mul_i32 s{t3}, s{t2}, 384
        v_lshl_add_u32 v6, v{vL}, 7, s{t3}
        v_min_u32 v6, L_END-{NAME}, v6
        s_mov_b64 exec, 7
        global_load_dword v9, v6, {sp(t0)}
        s_mov_b64 exec, -1
        """)
    a(f"""
    s_lshr_b32 s{t2}, s2, 3
    s_mul_i32 s{t2}, s{t2}, 9
    v_add_u32 v6, s{t2}, v{vL}
    v_min_u32 v8, 259, v6
    v_lshl_add_u32 v8, v8, 8, s{sH}
    s_lshr_b32 s{t2}, s{t2}, 1
    v_add_u32 v6, s{t2}, v{vL}
    v_min_u32 v6, 127, v6
    v_lshl_add_u32 v6, v6, 8, s{sH}
    v_lshrrev_b32 v4, 4, v{vL}
    v_and_b32 v5, 15, v{vL}
    v_lshl_add_u32 v4, v5, 2, v4
    s_add_u32 s{t2}, s{sH}, {256*256}
    v_lshl_add_u32 v4, v4, 1, s{t2}
    s_waitcnt lgkmcnt(0)
    s_mov_b64 exec, 0x1ff
    global_load_dword v9, v8, {sp(sG)}
    s_mov_b64 exec, 31
    global_load_dword v9, v6, {sp(sV)}
    global_load_dword v9, v6, {sp(sU)}
    s_mov_b64 exec, -1
    global_load_short_d16_hi v10, v4, {sp(sG)}
    global_load_short_d16_hi v11, v4, {sp(sG)} offset:256
    global_load_short_d16_hi v12, v4, {sp(sG)} offset:512
    global_load_short_d16_hi v13, v4, {sp(sG)} offset:768
    L_B1:
    s_waitcnt lgkmcnt(0)
    s_barrier                                     ; B1
    """)
    if "xlate" in X:
        a(f"""
        s_cmp_eq_u32 s{sW}, 10
        s_cselect_b32 s{sRW}, 1, 0
        s_cbranch_scc1 L_XL
        s_cmp_eq_u32 s{sW}, 4
        s_cbranch_scc1 L_XL
        """)
    else:
        a(f"""
        s_mov_b32 s{sRW}, s{sW}
        s_cmp_lt_u32 s{sW}, 2
        s_cbranch_scc1 L_XL
        """)
    a(f"""
    s_cmp_lt_u32 s{sW}, 5
    s_cselect_b32 s{sRW}, {0 if "xlate" in X else 2}, 7
    s_sub_u32 s{sRW}, s{sW}, s{sRW}
    v_lshrrev_b32 v26, 3, v{vL}
    v_lshlrev_b32 v26, 8, v26
    v_and_b32 v28, 7, v{vL}
    v_lshlrev_b32 v28, 4, v28
    v_and_b32 v27, 16, v{vL}
    v_lshlrev_b32 v27, 1, v27
    v_xor_b32 v28, v28, v27
    v_add3_u32 v26, v26, v28, s{sH}
    v_xor_b32 v27, 64, v26
    s_add_u32 s{SRD_W}, s{sG}, {128*256}
    s_addc_u32 s{SRD_W+1}, s{sG+1}, 0
    s_cmp_ge_u32 s{sRW}, 2
    s_cselect_b64 {sp(SRD_W)}, {sp(sV)}, {sp(SRD_W)}
    s_cmp_ge_u32 s{sRW}, 4
    s_cselect_b64 {sp(SRD_W)}, {sp(sG)}, {sp(SRD_W)}
    s_cmp_ge_u32 s{sRW}, 6
    s_cselect_b64 {sp(SRD_W)}, {sp(sU)}, {sp(SRD_W)}
    s_mov_b32 s{SRD_W+2}, {128*256}
    s_mov_b32 s{SRD_W+3}, 0x20000
    s_cmp_ge_u32 s{sRW}, 4
    s_cbranch_scc0 L_WE
    v_lshlrev_b32 v17, 4, v0
    v_mov_b64 v[20:21], 0
    v_mov_b64 v[22:23], 0
    v_min_u32 v18, {11264 + NB * GST - 8 * 5120 - 16}, v17
    """)
    for i in range(9):
        a(f"ds_write_b128 v{17 if i < 8 else 18}, v[20:23] offset:{LAGG - 11264 + 5120 * i}")
    a("s_branch L_SETUP\nL_WE:")

    def wdma(lab):
        a(f"""
        s_and_b32 s{t0}, s{sRW}, 1
        s_lshl_b32 s{t0}, s{t0}, 14
        s_lshl_b32 s{t1}, s{sRW}, 13
        s_add_u32 s{t1}, s{t1}, {LW}
        s_mov_b32 s{t2}, 4
        {lab}:
        s_mov_b32 m0, s{t1}
        s_add_u32 s{t3}, s{t0}, 1024
        buffer_load_dwordx4 v26, {sq(SRD_W)}, s{t0} offen lds
        buffer_load_dwordx4 v27, {sq(SRD_W)}, s{t3} offen offset:1024 lds
        s_add_u32 s{t0}, s{t0}, 4096
        s_add_u32 s{t1}, s{t1}, 2048
        s_sub_u32 s{t2}, s{t2}, 1
        s_cmp_lg_u32 s{t2}, 0
        s_cbranch_scc1 {lab}
        """)

    wdma("L_WL")
    a(f"""
    s_branch L_SETUP
    L_XL:
    v_lshrrev_b32 v4, 4, v{vL}
    v_and_b32 v5, 15, v{vL}
    v_xor_b32 v5, v5, v4
    v_lshlrev_b32 v5, 4, v5
    s_lshl_b32 s{t1}, s{sRW}, 7
    v_xor_b32 v5, s{t1}, v5
    s_mul_i32 s{t0}, s{sRW}, 10240
    s_mul_i32 s{t2}, s{sB}, {NB*256}
    s_add_u32 s{t2}, s{t2}, s{t0}
    v_lshl_add_u32 v4, v4, 8, v5
    s_add_u32 s{t1}, s{t0}, {LX}
    v_xor_b32 v5, 64, v4
    v_xor_b32 v6, 0x80, v4
    v_xor_b32 v7, 0xc0, v4
    v_mov_b32 v26, 0
    v_mov_b32 v27, 0
    """)
    srd(a, SRD_W, sX, f"s{t2}", 10240)
    a(f"s_mov_b32 s{t0}, 0\ns_mov_b32 s{sRW}, 0")
    for i in range(10):
        if i % 4 == 0:
            a(f"s_mov_b32 m0, s{t1}\ns_add_u32 s{t1}, s{t1}, 4096")
        a(f"buffer_load_dwordx4 v{4+i%4}, {sq(SRD_W)}, s{t0} offen offset:{1024*(i%4)} {XNT} lds")
        if i % 4 == 3:
            a(f"s_add_u32 s{t0}, s{t0}, 4096")
    a(f"""
    L_SETUP:
    s_add_u32 s{t2}, s{sWS}, {WS_EPOCH}
    s_addc_u32 s{t3}, s{sWS+1}, 0
    s_load_dword s{sEP}, {sp(t2)}, 0
    s_and_b32 s{sT0}, s{sW}, 3
    s_cmp_ge_u32 s{sW}, 12
    s_cselect_b32 s{t0}, {2*16384}, 0
    s_add_u32 s{t0}, s{t0}, {LW}
    s_mov_b32 s{t1}, {LX}
    v_lshrrev_b32 v40, 4, v{vL}                   ; sigma
    v_bfe_u32 v41, v{vL}, 2, 2
    v_and_b32 v42, 3, v{vL}
    v_and_b32 v{vJn}, 15, v{vL}
    v_lshlrev_b32 v43, 10, v40
    v_lshlrev_b32 v44, 7, v41
    v_lshl_add_u32 v44, v42, 3, v44
    v_bfe_u32 v45, v{vL}, 3, 2
    v_xor_b32 v45, s{sT0}, v45
    v_lshl_add_u32 v45, v45, 5, v44
    v_add3_u32 v{vA}, v43, v45, s{t0}
    s_lshl_b32 s{t0}, s{sT0}, 2
    v_add_u32 v{vRow}, s{t0}, v40
    v_xor_b32 v43, v{vJn}, v40
    v_lshlrev_b32 v43, 4, v43
    v_lshlrev_b32 v44, 8, v{vJn}
    v_add3_u32 v{vXa}, v43, v44, s{t1}
    v_xor_b32 v{vXa+1}, 64, v{vXa}
    v_xor_b32 v{vXa+2}, 0x80, v{vXa}
    v_xor_b32 v{vXa+3}, 0xc0, v{vXa}
    s_mov_b32 s{t0}, {LCW}
    v_lshl_add_u32 v{vCwa}, v{vL}, 3, s{t0}
    v_cmp_eq_u32 vcc, v40, v41
    v_mov_b32 v43, 0x3f80
    v_cmp_eq_u32 {sp(sEM)}, v40, v42
    v_cndmask_b32 v{vAo}, 0, v43, vcc
    v_mov_b32 v{vAo+1}, 0
    v_lshlrev_b32 v42, 4, v42
    v_lshlrev_b64 {vr(vAo,2)}, v42, {vr(vAo,2)}
    """)
    for g in range(4):
        if g:
            a(f"v_mov_b64 {vr(vAo+4*g,2)}, {vr(vAo,2)}")
        a(f"v_mov_b64 {vr(vAo+4*g+2,2)}, 0")
    a(f"""
    v_lshlrev_b32 v{vLO}, 4, v{vJn}
    v_lshlrev_b32 v{vLO+1}, 3, v{vJn}
    v_add_u32 v{vLO+1}, {LAGG}, v{vLO+1}
    v_lshrrev_b32 v40, 2, v0
    s_lshl_b32 s{t0}, s{sB}, 3
    v_lshl_add_u32 v{vOFFa}, v40, 10, s{t0}
    v_mul_u32_u24 v{vRO}, {CH*RB}, v40
    v_cmp_gt_u32 vcc, {NCH}, v40
    v_mov_b32 v{vF}, {LFLAG}
    v_mov_b32 v{vONE}, 1
    s_mov_b64 {sp(sM)}, vcc
    s_mov_b32 s{sLG}, {hex(NLOG2E)}
    s_mov_b32 s{s12}, {f2h(AST/256)}
    s_mov_b32 s{s12+1}, {f2h(GST/256)}
    s_mov_b32 s{sINC}, 512
    s_mov_b32 s{sINC+1}, 512
    s_mov_b32 s{sTHR}, 0x5f800000
    s_mov_b32 s{sFIRST}, 1
    s_mov_b32 s{sSPIN}, {SPIN*8}
    s_mul_i32 s{t1}, s{sH}, {T_HALF//128}
    """)
    srd(a, SRD_T, sWS, f"s{t1}", T_HALF)
    srd(a, SRD_R, sWS, WS_REC, E * RB)
    a(f"""
    s_cmp_eq_u32 s{sBIN}, 0
    s_cbranch_scc1 L_STG
    s_mov_b32 s{t0}, 52429
    s_mov_b32 s{t1}, {-NB}
    v_lshlrev_b32 v33, 3, v{vL}
    s_mul_i32 s{t2}, s{sRW}, 3072
    v_lshl_add_u32 v32, v{vL}, 4, s{t2}
    s_waitcnt vmcnt({3+PT})
    """)
    mark(1)
    for i in range(4):
        a(f"""
        v_mul_u32_u24 v{20+i}, s{t0}, v{4+i}
        v_lshrrev_b32 v{20+i}, 22, v{20+i}
        v_mad_i32_i24 v{24+i}, v{20+i}, s{t1}, v{4+i}
        v_lshlrev_b32 v{20+i}, 2, v{20+i}
        ds_add_rtn_u32 v{28+i}, v{20+i}, v{vONE} offset:{LHIST}
        """)
    a(f"""
    s_mov_b64 exec, 1
    ds_add_u32 v{vF}, v{vONE} offset:{F_RV}
    """)
    spin("L_BS1", F_RV, "gt", 5)
    a(f"""
    s_mov_b64 exec, -1
    ds_read_b64 v[34:35], v33 offset:{LHIST}
    s_add_u32 s{sEP}, s{sEP}, 1
    s_mul_i32 s{sTAG}, s{sEP}, 0x9E3779B1
    s_mul_i32 s{sTAG2}, s{sEP}, 0x85EBCA6B
    s_lshr_b32 s{sTAGB}, s{sTAG2}, 25
    s_waitcnt lgkmcnt(0)
    v_add_u32 v36, v34, v35
    v_mov_b32 v37, v36
    """)
    scan64(a, 37)
    a(f"""
    v_sub_u32 v38, v37, v36
    v_add_u32 v39, v38, v34
    v_mul_u32_u24 v38, {RB}, v38
    v_mul_u32_u24 v39, {RB}, v39
    ds_write_b64 v33, v[38:39] offset:{LSTART}
    """)
    for i in range(4):
        a(f"ds_read_b32 v{20+i}, v{20+i} offset:{LSTART}")
    a(f"""
    s_lshl_b32 s{t0}, s{sTAGB}, 25
    s_lshl_b32 s{t1}, s{sC}, 10
    s_add_u32 s{t1}, s{t1}, {WS_OFF}
    v_lshl_or_b32 v48, v34, 14, v38
    v_lshl_or_b32 v50, v35, 14, v39
    v_or_b32 v48, s{t0}, v48
    v_or_b32 v50, s{t0}, v50
    v_mov_b32 v49, s{sTAG}
    v_mov_b32 v51, s{sTAG}
    v_lshl_add_u32 v52, v{vL}, 4, s{t1}
    s_waitcnt vmcnt({2+PT}) lgkmcnt(0)
    """)
    for i in range(4):
        a(f"""
        v_mad_u32_u24 v{20+i}, v{28+i}, {RB}, v{20+i}
        v_lshl_or_b32 v{24+i}, v{8+i}, 8, v{24+i}
        ds_write_b32 v{20+i}, v{24+i} offset:8
        """)
    for i in range(4):
        if i % 2 == 0:
            a(f"s_waitcnt vmcnt({1 - i // 2 + PT})")
        a(f"ds_write2_b32 v{20+i}, v{12+2*i}, v{13+2*i} offset0:0 offset1:1")
    mark(13)
    a(f"""
    s_mov_b64 exec, 1
    ds_add_u32 v{vF}, v{vONE} offset:{F_RV}
    """)
    spin("L_BS2", F_RV, "gt", 10)
    a("s_mov_b64 exec, -1")
    for i in range(3):
        a(f"ds_read_b128 {vr(8+4*i,4)}, v32 offset:{1024*i}")
    for i in range(3):
        a(f"s_waitcnt lgkmcnt({2-i})\nbuffer_store_dwordx4 {vr(8+4*i,4)}, v32, {sq(SRD_W)}, 0 offen offset:{1024*i} sc1")
    a(f"""
    s_mov_b64 exec, 1
    ds_add_u32 v{vF}, v{vONE} offset:{F_RV}
    """)
    mark(2)
    a(f"""
    s_waitcnt vmcnt(0)
    ds_add_rtn_u32 v7, v{vF}, v{vONE} offset:{F_PUB}
    s_waitcnt lgkmcnt(0)
    v_cmp_eq_u32 vcc, 4, v7
    s_mov_b64 exec, -1
    s_cbranch_vccz L_NOPUB
    global_store_dwordx4 v52, v[48:51], {sp(sWS)} sc1
    L_NOPUB:
    s_setprio 0
    """)
    mark(4)
    a(f"""
    s_branch L_GD
    L_STG:
    s_waitcnt lgkmcnt(0)
    s_add_u32 s{sEP}, s{sEP}, 1
    s_mul_i32 s{sTAG}, s{sEP}, 0x9E3779B1
    s_mul_i32 s{sTAG2}, s{sEP}, 0x85EBCA6B
    s_lshr_b32 s{sTAGB}, s{sTAG2}, 25
    v_mov_b32 v6, 1
    s_cmp_lt_u32 s{sRW}, 4
    s_cbranch_scc1 L_EARLY
    s_cmp_eq_u32 s{sRW}, 8
    s_cbranch_scc1 L_GC
    """)
    if "ptt" in X:
        a(f"""
        s_mul_i32 s{t2}, s{sB}, {NB*256}
        s_sub_u32 s{t3}, s{sRW}, 4
        s_mul_i32 s{t3}, s{t3}, 5120
        s_add_u32 s{t2}, s{t2}, s{t3}
        v_lshlrev_b32 v22, 7, v{vL}
        s_mov_b32 exec_hi, 0xff
        s_setprio 3
        buffer_store_dword v22, v22, {sq(SRD_T)}, s{t2} offen sc1
        s_setprio 0
        """)
    a(f"""
    s_mov_b64 exec, 1
    """)
    spin("L_BS3", F_RV, "gt", 15, int(os.environ.get("SL3", 4)))
    a("s_mov_b64 exec, -1")
    wdma("L_WL2")
    a(f"""
    v_mov_b32 v6, 0x100
    L_EARLY:
    s_mov_b64 exec, 1
    s_waitcnt vmcnt(0)
    ds_add_u32 v{vF}, v6 offset:{F_LAND}
    """)
    mark(13)
    a(f"""
    s_cmp_ge_u32 s{sW}, 12
    s_cbranch_scc1 L_LAND2
    s_cmp_ge_u32 s{sW}, 4
    s_cbranch_scc1 L_GD
    """)
    spin("L_LAND1", F_LAND, "lowne", 6, int(os.environ.get("SL1", 0)))
    a("s_mov_b64 exec, -1")
    mark(3)

    def gemm(epi, pre, post=None):
        def xr(n, ks):
            a(f"ds_read_b128 {vr(vXb+16*(n&1)+4*ks,4)}, v{vXa+ks} offset:{4096*n}")
        for ks in range(4):
            xr(0, ks)
            for m in range(2):
                o = m * 16384 + ks * 4096
                r = vWf + 16 * m + 4 * ks
                a(f"ds_read_b64_tr_b16 {vr(r,2)}, v{vA} offset:{o}")
                a(f"ds_read_b64_tr_b16 {vr(r+2,2)}, v{vA} offset:{o+512}")
            if ks == 1:
                pre()
                a("s_waitcnt lgkmcnt(4)")
        a("s_waitcnt lgkmcnt(9)")
        for ks in range(4):
            xr(1, ks)
        for n in range(6):
            ops = epi(n - 1) if n else []
            if n == 5:
                if post:
                    a("s_nop 3")
                    for o in ops[:-4]:
                        a(o)
                    a("s_waitcnt lgkmcnt(0)")
                    post(3)
                    for o in ops[-4:]:
                        a(o)
                    a("s_waitcnt lgkmcnt(0)")
                    post(4)
                    break
                a("s_nop 7")
                for o in ops:
                    a(o)
                break
            late = post and n >= 2
            a(f"s_waitcnt lgkmcnt({(4 if n < 4 else 0) + (4 if late else 0)})")
            if n == 0:
                mark(21)
            per = -(-len(ops) // 5)
            for ks in range(4):
                for m in range(2):
                    acc = vAcc + 8 * (n & 1) + 4 * m
                    c = "0" if ks == 0 else vr(acc, 4)
                    a(f"v_mfma_f32_16x16x32_bf16 {vr(acc,4)}, {vr(vWf+16*m+4*ks,4)}, {vr(vXb+16*(n&1)+4*ks,4)}, {c}")
                    if late and 2 * ks + m == 3:
                        a(f"s_waitcnt lgkmcnt({4 if n < 4 else 0})")
                        post(n - 2)
                    if 2 * ks + m >= 3:
                        for o in ops[:per]:
                            a(o)
                        ops = ops[per:]
            assert not ops
            if n + 2 < 5:
                for ks in range(4):
                    xr(n + 2, ks)
            elif n == 3:
                a("s_nop 3")

    def t_pre():
        a(f"""
        s_mul_i32 s{t0}, s{sB}, {NB*256}
        """)
        if "nobp" in X:
            a(f"""
            v_lshlrev_b32 v4, 8, v{vJn}
            v_lshl_add_u32 v4, v{vRow}, 4, v4
            """)
        else:
            a(f"""
            v_lshrrev_b32 v6, 2, v{vL}
            v_and_b32 v7, 3, v{vL}
            s_lshl_b32 s{t1}, s{sT0}, 6
            v_lshl_add_u32 v4, v6, 8, s{t1}
            v_lshl_add_u32 v4, v7, 4, v4
            v_lshl_add_u32 v5, v7, 4, v6
            v_lshlrev_b32 v5, 2, v5
            """)
        a(f"""
        s_mov_b32 s{t1}, 0x07060302
        s_setreg_imm32_b32 hwreg(HW_REG_MODE, 4, 2), 0
        """)

    def t_epi(n):
        P = vPk + 4 * (n & 1)
        b = [vAcc + 8 * (n & 1) + t for t in range(4)]
        h = [vAcc + 8 * (n & 1) + 4 + t for t in range(4)]
        SD = "clamp dst_sel:DWORD dst_unused:UNUSED_PAD src0_sel:DWORD src1_sel:WORD_1"
        o = [f"v_mul_f32 v{b[t]}, s{sLG}, v{b[t]}" for t in range(4)]
        o += [f"v_add_f32 v{h[t]}, 0, v{h[t]}" for t in (0, 1, 3)]
        o += [f"v_add_u32 v{h[t]}, 0x8000, v{h[t]}" for t in (2, 0, 3, 1)]
        o += [f"v_sub_u32_sdwa v{h[0]}, v{h[0]}, v{h[2]} {SD}",
              f"v_cvt_pk_bf16_f32 v{P+2}, v{b[0]}, v{b[1]}",
              f"v_sub_u32_sdwa v{h[3]}, v{h[3]}, v{h[0]} {SD}",
              f"v_cvt_pk_bf16_f32 v{P+3}, v{b[2]}, v{b[3]}",
              f"v_sub_u32_sdwa v{h[1]}, v{h[1]}, v{h[3]} {SD}",
              f"v_perm_b32 v{P}, v{h[0]}, v{h[2]}, s{t1}",
              f"v_perm_b32 v{P+1}, v{h[1]}, v{h[3]}, s{t1}"]
        if "nobp" in X:
            o += [f"buffer_store_dwordx4 {vr(P,4)}, v4, {sq(SRD_T)}, s{t0} offen sc1",
                  f"s_add_u32 s{t0}, s{t0}, 4096"]
        else:
            o += [f"ds_bpermute_b32 v{P+u}, v5, v{P+u}" for u in (2, 3, 0, 1)]
        return o

    def t_post(n):
        a(f"buffer_store_dwordx4 {vr(vPk+4*(n&1),4)}, v4, {sq(SRD_T)}, s{t0} offen sc1\ns_add_u32 s{t0}, s{t0}, 4096")

    gemm(t_epi, t_pre, None if "nobp" in X else t_post)
    a(f"""
    s_setreg_imm32_b32 hwreg(HW_REG_MODE, 4, 2), 3
    """)
    if "late_sig" not in X:
        a(f"""
        s_add_u32 s{t2}, s{sH}, s{sB}
        s_lshl_b32 s{t2}, s{t2}, 7
        s_add_u32 s{t2}, s{t2}, {WS_TF}
        v_mov_b32 v8, s{t2}
        v_mov_b32 v4, s{sTAG}
        v_mov_b32 v5, s{sTAG2}
        v_lshlrev_b32 v9, 7, v{vL}
        s_sub_u32 s{t0}, s{t0}, {NB*256}
        s_add_u32 s{t1}, s{t0}, 8192
        s_add_u32 s{t2}, s{t0}, 16384
        s_mov_b64 exec, 1
        s_waitcnt vmcnt(0)
        ds_add_rtn_u32 v7, v{vF}, v{vONE} offset:{F_TD}
        s_waitcnt lgkmcnt(0)
        v_cmp_eq_u32 vcc, 3, v7
        s_cbranch_vccz L_GD
        global_store_dwordx2 v8, v[4:5], {sp(sWS)} sc1
        """)
        if "noown" not in X:
            a(f"""
            s_mov_b64 exec, -1
            buffer_load_dword v10, v9, {sq(SRD_T)}, s{t0} offen sc1
            buffer_load_dword v10, v9, {sq(SRD_T)}, s{t1} offen sc1
            s_mov_b32 exec_hi, 0
            buffer_load_dword v10, v9, {sq(SRD_T)}, s{t2} offen sc1
            """)
    a(f"""
    s_branch L_GD
    L_GC:
    s_mov_b32 s{t0}, 0xffff0000
    s_waitcnt vmcnt(0)
    """)
    for q in range(4):
        a(f"v_and_b32 v{10+q}, s{t0}, v{10+q}")
    for q in range(4):
        a(f"v_mul_f32 v{10+q}, s{sLG}, v{10+q}")
    a(f"""
    v_cvt_pk_bf16_f32 v10, v10, v11
    v_cvt_pk_bf16_f32 v11, v12, v13
    ds_write_b64 v{vCwa}, v[10:11]
    s_mov_b64 exec, 1
    """)
    if "w15slp" in X:
        spin("L_BS5", F_LAND, "gt", 0x100, 4)
    spin("L_LAND2", F_LAND, "ne", 0x406)
    a("s_mov_b64 exec, -1")
    mark(3)

    def au_pre():
        a(f"""
        s_mov_b32 s{t0}, {AST}
        s_mov_b32 s{t1}, {UST}
        s_mov_b32 s{t2}, {LU}
        v_lshlrev_b32 v4, 4, v{vRow}
        v_lshl_add_u32 v5, v{vRow}, 3, s{t2}
        v_mad_u32_u24 v4, v{vJn}, s{t0}, v4
        v_mad_u32_u24 v5, v{vJn}, s{t1}, v5
        """)

    def au_epi(n):
        A = vAcc + 8 * (n & 1)
        o = [f"v_mul_f32 v{A+t}, s{sLG}, v{A+t}" for t in range(4)]
        o += [f"v_cvt_pk_bf16_f32 v{A+4}, v{A+4}, v{A+5}", f"v_cvt_pk_bf16_f32 v{A+5}, v{A+6}, v{A+7}"]
        o += [f"ds_write_b128 v4, {vr(A,4)} offset:{LA+16*AST*n}"]
        o += [f"ds_write_b64 v5, {vr(A+4,2)} offset:{16*UST*n}"]
        return o

    gemm(au_epi, au_pre)
    vW = (8, 32)
    vPr = 56
    REC = (8, 14, 20, 26, 32, 38, 44)

    def rec(k):
        return REC[k]

    vP, vTFa, vLf = 94, 100, 96 - 20
    a("L_GD:\ns_mov_b64 exec, -1")
    mark(5)
    srd(a, SRD_W, sWS, WS_OFF, NCH * 1024)
    a(f"""
    s_waitcnt lgkmcnt(0)
    s_barrier
    """)
    mark(22)
    a(f"""
    {"s_sleep " + os.environ["PDELAY"] if os.environ.get("PDELAY") else ""}
    buffer_load_dwordx2 v[70:71], v{vOFFa}, {sq(SRD_W)}, 0 offen sc1
    L_FILL:
    v_lshrrev_b32 v4, 4, v0
    v_and_b32 v5, 15, v0
    s_mov_b32 s{t0}, {SLOTB}
    v_mov_b32 v6, {LSLOT}
    v_mad_u32_u24 v4, v4, s{t0}, v6
    v_mad_u32_u24 v4, v5, 48, v4
    v_mov_b32 v56, {DUMMY}
    v_mov_b32 v57, {DUMMY}
    v_mov_b64 v[58:59], v[56:57]
    s_cmp_lt_u32 s{sW}, 4
    ds_write_b128 v4, v[56:59]
    s_cbranch_scc0 L_FT
    ds_write_b128 v4, v[56:59] offset:{64*SLOTB}
    s_branch L_FD
    L_FT:
    s_mov_b32 s{t1}, {LTAB - 4096}
    v_mov_b32 v60, {LDUM}
    v_mov_b32 v61, 0
    v_lshl_add_u32 v5, v0, 4, s{t1}
    v_mov_b64 v[62:63], v[60:61]
    ds_write_b128 v5, v[60:63]
    L_FD:
    s_cmp_eq_u32 s{sFIRST}, 0
    s_waitcnt lgkmcnt(0)
    s_barrier                                     ; B5b
    s_cbranch_scc1 L_AGAIN
    """)
    mark(14)
    a(f"""
    s_mov_b32 s{sSPIN}, {SPIN}
    {f"s_cmp_lt_u32 s{sW}, 4" if "late_sig" in X else ""}
    {"s_cbranch_scc1 L_TSIG" if "late_sig" in X else ""}
    L_POLL0:
    s_mov_b64 exec, {sp(sM)}
    L_POLL:
    s_waitcnt vmcnt(0)
    L_POLL1:
    v_lshrrev_b32 v4, 25, v70
    v_cmp_ne_u32 vcc, s{sTAG}, v71
    v_cmp_ne_u32 {sp(t0)}, s{sTAGB}, v4
    s_or_b64 exec, vcc, {sp(t0)}
    s_cbranch_execnz L_POLL2
    L_POLLED:
    s_mov_b64 exec, -1
    """)
    mark(6)
    a(f"""
    v_bfe_u32 v{vRem}, v70, 14, 11
    v_and_b32 v4, 0x3fff, v70
    v_add_u32 v{vRO}, v{vRO}, v4
    """)
    a(f"""
    L_WINDOW:
    v_and_b32 v4, 15, v{vL}
    v_and_b32 v5, 3, v{vL}
    v_sub_u32 v5, v{vRem}, v5
    """)
    for k in range(4):
        a(f"v_sub_u32_dpp v{64+k}, v{vRem}, v4 row_newbcast:{4*k} row_mask:0xf bank_mask:0xf")
    for k in range(4):
        a(f"v_cmp_lt_i32 {sp(sM+2*k)}, 0, v{64+k}")
    for k in range(4, KMAX):
        a(f"v_cmp_lt_i32 {sp(sM+2*k)}, {4*k}, v5")
    a(f"""
    L_LOADS:
    v_and_b32 v4, 15, v{vL}
    v_and_b32 v5, 3, v{vL}
    v_mul_u32_u24 v4, {RB}, v4
    v_mad_u32_u24 v5, v5, {RB}, v{vRO}
    s_or_b64 {sp(sU5)}, {sp(sM+10)}, {sp(sM+12)}
    s_or_b64 {sp(sU4)}, {sp(sU5)}, {sp(sM+8)}
    """)
    for k in range(4):
        a(f"v_add_u32_dpp v{rec(k)+3}, v{vRO}, v4 row_newbcast:{4*k} row_mask:0xf bank_mask:0xf")

    def kloop(done, body, mask=sM):
        for k in range(KMAX):
            if k == 4:
                a(f"s_cmp_eq_u64 {sp(sU4)}, 0\ns_cbranch_scc1 {done}")
            if k == 5:
                a(f"s_cmp_eq_u64 {sp(sU5)}, 0\ns_cbranch_scc1 {done}")
            a(f"s_mov_b64 exec, {sp(mask+2*k)}")
            body(k)
        a(f"{done}:")

    RF = "" if "recplain" in X else "sc1"

    def rload(k):
        if k < 4:
            a(f"buffer_load_dwordx3 {vr(rec(k),3)}, v{rec(k)+3}, {sq(SRD_R)}, 0 offen {RF}")
        else:
            a(f"buffer_load_dwordx3 {vr(rec(k),3)}, v5, {sq(SRD_R)}, 0 offen offset:{48*k} {RF}")

    kloop("L_RL", rload)
    mark(23)
    a(f"""
    s_mov_b64 exec, -1
    s_mov_b32 s{t0}, {LCW}
    v_lshl_add_u32 v4, v{vL}, 3, s{t0}
    """)
    for k in range(8):
        a(f"ds_read_b64 {vr(vW[0]+6*k+4,2)}, v4")
    a(f"""
    s_lshl_b32 s{t0}, s{sW}, 5
    s_add_u32 s{t0}, s{t0}, {LTAB}
    v_lshrrev_b32 v4, 4, v{vL}
    v_bfe_u32 v5, v{vL}, 2, 2
    v_lshl_add_u32 v{vP}, v4, 3, s{t0}
    v_lshl_add_u32 v{vP+1}, v5, 3, s{t0}
    s_lshl_b32 s{t0}, s{sW}, 3
    v_add_u32 v4, s{t0}, v{vL}
    v_min_u32 v4, {NBK-1}, v4
    v_add_u32 v4, s{sH}, v4
    s_mov_b32 s{t1}, {WS_TF}
    v_lshl_add_u32 v{vTFa}, v4, 7, s{t1}
    s_mov_b32 s{t0}, {2*SLOTB}
    v_mad_u32_u24 v{vLf}, v{vL}, s{t0}, v6
    v_lshlrev_b32 v{vLf+1}, 9, v{vL}
    v_add_u32 v{vLf+2}, {SLOTB}, v{vLf}
    v_add_u32 v{vLf+3}, 256, v{vLf+1}
    v_lshlrev_b32 v{vLf+4}, 3, v{vL}
    v_mov_b32 v6, {LSLOT-48}
    s_mov_b32 s{t0}, {SLOTB//4}
    s_mov_b32 s{t1}, 0xffffff00
    """)
    mark(12)
    a("s_waitcnt vmcnt(0)")
    mark(7)
    PFN = int(os.environ.get("PFN", "14"))
    if PFN:
        a(f"""
        s_mov_b64 exec, 0xff
        global_load_dwordx2 v[70:71], v{vTFa}, {sp(sWS)} sc1
        """)
    SB = "dst_sel:DWORD dst_unused:UNUSED_PAD src0_sel:DWORD src1_sel:BYTE_0"

    def hist(k):
        a(f"""
        v_lshlrev_b32_sdwa v4, 2, v{rec(k)+2} {SB}
        v_lshlrev_b32_sdwa v{vPr+2*k+1}, 8, v{rec(k)+2} {SB}
        ds_add_rtn_u32 v{rec(k)+3}, v4, v{vONE} offset:{LCNT}
        v_mad_u32_u24 v{vPr+2*k}, v4, s{t0}, v6
        v_and_b32 v{rec(k)+2}, s{t1}, v{rec(k)+2}
        """)

    kloop("L_HD", hist)
    a(f"s_mov_b32 s{t2}, 0\ns_waitcnt lgkmcnt(0)")
    mark(24)

    def scat(k):
        r = rec(k)
        a(f"""
        v_cmpx_gt_u32 vcc, {CAP}, v{r+3}
        v_lshrrev_b32 v4, 2, v{r+3}
        v_and_b32 v5, 7, v{r+3}
        v_and_b32 v{r+3}, 3, v{r+3}
        s_andn2_b64 {sp(sM+2*k)}, {sp(sM+2*k)}, vcc
        v_mad_u32_u24 v{vPr+2*k}, v4, 48, v{vPr+2*k}
        v_cmp_eq_u32 {sp(sO+2*k)}, 4, v5
        v_lshl_add_u32 v4, v{r+3}, 2, v{vPr+2*k}
        v_lshl_add_u32 v5, v{r+3}, 3, v{vPr+2*k}
        ds_write_b32 v4, v{r+2} offset:48
        ds_write_b64 v5, {vr(r,2)} offset:64
        s_and_b64 {sp(sO+2*k)}, {sp(sO+2*k)}, exec
        s_bcnt1_i32_b64 s{t3}, {sp(sO+2*k)}
        s_add_u32 s{t2}, s{t2}, s{t3}
        """)

    kloop("L_SD", scat)
    mark(25)
    if not PFN:
        a(f"""
        s_mov_b64 exec, 0xff
        global_load_dwordx2 v[70:71], v{vTFa}, {sp(sWS)} sc1
        """)
    a(f"""
    s_mov_b64 exec, 1
    v_mov_b32 v4, s{t2}
    ds_add_rtn_u32 v5, v{vF}, v4 offset:{F_NQ}
    s_mov_b64 exec, -1
    v_cmp_lt_i32 vcc, {4*KMAX}, v{vRem}
    s_or_b64 {sp(t0)}, {sp(sM)}, {sp(sM+2)}
    s_or_b64 {sp(t2)}, {sp(sM+4)}, {sp(sM+6)}
    s_or_b64 {sp(t0)}, {sp(t0)}, {sp(sM+8)}
    s_or_b64 {sp(t2)}, {sp(t2)}, {sp(sM+10)}
    s_or_b64 {sp(t0)}, {sp(t0)}, {sp(sM+12)}
    s_or_b64 {sp(t0)}, {sp(t0)}, {sp(t2)}
    s_cselect_b32 s{sBIN}, 1, 0
    s_or_b64 exec, vcc, {sp(t0)}
    ds_write_b32 v{vF}, v{vONE} offset:{F_MORE}
    s_waitcnt lgkmcnt(0)
    v_readlane_b32 s{t2}, v5, 0
    s_lshl_b32 s{t2}, s{t2}, 3
    s_add_u32 s{t2}, s{t2}, {LTAB}
    """)

    def tab(k):
        a(f"""
        v_mbcnt_lo_u32_b32 v4, exec_lo, 0
        v_mbcnt_hi_u32_b32 v4, exec_hi, v4
        v_lshl_add_u32 v4, v4, 3, s{t2}
        s_bcnt1_i32_b64 s{t3}, exec
        s_lshl3_add_u32 s{t2}, s{t3}, s{t2}
        ds_write_b64 v4, {vr(vPr+2*k,2)}
        """)

    kloop("L_TD", tab, sO)
    mark(26)
    a(f"""
    s_mov_b64 exec, 0xff
    L_TP:
    s_waitcnt vmcnt(0)
    v_cmp_ne_u64 vcc, {sp(sTAG)}, v[70:71]
    s_cbranch_vccnz L_TP2
    L_TRDY:
    """)
    if PFN:
        a(f"""
        s_mul_i32 s{t0}, s{sW}, {8*NB*256}
        s_lshr_b32 s{t1}, s2, 3
        s_mul_i32 s{t1}, s{t1}, {40*128}
        s_add_u32 s{t0}, s{t0}, s{t1}
        s_lshr_b32 s{t1}, s{sW}, 2
        s_lshr_b32 s{t2}, s{sB}, 5
        s_cmp_eq_u32 s{t1}, s{t2}
        s_cselect_b64 exec, {"1" if "late_sig" not in X and "noown" not in X else hex((1 << PFN) - 1)}, {hex((1 << PFN) - 1)}
        v_lshlrev_b32 v4, 7, v{vL}
        buffer_load_dword v70, v4, {sq(SRD_T)}, s{t0} offen sc1
        """)
    a(f"""
    s_mov_b64 exec, -1
    s_mov_b32 s{sFIRST}, 0
    s_waitcnt lgkmcnt(0)
    """)
    mark(8)
    a("s_barrier                                     ; B6")
    mark(9)
    if stamp:
        a("s_memtime s[96:97]\nv_mov_b32 v107, 0")
    vT, vAp, vS = 56, 80, 84
    vTQ, vNA, vFA, vQE = 88, 90, 92, 93
    vDn, vNm, vAa, vCk = 72, 100, 4, 106
    vD = (76, 78, 4, 6)
    sRET = sTHR + 1

    def sh(g):
        return (96, 98, 104, 124)[g]

    def saddr(S):
        a(f"""
        v_pk_add_f32 {vr(S,2)}, {vr(S,2)}, {vr(vLO,2)} op_sel_hi:[1,0]
        v_pk_add_f32 {vr(S+2,2)}, {vr(S+2,2)}, {vr(vLO,2)} op_sel_hi:[1,0]
        """)

    def loads(p, S, loop=False):
        for g in range(int(os.environ.get("NLD", 4)) if loop else 4):
            a(f"buffer_load_dwordx4 {vr(vW[p]+6*g,4)}, v{S+g}, {sq(SRD_T)}, 0 offen sc1")

    def naddr(dst, TQ):
        a(f"v_pk_fma_f32 {vr(dst,2)}, {vr(TQ,2)}, {sp(s12)}, {vr(vLO,2)} op_sel:[1,0,0] op_sel_hi:[1,1,1]")

    def eread(q, half):
        a(f"s_mov_b64 exec, {sp(sEM)}")
        for g in range(4):
            a(f"ds_read_b64 {vr(vAo+4*g+2,2)}, v{q} offset:{48*half+16+8*g}")
        a("s_mov_b64 exec, -1")

    def hv(W, g, h):
        return vr(W + 6 * g, 2) if h == 0 else vr(sh(g), 2)

    def mfma(p, g, c=vAp):
        return f"v_mfma_f32_16x16x32_bf16 {vr(vT+4*g,4)}, {vr(vAo+4*g,4)}, {vr(vW[p]+6*g+2,4)}, {vr(c,4)}"

    def flush(ad):
        a(f"""
        v_pk_mul_f32 {vr(vNm,2)}, {vr(vNm,2)}, {vr(vDn,2)}
        v_pk_mul_f32 {vr(vNm+2,2)}, {vr(vNm+2,2)}, {vr(vDn+2,2)}
        """)
        for t in range(4):
            a(f"v_cvt_f64_f32 {vr(vD[t],2)}, v{vNm+t}")
        for t in range(4):
            a(f"ds_add_f64 v{ad}, {vr(vD[t],2)} offset:{128*t}")

    def check(lab):
        a(f"""
        v_max3_f32 v{vCk}, v{vDn}, v{vDn+1}, v{vDn+2}
        v_max_f32 v{vCk}, v{vCk}, v{vDn+3}
        v_cmp_nge_f32 vcc, s{sTHR}, v{vCk}
        s_cbranch_vccnz {lab}
        """)

    def leftover():
        for u in range(2):
            a(f"""
            v_min_u32 v{96+u}, {CAP}, v{96+u}
            v_add_u32 v{98+u}, 7, v{96+u}
            v_lshrrev_b32 v{96+u}, 3, v{96+u}
            v_and_b32 v{98+u}, 7, v{98+u}
            """)
        a(f"""
        s_mov_b32 s{t3}, 96
        v_cmp_gt_u32 {sp(sO)}, 4, v98
        v_cmp_gt_u32 {sp(sO+2)}, 4, v99
        v_mad_u32_u24 v{vLf}, v96, s{t3}, v{vLf}
        v_mad_u32_u24 v{vLf+2}, v97, s{t3}, v{vLf+2}
        s_lshl3_add_u32 s{t2}, s{t0}, {LTAB}
        """)
        for u in range(2):
            a(f"""
            s_mov_b64 exec, {sp(sO+2*u)}
            v_mbcnt_lo_u32_b32 v96, exec_lo, 0
            v_mbcnt_hi_u32_b32 v96, exec_hi, v96
            v_lshl_add_u32 v96, v96, 3, s{t2}
            s_bcnt1_i32_b64 s{t3}, exec
            s_lshl3_add_u32 s{t2}, s{t3}, s{t2}
            ds_write_b64 v96, {vr(vLf+2*u,2)}
            """)
        a(f"""
        s_mov_b64 exec, -1
        s_sub_u32 s{t2}, s{t2}, {LTAB - 24}
        s_lshr_b32 s{t2}, s{t2}, 5                ; groups
        s_sub_u32 s{t2}, s{t2}, s{sW}
        s_add_u32 s{t2}, s{t2}, 15
        s_lshr_b32 s{t2}, s{t2}, 4
        s_lshl4_add_u32 s{t3}, s{t2}, s{sW}
        s_lshl_b32 s{t3}, s{t3}, 2
        s_add_u32 s{t1}, s{t0}, 64
        s_lshl_b32 s{sN}, s{t2}, 1
        s_cmp_lt_u32 s{t3}, s{t1}
        s_addc_u32 s{sN}, s{sN}, 0
        """)

    a(f"""
    ds_read_b64 v[4:5], v{vF} offset:{F_MORE}
    ds_read_b64 v[96:97], v{vLf+4} offset:{LCNT}
    L_PRE:
    ds_read_b64 {vr(vT,2)}, v{vP}
    ds_read_b32 v{vQE}, v{vP+1}
    ds_read_b64 {vr(vTQ,2)}, v{vP} offset:512
    s_setprio 3
    v_mov_b32 v{vFA}, v{vLO+1}
    v_mov_b64 {vr(vNm,2)}, 0
    v_mov_b64 {vr(vNm+2,2)}, 0
    s_waitcnt lgkmcnt(2)
    ds_read_b128 {vr(vT+4,4)}, v{vT}
    ds_read_b128 {vr(vS,4)}, v{vT} offset:48
    v_readfirstlane_b32 s{t0}, v5
    v_readfirstlane_b32 s{sMORE}, v4
    """)
    naddr(vNA, vT)
    a(f"""
    s_cmp_lt_u32 s{t0}, 128
    s_cbranch_scc1 L_FEW
    s_waitcnt lgkmcnt(1)
    """)
    saddr(vT + 4)
    loads(0, vT + 4)
    if os.environ.get("NLD"):
        loads(1, vT + 4)
    a(f"s_cmp_eq_u32 s{t0}, -1\ns_cbranch_scc1 L_PRE2")
    leftover()
    a(f"""
    L_PRE2:
    ds_read_b128 {vr(vAp,4)}, v{vNA} offset:{LA}
    """)
    eread(vQE, 0)
    for t in range(4):
        a(f"v_mov_b32 v{vDn+t}, 1.0")
    a("s_branch L_SB1")
    for p in range(2):
        W = vW[p]
        a(f"""
        L_L{p}:
        ds_read_b128 {vr(vS,4)}, v{vTQ} offset:{48*p}
        """)
        for i in range(16):
            a(f"v_exp_f32 v{vT+i}, v{vT+i}")
            if i == 7:
                eread(vQE, p ^ 1)
                if p == 0:
                    a(f"ds_read_b32 v{vQE}, v{vP+1} offset:512")
                else:
                    a(f"v_mov_b32 v{vFA}, v{vNA+1}")
        if p == 0:
            flush(vFA)
        else:
            naddr(vNA, vTQ)
        for g in range(4):
            a(f"v_lshlrev_b64 {vr(sh(g),2)}, 16, {vr(W+6*g,2)}")
            if g == 0 and p == 1:
                a(f"ds_read_b128 {vr(vAp,4)}, v{vNA} offset:{LA}")
                a(f"ds_read_b64 {vr(vTQ,2)}, v{vP} offset:1024")
        if p == 0:
            for h in range(2):
                a(f"v_pk_add_f32 {vr(vDn+2*h,2)}, {vr(vT+2*h,2)}, 1.0 op_sel_hi:[1,0]")
        for g in range(1 - p, 4):
            for h in range(2):
                src = hv(W, 0, h) if (g == 1 and p == 0) else vr(vNm + 2 * h, 2)
                a(f"v_pk_fma_f32 {vr(vAa+2*h,2)}, {src}, {vr(vT+4*g+2*h,2)}, {src}")
            for h in range(2):
                a(f"v_pk_fma_f32 {vr(vNm+2*h,2)}, {hv(W,g,h)}, {vr(vDn+2*h,2)}, {vr(vAa+2*h,2)}")
            for h in range(2):
                a(f"v_pk_fma_f32 {vr(vDn+2*h,2)}, {vr(vDn+2*h,2)}, {vr(vT+4*g+2*h,2)}, {vr(vDn+2*h,2)}")
        if p == 1:
            check("L_REDO1")
            a(f"L_RB1:\nv_pk_add_f32 {vr(vP,2)}, {vr(vP,2)}, {sp(sINC)}")
        a(f"""
        L_SB{p}:
        """)
        if "trace" in X:
            a(f"s_memtime s[92:93]\ns_add_u32 m0, s{sN}, 16")
        a(f"""
        s_cmp_le_u32 s{sN}, 2
        s_waitcnt lgkmcnt(0)
        """)
        if "trace" in X:
            a("v_writelane_b32 v107, s92, m0")
        saddr(vS)
        a(f"s_cbranch_scc1 L_TAIL{p}")
        loads(p, vS, True)
        a(f"""
        s_waitcnt vmcnt({os.environ.get("NLD", 4)})
        L_M{p}:
        """)
        for g in range(4):
            a(mfma(p ^ 1, g))
            if p == 1:
                a(f"v_rcp_f32 v{vDn+g}, v{vDn+g}")
        a(f"""
        s_sub_u32 s{sN}, s{sN}, 1
        s_cmp_eq_u32 s{sN}, 4
        s_cbranch_scc1 L_PR{p}
        """)
        a("s_branch L_L0" if p == 1 else "s_nop 0")
    for p in range(2):
        a(f"""
        L_PR{p}:
        s_setprio 2
        s_branch L_L{p^1}
        L_TAIL{p}:
        s_setprio 0
        s_cmp_eq_u32 s{sN}, 2
        s_waitcnt vmcnt(0)
        s_cbranch_scc1 L_M{p}
        """)
        if p == 0:
            check("L_REDO0")
            a(f"L_RB0:\nv_mov_b32 v{vFA}, v{vNA+1}\ns_branch L_LAST")
    a("L_LAST:")
    for g in range(4):
        a(f"v_rcp_f32 v{vDn+g}, v{vDn+g}")
    a("s_nop 0")
    flush(vFA)
    a(f"""
    L_LD:
    s_cmp_lt_u32 s{sW}, 10
    s_cbranch_scc0 L_LD2
    v_lshrrev_b32 v97, 3, v0
    v_and_b32 v98, 7, v0
    s_mov_b32 s{t0}, {UST}
    v_lshlrev_b32 v98, 4, v98
    v_add_u32 v99, {LU}, v98
    v_mad_u32_u24 v99, v97, s{t0}, v99
    ds_read2_b64 v[56:59], v99 offset0:0 offset1:1
    s_mov_b32 s{t0}, {GST}
    v_mad_u32_u24 v96, v97, s{t0}, v98
    s_mul_i32 s{t1}, s{sB}, {NB*256}
    s_add_u32 s{t1}, s{t1}, s{sH}
    v_lshlrev_b32 v97, 8, v97
    v_add3_u32 v97, v97, v98, s{t1}
    s_mov_b32 s{t0}, 0xffff0000
    s_mov_b32 s{t2}, s{sLG}
    s_mov_b32 s{t3}, s{sLG}
    s_waitcnt lgkmcnt(0)
    """)
    for i in range(4):
        a(f"v_lshlrev_b32 v{60+2*i}, 16, v{56+i}\nv_and_b32 v{61+2*i}, s{t0}, v{56+i}")
    a("L_LD2:\ns_waitcnt lgkmcnt(0)")
    mark(10)
    if stamp:
        a("s_memtime s[92:93]\ns_waitcnt lgkmcnt(0)\ns_sub_u32 s92, s92, s96\nv_writelane_b32 v107, s92, 15\nv_writelane_b32 v107, s96, 16")
    a(f"""
    s_cmp_eq_u32 s{sMORE}, 0
    s_barrier                                     ; B8
    s_cbranch_scc0 L_MORE
    s_cmp_lt_u32 s{sW}, 10
    s_cbranch_scc0 L_EPO
    ds_read_b128 v[24:27], v96 offset:{LAGG}
    ds_read_b128 v[28:31], v96 offset:{LAGG+128}
    ds_read_b128 v[32:35], v96 offset:{LAGG+256}
    ds_read_b128 v[36:39], v96 offset:{LAGG+384}
    """)
    for t in range(4):
        a(f"s_waitcnt lgkmcnt({3-t})")
        for u in range(2):
            a(f"v_cvt_f32_f64 v{8+4*u+t}, {vr(24+4*t+2*u,2)}")
    for i in range(4):
        a(f"v_pk_add_f32 {vr(8+2*i,2)}, {vr(8+2*i,2)}, {vr(60+2*i,2)}")
    for i in range(4):
        a(f"v_pk_mul_f32 {vr(16+2*i,2)}, {vr(8+2*i,2)}, {sp(t2)}")
    for i in range(8):
        a(f"v_exp_f32 v{16+i}, v{16+i}")
    for i in range(4):
        a(f"v_pk_add_f32 {vr(16+2*i,2)}, {vr(16+2*i,2)}, 1.0 op_sel_hi:[1,0]")
    for i in range(8):
        a(f"v_rcp_f32 v{16+i}, v{16+i}")
    for i in range(4):
        a(f"v_pk_mul_f32 {vr(16+2*i,2)}, {vr(16+2*i,2)}, {vr(8+2*i,2)}")
    for i in range(4):
        a(f"v_cvt_pk_bf16_f32 v{8+i}, v{16+2*i}, v{17+2*i}")
    a(f"""
    global_store_dwordx4 v97, v[8:11], {sp(sOUT)} {os.environ.get('OF', 'sc1')}
    s_branch L_FIN
    L_EPO:
    s_lshl_b32 s{t0}, s2, 4
    s_add_u32 s{t0}, s{t0}, s{sW}
    s_cmp_eq_u32 s{t0}, 12
    s_cbranch_scc0 L_FIN
    v_mov_b32 v4, {WS_EPOCH}
    v_mov_b32 v5, s{sEP}
    s_mov_b64 exec, 1
    global_store_dword v4, v5, {sp(sWS)} sc1
    s_mov_b64 exec, -1
    L_FIN:
    """)
    if os.environ.get("GAP"):
        a(f"""
        s_lshl_b32 s{t0}, s2, 4
        s_add_u32 s{t0}, s{t0}, s{sW}
        s_cmp_eq_u32 s{t0}, 13
        s_cbranch_scc0 L_QX
        v_mov_b32 v4, 0x4000000
        s_mov_b64 exec, 1
        global_load_dword v5, v4, {sp(sWS)} sc1
        s_memrealtime s[84:85]
        s_waitcnt vmcnt(0) lgkmcnt(0)
        v_readfirstlane_b32 s88, v5
        s_nop 3
        s_sub_u32 s88, s94, s88
        s_min_u32 s88, s88, 5000
        s_mul_i32 s88, s88, 4
        s_add_u32 s88, s88, 300
        L_QS:
        s_memrealtime s[86:87]
        s_waitcnt lgkmcnt(0)
        s_sub_u32 s89, s86, s84
        s_cmp_lt_u32 s89, s88
        s_cbranch_scc1 L_QS
        v_mov_b32 v6, s86
        global_store_dword v4, v6, {sp(sWS)} sc1
        L_QX:
        """)
    if PROBE:
        a(f"""
        s_lshl_b32 s{t0}, s2, 4
        s_add_u32 s{t0}, s{t0}, s{sW}
        s_cmp_eq_u32 s{t0}, {PROBE[0]}
        s_cbranch_scc0 L_PX
        s_memrealtime s[84:85]
        s_sub_u32 s96, s96, s94
        s_lshl_b32 s96, s96, 3
        s_min_u32 s96, s96, 100000
        s_waitcnt lgkmcnt(0)
        L_PS:
        s_memrealtime s[86:87]
        s_waitcnt lgkmcnt(0)
        s_sub_u32 s86, s86, s84
        s_cmp_lt_u32 s86, s96
        s_cbranch_scc1 L_PS
        L_PX:
        """)
    if stamp:
        a("s_waitcnt vmcnt(0)")
        mark(11)
        a("s_waitcnt lgkmcnt(0)")
        for i_, m_ in enumerate(sorted(SLOT)):
            a(f"v_writelane_b32 v107, s{SLOT[m_]}, {i_}")
        a(f"""
        s_lshl_b32 s3, s2, 4
        s_add_u32 s3, s3, s{sW}
        s_lshl_b32 s3, s3, 6
        s_add_u32 s3, s3, {WS_STAMP}
        v_lshl_add_u32 v4, v{vL}, 2, s3
        s_mov_b64 exec, 0xffff
        global_store_dword v4, v107, {sp(sWS)}
        s_mov_b64 exec, 0xffff0000
        v_add_u32 v4, {0x40000 - 64}, v4
        global_store_dword v4, v107, {sp(sWS)}
        """)
    a("s_endpgm")
    a(f"""
    L_POLL2:
    s_sub_u32 s{sSPIN}, s{sSPIN}, 1
    s_cbranch_scc1 L_POLLX
    s_sleep 2
    buffer_load_dwordx2 v[70:71], v{vOFFa}, {sq(SRD_W)}, 0 offen sc1
    s_branch L_POLL
    L_POLLX:
    v_mov_b32 v70, 0
    s_mov_b32 s{sSPIN}, 0
    s_branch L_POLLED
    """)
    if "late_sig" in X:
        a(f"""
    L_TSIG:
    s_add_u32 s{t2}, s{sH}, s{sB}
    s_lshl_b32 s{t2}, s{t2}, 7
    s_add_u32 s{t2}, s{t2}, {WS_TF}
    v_mov_b32 v8, s{t2}
    v_mov_b32 v4, s{sTAG}
    v_mov_b32 v5, s{sTAG2}
    s_mov_b64 exec, 1
    s_waitcnt vmcnt(1)
    ds_add_rtn_u32 v7, v{vF}, v{vONE} offset:{F_TD}
    s_waitcnt lgkmcnt(0)
    v_cmp_eq_u32 vcc, 3, v7
    s_cbranch_vccz L_POLL0
    global_store_dwordx2 v8, v[4:5], {sp(sWS)} sc1
    s_mov_b64 exec, {sp(sM)}
    s_waitcnt vmcnt(1)
    s_branch L_POLL1
    """)
    a(f"""
    L_TP2:
    s_sub_u32 s{sSPIN}, s{sSPIN}, 1
    s_cbranch_scc1 L_TX
    s_sleep 2
    global_load_dwordx2 v[70:71], v{vTFa}, {sp(sWS)} sc1
    s_branch L_TP
    L_TX:
    s_mov_b32 s{sSPIN}, 0
    s_branch L_TRDY
    """)
    a(f"""
    L_FEW:
    s_waitcnt lgkmcnt(0)
    """)
    leftover()
    a(f"""
    s_cmp_eq_u32 s{t2}, 0
    s_cbranch_scc1 L_LD
    v_mov_b32 v5, -1
    s_branch L_PRE
    L_REDO0:
    s_mov_b32 s{sRET}, 0
    s_branch L_REDO
    L_REDO1:
    s_mov_b32 s{sRET}, 1
    L_REDO:
    ds_read_b64 v[76:77], v{vP}
    ds_read_b32 v{vCk}, v{vP+1}
    v_mov_b64 {vr(vNm,2)}, 0
    v_mov_b64 {vr(vNm+2,2)}, 0
    s_mov_b32 s{t0}, 2
    s_waitcnt lgkmcnt(0)
    """)
    naddr(78, 76)
    a(f"""
    ds_read_b128 {vr(vDn,4)}, v78 offset:{LA}
    L_RD1:
    ds_read_b128 {vr(vAa,4)}, v76
    """)
    eread(vCk, 0)
    a("s_waitcnt lgkmcnt(0)")
    saddr(vAa)
    loads(1, vAa)
    a(f"""
    v_add_u32 v76, 48, v76
    v_add_u32 v{vCk}, 48, v{vCk}
    s_waitcnt vmcnt(0)
    """)
    for g in range(4):
        a(mfma(1, g, vDn))
    for g in range(4):
        a(f"v_lshlrev_b64 {vr(sh(g),2)}, 16, {vr(vW[1]+6*g,2)}")
    a("s_nop 3")
    for i in range(16):
        a(f"v_exp_f32 v{vT+i}, v{vT+i}")
    for i in range(8):
        a(f"v_pk_add_f32 {vr(vT+2*i,2)}, {vr(vT+2*i,2)}, 1.0 op_sel_hi:[1,0]")
    for i in range(16):
        a(f"v_rcp_f32 v{vT+i}, v{vT+i}")
    for g in range(4):
        for h in range(2):
            a(f"v_pk_fma_f32 {vr(vNm+2*h,2)}, {vr(vT+4*g+2*h,2)}, {hv(vW[1],g,h)}, {vr(vNm+2*h,2)}")
    a(f"""
    s_sub_u32 s{t0}, s{t0}, 1
    s_cmp_lg_u32 s{t0}, 0
    s_cbranch_scc1 L_RD1
    """)
    eread(vQE, 0)
    for t in range(4):
        a(f"v_mov_b32 v{vDn+t}, 1.0")
    a(f"""
    s_cmp_eq_u32 s{sRET}, 0
    s_cbranch_scc1 L_RB0
    s_branch L_RB1
    """)
    a(f"""
    L_MORE:
    s_setprio 0
    v_mov_b32 v{vF}, {LFLAG}
    v_mov_b32 v{vONE}, 1
    v_lshlrev_b32 v4, 2, v0
    v_mov_b32 v5, 0
    v_cmp_gt_u32 vcc, 130, v0
    s_mov_b64 exec, vcc
    ds_write_b32 v4, v5 offset:{LCNT}
    s_mov_b64 exec, -1
    s_branch L_FILL
    L_AGAIN:
    s_cmp_eq_u32 s{sBIN}, 0
    s_cbranch_scc0 L_LOADS
    v_subrev_u32 v{vRem}, {4*KMAX}, v{vRem}
    v_add_u32 v{vRO}, {48*KMAX}, v{vRO}
    s_branch L_WINDOW
    L_END:
    """)
    return a.text()


def build(stamp=False):
    body = kernel(stamp)
    return f"""; Kernarg layout (80 bytes, pointers): x, e_attr, src, dst, u_w, v_w, g_w, out, debug, ws
; @launch grid=(256,1,1) block=(1024,1,1) lds={LDS}
.amdgcn_target "amdgcn-amd-amdhsa--gfx950"
.text
.globl {NAME}
.p2align 8
.type {NAME},@function
{NAME}:
{body}    s_endpgm
.section .rodata,"a"
.p2align 6
.amdhsa_kernel {NAME}
  .amdhsa_next_free_vgpr 128
  .amdhsa_next_free_sgpr 102
  .amdhsa_accum_offset 128
  .amdhsa_group_segment_fixed_size 0
  .amdhsa_kernarg_size 80
  .amdhsa_user_sgpr_count 2
  .amdhsa_user_sgpr_kernarg_segment_ptr 1
  .amdhsa_system_sgpr_workgroup_id_x 1
  .amdhsa_float_denorm_mode_32 3
.end_amdhsa_kernel
"""


if __name__ == "__main__":
    open(sys.argv[1], "w").write(build(stamp="--stamp" in sys.argv))
```

```python
import sys, os
X = set(os.environ.get('X', '').split('+'))
NAME = "standalone__edge_featured_mpnn_egc__graph_kernel"
N, E = 10000, 320000
NB, NBK, CH, NCH = 80, 125, 1280, 250
T_HALF = N * 256
RB = 12
WS_T, WS_REC, WS_OFF, WS_TF, WS_EPOCH, WS_STAMP = 0, 0x500000, 0xA00000, 0xA40000, 0xA80000, 0xB00000
NLOG2E = 0xBFB8AA3B
KA = dict(x=0, e=8, src=16, dst=24, u=32, v=40, g=48, out=56, dbg=64, ws=72)
AST, GST = 272, 528
LA, LAGG = 0, NB * AST
LHIST = LAGG + NB * GST
LCNT, LFLAG, LDUM = LHIST + 512, LHIST + 1024, LHIST + 1056
F_MORE, F_NQ, F_PUB, F_RV, F_LAND, F_TD = 0, 4, 8, 12, 16, 20
LSTART, LCW = LHIST + 1280, LHIST + 1792
LW = LHIST + 2304
LX = LW + 65536
UST = 136
LU = LX + 20480
LDS = LU + NB * UST
LSLOT, SLOTB, CAP = LW, 784, 64
LTAB = LX
assert LSTART < 65536
KMAX = 7
DUMMY = 0x400000
SPIN = 1 << 22
assert LW % 256 == 0 and LDS <= 163840


class Asm:
    def __init__(self):
        self.l = []

    def __call__(self, s):
        for ln in s.strip("\n").split("\n"):
            ln = ln.strip()
            if ln:
                self.l.append(ln if ln.endswith(":") else "    " + ln)

    def text(self):
        return "\n".join(self.l) + "\n"


def f2h(f):
    import struct
    return hex(struct.unpack('<I', struct.pack('<f', f))[0])


def vr(a, n):
    return f"v[{a}:{a+n-1}]" if n > 1 else f"v{a}"


def sp(a):
    return f"s[{a}:{a+1}]"


def sq(a):
    return f"s[{a}:{a+3}]"


def srd(a, d, base, off, size):
    a(f"s_add_u32 s{d}, s{base}, {off}\ns_addc_u32 s{d+1}, s{base+1}, 0")
    a(f"s_mov_b32 s{d+2}, {size}\ns_mov_b32 s{d+3}, 0x20000")


def scan64(a, v):
    for ctl in ("row_shr:1", "row_shr:2", "row_shr:4", "row_shr:8"):
        a(f"s_nop 1\nv_add_u32_dpp v{v}, v{v}, v{v} {ctl} row_mask:0xf bank_mask:0xf")
    a(f"s_nop 1\nv_add_u32_dpp v{v}, v{v}, v{v} row_bcast:15 row_mask:0xa bank_mask:0xf")
    a(f"s_nop 1\nv_add_u32_dpp v{v}, v{v}, v{v} row_bcast:31 row_mask:0xc bank_mask:0xf")


def kernel(stamp):
    a = Asm()
    PROBE = [int(x) for x in os.environ["PROBE"].split(",")] if os.environ.get("PROBE") else None
    MARKS = set(int(x) for x in os.environ["MARKS"].split(",")) if os.environ.get("MARKS") else None

    FREE = [4, 6, 8, 10, 12, 14, 16, 20, 98]
    SLOT = {0: 94}
    if stamp:
        for m_ in sorted((MARKS or set()) - {0}):
            SLOT[m_] = FREE.pop(0)

    def mark(n):
        if stamp and n in SLOT:
            a(f"s_memrealtime s[{SLOT[n]}:{SLOT[n]+1}]")
        if PROBE and n in PROBE[1:]:
            r = 94 + 2 * PROBE[1:].index(n)
            a(f"s_memrealtime s[{r}:{r+1}]\ns_waitcnt lgkmcnt(0)")

    sRW = 3
    sX, sE, sSRC, sDST, sU, sV, sG, sOUT, sDBG, sWS = 4, 6, 8, 10, 12, 14, 16, 18, 20, 22
    SRD_T, SRD_R, SRD_W = 24, 28, 32
    sM = 36
    sN, sBIN, sT0, sFIRST = 50, 51, 52, 53
    t0, t1, t2, t3 = 54, 55, 56, 57
    sMORE, sW = 58, 59
    sINC, s12, sTHR, sEM = 60, 62, 64, 66
    sH, sB, sC, sEP, sTAG, sTAG2, sSPIN, sLG = 68, 69, 70, 71, 72, 73, 74, 75
    sTAGB = 100
    sU5, sU4 = 76, 78
    sO = 80
    vL, vLO, vAo, vRO, vRem = 1, 2, 108, 126, 127
    vF, vONE = 124, 125
    vWf, vXb, vAcc, vPk, vA, vXa, vRow, vJn = 8, 40, 72, 88, 100, 96, 101, 102
    vOFFa, vR4, vCwa = 103, 104, 105
    LNT = "" if "nont" in X else "nt"
    XNT = "nt" if "xnt" in X else ""
    DNT = LNT if "dnt" in X else ""
    SNT = "" if "splain" in X else LNT
    CNT_ = "nt" if "cwnt" in X else ""
    WNT = "nt" if "wwnt" in X else ""

    def spin(label, off, cond, val, slp=0):
        a(f"""
        {label}:
        s_sub_u32 s{sSPIN}, s{sSPIN}, 1
        s_cbranch_scc1 L_END
        {f"s_sleep {slp}" if slp else ""}
        ds_read_b32 v7, v{vF} offset:{off}
        s_waitcnt lgkmcnt(0)
        """)
        if cond == "lowne":
            a(f"v_and_b32 v7, 0xff, v7\nv_cmp_ne_u32 vcc, {val}, v7")
        elif cond == "midne":
            a(f"v_cmp_ne_u32 vcc, {val}, v7")
        else:
            a(f"v_cmp_{cond}_u32 vcc, {val}, v7")
        a(f"s_cbranch_vccnz {label}")

    mark(0)
    a(f"""
    s_load_dwordx16 s[4:19], s[0:1], 0
    s_load_dwordx4 s[20:23], s[0:1], {KA['dbg']}
    s_lshr_b32 s{sB}, s2, 3
    """)
    if "latewarm" not in X:
        a(f"""
        s_getpc_b64 {sp(t0)}
        L_PC:
        s_mul_i32 s{t3}, s{sB}, 384
        v_lshl_add_u32 v6, v0, 7, s{t3}
        v_cmp_gt_u32 vcc, 3, v0
        v_min_u32 v6, L_END-L_PC, v6
        s_cbranch_vccz L_NOCW
        s_mov_b64 exec, vcc
        global_load_dword v9, v6, {sp(t0)} {CNT_}
        s_mov_b64 exec, -1
        L_NOCW:
        """)
    a(f"""
    s_bfe_u32 s{t0}, s2, 0x20001
    s_lshl_b32 s{t0}, s{t0}, 5
    s_cmp_ge_u32 s2, 256
    s_cselect_b32 s{t0}, 128, s{t0}
    s_add_u32 s{sB}, s{sB}, s{t0}                 ; bucket
    s_cmp_ge_u32 s{sB}, {NBK}
    s_cbranch_scc1 L_END
    v_lshrrev_b32 v4, 6, v0
    v_and_b32 v{vL}, 63, v0
    v_readfirstlane_b32 s{sW}, v4
    s_and_b32 s{t0}, s2, 1
    s_lshl_b32 s{sH}, s{t0}, 7                    ; half*128
    s_lshl_b32 s{sC}, s{sB}, 1
    s_add_u32 s{sC}, s{sC}, s{t0}                 ; chunk
    s_sub_u32 s{sRW}, s{sW}, 5
    s_cmp_lt_u32 s{sRW}, 5
    s_cbranch_scc0 L_NOBIN
    """)
    B1 = "s_barrier                                     ; B1"
    LIN = "nolin" not in X
    if LIN:
        a(f"""
        s_mul_i32 s{t1}, s{sC}, {CH*4}
        s_lshl_b32 s{t2}, s{sRW}, 10
        s_add_u32 s{t1}, s{t1}, s{t2}
        v_lshl_add_u32 v20, v{vL}, 3, s{t1}
        v_lshlrev_b32 v21, 1, v20
        s_setprio 3
        s_mov_b32 s{sBIN}, 1
        s_waitcnt lgkmcnt(0)
        global_load_dwordx2 v[4:5], v20, {sp(sDST)} {DNT}
        global_load_dwordx2 v[6:7], v20, {sp(sDST)} offset:512 {DNT}
        {"" if "nob1" in X else B1}
        global_load_dwordx2 v[8:9], v20, {sp(sSRC)} {SNT}
        global_load_dwordx2 v[10:11], v20, {sp(sSRC)} offset:512 {SNT}
        global_load_dwordx4 v[12:15], v21, {sp(sE)} {LNT}
        global_load_dwordx4 v[16:19], v21, {sp(sE)} offset:1024 {LNT}
        {B1 if "nob1" in X or "b1b" in X else ""}
        """)
    else:
        a(f"""
        s_mul_i32 s{t1}, s{sC}, {CH*4}
        s_sub_u32 s{t1}, s{t1}, {320*16}
        v_lshl_add_u32 v20, v0, 4, s{t1}
        v_lshlrev_b32 v21, 1, v20
        s_setprio 3
        s_mov_b32 s{sBIN}, 1
        s_waitcnt lgkmcnt(0)
        global_load_dwordx4 v[4:7], v20, {sp(sDST)} {LNT}
        {"" if "nob1" in X else B1}
        global_load_dwordx4 v[8:11], v20, {sp(sSRC)} {LNT}
        global_load_dwordx4 v[12:15], v21, {sp(sE)} {LNT}
        global_load_dwordx4 v[16:19], v21, {sp(sE)} offset:16 {LNT}
        {B1 if "nob1" in X else ""}
        """)
    a(f"""
    s_mul_i32 s{t0}, s{sC}, {CH*RB}
    s_add_u32 s{t0}, s{t0}, {WS_REC}
    """)
    srd(a, SRD_W, sWS, f"s{t0}", CH * RB)
    a(f"""
    s_branch L_SETUP
    L_NOBIN:
    s_mov_b32 s{sBIN}, 0
    s_cmp_lt_u32 s{sW}, 10
    s_cbranch_scc1 L_B1
    s_cmp_eq_u32 s{sW}, 15
    s_cbranch_scc1 L_WARM
    v_lshlrev_b32 v12, 2, v0
    v_lshrrev_b32 v16, 2, v0
    v_cmp_eq_u32 vcc, {(640 + (LDUM - LHIST) // 4) // 4}, v16
    v_mov_b32 v15, {DUMMY}
    s_mov_b64 {sp(t0)}, vcc
    v_cmp_eq_u32 vcc, {(640 + (LDUM - LHIST) // 4) // 4 + 3}, v16
    s_or_b64 vcc, vcc, {sp(t0)}
    v_cndmask_b32 v13, 0, v15, vcc
    ds_write_b32 v12, v13 offset:{LHIST - 2560}
    s_branch L_B1
    L_WARM:
    """)
    a(f"""
    s_lshr_b32 s{t2}, s2, 3
    s_mul_i32 s{t2}, s{t2}, 9
    v_add_u32 v6, s{t2}, v{vL}
    v_min_u32 v8, 259, v6
    v_lshl_add_u32 v8, v8, 8, s{sH}
    s_lshr_b32 s{t2}, s{t2}, 1
    v_add_u32 v6, s{t2}, v{vL}
    v_min_u32 v6, 127, v6
    v_lshl_add_u32 v6, v6, 8, s{sH}
    v_lshrrev_b32 v4, 4, v{vL}
    v_and_b32 v5, 15, v{vL}
    v_lshl_add_u32 v4, v5, 2, v4
    s_add_u32 s{t2}, s{sH}, {256*256}
    v_lshl_add_u32 v4, v4, 1, s{t2}
    s_waitcnt lgkmcnt(0)
    s_mov_b64 exec, 0x1ff
    global_load_dword v9, v8, {sp(sG)} {WNT}
    s_mov_b64 exec, 31
    global_load_dword v9, v6, {sp(sV)} {WNT}
    global_load_dword v9, v6, {sp(sU)} {WNT}
    s_mov_b64 exec, -1
    global_load_short_d16_hi v10, v4, {sp(sG)}
    global_load_short_d16_hi v11, v4, {sp(sG)} offset:256
    global_load_short_d16_hi v12, v4, {sp(sG)} offset:512
    global_load_short_d16_hi v13, v4, {sp(sG)} offset:768
    L_B1:
    s_waitcnt lgkmcnt(0)
    s_barrier                                     ; B1
    """)
    if "xlate" in X:
        a(f"""
        s_cmp_eq_u32 s{sW}, 10
        s_cselect_b32 s{sRW}, 1, 0
        s_cbranch_scc1 L_XL
        s_cmp_eq_u32 s{sW}, 4
        s_cbranch_scc1 L_XL
        """)
    else:
        a(f"""
        s_mov_b32 s{sRW}, s{sW}
        s_cmp_lt_u32 s{sW}, 2
        s_cbranch_scc1 L_XL
        """)
    a(f"""
    s_cmp_lt_u32 s{sW}, 5
    s_cselect_b32 s{sRW}, {0 if "xlate" in X else 2}, 7
    s_sub_u32 s{sRW}, s{sW}, s{sRW}
    v_lshrrev_b32 v26, 3, v{vL}
    v_lshlrev_b32 v26, 8, v26
    v_and_b32 v28, 7, v{vL}
    v_lshlrev_b32 v28, 4, v28
    v_and_b32 v27, 16, v{vL}
    v_lshlrev_b32 v27, 1, v27
    v_xor_b32 v28, v28, v27
    v_add3_u32 v26, v26, v28, s{sH}
    v_xor_b32 v27, 64, v26
    s_add_u32 s{SRD_W}, s{sG}, {128*256}
    s_addc_u32 s{SRD_W+1}, s{sG+1}, 0
    s_cmp_ge_u32 s{sRW}, 2
    s_cselect_b64 {sp(SRD_W)}, {sp(sV)}, {sp(SRD_W)}
    s_cmp_ge_u32 s{sRW}, 4
    s_cselect_b64 {sp(SRD_W)}, {sp(sG)}, {sp(SRD_W)}
    s_cmp_ge_u32 s{sRW}, 6
    s_cselect_b64 {sp(SRD_W)}, {sp(sU)}, {sp(SRD_W)}
    s_mov_b32 s{SRD_W+2}, {128*256}
    s_mov_b32 s{SRD_W+3}, 0x20000
    s_cmp_ge_u32 s{sRW}, 4
    {"s_barrier" if "b1b" in X else ""}
    s_cbranch_scc0 L_WE
    v_lshlrev_b32 v17, 4, v0
    v_mov_b64 v[20:21], 0
    v_mov_b64 v[22:23], 0
    v_min_u32 v18, {11264 + NB * GST - 8 * 5120 - 16}, v17
    """)
    for i in range(9):
        a(f"ds_write_b128 v{17 if i < 8 else 18}, v[20:23] offset:{LAGG - 11264 + 5120 * i}")
    a("s_branch L_SETUP\nL_WE:")

    def wdma(lab):
        a(f"""
        s_and_b32 s{t0}, s{sRW}, 1
        s_lshl_b32 s{t0}, s{t0}, 14
        s_lshl_b32 s{t1}, s{sRW}, 13
        s_add_u32 s{t1}, s{t1}, {LW}
        s_mov_b32 s{t2}, 4
        {lab}:
        s_mov_b32 m0, s{t1}
        s_add_u32 s{t3}, s{t0}, 1024
        buffer_load_dwordx4 v26, {sq(SRD_W)}, s{t0} offen lds
        buffer_load_dwordx4 v27, {sq(SRD_W)}, s{t3} offen offset:1024 lds
        s_add_u32 s{t0}, s{t0}, 4096
        s_add_u32 s{t1}, s{t1}, 2048
        s_sub_u32 s{t2}, s{t2}, 1
        s_cmp_lg_u32 s{t2}, 0
        s_cbranch_scc1 {lab}
        """)

    wdma("L_WL")
    a(f"""
    s_branch L_SETUP
    L_XL:
    v_lshrrev_b32 v4, 4, v{vL}
    v_and_b32 v5, 15, v{vL}
    v_xor_b32 v5, v5, v4
    v_lshlrev_b32 v5, 4, v5
    s_lshl_b32 s{t1}, s{sRW}, 7
    v_xor_b32 v5, s{t1}, v5
    s_mul_i32 s{t0}, s{sRW}, 10240
    s_mul_i32 s{t2}, s{sB}, {NB*256}
    s_add_u32 s{t2}, s{t2}, s{t0}
    v_lshl_add_u32 v4, v4, 8, v5
    s_add_u32 s{t1}, s{t0}, {LX}
    v_xor_b32 v5, 64, v4
    v_xor_b32 v6, 0x80, v4
    v_xor_b32 v7, 0xc0, v4
    v_mov_b32 v26, 0
    v_mov_b32 v27, 0
    """)
    srd(a, SRD_W, sX, f"s{t2}", 10240)
    a(f"s_mov_b32 s{t0}, 0\ns_mov_b32 s{sRW}, 0")
    if "b1b" in X:
        a("s_barrier")
    for i in range(10):
        if i % 4 == 0:
            a(f"s_mov_b32 m0, s{t1}\ns_add_u32 s{t1}, s{t1}, 4096")
        a(f"buffer_load_dwordx4 v{4+i%4}, {sq(SRD_W)}, s{t0} offen offset:{1024*(i%4)} {XNT} lds")
        if i % 4 == 3:
            a(f"s_add_u32 s{t0}, s{t0}, 4096")
    a(f"""
    L_SETUP:
    s_add_u32 s{t2}, s{sWS}, {WS_EPOCH}
    s_addc_u32 s{t3}, s{sWS+1}, 0
    s_load_dword s{sEP}, {sp(t2)}, 0
    s_and_b32 s{sT0}, s{sW}, 3
    s_cmp_ge_u32 s{sW}, 12
    s_cselect_b32 s{t0}, {2*16384}, 0
    s_add_u32 s{t0}, s{t0}, {LW}
    s_mov_b32 s{t1}, {LX}
    v_lshrrev_b32 v40, 4, v{vL}                   ; sigma
    v_bfe_u32 v41, v{vL}, 2, 2
    v_and_b32 v42, 3, v{vL}
    v_and_b32 v{vJn}, 15, v{vL}
    v_lshlrev_b32 v43, 10, v40
    v_lshlrev_b32 v44, 7, v41
    v_lshl_add_u32 v44, v42, 3, v44
    v_bfe_u32 v45, v{vL}, 3, 2
    v_xor_b32 v45, s{sT0}, v45
    v_lshl_add_u32 v45, v45, 5, v44
    v_add3_u32 v{vA}, v43, v45, s{t0}
    s_lshl_b32 s{t0}, s{sT0}, 2
    v_add_u32 v{vRow}, s{t0}, v40
    v_xor_b32 v43, v{vJn}, v40
    v_lshlrev_b32 v43, 4, v43
    v_lshlrev_b32 v44, 8, v{vJn}
    v_add3_u32 v{vXa}, v43, v44, s{t1}
    v_xor_b32 v{vXa+1}, 64, v{vXa}
    v_xor_b32 v{vXa+2}, 0x80, v{vXa}
    v_xor_b32 v{vXa+3}, 0xc0, v{vXa}
    s_mov_b32 s{t0}, {LCW}
    v_lshl_add_u32 v{vCwa}, v{vL}, 3, s{t0}
    v_cmp_eq_u32 vcc, v40, v41
    v_mov_b32 v43, 0x3f80
    v_cmp_eq_u32 {sp(sEM)}, v40, v42
    v_cndmask_b32 v{vAo}, 0, v43, vcc
    v_mov_b32 v{vAo+1}, 0
    v_lshlrev_b32 v42, 4, v42
    v_lshlrev_b64 {vr(vAo,2)}, v42, {vr(vAo,2)}
    """)
    for g in range(4):
        if g:
            a(f"v_mov_b64 {vr(vAo+4*g,2)}, {vr(vAo,2)}")
        a(f"v_mov_b64 {vr(vAo+4*g+2,2)}, 0")
    a(f"""
    v_lshlrev_b32 v{vLO}, 4, v{vJn}
    v_lshlrev_b32 v{vLO+1}, 3, v{vJn}
    v_add_u32 v{vLO+1}, {LAGG}, v{vLO+1}
    v_lshrrev_b32 v40, 2, v0
    s_lshl_b32 s{t0}, s{sB}, 3
    v_lshl_add_u32 v{vOFFa}, v40, 10, s{t0}
    v_mul_u32_u24 v{vRO}, {CH*RB}, v40
    v_cmp_gt_u32 vcc, {NCH}, v40
    v_mov_b32 v{vF}, {LFLAG}
    v_mov_b32 v{vONE}, 1
    s_mov_b64 {sp(sM)}, vcc
    s_mov_b32 s{sLG}, {hex(NLOG2E)}
    s_mov_b32 s{s12}, {f2h(AST/256)}
    s_mov_b32 s{s12+1}, {f2h(GST/256)}
    s_mov_b32 s{sINC}, 512
    s_mov_b32 s{sINC+1}, 512
    s_mov_b32 s{sTHR}, 0x5f800000
    s_mov_b32 s{sFIRST}, 1
    s_mov_b32 s{sSPIN}, {SPIN}
    s_mul_i32 s{t1}, s{sH}, {T_HALF//128}
    """)
    srd(a, SRD_T, sWS, f"s{t1}", T_HALF)
    srd(a, SRD_R, sWS, WS_REC, E * RB)
    a(f"""
    s_cmp_eq_u32 s{sBIN}, 0
    s_cbranch_scc1 L_STG
    s_mov_b32 s{t0}, 52429
    s_mov_b32 s{t1}, {-NB}
    v_lshlrev_b32 v33, 3, v{vL}
    s_mul_i32 s{t2}, s{sRW}, 3072
    v_lshl_add_u32 v32, v{vL}, 4, s{t2}
    s_waitcnt vmcnt({4 if LIN else 3})
    """)
    mark(1)
    for i in range(4):
        a(f"""
        v_mul_u32_u24 v{20+i}, s{t0}, v{4+i}
        v_lshrrev_b32 v{20+i}, 22, v{20+i}
        v_mad_i32_i24 v{24+i}, v{20+i}, s{t1}, v{4+i}
        v_lshlrev_b32 v{20+i}, 2, v{20+i}
        ds_add_rtn_u32 v{28+i}, v{20+i}, v{vONE} offset:{LHIST}
        """)
    a(f"""
    s_mov_b64 exec, 1
    ds_add_u32 v{vF}, v{vONE} offset:{F_RV}
    """)
    if "spr" in X:
        a("s_setprio 1")
    spin("L_BS1", F_RV, "gt", 5, int(os.environ.get("SLB", 0)))
    if "spr" in X:
        a("s_setprio 3")
    a(f"""
    s_mov_b64 exec, -1
    ds_read_b64 v[34:35], v33 offset:{LHIST}
    s_add_u32 s{sEP}, s{sEP}, 1
    s_xor_b32 s{sTAG2}, s{sEP}, 0x2545F491
    s_mul_i32 s{sTAG}, s{sTAG2}, 0x9E3779B1
    s_mul_i32 s{sTAG2}, s{sTAG2}, 0x85EBCA6B
    s_lshr_b32 s{sTAGB}, s{sTAG2}, 25
    s_waitcnt lgkmcnt(0)
    v_add_u32 v36, v34, v35
    v_mov_b32 v37, v36
    """)
    scan64(a, 37)
    a(f"""
    v_sub_u32 v38, v37, v36
    v_add_u32 v39, v38, v34
    v_mul_u32_u24 v38, {RB}, v38
    v_mul_u32_u24 v39, {RB}, v39
    ds_write_b64 v33, v[38:39] offset:{LSTART}
    """)
    for i in range(4):
        a(f"ds_read_b32 v{20+i}, v{20+i} offset:{LSTART}")
    a(f"""
    s_lshl_b32 s{t0}, s{sTAGB}, 25
    s_lshl_b32 s{t1}, s{sC}, 10
    s_add_u32 s{t1}, s{t1}, {WS_OFF}
    v_lshl_or_b32 v48, v34, 14, v38
    v_lshl_or_b32 v50, v35, 14, v39
    v_or_b32 v48, s{t0}, v48
    v_or_b32 v50, s{t0}, v50
    v_mov_b32 v49, s{sTAG}
    v_mov_b32 v51, s{sTAG}
    v_lshl_add_u32 v52, v{vL}, 4, s{t1}
    s_waitcnt vmcnt(2) lgkmcnt(0)
    """)
    for i in range(4):
        a(f"""
        v_mad_u32_u24 v{20+i}, v{28+i}, {RB}, v{20+i}
        v_lshl_or_b32 v{24+i}, v{8+i}, 8, v{24+i}
        ds_write_b32 v{20+i}, v{24+i} offset:8
        """)
    for i in range(4):
        if i % 2 == 0:
            a(f"s_waitcnt vmcnt({1 - i // 2})")
        a(f"ds_write2_b32 v{20+i}, v{12+2*i}, v{13+2*i} offset0:0 offset1:1")
    mark(13)
    a(f"""
    s_mov_b64 exec, 1
    ds_add_u32 v{vF}, v{vONE} offset:{F_RV}
    """)
    if "spr" in X:
        a("s_setprio 1")
    spin("L_BS2", F_RV, "gt", 10, int(os.environ.get("SLB", 0)))
    if "spr" in X:
        a("s_setprio 3")
    a("s_mov_b64 exec, -1")
    for i in range(3):
        a(f"ds_read_b128 {vr(8+4*i,4)}, v32 offset:{1024*i}")
    for i in range(3):
        a(f"s_waitcnt lgkmcnt({2-i})\nbuffer_store_dwordx4 {vr(8+4*i,4)}, v32, {sq(SRD_W)}, 0 offen offset:{1024*i} sc1")
    a(f"""
    s_mov_b64 exec, 1
    ds_add_u32 v{vF}, v{vONE} offset:{F_RV}
    """)
    mark(2)
    a(f"""
    s_waitcnt vmcnt(0)
    ds_add_rtn_u32 v7, v{vF}, v{vONE} offset:{F_PUB}
    s_waitcnt lgkmcnt(0)
    v_cmp_eq_u32 vcc, 4, v7
    s_mov_b64 exec, -1
    s_cbranch_vccz L_NOPUB
    global_store_dwordx4 v52, v[48:51], {sp(sWS)} sc1
    L_NOPUB:
    s_setprio 0
    """)
    mark(4)
    a(f"""
    s_branch L_GD
    L_STG:
    s_waitcnt lgkmcnt(0)
    s_add_u32 s{sEP}, s{sEP}, 1
    s_xor_b32 s{sTAG2}, s{sEP}, 0x2545F491
    s_mul_i32 s{sTAG}, s{sTAG2}, 0x9E3779B1
    s_mul_i32 s{sTAG2}, s{sTAG2}, 0x85EBCA6B
    s_lshr_b32 s{sTAGB}, s{sTAG2}, 25
    v_mov_b32 v6, 1
    s_cmp_lt_u32 s{sRW}, 4
    s_cbranch_scc1 L_EARLY
    s_cmp_eq_u32 s{sRW}, 8
    s_cbranch_scc1 L_GC
    """)
    a(f"""
    s_mov_b64 exec, 1
    """)
    spin("L_BS3", F_RV, "gt", 15, int(os.environ.get("SL3", 4)))
    a("s_mov_b64 exec, -1")
    wdma("L_WL2")
    a(f"""
    v_mov_b32 v6, 0x100
    L_EARLY:
    s_mov_b64 exec, 1
    s_waitcnt vmcnt(0)
    ds_add_u32 v{vF}, v6 offset:{F_LAND}
    """)
    mark(13)
    a(f"""
    s_cmp_ge_u32 s{sW}, 12
    s_cbranch_scc1 L_LAND2
    s_cmp_ge_u32 s{sW}, 4
    s_cbranch_scc1 L_GD
    """)
    spin("L_LAND1", F_LAND, "lowne", 6, int(os.environ.get("SL1", 0)))
    a("s_mov_b64 exec, -1")
    mark(3)

    def gemm(epi, pre, post=None, hook=None):
        def xr(n, ks):
            a(f"ds_read_b128 {vr(vXb+16*(n&1)+4*ks,4)}, v{vXa+ks} offset:{4096*n}")
        for ks in range(4):
            xr(0, ks)
            for m in range(2):
                o = m * 16384 + ks * 4096
                r = vWf + 16 * m + 4 * ks
                a(f"ds_read_b64_tr_b16 {vr(r,2)}, v{vA} offset:{o}")
                a(f"ds_read_b64_tr_b16 {vr(r+2,2)}, v{vA} offset:{o+512}")
            if ks == 1:
                pre()
                a("s_waitcnt lgkmcnt(4)")
        a("s_waitcnt lgkmcnt(9)")
        for ks in range(4):
            xr(1, ks)
        for n in range(6):
            ops = epi(n - 1) if n else []
            if n == 5:
                if post:
                    a("s_nop 3")
                    for o in ops[:-4]:
                        a(o)
                    a("s_waitcnt lgkmcnt(0)")
                    post(3)
                    for o in ops[-4:]:
                        a(o)
                    a("s_waitcnt lgkmcnt(0)")
                    post(4)
                    break
                a("s_nop 7")
                for o in ops:
                    a(o)
                break
            late = post and n >= 2
            a(f"s_waitcnt lgkmcnt({(4 if n < 4 else 0) + (4 if late else 0)})")
            if n == 0:
                mark(21)
            per = -(-len(ops) // 5)
            for ks in range(4):
                for m in range(2):
                    acc = vAcc + 8 * (n & 1) + 4 * m
                    c = "0" if ks == 0 else vr(acc, 4)
                    a(f"v_mfma_f32_16x16x32_bf16 {vr(acc,4)}, {vr(vWf+16*m+4*ks,4)}, {vr(vXb+16*(n&1)+4*ks,4)}, {c}")
                    if late and 2 * ks + m == 3:
                        a(f"s_waitcnt lgkmcnt({4 if n < 4 else 0})")
                        post(n - 2)
                    if 2 * ks + m >= 3:
                        for o in ops[:per]:
                            a(o)
                        ops = ops[per:]
            assert not ops
            if n + 2 < 5:
                for ks in range(4):
                    xr(n + 2, ks)
            elif n == 3:
                a("s_nop 3")
            if hook:
                hook(n)

    def t_pre():
        a(f"""
        s_mul_i32 s{t0}, s{sB}, {NB*256}
        """)
        if "nobp" in X:
            a(f"""
            v_lshlrev_b32 v4, 8, v{vJn}
            v_lshl_add_u32 v4, v{vRow}, 4, v4
            """)
        else:
            a(f"""
            v_lshrrev_b32 v6, 2, v{vL}
            v_and_b32 v7, 3, v{vL}
            s_lshl_b32 s{t1}, s{sT0}, 6
            v_lshl_add_u32 v4, v6, 8, s{t1}
            v_lshl_add_u32 v4, v7, 4, v4
            v_lshl_add_u32 v5, v7, 4, v6
            v_lshlrev_b32 v5, 2, v5
            """)
        a(f"""
        s_mov_b32 s{t1}, 0x07060302
        s_setreg_imm32_b32 hwreg(HW_REG_MODE, 4, 2), 0
        """)

    def t_epi(n):
        P = vPk + 4 * (n & 1)
        b = [vAcc + 8 * (n & 1) + t for t in range(4)]
        h = [vAcc + 8 * (n & 1) + 4 + t for t in range(4)]
        SD = "clamp dst_sel:DWORD dst_unused:UNUSED_PAD src0_sel:DWORD src1_sel:WORD_1"
        o = [f"v_mul_f32 v{b[t]}, s{sLG}, v{b[t]}" for t in range(4)]
        o += [f"v_add_f32 v{h[t]}, 0, v{h[t]}" for t in (0, 1, 3)]
        o += [f"v_add_u32 v{h[t]}, 0x8000, v{h[t]}" for t in (2, 0, 3, 1)]
        o += [f"v_sub_u32_sdwa v{h[0]}, v{h[0]}, v{h[2]} {SD}",
              f"v_cvt_pk_bf16_f32 v{P+2}, v{b[0]}, v{b[1]}",
              f"v_sub_u32_sdwa v{h[3]}, v{h[3]}, v{h[0]} {SD}",
              f"v_cvt_pk_bf16_f32 v{P+3}, v{b[2]}, v{b[3]}",
              f"v_sub_u32_sdwa v{h[1]}, v{h[1]}, v{h[3]} {SD}",
              f"v_perm_b32 v{P}, v{h[0]}, v{h[2]}, s{t1}",
              f"v_perm_b32 v{P+1}, v{h[1]}, v{h[3]}, s{t1}"]
        if "nobp" in X:
            o += [f"buffer_store_dwordx4 {vr(P,4)}, v4, {sq(SRD_T)}, s{t0} offen sc1",
                  f"s_add_u32 s{t0}, s{t0}, 4096"]
        else:
            o += [f"ds_bpermute_b32 v{P+u}, v5, v{P+u}" for u in (2, 3, 0, 1)]
        return o

    def t_post(n):
        a(f"buffer_store_dwordx4 {vr(vPk+4*(n&1),4)}, v4, {sq(SRD_T)}, s{t0} offen sc1\ns_add_u32 s{t0}, s{t0}, 4096")

    gemm(t_epi, t_pre, None if "nobp" in X else t_post)
    a(f"""
    s_setreg_imm32_b32 hwreg(HW_REG_MODE, 4, 2), 3
    """)
    if "late_sig" not in X:
        a(f"""
        s_add_u32 s{t2}, s{sH}, s{sB}
        s_lshl_b32 s{t2}, s{t2}, 7
        s_add_u32 s{t2}, s{t2}, {WS_TF}
        v_mov_b32 v8, s{t2}
        v_mov_b32 v4, s{sTAG}
        v_mov_b32 v5, s{sTAG2}
        v_lshlrev_b32 v9, 7, v{vL}
        s_sub_u32 s{t0}, s{t0}, {NB*256}
        s_add_u32 s{t1}, s{t0}, 8192
        s_add_u32 s{t2}, s{t0}, 16384
        s_mov_b64 exec, 1
        s_waitcnt vmcnt(0)
        ds_add_rtn_u32 v7, v{vF}, v{vONE} offset:{F_TD}
        s_waitcnt lgkmcnt(0)
        v_cmp_eq_u32 vcc, 3, v7
        s_cbranch_vccz L_GD
        global_store_dwordx2 v8, v[4:5], {sp(sWS)} sc1
        """)
        if "own" in X:
            a(f"""
            s_mov_b64 exec, -1
            buffer_load_dword v10, v9, {sq(SRD_T)}, s{t0} offen sc1
            buffer_load_dword v10, v9, {sq(SRD_T)}, s{t1} offen sc1
            s_mov_b32 exec_hi, 0
            buffer_load_dword v10, v9, {sq(SRD_T)}, s{t2} offen sc1
            """)
    a(f"""
    s_branch L_GD
    L_GC:
    s_mov_b32 s{t0}, 0xffff0000
    s_waitcnt vmcnt(0)
    """)
    for q in range(4):
        a(f"v_and_b32 v{10+q}, s{t0}, v{10+q}")
    for q in range(4):
        a(f"v_mul_f32 v{10+q}, s{sLG}, v{10+q}")
    a(f"""
    v_cvt_pk_bf16_f32 v10, v10, v11
    v_cvt_pk_bf16_f32 v11, v12, v13
    ds_write_b64 v{vCwa}, v[10:11]
    s_mov_b64 exec, 1
    """)
    if "w15slp" in X:
        spin("L_BS5", F_LAND, "gt", 0x100, 4)
    spin("L_LAND2", F_LAND, "ne", 0x406)
    a("s_mov_b64 exec, -1")
    mark(3)

    def au_pre():
        a(f"""
        s_mov_b32 s{t0}, {AST}
        s_mov_b32 s{t1}, {UST}
        s_mov_b32 s{t2}, {LU}
        v_lshlrev_b32 v4, 4, v{vRow}
        v_lshl_add_u32 v5, v{vRow}, 3, s{t2}
        v_mad_u32_u24 v4, v{vJn}, s{t0}, v4
        v_mad_u32_u24 v5, v{vJn}, s{t1}, v5
        """)

    def au_epi(n):
        A = vAcc + 8 * (n & 1)
        o = [f"v_mul_f32 v{A+t}, s{sLG}, v{A+t}" for t in range(4)]
        o += [f"v_cvt_pk_bf16_f32 v{A+4}, v{A+4}, v{A+5}", f"v_cvt_pk_bf16_f32 v{A+5}, v{A+6}, v{A+7}"]
        o += [f"ds_write_b128 v4, {vr(A,4)} offset:{LA+16*AST*n}"]
        o += [f"ds_write_b64 v5, {vr(A+4,2)} offset:{16*UST*n}"]
        return o

    def au_hook(n):
        HB = int(os.environ.get('HB', 1))
        if n == HB:
            srd(a, SRD_W, sWS, WS_OFF, NCH * 1024)
            a("s_waitcnt lgkmcnt(0)\ns_barrier                                     ; B5")
            mark(22)
            a(f"buffer_load_dwordx2 v[88:89], v{vOFFa}, {sq(SRD_W)}, 0 offen sc1")
        if n == HB + 1:
            a("s_barrier                                     ; B5b")

    gemm(au_epi, au_pre, None, au_hook)
    mark(5)
    a("s_branch L_PW")
    vW = (8, 32)
    vPr = 56
    REC = (8, 14, 20, 26, 32, 38, 44)

    def rec(k):
        return REC[k]

    vP, vTFa, vLf = 94, 100, 96 - 20
    a("L_GD:\ns_mov_b64 exec, -1")
    mark(5)
    srd(a, SRD_W, sWS, WS_OFF, NCH * 1024)
    a(f"""
    s_waitcnt lgkmcnt(0)
    s_barrier
    """)
    mark(22)
    a(f"""
    {"s_sleep " + os.environ["PDELAY"] if os.environ.get("PDELAY") else ""}
    buffer_load_dwordx2 v[88:89], v{vOFFa}, {sq(SRD_W)}, 0 offen sc1
    L_FILL:
    v_lshrrev_b32 v4, 4, v0
    v_and_b32 v5, 15, v0
    s_mov_b32 s{t0}, {SLOTB}
    v_mov_b32 v6, {LSLOT}
    v_mad_u32_u24 v4, v4, s{t0}, v6
    v_mad_u32_u24 v4, v5, 48, v4
    v_mov_b32 v56, {DUMMY}
    v_mov_b32 v57, {DUMMY}
    v_mov_b64 v[58:59], v[56:57]
    s_cmp_lt_u32 s{sW}, 8
    ds_write_b128 v4, v[56:59]
    s_cbranch_scc0 L_FT
    ds_write_b128 v4, v[56:59] offset:{48*SLOTB}
    s_branch L_FD
    L_FT:
    s_mov_b32 s{t1}, {LTAB - 8192}
    v_mov_b32 v60, {LDUM}
    v_mov_b32 v61, 0
    v_lshl_add_u32 v5, v0, 4, s{t1}
    v_mov_b64 v[62:63], v[60:61]
    ds_write_b128 v5, v[60:63]
    ds_write_b128 v5, v[60:63] offset:4096
    L_FD:
    s_cmp_eq_u32 s{sFIRST}, 0
    s_waitcnt lgkmcnt(0)
    s_barrier                                     ; B5b
    s_cbranch_scc1 L_AGAIN
    """)
    mark(14)
    if "late_sig" in X:
        a(f"s_cmp_lt_u32 s{sW}, 4\ns_cbranch_scc1 L_TSIG")
    a(f"""
    L_PW:
    s_mov_b64 exec, {sp(sM)}
    L_POLL:
    s_waitcnt vmcnt(0)
    L_POLL1:
    v_lshrrev_b32 v4, 25, v88
    v_cmp_ne_u32 vcc, s{sTAG}, v89
    v_cmp_ne_u32 {sp(t0)}, s{sTAGB}, v4
    s_or_b64 exec, vcc, {sp(t0)}
    s_cbranch_execnz L_POLL2
    L_POLLED:
    s_mov_b64 exec, -1
    """)
    mark(6)
    a(f"""
    v_bfe_u32 v{vRem}, v88, 14, 11
    v_and_b32 v4, 0x3fff, v88
    v_add_u32 v{vRO}, v{vRO}, v4
    """)
    a(f"""
    L_WINDOW:
    v_and_b32 v4, 15, v{vL}
    v_and_b32 v5, 3, v{vL}
    v_sub_u32 v5, v{vRem}, v5
    """)
    for k in range(4):
        a(f"v_sub_u32_dpp v{64+k}, v{vRem}, v4 row_newbcast:{4*k} row_mask:0xf bank_mask:0xf")
    for k in range(4):
        a(f"v_cmp_lt_i32 {sp(sM+2*k)}, 0, v{64+k}")
    for k in range(4, KMAX):
        a(f"v_cmp_lt_i32 {sp(sM+2*k)}, {4*k}, v5")
    a(f"""
    L_LOADS:
    """)
    EPF = os.environ.get("EPF", "")
    if EPF:
        a(f"""
        s_mov_b64 exec, 0xff
        global_load_dwordx2 v[82:83], v{vTFa}, {sp(sWS)} sc1
        s_mov_b64 exec, -1
        """)
    a(f"""
    v_and_b32 v4, 15, v{vL}
    v_and_b32 v5, 3, v{vL}
    v_mul_u32_u24 v4, {RB}, v4
    v_mad_u32_u24 v5, v5, {RB}, v{vRO}
    s_or_b64 {sp(sU5)}, {sp(sM+10)}, {sp(sM+12)}
    s_or_b64 {sp(sU4)}, {sp(sU5)}, {sp(sM+8)}
    """)
    for k in range(4):
        a(f"v_add_u32_dpp v{rec(k)+3}, v{vRO}, v4 row_newbcast:{4*k} row_mask:0xf bank_mask:0xf")

    def kloop(done, body, mask=sM):
        for k in range(KMAX):
            if k == 4:
                a(f"s_cmp_eq_u64 {sp(sU4)}, 0\ns_cbranch_scc1 {done}")
            if k == 5:
                a(f"s_cmp_eq_u64 {sp(sU5)}, 0\ns_cbranch_scc1 {done}")
            a(f"s_mov_b64 exec, {sp(mask+2*k)}")
            body(k)
        a(f"{done}:")

    RF = "" if "recplain" in X else "sc1"

    def rload(k):
        if k < 4:
            a(f"buffer_load_dwordx3 {vr(rec(k),3)}, v{rec(k)+3}, {sq(SRD_R)}, 0 offen {RF}")
        else:
            a(f"buffer_load_dwordx3 {vr(rec(k),3)}, v5, {sq(SRD_R)}, 0 offen offset:{48*k} {RF}")

    kloop("L_RL", rload)
    mark(23)
    a(f"""
    s_mov_b64 exec, -1
    s_mov_b32 s{t0}, {LCW}
    v_lshl_add_u32 v4, v{vL}, 3, s{t0}
    """)
    for k in range(8):
        a(f"ds_read_b64 {vr(vW[0]+6*k+4,2)}, v4")
    a(f"""
    s_lshl_b32 s{t0}, s{sW}, 5
    s_add_u32 s{t0}, s{t0}, {LTAB}
    v_lshrrev_b32 v4, 4, v{vL}
    v_bfe_u32 v5, v{vL}, 2, 2
    v_lshl_add_u32 v{vP}, v4, 3, s{t0}
    v_lshl_add_u32 v{vP+1}, v5, 3, s{t0}
    s_lshl_b32 s{t0}, s{sW}, 3
    v_add_u32 v4, s{t0}, v{vL}
    v_min_u32 v4, {NBK-1}, v4
    v_add_u32 v4, s{sH}, v4
    s_mov_b32 s{t1}, {WS_TF}
    v_lshl_add_u32 v{vTFa}, v4, 7, s{t1}
    v_mov_b32 v6, {LSLOT}
    s_mov_b32 s{t0}, {2*SLOTB}
    v_mad_u32_u24 v{vLf}, v{vL}, s{t0}, v6
    v_lshlrev_b32 v{vLf+1}, 9, v{vL}
    v_add_u32 v{vLf+2}, {SLOTB}, v{vLf}
    v_add_u32 v{vLf+3}, 256, v{vLf+1}
    v_lshlrev_b32 v{vLf+4}, 3, v{vL}
    v_mov_b32 v6, {LSLOT-48}
    s_mov_b32 s{t0}, {SLOTB//4}
    s_mov_b32 s{t1}, 0xffffff00
    """)
    if "sprio" in X:
        for lv in (1, 2, 3):
            a(f"s_cmp_lt_u32 s{sW}, {4*lv}\ns_cbranch_scc1 L_SP\ns_setprio {lv}")
        a("L_SP:")
    mark(12)
    a("s_waitcnt vmcnt(0)")
    mark(7)
    PFN = int(os.environ.get("PFN", "14"))
    if PFN:
        a(f"""
        s_mov_b64 exec, 0xff
        global_load_dwordx2 v[70:71], v{vTFa}, {sp(sWS)} sc1
        """)
    def pf(cond):
        if cond:
            a(f"""
            s_mov_b64 exec, 0xff
            v_cmp_eq_u64 vcc, {sp(sTAG)}, v[82:83]
            s_lshr_b32 s{t3}, s2, 5
            s_bitcmp1_b32 vcc_lo, s{t3}
            s_cbranch_scc0 L_NOPF
            """)
        a(f"""
        s_mul_i32 s{t2}, s{sW}, {8*NB*256}
        s_lshr_b32 s{t3}, s2, 3
        s_mul_i32 s{t3}, s{t3}, {40*128}
        s_add_u32 s{t2}, s{t2}, s{t3}
        s_mov_b64 exec, {hex((1 << PFN) - 1)}
        v_lshlrev_b32 v5, 7, v{vL}
        buffer_load_dword v106, v5, {sq(SRD_T)}, s{t2} offen sc1
        """)
        if cond:
            a(f"""
            s_branch L_PFD
            L_NOPF:
            s_mov_b64 exec, 1
            global_load_dword v106, v{vTFa}, {sp(sWS)} sc1
            L_PFD:
            """)

    if EPF == "a":
        pf(True)
    SB = "dst_sel:DWORD dst_unused:UNUSED_PAD src0_sel:DWORD src1_sel:BYTE_0"

    def hist(k):
        a(f"""
        v_lshlrev_b32_sdwa v4, 2, v{rec(k)+2} {SB}
        v_lshlrev_b32_sdwa v{vPr+2*k+1}, 8, v{rec(k)+2} {SB}
        ds_add_rtn_u32 v{rec(k)+3}, v4, v{vONE} offset:{LCNT}
        v_mad_u32_u24 v{vPr+2*k}, v4, s{t0}, v6
        v_and_b32 v{rec(k)+2}, s{t1}, v{rec(k)+2}
        """)

    kloop("L_HD", hist)
    if EPF == "h":
        pf(True)
    a(f"s_mov_b32 s{t2}, 0\ns_waitcnt lgkmcnt(0)")
    mark(24)

    def scat(k):
        r = rec(k)
        a(f"""
        v_cmpx_gt_u32 vcc, {CAP}, v{r+3}
        v_lshrrev_b32 v4, 2, v{r+3}
        v_and_b32 v5, 7, v{r+3}
        v_and_b32 v{r+3}, 3, v{r+3}
        s_andn2_b64 {sp(sM+2*k)}, {sp(sM+2*k)}, vcc
        v_mad_u32_u24 v{vPr+2*k}, v4, 48, v{vPr+2*k}
        v_cmp_eq_u32 vcc, 4, v5
        v_lshl_add_u32 v4, v{r+3}, 2, v{vPr+2*k}
        v_lshl_add_u32 v5, v{r+3}, 3, v{vPr+2*k}
        ds_write_b32 v4, v{r+2} offset:48
        ds_write_b64 v5, {vr(r,2)} offset:64
        s_and_b64 {sp(sO+2*k)}, vcc, exec
        s_bcnt1_i32_b64 s{t3}, {sp(sO+2*k)}
        s_add_u32 s{t2}, s{t2}, s{t3}
        """)

    kloop("L_SD", scat)
    mark(25)
    a(f"""
    s_mov_b64 exec, 1
    v_mov_b32 v4, s{t2}
    ds_add_rtn_u32 v7, v{vF}, v4 offset:{F_NQ}
    s_mov_b64 exec, -1
    v_cmp_lt_i32 vcc, {4*KMAX}, v{vRem}
    s_or_b64 {sp(t0)}, {sp(sM)}, {sp(sM+2)}
    s_or_b64 {sp(t2)}, {sp(sM+4)}, {sp(sM+6)}
    s_or_b64 {sp(t0)}, {sp(t0)}, {sp(sM+8)}
    s_or_b64 {sp(t2)}, {sp(t2)}, {sp(sM+10)}
    s_or_b64 {sp(t0)}, {sp(t0)}, {sp(sM+12)}
    s_or_b64 {sp(t0)}, {sp(t0)}, {sp(t2)}
    s_cselect_b32 s{sBIN}, 1, 0
    s_or_b64 exec, vcc, {sp(t0)}
    ds_write_b32 v{vF}, v{vONE} offset:{F_MORE}
    s_waitcnt lgkmcnt(1)
    v_readlane_b32 s{t2}, v7, 0
    s_lshl_b32 s{t2}, s{t2}, 3
    s_add_u32 s{t2}, s{t2}, {LTAB}
    """)

    def tab(k):
        a(f"""
        v_mbcnt_lo_u32_b32 v4, exec_lo, 0
        v_mbcnt_hi_u32_b32 v4, exec_hi, v4
        v_lshl_add_u32 v4, v4, 3, s{t2}
        s_bcnt1_i32_b64 s{t3}, exec
        s_lshl3_add_u32 s{t2}, s{t3}, s{t2}
        ds_write_b64 v4, {vr(vPr+2*k,2)}
        """)

    kloop("L_TD", tab, sO)
    mark(26)
    a(f"""
    s_mov_b64 exec, 0xff
    s_waitcnt vmcnt({1 if EPF else 0})
    L_TP:
    v_cmp_ne_u64 vcc, {sp(sTAG)}, v[70:71]
    s_cbranch_vccnz L_TP2
    L_TRDY:
    """)
    if PFN and not EPF:
        pf(False)
    a(f"""
    s_mov_b64 exec, -1
    s_mov_b32 s{sFIRST}, 0
    s_waitcnt lgkmcnt(0)
    """)
    mark(8)
    a("s_barrier                                     ; B6")
    mark(9)
    if stamp:
        a("s_memtime s[96:97]\nv_mov_b32 v107, 0")
    vT, vAp, vS = 56, 80, 84
    vTQ, vNA, vFA, vQE = 88, 90, 92, 93
    vDn, vNm, vAa, vCk = 72, 100, 4, 106
    vD = (76, 78, 4, 6)
    sRET = sTHR + 1

    def sh(g):
        return (96, 98, 104, 124)[g]

    def saddr(S):
        a(f"""
        v_pk_add_f32 {vr(S,2)}, {vr(S,2)}, {vr(vLO,2)} op_sel_hi:[1,0]
        v_pk_add_f32 {vr(S+2,2)}, {vr(S+2,2)}, {vr(vLO,2)} op_sel_hi:[1,0]
        """)

    def loads(p, S, loop=False):
        for g in range(int(os.environ.get("NLD", 4)) if loop else 4):
            a(f"buffer_load_dwordx4 {vr(vW[p]+6*g,4)}, v{S+g}, {sq(SRD_T)}, 0 offen sc1")

    def naddr(dst, TQ):
        a(f"v_pk_fma_f32 {vr(dst,2)}, {vr(TQ,2)}, {sp(s12)}, {vr(vLO,2)} op_sel:[1,0,0] op_sel_hi:[1,1,1]")

    def eread(q, half):
        a(f"s_mov_b64 exec, {sp(sEM)}")
        for g in range(4):
            a(f"ds_read_b64 {vr(vAo+4*g+2,2)}, v{q} offset:{48*half+16+8*g}")
        a("s_mov_b64 exec, -1")

    def hv(W, g, h):
        return vr(W + 6 * g, 2) if h == 0 else vr(sh(g), 2)

    def mfma(p, g, c=vAp):
        return f"v_mfma_f32_16x16x32_bf16 {vr(vT+4*g,4)}, {vr(vAo+4*g,4)}, {vr(vW[p]+6*g+2,4)}, {vr(c,4)}"

    def flush(ad):
        a(f"""
        v_pk_mul_f32 {vr(vNm,2)}, {vr(vNm,2)}, {vr(vDn,2)}
        v_pk_mul_f32 {vr(vNm+2,2)}, {vr(vNm+2,2)}, {vr(vDn+2,2)}
        """)
        for t in range(4):
            a(f"v_cvt_f64_f32 {vr(vD[t],2)}, v{vNm+t}")
        for t in range(4):
            a(f"ds_add_f64 v{ad}, {vr(vD[t],2)} offset:{128*t}")

    def check(lab):
        a(f"""
        v_max3_f32 v{vCk}, v{vDn}, v{vDn+1}, v{vDn+2}
        v_max_f32 v{vCk}, v{vCk}, v{vDn+3}
        v_cmp_nge_f32 vcc, s{sTHR}, v{vCk}
        s_cbranch_vccnz {lab}
        """)

    def leftover():
        for u in range(2):
            a(f"""
            v_min_u32 v{96+u}, {CAP}, v{96+u}
            v_add_u32 v{98+u}, 7, v{96+u}
            v_lshrrev_b32 v{96+u}, 3, v{96+u}
            v_and_b32 v{98+u}, 7, v{98+u}
            """)
        a(f"""
        s_mov_b32 s{t3}, 96
        v_cmp_gt_u32 {sp(sO)}, 4, v98
        v_cmp_gt_u32 {sp(sO+2)}, 4, v99
        v_mad_u32_u24 v{vLf}, v96, s{t3}, v{vLf}
        v_mad_u32_u24 v{vLf+2}, v97, s{t3}, v{vLf+2}
        s_lshl3_add_u32 s{t2}, s{t0}, {LTAB}
        """)
        for u in range(2):
            a(f"""
            s_mov_b64 exec, {sp(sO+2*u)}
            v_mbcnt_lo_u32_b32 v96, exec_lo, 0
            v_mbcnt_hi_u32_b32 v96, exec_hi, v96
            v_lshl_add_u32 v96, v96, 3, s{t2}
            s_bcnt1_i32_b64 s{t3}, exec
            s_lshl3_add_u32 s{t2}, s{t3}, s{t2}
            ds_write_b64 v96, {vr(vLf+2*u,2)}
            """)
        a(f"""
        s_mov_b64 exec, -1
        s_sub_u32 s{t2}, s{t2}, {LTAB - 24}
        s_lshr_b32 s{t2}, s{t2}, 5                ; groups
        s_sub_u32 s{t2}, s{t2}, s{sW}
        s_add_u32 s{t2}, s{t2}, 15
        s_lshr_b32 s{t2}, s{t2}, 4
        s_lshl4_add_u32 s{t3}, s{t2}, s{sW}
        s_lshl_b32 s{t3}, s{t3}, 2
        s_add_u32 s{t1}, s{t0}, 64
        s_lshl_b32 s{sN}, s{t2}, 1
        s_cmp_lt_u32 s{t3}, s{t1}
        s_addc_u32 s{sN}, s{sN}, 0
        """)

    a(f"""
    ds_read_b64 v[4:5], v{vF} offset:{F_MORE}
    ds_read_b64 v[96:97], v{vLf+4} offset:{LCNT}
    L_PRE:
    ds_read_b64 {vr(vT,2)}, v{vP}
    ds_read_b32 v{vQE}, v{vP+1}
    ds_read_b64 {vr(vTQ,2)}, v{vP} offset:512
    s_setprio 3
    v_mov_b32 v{vFA}, v{vLO+1}
    v_mov_b64 {vr(vNm,2)}, 0
    v_mov_b64 {vr(vNm+2,2)}, 0
    s_waitcnt lgkmcnt(2)
    ds_read_b128 {vr(vT+4,4)}, v{vT}
    ds_read_b128 {vr(vS,4)}, v{vT} offset:48
    v_readfirstlane_b32 s{t0}, v5
    v_readfirstlane_b32 s{sMORE}, v4
    """)
    naddr(vNA, vT)
    a(f"""
    s_cmp_lt_u32 s{t0}, 128
    s_cbranch_scc1 L_FEW
    s_waitcnt lgkmcnt(1)
    """)
    saddr(vT + 4)
    loads(0, vT + 4)
    a(f"ds_read_b128 {vr(vAp,4)}, v{vNA} offset:{LA}")
    eread(vQE, 0)
    for t in range(4):
        a(f"v_mov_b32 v{vDn+t}, 1.0")
    a(f"s_cmp_eq_u32 s{t0}, -1\ns_cbranch_scc1 L_SB1")
    if "w1late" in X:
        leftover()
        a("s_branch L_SB1")
    else:
        a("s_waitcnt lgkmcnt(5)")
        saddr(vS)
        loads(1, vS)
        leftover()
        a("s_waitcnt vmcnt(4) lgkmcnt(0)\ns_branch L_M1")
    for p in range(2):
        W = vW[p]
        a(f"""
        L_L{p}:
        ds_read_b128 {vr(vS,4)}, v{vTQ} offset:{48*p}
        """)
        for i in range(16):
            a(f"v_exp_f32 v{vT+i}, v{vT+i}")
            if i == 7:
                eread(vQE, p ^ 1)
                if p == 0:
                    a(f"ds_read_b32 v{vQE}, v{vP+1} offset:512")
                else:
                    a(f"v_mov_b32 v{vFA}, v{vNA+1}")
        if p == 0:
            flush(vFA)
        else:
            naddr(vNA, vTQ)
        for g in range(4):
            a(f"v_lshlrev_b64 {vr(sh(g),2)}, 16, {vr(W+6*g,2)}")
            if g == 0 and p == 1:
                a(f"ds_read_b128 {vr(vAp,4)}, v{vNA} offset:{LA}")
                a(f"ds_read_b64 {vr(vTQ,2)}, v{vP} offset:1024")
        if p == 0:
            for h in range(2):
                a(f"v_pk_add_f32 {vr(vDn+2*h,2)}, {vr(vT+2*h,2)}, 1.0 op_sel_hi:[1,0]")
        for g in range(1 - p, 4):
            for h in range(2):
                src = hv(W, 0, h) if (g == 1 and p == 0) else vr(vNm + 2 * h, 2)
                a(f"v_pk_fma_f32 {vr(vAa+2*h,2)}, {src}, {vr(vT+4*g+2*h,2)}, {src}")
            for h in range(2):
                a(f"v_pk_fma_f32 {vr(vNm+2*h,2)}, {hv(W,g,h)}, {vr(vDn+2*h,2)}, {vr(vAa+2*h,2)}")
            for h in range(2):
                a(f"v_pk_fma_f32 {vr(vDn+2*h,2)}, {vr(vDn+2*h,2)}, {vr(vT+4*g+2*h,2)}, {vr(vDn+2*h,2)}")
        if p == 1:
            check("L_REDO1")
            a(f"L_RB1:\nv_pk_add_f32 {vr(vP,2)}, {vr(vP,2)}, {sp(sINC)}")
        a(f"""
        L_SB{p}:
        """)
        if "trace" in X:
            a(f"s_memtime s[92:93]\ns_add_u32 m0, s{sN}, 16")
        a(f"""
        s_cmp_le_u32 s{sN}, 2
        s_waitcnt lgkmcnt(0)
        """)
        if "trace" in X:
            a("v_writelane_b32 v107, s92, m0")
        saddr(vS)
        a(f"s_cbranch_scc1 L_TAIL{p}")
        loads(p, vS, True)
        a(f"""
        s_waitcnt vmcnt({os.environ.get("NLD", 4)})
        L_M{p}:
        """)
        for g in range(4):
            a(mfma(p ^ 1, g))
            if p == 1:
                a(f"v_rcp_f32 v{vDn+g}, v{vDn+g}")
        a(f"""
        s_sub_u32 s{sN}, s{sN}, 1
        s_cmp_eq_u32 s{sN}, 4
        s_cbranch_scc1 L_PR{p}
        """)
        a("s_branch L_L0" if p == 1 else "s_nop 0")
    for p in range(2):
        a(f"""
        L_PR{p}:
        s_setprio 2
        s_branch L_L{p^1}
        L_TAIL{p}:
        s_setprio 0
        s_cmp_eq_u32 s{sN}, 2
        s_waitcnt vmcnt(0)
        s_cbranch_scc1 L_M{p}
        """)
        if p == 0:
            check("L_REDO0")
            a(f"L_RB0:\nv_mov_b32 v{vFA}, v{vNA+1}\ns_branch L_LAST")
    a("L_LAST:")
    for g in range(4):
        a(f"v_rcp_f32 v{vDn+g}, v{vDn+g}")
    a("s_nop 0")
    flush(vFA)
    a(f"""
    L_LD:
    s_cmp_lt_u32 s{sW}, 10
    s_cbranch_scc0 L_LD2
    v_lshrrev_b32 v97, 3, v0
    v_and_b32 v98, 7, v0
    s_mov_b32 s{t0}, {UST}
    v_lshlrev_b32 v98, 4, v98
    v_add_u32 v99, {LU}, v98
    v_mad_u32_u24 v99, v97, s{t0}, v99
    ds_read2_b64 v[56:59], v99 offset0:0 offset1:1
    s_mov_b32 s{t0}, {GST}
    v_mad_u32_u24 v96, v97, s{t0}, v98
    s_mul_i32 s{t1}, s{sB}, {NB*256}
    s_add_u32 s{t1}, s{t1}, s{sH}
    v_lshlrev_b32 v97, 8, v97
    v_add3_u32 v97, v97, v98, s{t1}
    s_mov_b32 s{t0}, 0xffff0000
    s_mov_b32 s{t2}, s{sLG}
    s_mov_b32 s{t3}, s{sLG}
    s_waitcnt lgkmcnt(0)
    """)
    for i in range(4):
        a(f"v_lshlrev_b32 v{60+2*i}, 16, v{56+i}\nv_and_b32 v{61+2*i}, s{t0}, v{56+i}")
    a("L_LD2:\ns_waitcnt lgkmcnt(0)")
    mark(10)
    if stamp:
        a("s_memtime s[92:93]\ns_waitcnt lgkmcnt(0)\ns_sub_u32 s92, s92, s96\nv_writelane_b32 v107, s92, 15\nv_writelane_b32 v107, s96, 16")
    a(f"""
    s_cmp_eq_u32 s{sMORE}, 0
    s_barrier                                     ; B8
    s_cbranch_scc0 L_MORE
    s_cmp_lt_u32 s{sW}, 10
    s_cbranch_scc0 L_EPO
    ds_read_b128 v[24:27], v96 offset:{LAGG}
    ds_read_b128 v[28:31], v96 offset:{LAGG+128}
    ds_read_b128 v[32:35], v96 offset:{LAGG+256}
    ds_read_b128 v[36:39], v96 offset:{LAGG+384}
    """)
    for t in range(4):
        a(f"s_waitcnt lgkmcnt({3-t})")
        for u in range(2):
            a(f"v_cvt_f32_f64 v{8+4*u+t}, {vr(24+4*t+2*u,2)}")
    for i in range(4):
        a(f"v_pk_add_f32 {vr(8+2*i,2)}, {vr(8+2*i,2)}, {vr(60+2*i,2)}")
    for i in range(4):
        a(f"v_pk_mul_f32 {vr(16+2*i,2)}, {vr(8+2*i,2)}, {sp(t2)}")
    for i in range(8):
        a(f"v_exp_f32 v{16+i}, v{16+i}")
    for i in range(4):
        a(f"v_pk_add_f32 {vr(16+2*i,2)}, {vr(16+2*i,2)}, 1.0 op_sel_hi:[1,0]")
    for i in range(8):
        a(f"v_rcp_f32 v{16+i}, v{16+i}")
    for i in range(4):
        a(f"v_pk_mul_f32 {vr(16+2*i,2)}, {vr(16+2*i,2)}, {vr(8+2*i,2)}")
    for i in range(4):
        a(f"v_cvt_pk_bf16_f32 v{8+i}, v{16+2*i}, v{17+2*i}")
    a(f"""
    global_store_dwordx4 v97, v[8:11], {sp(sOUT)} {os.environ.get('OF', 'sc1')}
    s_branch L_FIN
    L_EPO:
    s_lshl_b32 s{t0}, s2, 4
    s_add_u32 s{t0}, s{t0}, s{sW}
    s_cmp_eq_u32 s{t0}, 12
    s_cbranch_scc0 L_FIN
    v_mov_b32 v4, {WS_EPOCH}
    v_mov_b32 v5, s{sEP}
    s_mov_b64 exec, 1
    global_store_dword v4, v5, {sp(sWS)} sc1
    s_mov_b64 exec, -1
    L_FIN:
    """)
    if PROBE:
        a(f"""
        s_lshl_b32 s{t0}, s2, 4
        s_add_u32 s{t0}, s{t0}, s{sW}
        s_cmp_eq_u32 s{t0}, {PROBE[0]}
        s_cbranch_scc0 L_PX
        s_memrealtime s[84:85]
        s_sub_u32 s96, s96, s94
        s_lshl_b32 s96, s96, 3
        s_min_u32 s96, s96, 100000
        s_waitcnt lgkmcnt(0)
        L_PS:
        s_memrealtime s[86:87]
        s_waitcnt lgkmcnt(0)
        s_sub_u32 s86, s86, s84
        s_cmp_lt_u32 s86, s96
        s_cbranch_scc1 L_PS
        L_PX:
        """)
    if stamp:
        a("s_waitcnt vmcnt(0)")
        mark(11)
        a("s_waitcnt lgkmcnt(0)")
        for i_, m_ in enumerate(sorted(SLOT)):
            a(f"v_writelane_b32 v107, s{SLOT[m_]}, {i_}")
        a(f"""
        s_lshl_b32 s3, s2, 4
        s_add_u32 s3, s3, s{sW}
        s_lshl_b32 s3, s3, 6
        s_add_u32 s3, s3, {WS_STAMP}
        v_lshl_add_u32 v4, v{vL}, 2, s3
        s_mov_b64 exec, 0xffff
        global_store_dword v4, v107, {sp(sWS)}
        s_mov_b64 exec, 0xffff0000
        v_add_u32 v4, {0x40000 - 64}, v4
        global_store_dword v4, v107, {sp(sWS)}
        """)
    a("s_endpgm")
    a(f"""
    L_POLL2:
    s_sub_u32 s{sSPIN}, s{sSPIN}, 1
    s_cbranch_scc1 L_POLLX
    s_sleep 2
    buffer_load_dwordx2 v[88:89], v{vOFFa}, {sq(SRD_W)}, 0 offen sc1
    s_branch L_POLL
    L_POLLX:
    v_mov_b32 v88, 0
    s_mov_b32 s{sSPIN}, 0
    s_branch L_POLLED
    """)
    a(f"""
    """)
    if "late_sig" in X:
        a(f"""
        L_TSIG:
        s_add_u32 s{t2}, s{sH}, s{sB}
        s_lshl_b32 s{t2}, s{t2}, 7
        s_add_u32 s{t2}, s{t2}, {WS_TF}
        v_mov_b32 v8, s{t2}
        v_mov_b32 v4, s{sTAG}
        v_mov_b32 v5, s{sTAG2}
        s_mov_b64 exec, 1
        s_waitcnt vmcnt(1)
        ds_add_rtn_u32 v7, v{vF}, v{vONE} offset:{F_TD}
        s_waitcnt lgkmcnt(0)
        v_cmp_eq_u32 vcc, 3, v7
        s_cbranch_vccz L_PW
        global_store_dwordx2 v8, v[4:5], {sp(sWS)} sc1
        s_mov_b64 exec, {sp(sM)}
        s_waitcnt vmcnt(1)
        s_branch L_POLL1
        """)
    a(f"""
    L_TP2:
    s_sub_u32 s{sSPIN}, s{sSPIN}, 1
    s_cbranch_scc1 L_TX
    s_sleep 2
    global_load_dwordx2 v[70:71], v{vTFa}, {sp(sWS)} sc1
    s_waitcnt vmcnt(0)
    s_branch L_TP
    L_TX:
    s_mov_b32 s{sSPIN}, 0
    s_branch L_TRDY
    """)
    a(f"""
    L_FEW:
    s_waitcnt lgkmcnt(0)
    """)
    leftover()
    a(f"""
    s_cmp_eq_u32 s{t2}, 0
    s_cbranch_scc1 L_LD
    v_mov_b32 v5, -1
    s_branch L_PRE
    L_REDO0:
    s_mov_b32 s{sRET}, 0
    s_branch L_REDO
    L_REDO1:
    s_mov_b32 s{sRET}, 1
    L_REDO:
    ds_read_b64 v[76:77], v{vP}
    ds_read_b32 v{vCk}, v{vP+1}
    v_mov_b64 {vr(vNm,2)}, 0
    v_mov_b64 {vr(vNm+2,2)}, 0
    s_mov_b32 s{t0}, 2
    s_waitcnt lgkmcnt(0)
    """)
    naddr(78, 76)
    a(f"""
    ds_read_b128 {vr(vDn,4)}, v78 offset:{LA}
    L_RD1:
    ds_read_b128 {vr(vAa,4)}, v76
    """)
    eread(vCk, 0)
    a("s_waitcnt lgkmcnt(0)")
    saddr(vAa)
    loads(1, vAa)
    a(f"""
    v_add_u32 v76, 48, v76
    v_add_u32 v{vCk}, 48, v{vCk}
    s_waitcnt vmcnt(0)
    """)
    for g in range(4):
        a(mfma(1, g, vDn))
    for g in range(4):
        a(f"v_lshlrev_b64 {vr(sh(g),2)}, 16, {vr(vW[1]+6*g,2)}")
    a("s_nop 3")
    for i in range(16):
        a(f"v_exp_f32 v{vT+i}, v{vT+i}")
    for i in range(8):
        a(f"v_pk_add_f32 {vr(vT+2*i,2)}, {vr(vT+2*i,2)}, 1.0 op_sel_hi:[1,0]")
    for i in range(16):
        a(f"v_rcp_f32 v{vT+i}, v{vT+i}")
    for g in range(4):
        for h in range(2):
            a(f"v_pk_fma_f32 {vr(vNm+2*h,2)}, {vr(vT+4*g+2*h,2)}, {hv(vW[1],g,h)}, {vr(vNm+2*h,2)}")
    a(f"""
    s_sub_u32 s{t0}, s{t0}, 1
    s_cmp_lg_u32 s{t0}, 0
    s_cbranch_scc1 L_RD1
    """)
    eread(vQE, 0)
    for t in range(4):
        a(f"v_mov_b32 v{vDn+t}, 1.0")
    a(f"""
    s_cmp_eq_u32 s{sRET}, 0
    s_cbranch_scc1 L_RB0
    s_branch L_RB1
    """)
    a(f"""
    L_MORE:
    s_setprio 0
    v_mov_b32 v{vF}, {LFLAG}
    v_mov_b32 v{vONE}, 1
    v_lshlrev_b32 v4, 2, v0
    v_mov_b32 v5, 0
    v_cmp_gt_u32 vcc, 130, v0
    s_mov_b64 exec, vcc
    ds_write_b32 v4, v5 offset:{LCNT}
    s_mov_b64 exec, -1
    s_cmp_lt_u32 s{sW}, 12
    s_cbranch_scc1 L_FILL
    s_branch L_FD
    L_AGAIN:
    s_cmp_eq_u32 s{sBIN}, 0
    s_cbranch_scc0 L_LOADS
    v_subrev_u32 v{vRem}, {4*KMAX}, v{vRem}
    v_add_u32 v{vRO}, {48*KMAX}, v{vRO}
    s_branch L_WINDOW
    L_END:
    """)
    if "oldlay" not in X:
        L = a.l
        i, j, k = L.index("L_NOBIN:"), L.index("L_SETUP:"), L.index("L_STG:")
        assert L[i - 1].strip() == "s_branch L_SETUP"
        blk = L[i:j] + ["    s_branch L_SETUP"]
        a.l = L[:i - 1] + L[j:k] + blk + L[k:]
    return a.text()


def build(stamp=False):
    body = kernel(stamp)
    return f"""; Kernarg layout (80 bytes, pointers): x, e_attr, src, dst, u_w, v_w, g_w, out, debug, ws
; Emitted by my own generator script; hand-written instruction stream.
; @launch grid=(256,1,1) block=(1024,1,1) lds={LDS}
.amdgcn_target "amdgcn-amd-amdhsa--gfx950"
.text
.globl {NAME}
.p2align 8
.type {NAME},@function
{NAME}:
{body}    s_endpgm
.section .rodata,"a"
.p2align 6
.amdhsa_kernel {NAME}
  .amdhsa_next_free_vgpr 128
  .amdhsa_next_free_sgpr 102
  .amdhsa_accum_offset 128
  .amdhsa_group_segment_fixed_size 0
  .amdhsa_kernarg_size 80
  .amdhsa_user_sgpr_count 2
  .amdhsa_user_sgpr_kernarg_segment_ptr 1
  .amdhsa_system_sgpr_workgroup_id_x 1
  .amdhsa_float_denorm_mode_32 3
.end_amdhsa_kernel
"""


if __name__ == "__main__":
    open(sys.argv[1], "w").write(build(stamp="--stamp" in sys.argv))
```

```python
import sys, os
X = set(os.environ.get('X', '').split('+')) | {'u64', 'tprio'}
NAME = "standalone__edge_featured_mpnn_egc__graph_kernel"
N, E = 10000, 320000
NB, NBK, CH, NCH = 80, 128, 1250, 256
CHB = 15360
T_HALF = N * 256
RB = 12
WS_T, WS_REC, WS_OFF, WS_TF, WS_EPOCH, WS_STAMP = 0, 0x500000, 0xA00000, 0xA40000, 0xA80000, 0xB00000
NLOG2E = 0xBFB8AA3B
KA = dict(x=0, e=8, src=16, dst=24, u=32, v=40, g=48, out=56, dbg=64, ws=72)
AST, GST = 272, 528
LA, LAGG = 0, NB * AST
LHIST = LAGG + NB * GST
LCNT, LFLAG, LDUM = LHIST + 512, LHIST + 1024, LHIST + 1056
F_MORE, F_NQ, F_PUB, F_RV, F_LAND, F_EP = 0, 4, 8, 12, 16, 20
LSTART, LCW = LHIST + 1280, LHIST + 1792
LW = LHIST + 2304
LX = LW + 65536
UST = 136
LU = LX + 20480
LDS = LU + (0 if 'u64' in X else NB * UST)
LSLOT, SLOTB, CAP = LW, 784, 64
LTAB = LX
assert LSTART < 65536
KMAX = 7
DUMMY = 0x400000
SPIN = 1 << 22
assert LW % 256 == 0 and LDS <= 163840


class Asm:
    def __init__(self):
        self.l = []

    def __call__(self, s):
        for ln in s.strip("\n").split("\n"):
            ln = ln.strip()
            if ln:
                self.l.append(ln if ln.endswith(":") else "    " + ln)

    def text(self):
        return "\n".join(self.l) + "\n"


def f2h(f):
    import struct
    return hex(struct.unpack('<I', struct.pack('<f', f))[0])


def vr(a, n):
    return f"v[{a}:{a+n-1}]" if n > 1 else f"v{a}"


def sp(a):
    return f"s[{a}:{a+1}]"


def sq(a):
    return f"s[{a}:{a+3}]"


def srd(a, d, base, off, size):
    a(f"s_add_u32 s{d}, s{base}, {off}\ns_addc_u32 s{d+1}, s{base+1}, 0")
    a(f"s_mov_b32 s{d+2}, {size}\ns_mov_b32 s{d+3}, 0x20000")


def scan64(a, v):
    for ctl in ("row_shr:1", "row_shr:2", "row_shr:4", "row_shr:8"):
        a(f"s_nop 1\nv_add_u32_dpp v{v}, v{v}, v{v} {ctl} row_mask:0xf bank_mask:0xf")
    a(f"s_nop 1\nv_add_u32_dpp v{v}, v{v}, v{v} row_bcast:15 row_mask:0xa bank_mask:0xf")
    a(f"s_nop 1\nv_add_u32_dpp v{v}, v{v}, v{v} row_bcast:31 row_mask:0xc bank_mask:0xf")


def kernel(stamp):
    a = Asm()
    PROBE = [int(x) for x in os.environ["PROBE"].split(",")] if os.environ.get("PROBE") else None
    MARKS = set(int(x) for x in os.environ["MARKS"].split(",")) if os.environ.get("MARKS") else None

    FREE = [4, 6, 8, 10, 12, 14, 16, 20, 98]
    SLOT = {0: 94}
    if stamp:
        for m_ in sorted((MARKS or set()) - {0}):
            SLOT[m_] = FREE.pop(0)

    def mark(n):
        if stamp and n in SLOT:
            a(f"s_memrealtime s[{SLOT[n]}:{SLOT[n]+1}]")
        if PROBE and n in PROBE[1:]:
            r = 94 + 2 * PROBE[1:].index(n)
            a(f"s_memrealtime s[{r}:{r+1}]\ns_waitcnt lgkmcnt(0)")

    sRW = 3
    sX, sE, sSRC, sDST, sU, sV, sG, sOUT, sDBG, sWS = 4, 6, 8, 10, 12, 14, 16, 18, 20, 22
    SRD_T, SRD_R, SRD_W = 24, 28, 32
    sM = 36
    sN, sBIN, sT0, sFIRST = 50, 51, 52, 53
    t0, t1, t2, t3 = 54, 55, 56, 57
    sMORE, sW = 58, 59
    sINC, s12, sTHR, sEM = 60, 62, 64, 66
    sH, sB, sC, sEP, sTAG, sTAG2, sSPIN, sLG = 68, 69, 70, 71, 72, 73, 74, 75
    sTAGB, sN0, sNB = 100, 101, 1
    sU5, sU4 = 76, 78
    sO = 80
    vL, vLO, vAo, vRO, vRem = 1, 2, 108, 126, 127
    vF, vONE = 124, 125
    vWf, vXb, vAcc, vPk, vA, vXa, vRow, vJn = 8, 40, 72, 88, 100, 96, 101, 102
    vOFFa, vR4, vCwa = 103, 104, 105
    LNT = "" if "nont" in X else "nt"
    XNT = "nt" if "xnt" in X else ""
    DNT = LNT if "dnt" in X else ""
    SNT = "" if "splain" in X else LNT
    CNT_ = "nt" if "cwnt" in X else ""
    WNT = "nt" if "wwnt" in X else ""

    RPF = 0
    vRp = 106

    def pollreq():
        a(f"buffer_load_dwordx2 v[88:89], v{vOFFa}, {sq(SRD_W)}, 0 offen sc1")
        a(f"ds_read_b32 v90, v{vF} offset:{F_EP}")

    def recpf():
        if RPF:
            a(f"""
            s_mov_b64 exec, {hex((1 << RPF) - 1)}
            buffer_load_dword v91, v{vRp}, {sq(SRD_R)}, 0 offen sc1
            s_mov_b64 exec, -1
            """)

    def spin(label, off, cond, val, slp=0):
        a(f"""
        {label}:
        s_sub_u32 s{sSPIN}, s{sSPIN}, 1
        s_cbranch_scc1 L_END
        {f"s_sleep {slp}" if slp else ""}
        ds_read_b32 v7, v{vF} offset:{off}
        s_waitcnt lgkmcnt(0)
        """)
        if cond == "lowne":
            a(f"v_and_b32 v7, 0xff, v7\nv_cmp_ne_u32 vcc, {val}, v7")
        elif cond == "midne":
            a(f"v_cmp_ne_u32 vcc, {val}, v7")
        else:
            a(f"v_cmp_{cond}_u32 vcc, {val}, v7")
        a(f"s_cbranch_vccnz {label}")

    mark(0)
    a(f"""
    s_load_dwordx16 s[4:19], s[0:1], 0
    s_load_dwordx4 s[20:23], s[0:1], {KA['dbg']}
    s_lshr_b32 s{sB}, s2, 3
    """)
    if "latewarm" not in X:
        a(f"""
        s_getpc_b64 {sp(t0)}
        L_PC:
        s_mul_i32 s{t3}, s{sB}, 384
        v_lshl_add_u32 v6, v0, 7, s{t3}
        v_cmp_gt_u32 vcc, 3, v0
        v_min_u32 v6, L_END-L_PC, v6
        s_cbranch_vccz L_NOCW
        s_mov_b64 exec, vcc
        global_load_dword v9, v6, {sp(t0)} {CNT_}
        s_mov_b64 exec, -1
        L_NOCW:
        """)
    a(f"""
    s_bfe_u32 s{t0}, s2, 0x20001
    s_lshl_b32 s{t0}, s{t0}, 5
    s_add_u32 s{sB}, s{sB}, s{t0}
    s_mul_i32 s{sN0}, s{sB}, 625
    s_add_u32 s{sN0}, s{sN0}, 7
    s_lshr_b32 s{sN0}, s{sN0}, 3
    s_lshl_b32 s{sN0}, s{sN0}, 8
    s_cmp_ge_u32 s2, 256
    s_cbranch_scc1 L_END
    v_lshrrev_b32 v4, 6, v0
    v_and_b32 v{vL}, 63, v0
    v_readfirstlane_b32 s{sW}, v4
    s_and_b32 s{t0}, s2, 1
    s_lshl_b32 s{sH}, s{t0}, 7                    ; half*128
    s_lshl_b32 s{sC}, s{sB}, 1
    s_add_u32 s{sC}, s{sC}, s{t0}                 ; chunk
    s_sub_u32 s{sRW}, s{sW}, 5
    s_cmp_lt_u32 s{sRW}, 5
    s_cbranch_scc0 L_NOBIN
    """)
    B1 = "s_barrier                                     ; B1"
    HM = "s_mov_b32 exec_hi, 0x1fffffff"
    FM = "s_mov_b32 exec_hi, -1"
    a(f"""
    s_mul_i32 s{t1}, s{sC}, {CH*4}
    s_mul_i32 s{t2}, s{sRW}, 1000
    s_add_u32 s{t1}, s{t1}, s{t2}
    v_lshl_add_u32 v20, v{vL}, 3, s{t1}
    v_lshlrev_b32 v21, 1, v20
    s_setprio 3
    s_mov_b32 s{sBIN}, 1
    s_waitcnt lgkmcnt(0)
    global_load_dwordx2 v[4:5], v20, {sp(sDST)}
    {HM}
    global_load_dwordx2 v[6:7], v20, {sp(sDST)} offset:512
    {B1}
    global_load_dwordx2 v[10:11], v20, {sp(sSRC)} offset:512 nt
    {FM}
    global_load_dwordx2 v[8:9], v20, {sp(sSRC)} nt
    global_load_dwordx4 v[12:15], v21, {sp(sE)} nt
    {HM}
    global_load_dwordx4 v[16:19], v21, {sp(sE)} offset:1024 nt
    {FM}
    """)
    a(f"""
    s_mul_i32 s{t0}, s{sC}, {CHB}
    s_add_u32 s{t0}, s{t0}, {WS_REC}
    """)
    srd(a, SRD_W, sWS, f"s{t0}", (CH * RB + 127) // 128 * 128)
    a(f"""
    s_add_u32 s{t2}, s{sWS}, {WS_EPOCH}
    s_addc_u32 s{t3}, s{sWS+1}, 0
    s_load_dword s{sEP}, {sp(t2)}, 0
    """)
    a(f"""
    s_branch L_SETUP
    L_NOBIN:
    s_mov_b32 s{sBIN}, 0
    s_cmp_lt_u32 s{sW}, 10
    s_cbranch_scc1 L_B1
    s_cmp_eq_u32 s{sW}, 15
    s_cbranch_scc1 L_WARM
    v_lshlrev_b32 v12, 2, v0
    v_lshrrev_b32 v16, 2, v0
    v_cmp_eq_u32 vcc, {(640 + (LDUM - LHIST) // 4) // 4}, v16
    v_mov_b32 v15, {DUMMY}
    s_mov_b64 {sp(t0)}, vcc
    v_cmp_eq_u32 vcc, {(640 + (LDUM - LHIST) // 4) // 4 + 3}, v16
    s_or_b64 vcc, vcc, {sp(t0)}
    v_cndmask_b32 v13, 0, v15, vcc
    ds_write_b32 v12, v13 offset:{LHIST - 2560}
    s_branch L_B1
    L_WARM:
    """)
    a(f"""
    s_lshr_b32 s{t2}, s2, 3
    s_mul_i32 s{t2}, s{t2}, 9
    v_add_u32 v6, s{t2}, v{vL}
    v_min_u32 v8, 259, v6
    v_lshl_add_u32 v8, v8, 8, s{sH}
    s_lshr_b32 s{t2}, s{t2}, 1
    v_add_u32 v6, s{t2}, v{vL}
    v_min_u32 v6, 127, v6
    v_lshl_add_u32 v6, v6, 8, s{sH}
    v_lshrrev_b32 v4, 4, v{vL}
    v_and_b32 v5, 15, v{vL}
    v_lshl_add_u32 v4, v5, 2, v4
    s_add_u32 s{t2}, s{sH}, {256*256}
    v_lshl_add_u32 v4, v4, 1, s{t2}
    s_waitcnt lgkmcnt(0)
    s_mov_b64 exec, 0x1ff
    global_load_dword v9, v8, {sp(sG)} {WNT}
    s_mov_b64 exec, 31
    global_load_dword v9, v6, {sp(sV)} {WNT}
    global_load_dword v9, v6, {sp(sU)} {WNT}
    s_mov_b64 exec, -1
    global_load_short_d16_hi v10, v4, {sp(sG)}
    global_load_short_d16_hi v11, v4, {sp(sG)} offset:256
    global_load_short_d16_hi v12, v4, {sp(sG)} offset:512
    global_load_short_d16_hi v13, v4, {sp(sG)} offset:768
    L_B1:
    s_waitcnt lgkmcnt(0)
    s_barrier                                     ; B1
    """)
    if "xlate" in X:
        a(f"""
        s_cmp_eq_u32 s{sW}, 10
        s_cselect_b32 s{sRW}, 1, 0
        s_cbranch_scc1 L_XL
        s_cmp_eq_u32 s{sW}, 4
        s_cbranch_scc1 L_XL
        """)
    else:
        a(f"""
        s_mov_b32 s{sRW}, s{sW}
        s_cmp_lt_u32 s{sW}, 2
        s_cbranch_scc1 L_XL
        """)
    a(f"""
    s_cmp_lt_u32 s{sW}, 5
    s_cselect_b32 s{sRW}, {0 if "xlate" in X else 2}, 7
    s_sub_u32 s{sRW}, s{sW}, s{sRW}
    v_lshrrev_b32 v26, 3, v{vL}
    v_lshlrev_b32 v26, 8, v26
    v_and_b32 v28, 7, v{vL}
    v_lshlrev_b32 v28, 4, v28
    v_and_b32 v27, 16, v{vL}
    v_lshlrev_b32 v27, 1, v27
    v_xor_b32 v28, v28, v27
    v_add3_u32 v26, v26, v28, s{sH}
    v_xor_b32 v27, 64, v26
    s_add_u32 s{SRD_W}, s{sG}, {128*256}
    s_addc_u32 s{SRD_W+1}, s{sG+1}, 0
    s_cmp_ge_u32 s{sRW}, 2
    s_cselect_b64 {sp(SRD_W)}, {sp(sV)}, {sp(SRD_W)}
    s_cmp_ge_u32 s{sRW}, 4
    s_cselect_b64 {sp(SRD_W)}, {sp(sG)}, {sp(SRD_W)}
    s_cmp_ge_u32 s{sRW}, 6
    s_cselect_b64 {sp(SRD_W)}, {sp(sU)}, {sp(SRD_W)}
    s_mov_b32 s{SRD_W+2}, {128*256}
    s_mov_b32 s{SRD_W+3}, 0x20000
    s_cmp_ge_u32 s{sRW}, 4
    {"s_barrier" if "b1b" in X else ""}
    s_cbranch_scc1 L_SETUP
    """)
    if "u64" not in X:
        a(f"""
        v_lshlrev_b32 v17, 4, v0
        v_mov_b64 v[20:21], 0
        v_mov_b64 v[22:23], 0
        v_min_u32 v18, {11264 + NB * GST - 8 * 5120 - 16}, v17
        """)
    for i in range(0 if "u64" in X else 9):
        a(f"ds_write_b128 v{17 if i < 8 else 18}, v[20:23] offset:{LAGG - 11264 + 5120 * i}")

    def wdma(lab):
        a(f"""
        s_and_b32 s{t0}, s{sRW}, 1
        s_lshl_b32 s{t0}, s{t0}, 14
        s_lshl_b32 s{t1}, s{sRW}, 13
        s_add_u32 s{t1}, s{t1}, {LW}
        s_mov_b32 s{t2}, 4
        {lab}:
        s_mov_b32 m0, s{t1}
        s_add_u32 s{t3}, s{t0}, 1024
        buffer_load_dwordx4 v26, {sq(SRD_W)}, s{t0} offen lds
        buffer_load_dwordx4 v27, {sq(SRD_W)}, s{t3} offen offset:1024 lds
        s_add_u32 s{t0}, s{t0}, 4096
        s_add_u32 s{t1}, s{t1}, 2048
        s_sub_u32 s{t2}, s{t2}, 1
        s_cmp_lg_u32 s{t2}, 0
        s_cbranch_scc1 {lab}
        """)

    wdma("L_WL")
    a(f"""
    s_branch L_SETUP
    L_XL:
    v_lshrrev_b32 v4, 4, v{vL}
    v_and_b32 v5, 15, v{vL}
    v_xor_b32 v5, v5, v4
    v_lshlrev_b32 v5, 4, v5
    s_lshl_b32 s{t1}, s{sRW}, 7
    v_xor_b32 v5, s{t1}, v5
    s_mul_i32 s{t0}, s{sRW}, 10240
    s_add_u32 s{t2}, s{sN0}, s{t0}
    s_sub_u32 s{t3}, {N*256}, s{t2}
    v_lshl_add_u32 v4, v4, 8, v5
    s_add_u32 s{t1}, s{t0}, {LX}
    v_xor_b32 v5, 64, v4
    v_xor_b32 v6, 0x80, v4
    v_xor_b32 v7, 0xc0, v4
    v_mov_b32 v26, 0
    v_mov_b32 v27, 0
    """)
    srd(a, SRD_W, sX, f"s{t2}", f"s{t3}")
    a(f"s_mov_b32 s{t0}, 0\ns_mov_b32 s{sRW}, 0")
    if "b1b" in X:
        a("s_barrier")
    for i in range(10):
        if i % 4 == 0:
            a(f"s_mov_b32 m0, s{t1}\ns_add_u32 s{t1}, s{t1}, 4096")
        a(f"buffer_load_dwordx4 v{4+i%4}, {sq(SRD_W)}, s{t0} offen offset:{1024*(i%4)} {XNT} lds")
        if i % 4 == 3:
            a(f"s_add_u32 s{t0}, s{t0}, 4096")
    a(f"""
    L_SETUP:
    s_and_b32 s{sT0}, s{sW}, 3
    s_cmp_ge_u32 s{sW}, 12
    s_cselect_b32 s{t0}, {2*16384}, 0
    s_add_u32 s{t0}, s{t0}, {LW}
    s_mov_b32 s{t1}, {LX}
    v_lshrrev_b32 v40, 4, v{vL}                   ; sigma
    v_bfe_u32 v41, v{vL}, 2, 2
    v_and_b32 v42, 3, v{vL}
    v_and_b32 v{vJn}, 15, v{vL}
    v_lshlrev_b32 v43, 10, v40
    v_lshlrev_b32 v44, 7, v41
    v_lshl_add_u32 v44, v42, 3, v44
    v_bfe_u32 v45, v{vL}, 3, 2
    v_xor_b32 v45, s{sT0}, v45
    v_lshl_add_u32 v45, v45, 5, v44
    v_add3_u32 v{vA}, v43, v45, s{t0}
    s_lshl_b32 s{t0}, s{sT0}, 2
    v_add_u32 v{vRow}, s{t0}, v40
    v_xor_b32 v43, v{vJn}, v40
    v_lshlrev_b32 v43, 4, v43
    v_lshlrev_b32 v44, 8, v{vJn}
    v_add3_u32 v{vXa}, v43, v44, s{t1}
    v_xor_b32 v{vXa+1}, 64, v{vXa}
    v_xor_b32 v{vXa+2}, 0x80, v{vXa}
    v_xor_b32 v{vXa+3}, 0xc0, v{vXa}
    s_mov_b32 s{t0}, {LCW}
    v_lshl_add_u32 v{vCwa}, v{vL}, 3, s{t0}
    v_cmp_eq_u32 vcc, v40, v41
    v_mov_b32 v43, 0x3f80
    v_cmp_eq_u32 {sp(sEM)}, v40, v42
    v_cndmask_b32 v{vAo}, 0, v43, vcc
    v_mov_b32 v{vAo+1}, 0
    v_lshlrev_b32 v42, 4, v42
    v_lshlrev_b64 {vr(vAo,2)}, v42, {vr(vAo,2)}
    """)
    for g in range(4):
        if g:
            a(f"v_mov_b64 {vr(vAo+4*g,2)}, {vr(vAo,2)}")
        a(f"v_mov_b64 {vr(vAo+4*g+2,2)}, 0")
    a(f"""
    v_lshlrev_b32 v{vLO}, 4, v{vJn}
    v_lshlrev_b32 v{vLO+1}, 3, v{vJn}
    v_add_u32 v{vLO+1}, {LAGG}, v{vLO+1}
    v_lshrrev_b32 v40, 2, v0
    s_lshl_b32 s{t0}, s{sB}, 3
    v_lshl_add_u32 v{vOFFa}, v40, 10, s{t0}
    v_mul_u32_u24 v{vRO}, {CHB}, v40
    v_mov_b32 v{vF}, {LFLAG}
    v_mov_b32 v{vONE}, 1
    s_and_b32 s{t0}, s{sB}, 7
    s_cmp_eq_u32 s{t0}, 0
    s_addc_u32 s{sNB}, 78, 0
    s_mov_b32 s{sLG}, {hex(NLOG2E)}
    s_mov_b32 s{s12}, {f2h(AST/256)}
    s_mov_b32 s{s12+1}, {f2h(GST/256)}
    s_mov_b32 s{sINC}, 512
    s_mov_b32 s{sINC+1}, 512
    s_mov_b32 s{sTHR}, 0x5f800000
    s_mov_b32 s{sFIRST}, 1
    s_mov_b32 s{sSPIN}, {SPIN}
    s_mul_i32 s{t1}, s{sH}, {T_HALF//128}
    """)
    srd(a, SRD_T, sWS, f"s{t1}", T_HALF)
    srd(a, SRD_R, sWS, WS_REC, NCH * CHB)
    a(f"""
    s_cmp_eq_u32 s{sBIN}, 0
    s_cbranch_scc1 L_STG
    s_mov_b32 s{t0}, 429497
    s_mov_b32 s{t1}, 625
    v_lshlrev_b32 v33, 3, v{vL}
    s_mul_i32 s{t2}, s{sRW}, 3072
    v_lshl_add_u32 v32, v{vL}, 4, s{t2}
    s_waitcnt vmcnt(4)
    """)
    mark(1)
    for i in range(4):
        a(f"""
        {HM if i == 2 else ""}
        v_mul_u32_u24 v{24+i}, s{t0}, v{4+i}
        v_lshrrev_b32 v{24+i}, 25, v{24+i}
        v_lshlrev_b32 v{20+i}, 2, v{24+i}
        ds_add_rtn_u32 v{28+i}, v{20+i}, v{vONE} offset:{LHIST}
        """)
    a(f"""
    s_mov_b64 exec, 1
    ds_add_u32 v{vF}, v{vONE} offset:{F_RV}
    s_mov_b64 exec, -1
    """)
    for i in range(4):
        a(f"""
        v_mad_u32_u24 v{24+i}, v{24+i}, s{t1}, 7
        v_lshrrev_b32 v{24+i}, 3, v{24+i}
        v_sub_u32 v{24+i}, v{4+i}, v{24+i}
        """)
    a("s_mov_b64 exec, 1")
    if "spr" in X:
        a("s_setprio 1")
    spin("L_BS1", F_RV, "gt", 5, int(os.environ.get("SLB", 0)))
    if "spr" in X:
        a("s_setprio 3")
    mark(15)
    a(f"""
    s_mov_b64 exec, -1
    ds_read_b64 v[34:35], v33 offset:{LHIST}
    s_add_u32 s{sEP}, s{sEP}, 1
    s_xor_b32 s{sTAG2}, s{sEP}, 0x2545F491
    s_mul_i32 s{sTAG}, s{sTAG2}, 0x9E3779B1
    s_mul_i32 s{sTAG2}, s{sTAG2}, 0x85EBCA6B
    s_lshr_b32 s{sTAGB}, s{sTAG2}, 25
    s_waitcnt lgkmcnt(0)
    v_add_u32 v36, v34, v35
    v_mov_b32 v37, v36
    """)
    scan64(a, 37)
    a(f"""
    v_sub_u32 v38, v37, v36
    v_add_u32 v39, v38, v34
    v_mul_u32_u24 v38, {RB}, v38
    v_mul_u32_u24 v39, {RB}, v39
    ds_write_b64 v33, v[38:39] offset:{LSTART}
    """)
    for i in range(4):
        a(f"{HM if i == 2 else ''}\nds_read_b32 v{20+i}, v{20+i} offset:{LSTART}")
    a(FM)
    a(f"""
    s_lshl_b32 s{t0}, s{sTAGB}, 25
    s_lshl_b32 s{t1}, s{sC}, 10
    s_add_u32 s{t1}, s{t1}, {WS_OFF}
    v_lshl_or_b32 v48, v34, 14, v38
    v_lshl_or_b32 v50, v35, 14, v39
    v_or_b32 v48, s{t0}, v48
    v_or_b32 v50, s{t0}, v50
    v_mov_b32 v49, s{sTAG}
    v_mov_b32 v51, s{sTAG}
    v_lshl_add_u32 v52, v{vL}, 4, s{t1}
    """)
    mark(16)
    a(f"""
    s_waitcnt vmcnt(2) lgkmcnt(0)
    """)
    for i in range(4):
        a(f"""
        {HM if i == 2 else ""}
        v_mad_u32_u24 v{20+i}, v{28+i}, {RB}, v{20+i}
        v_lshl_or_b32 v{24+i}, v{8+i}, 8, v{24+i}
        ds_write_b32 v{20+i}, v{24+i} offset:8
        """)
    for i in range(4):
        if i % 2 == 0:
            a(f"{HM if i else FM}\ns_waitcnt vmcnt({1 - i // 2})")
        a(f"ds_write2_b32 v{20+i}, v{12+2*i}, v{13+2*i} offset0:0 offset1:1")
    mark(13)
    a(f"""
    s_mov_b64 exec, 1
    ds_add_u32 v{vF}, v{vONE} offset:{F_RV}
    """)
    if "spr" in X:
        a("s_setprio 1")
    spin("L_BS2", F_RV, "gt", 10, int(os.environ.get("SLB", 0)))
    if "spr" in X:
        a("s_setprio 3")
    a("s_mov_b64 exec, -1")
    for i in range(3):
        a(f"ds_read_b128 {vr(8+4*i,4)}, v32 offset:{1024*i}")
    for i in range(3):
        a(f"s_waitcnt lgkmcnt({2-i})\nbuffer_store_dwordx4 {vr(8+4*i,4)}, v32, {sq(SRD_W)}, 0 offen offset:{1024*i} sc1")
    a(f"""
    s_mov_b64 exec, 1
    ds_add_u32 v{vF}, v{vONE} offset:{F_RV}
    """)
    mark(2)
    a(f"""
    s_waitcnt vmcnt(0)
    ds_add_rtn_u32 v7, v{vF}, v{vONE} offset:{F_PUB}
    s_waitcnt lgkmcnt(0)
    v_cmp_eq_u32 vcc, 4, v7
    s_mov_b64 exec, -1
    s_cbranch_vccz L_NOPUB
    global_store_dwordx4 v52, v[48:51], {sp(sWS)} sc1
    L_NOPUB:
    s_setprio 0
    v_mov_b32 v4, s{sEP}
    ds_write_b32 v{vF}, v4 offset:{F_EP}
    """)
    mark(4)
    a(f"""
    s_cmp_eq_u32 s{sW}, 5
    s_cbranch_scc0 L_GD
    s_add_u32 s{t2}, s{sH}, s{sB}
    s_lshl_b32 s{t2}, s{t2}, 7
    s_add_u32 s{t2}, s{t2}, {WS_TF}
    v_mov_b32 v8, s{t2}
    v_mov_b32 v10, s{sTAG}
    v_mov_b32 v11, s{sTAG2}
    """)
    srd(a, SRD_W, sWS, WS_OFF, NCH * 1024)
    a(f"""
    s_mov_b64 exec, 1
    s_waitcnt lgkmcnt(0)
    s_barrier                                     ; B5
    global_store_dwordx2 v8, v[10:11], {sp(sWS)} sc1
    s_mov_b64 exec, -1
    s_branch L_TSD
    L_STG:
    v_mov_b32 v6, 1
    s_cmp_lt_u32 s{sRW}, 4
    s_cbranch_scc1 L_EARLY
    s_cmp_eq_u32 s{sRW}, 8
    s_cbranch_scc1 L_GC
    """)
    a(f"""
    s_mov_b64 exec, 1
    """)
    spin("L_BS3", F_RV, "gt", 15, int(os.environ.get("SL3", 4)))
    a("s_mov_b64 exec, -1")
    wdma("L_WL2")
    a(f"""
    v_mov_b32 v6, 0x100
    L_EARLY:
    s_mov_b64 exec, 1
    s_waitcnt vmcnt(0)
    ds_add_u32 v{vF}, v6 offset:{F_LAND}
    """)
    mark(13)
    a(f"""
    s_cmp_ge_u32 s{sW}, 12
    s_cbranch_scc1 L_LAND2
    s_cmp_ge_u32 s{sW}, 4
    s_cbranch_scc1 L_GD
    """)
    spin("L_LAND1", F_LAND, "lowne", 6, int(os.environ.get("SL1", 0)))
    a("s_mov_b64 exec, -1")
    if "tprio" in X:
        a("s_setprio 2")
    mark(3)

    def gemm(epi, pre, post=None, hook=None):
        def xr(n, ks):
            a(f"ds_read_b128 {vr(vXb+16*(n&1)+4*ks,4)}, v{vXa+ks} offset:{4096*n}")
        for ks in range(4):
            xr(0, ks)
            for m in range(2):
                o = m * 16384 + ks * 4096
                r = vWf + 16 * m + 4 * ks
                a(f"ds_read_b64_tr_b16 {vr(r,2)}, v{vA} offset:{o}")
                a(f"ds_read_b64_tr_b16 {vr(r+2,2)}, v{vA} offset:{o+512}")
            if ks == 1:
                pre()
                a("s_waitcnt lgkmcnt(4)")
        a("s_waitcnt lgkmcnt(9)")
        for ks in range(4):
            xr(1, ks)
        if hook:
            hook(-1)
        for n in range(6):
            ops = epi(n - 1) if n else []
            tail = [o[1:] for o in ops if o[0] == "@"]
            ops = [o for o in ops if o[0] != "@"]
            if n == 5:
                ops += tail
                if post:
                    a("s_nop 3")
                    for o in ops[:-4]:
                        a(o)
                    a("s_waitcnt lgkmcnt(0)")
                    post(3)
                    for o in ops[-4:]:
                        a(o)
                    a("s_waitcnt lgkmcnt(0)")
                    post(4)
                    break
                a("s_nop 7")
                for o in ops:
                    a(o)
                break
            late = post and n >= 2
            a(f"s_waitcnt lgkmcnt({(4 if n < 4 else 0) + (4 if late else 0)})")
            if n == 0:
                mark(21)
            per = -(-len(ops) // 5)
            for ks in range(4):
                for m in range(2):
                    acc = vAcc + 8 * (n & 1) + 4 * m
                    c = "0" if ks == 0 else vr(acc, 4)
                    a(f"v_mfma_f32_16x16x32_bf16 {vr(acc,4)}, {vr(vWf+16*m+4*ks,4)}, {vr(vXb+16*(n&1)+4*ks,4)}, {c}")
                    if late and 2 * ks + m == 3:
                        a(f"s_waitcnt lgkmcnt({4 if n < 4 else 0})")
                        post(n - 2)
                    if 2 * ks + m >= 3:
                        for o in ops[:per]:
                            a(o)
                        ops = ops[per:]
            assert not ops
            for o in tail:
                a(o)
            if n + 2 < 5:
                for ks in range(4):
                    xr(n + 2, ks)
            elif n == 3:
                a("s_nop 3")
            if hook:
                hook(n)

    def t_pre():
        a(f"""
        s_mov_b32 s{t0}, s{sN0}
        s_lshl_b32 s{t2}, s{sNB}, 2
        s_sub_u32 s{t2}, 320, s{t2}
        s_lshr_b32 s{t2}, -1, s{t2}
        """)
        if "nobp" in X:
            a(f"""
            v_lshlrev_b32 v4, 8, v{vJn}
            v_lshl_add_u32 v4, v{vRow}, 4, v4
            """)
        else:
            a(f"""
            v_lshrrev_b32 v6, 2, v{vL}
            v_and_b32 v7, 3, v{vL}
            s_lshl_b32 s{t1}, s{sT0}, 6
            v_lshl_add_u32 v4, v6, 8, s{t1}
            v_lshl_add_u32 v4, v7, 4, v4
            v_lshl_add_u32 v5, v7, 4, v6
            v_lshlrev_b32 v5, 2, v5
            """)
        a(f"""
        s_mov_b32 s{t1}, 0x07060302
        s_setreg_imm32_b32 hwreg(HW_REG_MODE, 4, 2), 0
        """)

    def t_epi(n):
        P = vPk + 4 * (n & 1)
        b = [vAcc + 8 * (n & 1) + t for t in range(4)]
        h = [vAcc + 8 * (n & 1) + 4 + t for t in range(4)]
        SD = "clamp dst_sel:DWORD dst_unused:UNUSED_PAD src0_sel:DWORD src1_sel:WORD_1"
        o = [f"v_mul_f32 v{b[t]}, s{sLG}, v{b[t]}" for t in range(4)]
        o += [f"v_add_f32 v{h[t]}, 0, v{h[t]}" for t in (0, 1, 3)]
        o += [f"v_add_u32 v{h[t]}, 0x8000, v{h[t]}" for t in (2, 0, 3, 1)]
        o += [f"v_sub_u32_sdwa v{h[0]}, v{h[0]}, v{h[2]} {SD}",
              f"v_cvt_pk_bf16_f32 v{P+2}, v{b[0]}, v{b[1]}",
              f"v_sub_u32_sdwa v{h[3]}, v{h[3]}, v{h[0]} {SD}",
              f"v_cvt_pk_bf16_f32 v{P+3}, v{b[2]}, v{b[3]}",
              f"v_sub_u32_sdwa v{h[1]}, v{h[1]}, v{h[3]} {SD}",
              f"v_perm_b32 v{P}, v{h[0]}, v{h[2]}, s{t1}",
              f"v_perm_b32 v{P+1}, v{h[1]}, v{h[3]}, s{t1}"]
        if "nobp" in X:
            o += [f"buffer_store_dwordx4 {vr(P,4)}, v4, {sq(SRD_T)}, s{t0} offen sc1",
                  f"s_add_u32 s{t0}, s{t0}, 4096"]
        else:
            o += [f"ds_bpermute_b32 v{P+u}, v5, v{P+u}" for u in (2, 3, 0, 1)]
        return o

    def t_post(n):
        if n == 4:
            a(f"s_mov_b32 exec_hi, s{t2}")
        a(f"buffer_store_dwordx4 {vr(vPk+4*(n&1),4)}, v4, {sq(SRD_T)}, s{t0} offen sc1\ns_add_u32 s{t0}, s{t0}, 4096")

    gemm(t_epi, t_pre, None if "nobp" in X else t_post)
    a(f"""
    s_setreg_imm32_b32 hwreg(HW_REG_MODE, 4, 2), 3
    """)
    a("s_setprio 0\ns_waitcnt vmcnt(0)" if "tprio" in X else "s_waitcnt vmcnt(0)")
    a(f"""
    s_branch L_GD
    L_GC:
    s_mov_b32 s{t0}, 0xffff0000
    s_waitcnt vmcnt(0)
    """)
    for q in range(4):
        a(f"v_and_b32 v{10+q}, s{t0}, v{10+q}")
    for q in range(4):
        a(f"v_mul_f32 v{10+q}, s{sLG}, v{10+q}")
    a(f"""
    v_cvt_pk_bf16_f32 v10, v10, v11
    v_cvt_pk_bf16_f32 v11, v12, v13
    ds_write_b64 v{vCwa}, v[10:11]
    s_mov_b64 exec, 1
    """)
    if "w15slp" in X:
        spin("L_BS5", F_LAND, "gt", 0x100, 4)
    spin("L_LAND2", F_LAND, "ne", 0x406)
    a("s_mov_b64 exec, -1")
    mark(3)

    def au_pre():
        a(f"""
        s_mov_b32 s{t0}, {AST}
        s_mov_b32 s{t1}, {GST if "u64" in X else UST}
        s_mov_b32 s{t2}, {0 if "u64" in X else LU}
        v_lshlrev_b32 v4, 4, v{vRow}
        v_lshl_add_u32 v5, v{vRow}, 3, s{t2}
        v_mad_u32_u24 v4, v{vJn}, s{t0}, v4
        v_mad_u32_u24 v5, v{vJn}, s{t1}, v5
        """)

    def au_epi(n):
        A = vAcc + 8 * (n & 1)
        o = [f"v_mul_f32 v{A+t}, s{sLG}, v{A+t}" for t in range(4)]
        if "u64" in X:
            o += [f"ds_write_b128 v4, {vr(A,4)} offset:{LA+16*AST*n}"]
            D = (92, 94, 104, 6)
            o += ["@" + f"v_cvt_f64_f32 {vr(D[t],2)}, v{A+4+t}" for t in range(4)]
            o += ["@" + f"ds_write_b64 v5, {vr(D[t],2)} offset:{LAGG+16*GST*n+128*t}" for t in range(4)]
            return o
        o += [f"v_cvt_pk_bf16_f32 v{A+4}, v{A+4}, v{A+5}", f"v_cvt_pk_bf16_f32 v{A+5}, v{A+6}, v{A+7}"]
        o += [f"ds_write_b128 v4, {vr(A,4)} offset:{LA+16*AST*n}"]
        o += [f"ds_write_b64 v5, {vr(A+4,2)} offset:{16*UST*n}"]
        return o

    def au_hook(n):
        HB = int(os.environ.get('HB', 0))
        if n == HB:
            srd(a, SRD_W, sWS, WS_OFF, NCH * 1024)
            a("s_waitcnt lgkmcnt(0)\ns_barrier                                     ; B5")
            mark(22)
            pollreq()
        if n == HB + 1:
            a("s_barrier                                     ; B5b")
            recpf()

    gemm(au_epi, au_pre, None, au_hook)
    mark(5)
    a("s_branch L_PW")
    vW = (8, 32)
    vPr = 56
    REC = (8, 14, 20, 26, 32, 38, 44)

    def rec(k):
        return REC[k]

    vP, vTFa, vLf = 94, 100, 96 - 20
    a("L_GD:\ns_mov_b64 exec, -1")
    mark(5)
    srd(a, SRD_W, sWS, WS_OFF, NCH * 1024)
    a(f"""
    s_waitcnt lgkmcnt(0)
    s_barrier
    """)
    mark(22)
    a(f"""
    {"s_sleep " + os.environ["PDELAY"] if os.environ.get("PDELAY") else ""}
    L_TSD:
    """)
    pollreq()
    a(f"""
    L_FILL:
    v_lshrrev_b32 v4, 4, v0
    v_and_b32 v5, 15, v0
    s_mov_b32 s{t0}, {SLOTB}
    v_mov_b32 v6, {LSLOT}
    v_mad_u32_u24 v4, v4, s{t0}, v6
    v_mad_u32_u24 v4, v5, 48, v4
    v_mov_b32 v56, {DUMMY}
    v_mov_b32 v57, {DUMMY}
    v_mov_b64 v[58:59], v[56:57]
    s_cmp_lt_u32 s{sW}, 8
    ds_write_b128 v4, v[56:59]
    s_cbranch_scc0 L_FT
    ds_write_b128 v4, v[56:59] offset:{48*SLOTB}
    s_branch L_FD
    L_FT:
    s_mov_b32 s{t1}, {LTAB - 8192}
    v_mov_b32 v60, {LDUM}
    v_mov_b32 v61, 0
    v_lshl_add_u32 v5, v0, 4, s{t1}
    v_mov_b64 v[62:63], v[60:61]
    ds_write_b128 v5, v[60:63]
    ds_write_b128 v5, v[60:63] offset:4096
    L_FD:
    s_cmp_eq_u32 s{sFIRST}, 0
    s_waitcnt lgkmcnt(0)
    s_barrier                                     ; B5b
    s_cbranch_scc1 L_AGAIN
    """)
    mark(14)
    recpf()
    a(f"""
    L_PW:
    v_readfirstlane_b32 s{sEP}, v90
    s_nop 0
    s_xor_b32 s{sTAG2}, s{sEP}, 0x2545F491
    s_mul_i32 s{sTAG}, s{sTAG2}, 0x9E3779B1
    s_mul_i32 s{sTAG2}, s{sTAG2}, 0x85EBCA6B
    s_lshr_b32 s{sTAGB}, s{sTAG2}, 25
    s_waitcnt vmcnt({1 if RPF else 0})
    L_POLL:
    v_lshrrev_b32 v4, 25, v88
    v_cmp_ne_u32 vcc, s{sTAG}, v89
    v_cmp_ne_u32 {sp(t0)}, s{sTAGB}, v4
    s_or_b64 exec, vcc, {sp(t0)}
    s_cbranch_execnz L_POLL2
    L_POLLED:
    s_mov_b64 exec, -1
    """)
    mark(6)
    a(f"""
    v_bfe_u32 v{vRem}, v88, 14, 11
    v_and_b32 v4, 0x3fff, v88
    v_add_u32 v{vRO}, v{vRO}, v4
    """)
    a(f"""
    L_WINDOW:
    v_and_b32 v4, 15, v{vL}
    v_and_b32 v5, 3, v{vL}
    v_sub_u32 v5, v{vRem}, v5
    """)
    for k in range(4):
        a(f"v_sub_u32_dpp v{64+k}, v{vRem}, v4 row_newbcast:{4*k} row_mask:0xf bank_mask:0xf")
    for k in range(4):
        a(f"v_cmp_lt_i32 {sp(sM+2*k)}, 0, v{64+k}")
    for k in range(4, KMAX):
        a(f"v_cmp_lt_i32 {sp(sM+2*k)}, {4*k}, v5")
    a(f"""
    L_LOADS:
    """)
    EPF = os.environ.get("EPF", "")
    if EPF:
        a(f"""
        s_mov_b64 exec, 0xff
        global_load_dwordx2 v[82:83], v{vTFa}, {sp(sWS)} sc1
        s_mov_b64 exec, -1
        """)
    a(f"""
    v_and_b32 v4, 15, v{vL}
    v_and_b32 v5, 3, v{vL}
    v_mul_u32_u24 v4, {RB}, v4
    v_mad_u32_u24 v5, v5, {RB}, v{vRO}
    s_or_b64 {sp(sU5)}, {sp(sM+10)}, {sp(sM+12)}
    s_or_b64 {sp(sU4)}, {sp(sU5)}, {sp(sM+8)}
    """)
    for k in range(4):
        a(f"v_add_u32_dpp v{rec(k)+3}, v{vRO}, v4 row_newbcast:{4*k} row_mask:0xf bank_mask:0xf")

    def kloop(done, body, mask=sM):
        for k in range(KMAX):
            if k == 4:
                a(f"s_cmp_eq_u64 {sp(sU4)}, 0\ns_cbranch_scc1 {done}")
            if k == 5:
                a(f"s_cmp_eq_u64 {sp(sU5)}, 0\ns_cbranch_scc1 {done}")
            a(f"s_mov_b64 exec, {sp(mask+2*k)}")
            body(k)
        a(f"{done}:")

    RF = "" if "recplain" in X else "sc1"

    def rload(k):
        if k < 4:
            a(f"buffer_load_dwordx3 {vr(rec(k),3)}, v{rec(k)+3}, {sq(SRD_R)}, 0 offen {RF}")
        else:
            a(f"buffer_load_dwordx3 {vr(rec(k),3)}, v5, {sq(SRD_R)}, 0 offen offset:{48*k} {RF}")

    kloop("L_RL", rload)
    mark(23)
    a(f"""
    s_mov_b64 exec, -1
    s_mov_b32 s{t0}, {LCW}
    v_lshl_add_u32 v4, v{vL}, 3, s{t0}
    """)
    for k in range(8):
        a(f"ds_read_b64 {vr(vW[0]+6*k+4,2)}, v4")
    a(f"""
    s_lshl_b32 s{t0}, s{sW}, 5
    s_add_u32 s{t0}, s{t0}, {LTAB}
    v_lshrrev_b32 v4, 4, v{vL}
    v_bfe_u32 v5, v{vL}, 2, 2
    v_lshl_add_u32 v{vP}, v4, 3, s{t0}
    v_lshl_add_u32 v{vP+1}, v5, 3, s{t0}
    s_lshl_b32 s{t0}, s{sW}, 3
    s_add_u32 s{t0}, s{t0}, s{sH}
    s_lshl_b32 s{t0}, s{t0}, 7
    s_add_u32 s{t0}, s{t0}, {WS_TF}
    v_lshl_add_u32 v{vTFa}, v{vL}, 7, s{t0}
    v_mov_b32 v6, {LSLOT}
    s_mov_b32 s{t0}, {2*SLOTB}
    v_mad_u32_u24 v{vLf}, v{vL}, s{t0}, v6
    v_lshlrev_b32 v{vLf+1}, 9, v{vL}
    v_add_u32 v{vLf+2}, {SLOTB}, v{vLf}
    v_add_u32 v{vLf+3}, 256, v{vLf+1}
    v_lshlrev_b32 v{vLf+4}, 3, v{vL}
    v_mov_b32 v6, {LSLOT-48}
    s_mov_b32 s{t0}, {SLOTB//4}
    s_mov_b32 s{t1}, 0xffffff00
    """)
    if "sprio" in X:
        for lv in (1, 2, 3):
            a(f"s_cmp_lt_u32 s{sW}, {4*lv}\ns_cbranch_scc1 L_SP\ns_setprio {lv}")
        a("L_SP:")
    mark(12)
    a("s_waitcnt vmcnt(0)")
    mark(7)
    PFN = int(os.environ.get("PFN", "14"))
    if PFN:
        a(f"""
        s_mov_b64 exec, 0xff
        global_load_dwordx2 v[70:71], v{vTFa}, {sp(sWS)} sc1
        """)
    def pf(cond):
        if cond:
            a(f"""
            s_mov_b64 exec, 0xff
            v_cmp_eq_u64 vcc, {sp(sTAG)}, v[82:83]
            s_lshr_b32 s{t3}, s2, 5
            s_bitcmp1_b32 vcc_lo, s{t3}
            s_cbranch_scc0 L_NOPF
            """)
        a(f"""
        s_mul_i32 s{t2}, s{sW}, {625*256}
        s_lshr_b32 s{t3}, s2, 3
        s_mul_i32 s{t3}, s{t3}, {39*128}
        s_add_u32 s{t2}, s{t2}, s{t3}
        s_mov_b64 exec, {hex((1 << PFN) - 1)}
        v_lshlrev_b32 v5, 7, v{vL}
        buffer_load_dword v106, v5, {sq(SRD_T)}, s{t2} offen sc1
        """)
        if cond:
            a(f"""
            s_branch L_PFD
            L_NOPF:
            s_mov_b64 exec, 1
            global_load_dword v106, v{vTFa}, {sp(sWS)} sc1
            L_PFD:
            """)

    if EPF == "a":
        pf(True)
    SB = "dst_sel:DWORD dst_unused:UNUSED_PAD src0_sel:DWORD src1_sel:BYTE_0"

    def hist(k):
        a(f"""
        v_lshlrev_b32_sdwa v4, 2, v{rec(k)+2} {SB}
        v_lshlrev_b32_sdwa v{vPr+2*k+1}, 8, v{rec(k)+2} {SB}
        ds_add_rtn_u32 v{rec(k)+3}, v4, v{vONE} offset:{LCNT}
        v_mad_u32_u24 v{vPr+2*k}, v4, s{t0}, v6
        v_and_b32 v{rec(k)+2}, s{t1}, v{rec(k)+2}
        """)

    kloop("L_HD", hist)
    if EPF == "h":
        pf(True)
    a(f"s_mov_b32 s{t2}, 0\ns_waitcnt lgkmcnt(0)")
    mark(24)

    def scat(k):
        r = rec(k)
        a(f"""
        v_cmpx_gt_u32 vcc, {CAP}, v{r+3}
        v_lshrrev_b32 v4, 2, v{r+3}
        v_and_b32 v5, 7, v{r+3}
        v_and_b32 v{r+3}, 3, v{r+3}
        s_andn2_b64 {sp(sM+2*k)}, {sp(sM+2*k)}, vcc
        v_mad_u32_u24 v{vPr+2*k}, v4, 48, v{vPr+2*k}
        v_cmp_eq_u32 vcc, 4, v5
        v_lshl_add_u32 v4, v{r+3}, 2, v{vPr+2*k}
        v_lshl_add_u32 v5, v{r+3}, 3, v{vPr+2*k}
        ds_write_b32 v4, v{r+2} offset:48
        ds_write_b64 v5, {vr(r,2)} offset:64
        s_and_b64 {sp(sO+2*k)}, vcc, exec
        s_bcnt1_i32_b64 s{t3}, {sp(sO+2*k)}
        s_add_u32 s{t2}, s{t2}, s{t3}
        """)

    kloop("L_SD", scat)
    mark(25)
    a(f"""
    s_mov_b64 exec, 1
    v_mov_b32 v4, s{t2}
    ds_add_rtn_u32 v7, v{vF}, v4 offset:{F_NQ}
    s_mov_b64 exec, -1
    v_cmp_lt_i32 vcc, {4*KMAX}, v{vRem}
    s_or_b64 {sp(t0)}, {sp(sM)}, {sp(sM+2)}
    s_or_b64 {sp(t2)}, {sp(sM+4)}, {sp(sM+6)}
    s_or_b64 {sp(t0)}, {sp(t0)}, {sp(sM+8)}
    s_or_b64 {sp(t2)}, {sp(t2)}, {sp(sM+10)}
    s_or_b64 {sp(t0)}, {sp(t0)}, {sp(sM+12)}
    s_or_b64 {sp(t0)}, {sp(t0)}, {sp(t2)}
    s_cselect_b32 s{sBIN}, 1, 0
    s_or_b64 exec, vcc, {sp(t0)}
    ds_write_b32 v{vF}, v{vONE} offset:{F_MORE}
    s_waitcnt lgkmcnt(1)
    v_readlane_b32 s{t2}, v7, 0
    s_lshl_b32 s{t2}, s{t2}, 3
    s_add_u32 s{t2}, s{t2}, {LTAB}
    """)

    def tab(k):
        a(f"""
        v_mbcnt_lo_u32_b32 v4, exec_lo, 0
        v_mbcnt_hi_u32_b32 v4, exec_hi, v4
        v_lshl_add_u32 v4, v4, 3, s{t2}
        s_bcnt1_i32_b64 s{t3}, exec
        s_lshl3_add_u32 s{t2}, s{t3}, s{t2}
        ds_write_b64 v4, {vr(vPr+2*k,2)}
        """)

    kloop("L_TD", tab, sO)
    mark(26)
    a(f"""
    s_mov_b64 exec, 0xff
    s_waitcnt vmcnt({1 if EPF else 0})
    L_TP:
    v_cmp_ne_u64 vcc, {sp(sTAG)}, v[70:71]
    s_cbranch_vccnz L_TP2
    L_TRDY:
    """)
    if PFN and not EPF:
        pf(False)
    a(f"""
    s_mov_b64 exec, -1
    s_mov_b32 s{sFIRST}, 0
    s_waitcnt lgkmcnt(0)
    """)
    mark(8)
    a(f"""
    s_lshl4_add_u32 s{t0}, s2, s{sW}
    s_cmp_eq_u32 s{t0}, 15
    s_barrier                                     ; B6
    s_cbranch_scc1 L_EPO
    L_EPD:
    """)
    mark(9)
    if stamp:
        a("s_memtime s[96:97]\nv_mov_b32 v107, 0")
    vT, vAp, vS = 56, 80, 84
    vTQ, vNA, vFA, vQE = 88, 90, 92, 93
    vDn, vNm, vAa, vCk = 72, 100, 4, 106
    vD = (76, 78, 4, 6)
    sRET = sTHR + 1
    PRA, PRB = [int(x) for x in os.environ.get('PR', '5,2').split(',')]

    def sh(g):
        return (96, 98, 104, 124)[g]

    def saddr(S):
        a(f"""
        v_pk_add_f32 {vr(S,2)}, {vr(S,2)}, {vr(vLO,2)} op_sel_hi:[1,0]
        v_pk_add_f32 {vr(S+2,2)}, {vr(S+2,2)}, {vr(vLO,2)} op_sel_hi:[1,0]
        """)

    def loads(p, S, loop=False):
        for g in range(int(os.environ.get("NLD", 4)) if loop else 4):
            a(f"buffer_load_dwordx4 {vr(vW[p]+6*g,4)}, v{S+g}, {sq(SRD_T)}, 0 offen sc1")

    def naddr(dst, TQ):
        a(f"v_pk_fma_f32 {vr(dst,2)}, {vr(TQ,2)}, {sp(s12)}, {vr(vLO,2)} op_sel:[1,0,0] op_sel_hi:[1,1,1]")

    def eread(q, half):
        a(f"s_mov_b64 exec, {sp(sEM)}")
        for g in range(4):
            a(f"ds_read_b64 {vr(vAo+4*g+2,2)}, v{q} offset:{48*half+16+8*g}")
        a("s_mov_b64 exec, -1")

    def hv(W, g, h):
        return vr(W + 6 * g, 2) if h == 0 else vr(sh(g), 2)

    def mfma(p, g, c=vAp):
        return f"v_mfma_f32_16x16x32_bf16 {vr(vT+4*g,4)}, {vr(vAo+4*g,4)}, {vr(vW[p]+6*g+2,4)}, {vr(c,4)}"

    def flush(ad):
        a(f"""
        v_pk_mul_f32 {vr(vNm,2)}, {vr(vNm,2)}, {vr(vDn,2)}
        v_pk_mul_f32 {vr(vNm+2,2)}, {vr(vNm+2,2)}, {vr(vDn+2,2)}
        """)
        for t in range(4):
            a(f"v_cvt_f64_f32 {vr(vD[t],2)}, v{vNm+t}")
        for t in range(4):
            a(f"ds_add_f64 v{ad}, {vr(vD[t],2)} offset:{128*t}")

    def check(lab):
        a(f"""
        v_pk_add_f32 {vr(vAa,2)}, {vr(vDn,2)}, {vr(vDn+2,2)}
        v_add_f32 v{vCk}, v{vAa}, v{vAa+1}
        v_cmp_nge_f32 vcc, s{sTHR}, v{vCk}
        s_cbranch_vccnz {lab}
        """)

    def leftover():
        for u in range(2):
            a(f"""
            v_min_u32 v{96+u}, {CAP}, v{96+u}
            v_add_u32 v{98+u}, 7, v{96+u}
            v_lshrrev_b32 v{96+u}, 3, v{96+u}
            v_and_b32 v{98+u}, 7, v{98+u}
            """)
        a(f"""
        s_mov_b32 s{t3}, 96
        v_cmp_gt_u32 {sp(sO)}, 4, v98
        v_cmp_gt_u32 {sp(sO+2)}, 4, v99
        v_mad_u32_u24 v{vLf}, v96, s{t3}, v{vLf}
        v_mad_u32_u24 v{vLf+2}, v97, s{t3}, v{vLf+2}
        s_lshl3_add_u32 s{t2}, s{t0}, {LTAB}
        """)
        for u in range(2):
            a(f"""
            s_mov_b64 exec, {sp(sO+2*u)}
            v_mbcnt_lo_u32_b32 v96, exec_lo, 0
            v_mbcnt_hi_u32_b32 v96, exec_hi, v96
            v_lshl_add_u32 v96, v96, 3, s{t2}
            s_bcnt1_i32_b64 s{t3}, exec
            s_lshl3_add_u32 s{t2}, s{t3}, s{t2}
            ds_write_b64 v96, {vr(vLf+2*u,2)}
            """)
        a(f"""
        s_mov_b64 exec, -1
        s_sub_u32 s{t2}, s{t2}, {LTAB - 24}
        s_lshr_b32 s{t2}, s{t2}, 5                ; groups
        s_sub_u32 s{t2}, s{t2}, s{sW}
        s_add_u32 s{t2}, s{t2}, 15
        s_lshr_b32 s{t2}, s{t2}, 4
        s_lshl4_add_u32 s{t3}, s{t2}, s{sW}
        s_lshl_b32 s{t3}, s{t3}, 2
        s_add_u32 s{t1}, s{t0}, 64
        s_lshl_b32 s{sN}, s{t2}, 1
        s_cmp_lt_u32 s{t3}, s{t1}
        s_addc_u32 s{sN}, s{sN}, 0
        """)

    a(f"""
    ds_read_b64 v[4:5], v{vF} offset:{F_MORE}
    ds_read_b64 v[96:97], v{vLf+4} offset:{LCNT}
    L_PRE:
    ds_read_b64 {vr(vT,2)}, v{vP}
    ds_read_b32 v{vQE}, v{vP+1}
    ds_read_b64 {vr(vTQ,2)}, v{vP} offset:512
    s_setprio 3
    v_mov_b32 v{vFA}, v{vLO+1}
    v_mov_b64 {vr(vNm,2)}, 0
    v_mov_b64 {vr(vNm+2,2)}, 0
    s_waitcnt lgkmcnt(2)
    ds_read_b128 {vr(vT+4,4)}, v{vT}
    ds_read_b128 {vr(vS,4)}, v{vT} offset:48
    v_readfirstlane_b32 s{t0}, v5
    v_readfirstlane_b32 s{sMORE}, v4
    """)
    naddr(vNA, vT)
    a(f"""
    s_cmp_lt_u32 s{t0}, 128
    s_cbranch_scc1 L_FEW
    s_waitcnt lgkmcnt(1)
    """)
    saddr(vT + 4)
    loads(0, vT + 4)
    a(f"ds_read_b128 {vr(vAp,4)}, v{vNA} offset:{LA}")
    eread(vQE, 0)
    for t in range(4):
        a(f"v_mov_b32 v{vDn+t}, 1.0")
    a(f"s_cmp_eq_u32 s{t0}, -1\ns_cbranch_scc1 L_SB1")
    if "w1late" in X:
        leftover()
        a("s_branch L_SB1")
    else:
        a("s_waitcnt lgkmcnt(5)")
        saddr(vS)
        loads(1, vS)
        leftover()
        a("s_waitcnt vmcnt(4) lgkmcnt(0)\ns_branch L_M1")
    for p in range(2):
        W = vW[p]
        a(f"""
        L_L{p}:
        ds_read_b128 {vr(vS,4)}, v{vTQ} offset:{48*p}
        """)
        for i in range(16):
            a(f"v_exp_f32 v{vT+i}, v{vT+i}")
            if i == 7:
                eread(vQE, p ^ 1)
                if p == 0:
                    a(f"ds_read_b32 v{vQE}, v{vP+1} offset:512")
                else:
                    a(f"v_mov_b32 v{vFA}, v{vNA+1}")
        if p == 0:
            flush(vFA)
        else:
            naddr(vNA, vTQ)
        for g in range(4):
            a(f"v_lshlrev_b64 {vr(sh(g),2)}, 16, {vr(W+6*g,2)}")
            if g == 0 and p == 1:
                a(f"ds_read_b128 {vr(vAp,4)}, v{vNA} offset:{LA}")
                a(f"ds_read_b64 {vr(vTQ,2)}, v{vP} offset:1024")
        if p == 0:
            for h in range(2):
                a(f"v_pk_add_f32 {vr(vDn+2*h,2)}, {vr(vT+2*h,2)}, 1.0 op_sel_hi:[1,0]")
        for g in range(1 - p, 4):
            for h in range(2):
                src = hv(W, 0, h) if (g == 1 and p == 0) else vr(vNm + 2 * h, 2)
                a(f"v_pk_fma_f32 {vr(vAa+2*h,2)}, {src}, {vr(vT+4*g+2*h,2)}, {src}")
            for h in range(2):
                a(f"v_pk_fma_f32 {vr(vNm+2*h,2)}, {hv(W,g,h)}, {vr(vDn+2*h,2)}, {vr(vAa+2*h,2)}")
            for h in range(2):
                a(f"v_pk_fma_f32 {vr(vDn+2*h,2)}, {vr(vDn+2*h,2)}, {vr(vT+4*g+2*h,2)}, {vr(vDn+2*h,2)}")
        if p == 1:
            check("L_REDO1")
            a(f"L_RB1:\nv_pk_add_f32 {vr(vP,2)}, {vr(vP,2)}, {sp(sINC)}")
        a(f"""
        L_SB{p}:
        """)
        if "trace" in X:
            a(f"s_memtime s[92:93]\ns_add_u32 m0, s{sN}, 16")
        a(f"""
        s_cmp_le_u32 s{sN}, 2
        s_waitcnt lgkmcnt(0)
        """)
        if "trace" in X:
            a("v_writelane_b32 v107, s92, m0")
        saddr(vS)
        a(f"s_cbranch_scc1 L_TAIL{p}")
        loads(p, vS, True)
        a(f"""
        s_waitcnt vmcnt({os.environ.get("NLD", 4)})
        L_M{p}:
        """)
        for g in range(4):
            a(mfma(p ^ 1, g))
            if p == 1:
                a(f"v_rcp_f32 v{vDn+g}, v{vDn+g}")
        a(f"""
        s_sub_u32 s{sN}, s{sN}, 1
        s_bitcmp1_b32 {(1 << PRA) | (1 << PRB)}, s{sN}
        s_cbranch_scc1 L_PR{p}
        """)
        a("s_branch L_L0" if p == 1 else "s_nop 0")
    for p in range(2):
        a(f"""
        L_PR{p}:
        """)
        a(f"""
        s_setprio 2
        s_cmp_eq_u32 s{sN}, {PRA}
        s_cbranch_scc1 L_L{p^1}
        s_setprio 1
        """)
        a(f"""
        s_branch L_L{p^1}
        L_TAIL{p}:
        s_setprio 0
        s_cmp_eq_u32 s{sN}, 2
        s_waitcnt vmcnt(0)
        s_cbranch_scc1 L_M{p}
        """)
        if p == 0:
            check("L_REDO0")
            a(f"L_RB0:\nv_mov_b32 v{vFA}, v{vNA+1}\ns_branch L_LAST")
    a("L_LAST:")
    for g in range(4):
        a(f"v_rcp_f32 v{vDn+g}, v{vDn+g}")
    a("s_nop 0")
    flush(vFA)
    a(f"""
    L_LD:
    s_cmp_lt_u32 s{sW}, 10
    s_cbranch_scc0 L_LD2
    v_lshrrev_b32 v97, 3, v0
    v_and_b32 v98, 7, v0
    v_lshlrev_b32 v98, 4, v98
    """)
    if "u64" not in X:
        a(f"""
        s_mov_b32 s{t0}, {UST}
        v_add_u32 v99, {LU}, v98
        v_mad_u32_u24 v99, v97, s{t0}, v99
        ds_read2_b64 v[56:59], v99 offset0:0 offset1:1
        """)
    a(f"""
    s_mov_b32 s{t0}, {GST}
    v_mad_u32_u24 v96, v97, s{t0}, v98
    s_add_u32 s{t1}, s{sN0}, s{sH}
    v_cmp_gt_u32 {sp(sO)}, s{sNB}, v97
    v_lshlrev_b32 v97, 8, v97
    v_add3_u32 v97, v97, v98, s{t1}
    s_mov_b32 s{t2}, s{sLG}
    s_mov_b32 s{t3}, s{sLG}
    """)
    for i in range(0 if "u64" in X else 4):
        a(f"v_lshlrev_b32 v{60+2*i}, 16, v{56+i}\nv_and_b32 v{61+2*i}, s{t0}, v{56+i}")
    a("L_LD2:\ns_waitcnt lgkmcnt(0)")
    mark(10)
    if stamp:
        a("s_memtime s[92:93]\ns_waitcnt lgkmcnt(0)\ns_sub_u32 s92, s92, s96\nv_writelane_b32 v107, s92, 15\nv_writelane_b32 v107, s96, 16")
    a(f"""
    s_cmp_eq_u32 s{sMORE}, 0
    s_barrier                                     ; B8
    s_cbranch_scc0 L_MORE
    s_cmp_lt_u32 s{sW}, 10
    s_cbranch_scc0 L_FIN
    ds_read_b128 v[24:27], v96 offset:{LAGG}
    ds_read_b128 v[28:31], v96 offset:{LAGG+128}
    ds_read_b128 v[32:35], v96 offset:{LAGG+256}
    ds_read_b128 v[36:39], v96 offset:{LAGG+384}
    """)
    for t in range(4):
        a(f"s_waitcnt lgkmcnt({3-t})")
        for u in range(2):
            a(f"v_cvt_f32_f64 v{8+4*u+t}, {vr(24+4*t+2*u,2)}")
    for i in range(0 if "u64" in X else 4):
        a(f"v_pk_add_f32 {vr(8+2*i,2)}, {vr(8+2*i,2)}, {vr(60+2*i,2)}")
    for i in range(4):
        a(f"v_pk_mul_f32 {vr(16+2*i,2)}, {vr(8+2*i,2)}, {sp(t2)}")
    for i in range(8):
        a(f"v_exp_f32 v{16+i}, v{16+i}")
    for i in range(4):
        a(f"v_pk_add_f32 {vr(16+2*i,2)}, {vr(16+2*i,2)}, 1.0 op_sel_hi:[1,0]")
    for i in range(8):
        a(f"v_rcp_f32 v{16+i}, v{16+i}")
    for i in range(4):
        a(f"v_pk_mul_f32 {vr(16+2*i,2)}, {vr(16+2*i,2)}, {vr(8+2*i,2)}")
    for i in range(4):
        a(f"v_cvt_pk_bf16_f32 v{8+i}, v{16+2*i}, v{17+2*i}")
    a(f"""
    s_mov_b64 exec, {sp(sO)}
    global_store_dwordx4 v97, v[8:11], {sp(sOUT)} {os.environ.get('OF', 'sc1')}
    L_FIN:
    """)
    if stamp:
        a("s_mov_b64 exec, -1")
    if PROBE:
        a(f"""
        s_lshl_b32 s{t0}, s2, 4
        s_add_u32 s{t0}, s{t0}, s{sW}
        s_cmp_eq_u32 s{t0}, {PROBE[0]}
        s_cbranch_scc0 L_PX
        s_memrealtime s[84:85]
        s_sub_u32 s96, s96, s94
        s_lshl_b32 s96, s96, 3
        s_min_u32 s96, s96, 100000
        s_waitcnt lgkmcnt(0)
        L_PS:
        s_memrealtime s[86:87]
        s_waitcnt lgkmcnt(0)
        s_sub_u32 s86, s86, s84
        s_cmp_lt_u32 s86, s96
        s_cbranch_scc1 L_PS
        L_PX:
        """)
    if stamp:
        a("s_waitcnt vmcnt(0)")
        mark(11)
        a("s_waitcnt lgkmcnt(0)")
        for i_, m_ in enumerate(sorted(SLOT)):
            a(f"v_writelane_b32 v107, s{SLOT[m_]}, {i_}")
        a(f"""
        s_lshl_b32 s3, s2, 4
        s_add_u32 s3, s3, s{sW}
        s_lshl_b32 s3, s3, 6
        s_add_u32 s3, s3, {WS_STAMP}
        v_lshl_add_u32 v4, v{vL}, 2, s3
        s_mov_b64 exec, 0xffff
        global_store_dword v4, v107, {sp(sWS)}
        s_mov_b64 exec, 0xffff0000
        v_add_u32 v4, {0x40000 - 64}, v4
        global_store_dword v4, v107, {sp(sWS)}
        """)
    a("s_endpgm")
    a(f"""
    L_POLL2:
    s_sub_u32 s{sSPIN}, s{sSPIN}, 1
    s_cbranch_scc1 L_POLLX
    s_sleep 2
    buffer_load_dwordx2 v[88:89], v{vOFFa}, {sq(SRD_W)}, 0 offen sc1
    s_waitcnt vmcnt(0)
    s_branch L_POLL
    L_POLLX:
    v_mov_b32 v88, 0
    s_mov_b32 s{sSPIN}, 0
    s_branch L_POLLED
    """)
    a(f"""
    """)
    a(f"""
    L_EPO:
    v_mov_b32 v6, {WS_EPOCH}
    v_mov_b32 v7, s{sEP}
    s_mov_b64 exec, 1
    global_store_dword v6, v7, {sp(sWS)} sc1
    s_mov_b64 exec, -1
    s_branch L_EPD
    L_TP2:
    s_sub_u32 s{sSPIN}, s{sSPIN}, 1
    s_cbranch_scc1 L_TX
    s_sleep 2
    global_load_dwordx2 v[70:71], v{vTFa}, {sp(sWS)} sc1
    s_waitcnt vmcnt(0)
    s_branch L_TP
    L_TX:
    s_mov_b32 s{sSPIN}, 0
    s_branch L_TRDY
    """)
    a(f"""
    L_FEW:
    s_waitcnt lgkmcnt(0)
    """)
    leftover()
    a(f"""
    s_cmp_eq_u32 s{t2}, 0
    s_cbranch_scc1 L_LD
    v_mov_b32 v5, -1
    s_branch L_PRE
    L_REDO0:
    s_mov_b32 s{sRET}, 0
    s_branch L_REDO
    L_REDO1:
    s_mov_b32 s{sRET}, 1
    L_REDO:
    ds_read_b64 v[76:77], v{vP}
    ds_read_b32 v{vCk}, v{vP+1}
    v_mov_b64 {vr(vNm,2)}, 0
    v_mov_b64 {vr(vNm+2,2)}, 0
    s_mov_b32 s{t0}, 2
    s_waitcnt lgkmcnt(0)
    """)
    naddr(78, 76)
    a(f"""
    ds_read_b128 {vr(vDn,4)}, v78 offset:{LA}
    L_RD1:
    ds_read_b128 {vr(vAa,4)}, v76
    """)
    eread(vCk, 0)
    a("s_waitcnt lgkmcnt(0)")
    saddr(vAa)
    loads(1, vAa)
    a(f"""
    v_add_u32 v76, 48, v76
    v_add_u32 v{vCk}, 48, v{vCk}
    s_waitcnt vmcnt(0)
    """)
    for g in range(4):
        a(mfma(1, g, vDn))
    for g in range(4):
        a(f"v_lshlrev_b64 {vr(sh(g),2)}, 16, {vr(vW[1]+6*g,2)}")
    a("s_nop 3")
    for i in range(16):
        a(f"v_exp_f32 v{vT+i}, v{vT+i}")
    for i in range(8):
        a(f"v_pk_add_f32 {vr(vT+2*i,2)}, {vr(vT+2*i,2)}, 1.0 op_sel_hi:[1,0]")
    for i in range(16):
        a(f"v_rcp_f32 v{vT+i}, v{vT+i}")
    for g in range(4):
        for h in range(2):
            a(f"v_pk_fma_f32 {vr(vNm+2*h,2)}, {vr(vT+4*g+2*h,2)}, {hv(vW[1],g,h)}, {vr(vNm+2*h,2)}")
    a(f"""
    s_sub_u32 s{t0}, s{t0}, 1
    s_cmp_lg_u32 s{t0}, 0
    s_cbranch_scc1 L_RD1
    """)
    eread(vQE, 0)
    for t in range(4):
        a(f"v_mov_b32 v{vDn+t}, 1.0")
    a(f"""
    s_cmp_eq_u32 s{sRET}, 0
    s_cbranch_scc1 L_RB0
    s_branch L_RB1
    """)
    a(f"""
    L_MORE:
    s_setprio 0
    v_mov_b32 v{vF}, {LFLAG}
    v_mov_b32 v{vONE}, 1
    v_lshlrev_b32 v4, 2, v0
    v_mov_b32 v5, 0
    v_cmp_gt_u32 vcc, 130, v0
    s_mov_b64 exec, vcc
    ds_write_b32 v4, v5 offset:{LCNT}
    s_mov_b64 exec, -1
    s_cmp_lt_u32 s{sW}, 12
    s_cbranch_scc1 L_FILL
    s_branch L_FD
    L_AGAIN:
    s_cmp_eq_u32 s{sBIN}, 0
    s_cbranch_scc0 L_LOADS
    v_subrev_u32 v{vRem}, {4*KMAX}, v{vRem}
    v_add_u32 v{vRO}, {48*KMAX}, v{vRO}
    s_branch L_WINDOW
    L_END:
    """)
    if "lay2" in X:
        L = a.l
        i, j, k = L.index("L_B1:") + 3, L.index("L_SETUP:"), L.index("L_STG:")
        assert "s_barrier" in L[i - 1]
        a.l = L[:i] + ["    s_branch L_B1X"] + L[j:k] + ["L_B1X:"] + L[i:j] + ["    s_branch L_SETUP"] + L[k:]
    elif "oldlay" not in X:
        L = a.l
        i, j, k = L.index("L_NOBIN:"), L.index("L_SETUP:"), L.index("L_STG:")
        assert L[i - 1].strip() == "s_branch L_SETUP"
        blk = L[i:j] + ["    s_branch L_SETUP"]
        a.l = L[:i - 1] + L[j:k] + blk + L[k:]
    return a.text()


def build(stamp=False):
    body = kernel(stamp)
    return f"""; Edge-gated MPNN layer, one fused launch.  Kernarg (80 bytes, pointers, base s[0:1]):
;
; @launch grid=(256,1,1) block=(1024,1,1) lds={LDS}
.amdgcn_target "amdgcn-amd-amdhsa--gfx950"
.text
.globl {NAME}
.p2align 8
.type {NAME},@function
{NAME}:
{body}    s_endpgm
.section .rodata,"a"
.p2align 6
.amdhsa_kernel {NAME}
  .amdhsa_next_free_vgpr 128
  .amdhsa_next_free_sgpr 102
  .amdhsa_accum_offset 128
  .amdhsa_group_segment_fixed_size 0
  .amdhsa_kernarg_size 80
  .amdhsa_user_sgpr_count 2
  .amdhsa_user_sgpr_kernarg_segment_ptr 1
  .amdhsa_system_sgpr_workgroup_id_x 1
  .amdhsa_float_denorm_mode_32 3
.end_amdhsa_kernel
"""


if __name__ == "__main__":
    open(sys.argv[1], "w").write(build(stamp="--stamp" in sys.argv))
```

```python
import sys, os
X = set(os.environ.get('X', '').split('+')) | {'u64', 'tprio'}
NAME = "standalone__edge_featured_mpnn_egc__graph_kernel"
N, E = 10000, 320000
NB, NBK, CH, NCH = 80, 128, 1250, 256
CHB = 15360
T_HALF = N * 256
RB = 12
WS_T, WS_REC, WS_OFF, WS_TF, WS_EPOCH, WS_STAMP = 0, 0x500000, 0xA00000, 0xA40000, 0xA80000, 0xB00000
NLOG2E = 0xBFB8AA3B
KA = dict(x=0, e=8, src=16, dst=24, u=32, v=40, g=48, out=56, dbg=64, ws=72)
AST, GST = 272, 528
LA, LAGG = 0, NB * AST
LHIST = LAGG + NB * GST
LCNT, LFLAG, LDUM = LHIST + 512, LHIST + 1024, LHIST + 1056
F_MORE, F_NQ, F_PUB, F_RV, F_LAND, F_EP = 0, 4, 8, 12, 16, 20
LSTART, LCW = LHIST + 1280, LHIST + 1792
LW = LHIST + 2304
LX = LW + 65536
UST = 136
LU = LX + 20480
LDS = LU + (0 if 'u64' in X else NB * UST)
LSLOT, SLOTB, CAP = LW, 784, 64
LTAB = LX
assert LSTART < 65536
KMAX = 7
DUMMY = 0x400000
SPIN = 1 << 22
assert LW % 256 == 0 and LDS <= 163840


class Asm:
    def __init__(self):
        self.l = []

    def __call__(self, s):
        for ln in s.strip("\n").split("\n"):
            ln = ln.strip()
            if ln:
                self.l.append(ln if ln.endswith(":") else "    " + ln)

    def text(self):
        return "\n".join(self.l) + "\n"


def f2h(f):
    import struct
    return hex(struct.unpack('<I', struct.pack('<f', f))[0])


def vr(a, n):
    return f"v[{a}:{a+n-1}]" if n > 1 else f"v{a}"


def sp(a):
    return f"s[{a}:{a+1}]"


def sq(a):
    return f"s[{a}:{a+3}]"


def srd(a, d, base, off, size):
    a(f"s_add_u32 s{d}, s{base}, {off}\ns_addc_u32 s{d+1}, s{base+1}, 0")
    a(f"s_mov_b32 s{d+2}, {size}\ns_mov_b32 s{d+3}, 0x20000")


def scan64(a, v):
    for ctl in ("row_shr:1", "row_shr:2", "row_shr:4", "row_shr:8"):
        a(f"s_nop 1\nv_add_u32_dpp v{v}, v{v}, v{v} {ctl} row_mask:0xf bank_mask:0xf")
    a(f"s_nop 1\nv_add_u32_dpp v{v}, v{v}, v{v} row_bcast:15 row_mask:0xa bank_mask:0xf")
    a(f"s_nop 1\nv_add_u32_dpp v{v}, v{v}, v{v} row_bcast:31 row_mask:0xc bank_mask:0xf")


def kernel(stamp):
    a = Asm()
    PROBE = [int(x) for x in os.environ["PROBE"].split(",")] if os.environ.get("PROBE") else None
    MARKS = set(int(x) for x in os.environ["MARKS"].split(",")) if os.environ.get("MARKS") else None

    FREE = [4, 6, 8, 10, 12, 14, 16, 20, 98]
    SLOT = {0: 94}
    if stamp:
        for m_ in sorted((MARKS or set()) - {0}):
            SLOT[m_] = FREE.pop(0)

    def mark(n):
        if stamp and n in SLOT:
            a(f"s_memrealtime s[{SLOT[n]}:{SLOT[n]+1}]")
        if PROBE and n in PROBE[1:]:
            r = 94 + 2 * PROBE[1:].index(n)
            a(f"s_memrealtime s[{r}:{r+1}]\ns_waitcnt lgkmcnt(0)")

    sRW = 3
    sX, sE, sSRC, sDST, sU, sV, sG, sOUT, sDBG, sWS = 4, 6, 8, 10, 12, 14, 16, 18, 20, 22
    SRD_T, SRD_R, SRD_W = 24, 28, 32
    sM = 36
    sN, sBIN, sT0, sFIRST = 50, 51, 52, 53
    t0, t1, t2, t3 = 54, 55, 56, 57
    sMORE, sW = 58, 59
    sINC, s12, sTHR, sEM = 60, 62, 64, 66
    sH, sB, sC, sEP, sTAG, sTAG2, sSPIN, sLG = 68, 69, 70, 71, 72, 73, 74, 75
    sTAGB, sN0, sNB = 100, 101, 1
    sU5, sU4 = 76, 78
    sO = 80
    vL, vLO, vAo, vRO, vRem = 1, 2, 108, 126, 127
    vF, vONE = 124, 125
    vWf, vXb, vAcc, vPk, vA, vXa, vRow, vJn = 8, 40, 72, 88, 100, 96, 101, 102
    vOFFa, vR4, vCwa = 103, 104, 105
    LNT = "" if "nont" in X else "nt"
    XNT = "nt" if "xnt" in X else ""
    DNT = LNT if "dnt" in X else ""
    SNT = "" if "splain" in X else LNT
    CNT_ = "nt" if "cwnt" in X else ""
    WNT = "nt" if "wwnt" in X else ""

    RPF = 0
    vRp = 106

    def pollreq():
        a(f"buffer_load_dwordx2 v[88:89], v{vOFFa}, {sq(SRD_W)}, 0 offen sc1")
        a(f"ds_read_b32 v90, v{vF} offset:{F_EP}")

    def recpf():
        if RPF:
            a(f"""
            s_mov_b64 exec, {hex((1 << RPF) - 1)}
            buffer_load_dword v91, v{vRp}, {sq(SRD_R)}, 0 offen sc1
            s_mov_b64 exec, -1
            """)

    def spin(label, off, cond, val, slp=0):
        a(f"""
        {label}:
        s_sub_u32 s{sSPIN}, s{sSPIN}, 1
        s_cbranch_scc1 L_END
        {f"s_sleep {slp}" if slp else ""}
        ds_read_b32 v7, v{vF} offset:{off}
        s_waitcnt lgkmcnt(0)
        """)
        if cond == "lowne":
            a(f"v_and_b32 v7, 0xff, v7\nv_cmp_ne_u32 vcc, {val}, v7")
        elif cond == "midne":
            a(f"v_cmp_ne_u32 vcc, {val}, v7")
        else:
            a(f"v_cmp_{cond}_u32 vcc, {val}, v7")
        a(f"s_cbranch_vccnz {label}")

    MAP = os.environ.get("MAP", "hi")
    QSEL = {"par": f"s_bfe_u32 s{t0}, s2, 0x20001", "hi": f"s_and_b32 s{t0}, s2, 3",
            "mid": f"s_bfe_u32 s{t1}, s2, 0x10002\ns_and_b32 s{t0}, s2, 1\ns_lshl1_add_u32 s{t0}, s{t1}, s{t0}"}[MAP]
    HSEL = {"par": f"s_and_b32 s{t0}, s2, 1", "hi": f"s_bfe_u32 s{t0}, s2, 0x10002", "mid": f"s_bfe_u32 s{t0}, s2, 0x10001"}[MAP]
    mark(0)
    a(f"""
    s_load_dwordx16 s[4:19], s[0:1], 0
    s_load_dwordx4 s[20:23], s[0:1], {KA['dbg']}
    s_lshr_b32 s{sB}, s2, 3
    """)
    if "latewarm" not in X:
        a(f"""
        s_getpc_b64 {sp(t0)}
        L_PC:
        s_mul_i32 s{t3}, s{sB}, 384
        v_lshl_add_u32 v6, v0, 7, s{t3}
        v_cmp_gt_u32 vcc, 3, v0
        v_min_u32 v6, L_END-L_PC, v6
        s_cbranch_vccz L_NOCW
        s_mov_b64 exec, vcc
        global_load_dword v9, v6, {sp(t0)} {CNT_}
        s_mov_b64 exec, -1
        L_NOCW:
        """)
    a(f"""
    {QSEL}
    s_lshl_b32 s{t0}, s{t0}, 5
    s_add_u32 s{sB}, s{sB}, s{t0}
    s_mul_i32 s{sN0}, s{sB}, 625
    s_add_u32 s{sN0}, s{sN0}, 7
    s_lshr_b32 s{sN0}, s{sN0}, 3
    s_lshl_b32 s{sN0}, s{sN0}, 8
    s_cmp_ge_u32 s2, 256
    s_cbranch_scc1 L_END
    v_lshrrev_b32 v4, 6, v0
    v_and_b32 v{vL}, 63, v0
    v_readfirstlane_b32 s{sW}, v4
    {HSEL}
    s_lshl_b32 s{sH}, s{t0}, 7                    ; half*128
    s_lshl_b32 s{sC}, s{sB}, 1
    s_add_u32 s{sC}, s{sC}, s{t0}                 ; chunk
    s_sub_u32 s{sRW}, s{sW}, 5
    s_cmp_lt_u32 s{sRW}, 5
    s_cbranch_scc0 L_NOBIN
    """)
    B1 = "s_barrier                                     ; B1"
    HM = "s_mov_b32 exec_hi, 0x1fffffff"
    FM = "s_mov_b32 exec_hi, -1"
    a(f"""
    s_mul_i32 s{t1}, s{sC}, {CH*4}
    s_mul_i32 s{t2}, s{sRW}, 1000
    s_add_u32 s{t1}, s{t1}, s{t2}
    v_lshl_add_u32 v20, v{vL}, 3, s{t1}
    v_lshlrev_b32 v21, 1, v20
    s_setprio 3
    s_mov_b32 s{sBIN}, 1
    s_waitcnt lgkmcnt(0)
    global_load_dwordx2 v[4:5], v20, {sp(sDST)}
    {HM}
    global_load_dwordx2 v[6:7], v20, {sp(sDST)} offset:512
    {B1}
    global_load_dwordx2 v[10:11], v20, {sp(sSRC)} offset:512 nt
    {FM}
    global_load_dwordx2 v[8:9], v20, {sp(sSRC)} nt
    global_load_dwordx4 v[12:15], v21, {sp(sE)} nt
    {HM}
    global_load_dwordx4 v[16:19], v21, {sp(sE)} offset:1024 nt
    {FM}
    """)
    a(f"""
    s_mul_i32 s{t0}, s{sC}, {CHB}
    s_add_u32 s{t0}, s{t0}, {WS_REC}
    """)
    srd(a, SRD_W, sWS, f"s{t0}", (CH * RB + 127) // 128 * 128)
    a(f"""
    s_add_u32 s{t2}, s{sWS}, {WS_EPOCH}
    s_addc_u32 s{t3}, s{sWS+1}, 0
    s_load_dword s{sEP}, {sp(t2)}, 0
    """)
    a(f"""
    s_branch L_SETUP
    L_NOBIN:
    s_mov_b32 s{sBIN}, 0
    s_cmp_lt_u32 s{sW}, 10
    s_cbranch_scc1 L_B1
    s_cmp_eq_u32 s{sW}, 15
    s_cbranch_scc1 L_WARM
    v_lshlrev_b32 v12, 2, v0
    v_lshrrev_b32 v16, 2, v0
    v_cmp_eq_u32 vcc, {(640 + (LDUM - LHIST) // 4) // 4}, v16
    v_mov_b32 v15, {DUMMY}
    s_mov_b64 {sp(t0)}, vcc
    v_cmp_eq_u32 vcc, {(640 + (LDUM - LHIST) // 4) // 4 + 3}, v16
    s_or_b64 vcc, vcc, {sp(t0)}
    v_cndmask_b32 v13, 0, v15, vcc
    ds_write_b32 v12, v13 offset:{LHIST - 2560}
    s_branch L_B1
    L_WARM:
    """)
    a(f"""
    s_lshr_b32 s{t2}, s2, 3
    s_mul_i32 s{t2}, s{t2}, 9
    v_add_u32 v6, s{t2}, v{vL}
    v_min_u32 v8, 259, v6
    v_lshl_add_u32 v8, v8, 8, s{sH}
    s_lshr_b32 s{t2}, s{t2}, 1
    v_add_u32 v6, s{t2}, v{vL}
    v_min_u32 v6, 127, v6
    v_lshl_add_u32 v6, v6, 8, s{sH}
    v_lshrrev_b32 v4, 4, v{vL}
    v_and_b32 v5, 15, v{vL}
    v_lshl_add_u32 v4, v5, 2, v4
    s_add_u32 s{t2}, s{sH}, {256*256}
    v_lshl_add_u32 v4, v4, 1, s{t2}
    s_waitcnt lgkmcnt(0)
    s_mov_b64 exec, 0x1ff
    global_load_dword v9, v8, {sp(sG)} {WNT}
    s_mov_b64 exec, 31
    global_load_dword v9, v6, {sp(sV)} {WNT}
    global_load_dword v9, v6, {sp(sU)} {WNT}
    s_mov_b64 exec, -1
    global_load_short_d16_hi v10, v4, {sp(sG)}
    global_load_short_d16_hi v11, v4, {sp(sG)} offset:256
    global_load_short_d16_hi v12, v4, {sp(sG)} offset:512
    global_load_short_d16_hi v13, v4, {sp(sG)} offset:768
    L_B1:
    s_waitcnt lgkmcnt(0)
    s_barrier                                     ; B1
    """)
    if "xlate" in X:
        a(f"""
        s_cmp_eq_u32 s{sW}, 10
        s_cselect_b32 s{sRW}, 1, 0
        s_cbranch_scc1 L_XL
        s_cmp_eq_u32 s{sW}, 4
        s_cbranch_scc1 L_XL
        """)
    else:
        a(f"""
        s_mov_b32 s{sRW}, s{sW}
        s_cmp_lt_u32 s{sW}, 2
        s_cbranch_scc1 L_XL
        """)
    a(f"""
    s_cmp_lt_u32 s{sW}, 5
    s_cselect_b32 s{sRW}, {0 if "xlate" in X else 2}, 7
    s_sub_u32 s{sRW}, s{sW}, s{sRW}
    v_lshrrev_b32 v26, 3, v{vL}
    v_lshlrev_b32 v26, 8, v26
    v_and_b32 v28, 7, v{vL}
    v_lshlrev_b32 v28, 4, v28
    v_and_b32 v27, 16, v{vL}
    v_lshlrev_b32 v27, 1, v27
    v_xor_b32 v28, v28, v27
    v_add3_u32 v26, v26, v28, s{sH}
    v_xor_b32 v27, 64, v26
    s_add_u32 s{SRD_W}, s{sG}, {128*256}
    s_addc_u32 s{SRD_W+1}, s{sG+1}, 0
    s_cmp_ge_u32 s{sRW}, 2
    s_cselect_b64 {sp(SRD_W)}, {sp(sV)}, {sp(SRD_W)}
    s_cmp_ge_u32 s{sRW}, 4
    s_cselect_b64 {sp(SRD_W)}, {sp(sG)}, {sp(SRD_W)}
    s_cmp_ge_u32 s{sRW}, 6
    s_cselect_b64 {sp(SRD_W)}, {sp(sU)}, {sp(SRD_W)}
    s_mov_b32 s{SRD_W+2}, {128*256}
    s_mov_b32 s{SRD_W+3}, 0x20000
    s_cmp_ge_u32 s{sRW}, 4
    {"s_barrier" if "b1b" in X else ""}
    s_cbranch_scc1 L_SETUP
    """)
    if "u64" not in X:
        a(f"""
        v_lshlrev_b32 v17, 4, v0
        v_mov_b64 v[20:21], 0
        v_mov_b64 v[22:23], 0
        v_min_u32 v18, {11264 + NB * GST - 8 * 5120 - 16}, v17
        """)
    for i in range(0 if "u64" in X else 9):
        a(f"ds_write_b128 v{17 if i < 8 else 18}, v[20:23] offset:{LAGG - 11264 + 5120 * i}")

    def wdma(lab):
        a(f"""
        s_and_b32 s{t0}, s{sRW}, 1
        s_lshl_b32 s{t0}, s{t0}, 14
        s_lshl_b32 s{t1}, s{sRW}, 13
        s_add_u32 s{t1}, s{t1}, {LW}
        s_mov_b32 s{t2}, 4
        {lab}:
        s_mov_b32 m0, s{t1}
        s_add_u32 s{t3}, s{t0}, 1024
        buffer_load_dwordx4 v26, {sq(SRD_W)}, s{t0} offen lds
        buffer_load_dwordx4 v27, {sq(SRD_W)}, s{t3} offen offset:1024 lds
        s_add_u32 s{t0}, s{t0}, 4096
        s_add_u32 s{t1}, s{t1}, 2048
        s_sub_u32 s{t2}, s{t2}, 1
        s_cmp_lg_u32 s{t2}, 0
        s_cbranch_scc1 {lab}
        """)

    wdma("L_WL")
    a(f"""
    s_branch L_SETUP
    L_XL:
    v_lshrrev_b32 v4, 4, v{vL}
    v_and_b32 v5, 15, v{vL}
    v_xor_b32 v5, v5, v4
    v_lshlrev_b32 v5, 4, v5
    s_lshl_b32 s{t1}, s{sRW}, 7
    v_xor_b32 v5, s{t1}, v5
    s_mul_i32 s{t0}, s{sRW}, 10240
    s_add_u32 s{t2}, s{sN0}, s{t0}
    s_sub_u32 s{t3}, {N*256}, s{t2}
    v_lshl_add_u32 v4, v4, 8, v5
    s_add_u32 s{t1}, s{t0}, {LX}
    v_xor_b32 v5, 64, v4
    v_xor_b32 v6, 0x80, v4
    v_xor_b32 v7, 0xc0, v4
    v_mov_b32 v26, 0
    v_mov_b32 v27, 0
    """)
    srd(a, SRD_W, sX, f"s{t2}", f"s{t3}")
    a(f"s_mov_b32 s{t0}, 0\ns_mov_b32 s{sRW}, 0")
    if "b1b" in X:
        a("s_barrier")
    for i in range(10):
        if i % 4 == 0:
            a(f"s_mov_b32 m0, s{t1}\ns_add_u32 s{t1}, s{t1}, 4096")
        a(f"buffer_load_dwordx4 v{4+i%4}, {sq(SRD_W)}, s{t0} offen offset:{1024*(i%4)} {XNT} lds")
        if i % 4 == 3:
            a(f"s_add_u32 s{t0}, s{t0}, 4096")
    a(f"""
    L_SETUP:
    s_and_b32 s{sT0}, s{sW}, 3
    s_cmp_ge_u32 s{sW}, 12
    s_cselect_b32 s{t0}, {2*16384}, 0
    s_add_u32 s{t0}, s{t0}, {LW}
    s_mov_b32 s{t1}, {LX}
    v_lshrrev_b32 v40, 4, v{vL}                   ; sigma
    v_bfe_u32 v41, v{vL}, 2, 2
    v_and_b32 v42, 3, v{vL}
    v_and_b32 v{vJn}, 15, v{vL}
    v_lshlrev_b32 v43, 10, v40
    v_lshlrev_b32 v44, 7, v41
    v_lshl_add_u32 v44, v42, 3, v44
    v_bfe_u32 v45, v{vL}, 3, 2
    v_xor_b32 v45, s{sT0}, v45
    v_lshl_add_u32 v45, v45, 5, v44
    v_add3_u32 v{vA}, v43, v45, s{t0}
    s_lshl_b32 s{t0}, s{sT0}, 2
    v_add_u32 v{vRow}, s{t0}, v40
    v_xor_b32 v43, v{vJn}, v40
    v_lshlrev_b32 v43, 4, v43
    v_lshlrev_b32 v44, 8, v{vJn}
    v_add3_u32 v{vXa}, v43, v44, s{t1}
    v_xor_b32 v{vXa+1}, 64, v{vXa}
    v_xor_b32 v{vXa+2}, 0x80, v{vXa}
    v_xor_b32 v{vXa+3}, 0xc0, v{vXa}
    s_mov_b32 s{t0}, {LCW}
    v_lshl_add_u32 v{vCwa}, v{vL}, 3, s{t0}
    v_cmp_eq_u32 vcc, v40, v41
    v_mov_b32 v43, 0x3f80
    v_cmp_eq_u32 {sp(sEM)}, v40, v42
    v_cndmask_b32 v{vAo}, 0, v43, vcc
    v_mov_b32 v{vAo+1}, 0
    v_lshlrev_b32 v42, 4, v42
    v_lshlrev_b64 {vr(vAo,2)}, v42, {vr(vAo,2)}
    """)
    for g in range(4):
        if g:
            a(f"v_mov_b64 {vr(vAo+4*g,2)}, {vr(vAo,2)}")
        a(f"v_mov_b64 {vr(vAo+4*g+2,2)}, 0")
    a(f"""
    v_lshlrev_b32 v{vLO}, 4, v{vJn}
    v_lshlrev_b32 v{vLO+1}, 3, v{vJn}
    v_add_u32 v{vLO+1}, {LAGG}, v{vLO+1}
    v_lshrrev_b32 v40, 2, v0
    s_lshl_b32 s{t0}, s{sB}, 3
    v_lshl_add_u32 v{vOFFa}, v40, 10, s{t0}
    v_mul_u32_u24 v{vRO}, {CHB}, v40
    v_mov_b32 v{vF}, {LFLAG}
    v_mov_b32 v{vONE}, 1
    s_and_b32 s{t0}, s{sB}, 7
    s_cmp_eq_u32 s{t0}, 0
    s_addc_u32 s{sNB}, 78, 0
    s_mov_b32 s{sLG}, {hex(NLOG2E)}
    s_mov_b32 s{s12}, {f2h(AST/256)}
    s_mov_b32 s{s12+1}, {f2h(GST/256)}
    s_mov_b32 s{sINC}, 512
    s_mov_b32 s{sINC+1}, 512
    s_mov_b32 s{sTHR}, 0x5f800000
    s_mov_b32 s{sFIRST}, 1
    s_mov_b32 s{sSPIN}, {SPIN}
    s_mul_i32 s{t1}, s{sH}, {T_HALF//128}
    """)
    srd(a, SRD_T, sWS, f"s{t1}", T_HALF)
    srd(a, SRD_R, sWS, WS_REC, NCH * CHB)
    a(f"""
    s_cmp_eq_u32 s{sBIN}, 0
    s_cbranch_scc1 L_STG
    s_mov_b32 s{t0}, 429497
    s_mov_b32 s{t1}, 625
    v_lshlrev_b32 v33, 3, v{vL}
    s_mul_i32 s{t2}, s{sRW}, 3072
    v_lshl_add_u32 v32, v{vL}, 4, s{t2}
    s_waitcnt vmcnt(4)
    """)
    mark(1)
    for i in range(4):
        a(f"""
        {HM if i == 2 else ""}
        v_mul_u32_u24 v{24+i}, s{t0}, v{4+i}
        v_lshrrev_b32 v{24+i}, 25, v{24+i}
        v_lshlrev_b32 v{20+i}, 2, v{24+i}
        ds_add_rtn_u32 v{28+i}, v{20+i}, v{vONE} offset:{LHIST}
        """)
    a(f"""
    s_mov_b64 exec, 1
    ds_add_u32 v{vF}, v{vONE} offset:{F_RV}
    s_mov_b64 exec, -1
    """)
    for i in range(4):
        a(f"""
        v_mad_u32_u24 v{24+i}, v{24+i}, s{t1}, 7
        v_lshrrev_b32 v{24+i}, 3, v{24+i}
        v_sub_u32 v{24+i}, v{4+i}, v{24+i}
        """)
    a("s_mov_b64 exec, 1")
    if "spr" in X:
        a("s_setprio 1")
    spin("L_BS1", F_RV, "gt", 5, int(os.environ.get("SLB", 0)))
    if "spr" in X:
        a("s_setprio 3")
    mark(15)
    a(f"""
    s_mov_b64 exec, -1
    ds_read_b64 v[34:35], v33 offset:{LHIST}
    s_add_u32 s{sEP}, s{sEP}, 1
    s_xor_b32 s{sTAG2}, s{sEP}, 0x2545F491
    s_mul_i32 s{sTAG}, s{sTAG2}, 0x9E3779B1
    s_mul_i32 s{sTAG2}, s{sTAG2}, 0x85EBCA6B
    s_lshr_b32 s{sTAGB}, s{sTAG2}, 25
    s_waitcnt lgkmcnt(0)
    v_add_u32 v36, v34, v35
    v_mov_b32 v37, v36
    """)
    scan64(a, 37)
    a(f"""
    v_sub_u32 v38, v37, v36
    v_add_u32 v39, v38, v34
    v_mul_u32_u24 v38, {RB}, v38
    v_mul_u32_u24 v39, {RB}, v39
    ds_write_b64 v33, v[38:39] offset:{LSTART}
    """)
    for i in range(4):
        a(f"{HM if i == 2 else ''}\nds_read_b32 v{20+i}, v{20+i} offset:{LSTART}")
    a(FM)
    a(f"""
    s_lshl_b32 s{t0}, s{sTAGB}, 25
    s_lshl_b32 s{t1}, s{sC}, 10
    s_add_u32 s{t1}, s{t1}, {WS_OFF}
    v_lshl_or_b32 v48, v34, 14, v38
    v_lshl_or_b32 v50, v35, 14, v39
    v_or_b32 v48, s{t0}, v48
    v_or_b32 v50, s{t0}, v50
    v_mov_b32 v49, s{sTAG}
    v_mov_b32 v51, s{sTAG}
    v_lshl_add_u32 v52, v{vL}, 4, s{t1}
    """)
    mark(16)
    a(f"""
    s_waitcnt vmcnt(2) lgkmcnt(0)
    """)
    for i in range(4):
        a(f"""
        {HM if i == 2 else ""}
        v_mad_u32_u24 v{20+i}, v{28+i}, {RB}, v{20+i}
        v_lshl_or_b32 v{24+i}, v{8+i}, 8, v{24+i}
        ds_write_b32 v{20+i}, v{24+i} offset:8
        """)
    for i in range(4):
        if i % 2 == 0:
            a(f"{HM if i else FM}\ns_waitcnt vmcnt({1 - i // 2})")
        a(f"ds_write2_b32 v{20+i}, v{12+2*i}, v{13+2*i} offset0:0 offset1:1")
    mark(13)
    a(f"""
    s_mov_b64 exec, 1
    ds_add_u32 v{vF}, v{vONE} offset:{F_RV}
    """)
    if "spr" in X:
        a("s_setprio 1")
    spin("L_BS2", F_RV, "gt", 10, int(os.environ.get("SLB", 0)))
    if "spr" in X:
        a("s_setprio 3")
    a("s_mov_b64 exec, -1")
    for i in range(3):
        a(f"ds_read_b128 {vr(8+4*i,4)}, v32 offset:{1024*i}")
    for i in range(3):
        a(f"s_waitcnt lgkmcnt({2-i})\nbuffer_store_dwordx4 {vr(8+4*i,4)}, v32, {sq(SRD_W)}, 0 offen offset:{1024*i} sc1")
    a(f"""
    s_mov_b64 exec, 1
    ds_add_u32 v{vF}, v{vONE} offset:{F_RV}
    """)
    mark(2)
    a(f"""
    s_waitcnt vmcnt(0)
    ds_add_rtn_u32 v7, v{vF}, v{vONE} offset:{F_PUB}
    s_waitcnt lgkmcnt(0)
    v_cmp_eq_u32 vcc, 4, v7
    s_mov_b64 exec, -1
    s_cbranch_vccz L_NOPUB
    global_store_dwordx4 v52, v[48:51], {sp(sWS)} sc1
    L_NOPUB:
    s_setprio 0
    v_mov_b32 v4, s{sEP}
    ds_write_b32 v{vF}, v4 offset:{F_EP}
    """)
    mark(4)
    a(f"""
    s_cmp_eq_u32 s{sW}, 5
    s_cbranch_scc0 L_GD
    s_add_u32 s{t2}, s{sH}, s{sB}
    s_lshl_b32 s{t2}, s{t2}, 7
    s_add_u32 s{t2}, s{t2}, {WS_TF}
    v_mov_b32 v8, s{t2}
    v_mov_b32 v10, s{sTAG}
    v_mov_b32 v11, s{sTAG2}
    """)
    srd(a, SRD_W, sWS, WS_OFF, NCH * 1024)
    a(f"""
    s_mov_b64 exec, 1
    s_waitcnt lgkmcnt(0)
    s_barrier                                     ; B5
    global_store_dwordx2 v8, v[10:11], {sp(sWS)} sc1
    s_mov_b64 exec, -1
    s_branch L_TSD
    L_STG:
    v_mov_b32 v6, 1
    s_cmp_lt_u32 s{sRW}, 4
    s_cbranch_scc1 L_EARLY
    s_cmp_eq_u32 s{sRW}, 8
    s_cbranch_scc1 L_GC
    """)
    a(f"""
    s_mov_b64 exec, 1
    """)
    spin("L_BS3", F_RV, "gt", 15, int(os.environ.get("SL3", 4)))
    a("s_mov_b64 exec, -1")
    wdma("L_WL2")
    a(f"""
    v_mov_b32 v6, 0x100
    L_EARLY:
    s_mov_b64 exec, 1
    s_waitcnt vmcnt(0)
    ds_add_u32 v{vF}, v6 offset:{F_LAND}
    """)
    mark(13)
    a(f"""
    s_cmp_ge_u32 s{sW}, 12
    s_cbranch_scc1 L_LAND2
    s_cmp_ge_u32 s{sW}, 4
    s_cbranch_scc1 L_GD
    """)
    spin("L_LAND1", F_LAND, "lowne", 6, int(os.environ.get("SL1", 0)))
    a("s_mov_b64 exec, -1")
    if "tprio" in X:
        a("s_setprio 2")
    mark(3)

    def gemm(epi, pre, post=None, hook=None):
        def xr(n, ks):
            a(f"ds_read_b128 {vr(vXb+16*(n&1)+4*ks,4)}, v{vXa+ks} offset:{4096*n}")
        for ks in range(4):
            xr(0, ks)
            for m in range(2):
                o = m * 16384 + ks * 4096
                r = vWf + 16 * m + 4 * ks
                a(f"ds_read_b64_tr_b16 {vr(r,2)}, v{vA} offset:{o}")
                a(f"ds_read_b64_tr_b16 {vr(r+2,2)}, v{vA} offset:{o+512}")
            if ks == 1:
                pre()
                a("s_waitcnt lgkmcnt(4)")
        a("s_waitcnt lgkmcnt(9)")
        for ks in range(4):
            xr(1, ks)
        if hook:
            hook(-1)
        for n in range(6):
            ops = epi(n - 1) if n else []
            tail = [o[1:] for o in ops if o[0] == "@"]
            ops = [o for o in ops if o[0] != "@"]
            if n == 5:
                ops += tail
                if post:
                    a("s_nop 3")
                    for o in ops[:-4]:
                        a(o)
                    a("s_waitcnt lgkmcnt(0)")
                    post(3)
                    for o in ops[-4:]:
                        a(o)
                    a("s_waitcnt lgkmcnt(0)")
                    post(4)
                    break
                a("s_nop 7")
                for o in ops:
                    a(o)
                break
            late = post and n >= 2
            a(f"s_waitcnt lgkmcnt({(4 if n < 4 else 0) + (4 if late else 0)})")
            if n == 0:
                mark(21)
            per = -(-len(ops) // 5)
            for ks in range(4):
                for m in range(2):
                    acc = vAcc + 8 * (n & 1) + 4 * m
                    c = "0" if ks == 0 else vr(acc, 4)
                    a(f"v_mfma_f32_16x16x32_bf16 {vr(acc,4)}, {vr(vWf+16*m+4*ks,4)}, {vr(vXb+16*(n&1)+4*ks,4)}, {c}")
                    if late and 2 * ks + m == 3:
                        a(f"s_waitcnt lgkmcnt({4 if n < 4 else 0})")
                        post(n - 2)
                    if 2 * ks + m >= 3:
                        for o in ops[:per]:
                            a(o)
                        ops = ops[per:]
            assert not ops
            for o in tail:
                a(o)
            if n + 2 < 5:
                for ks in range(4):
                    xr(n + 2, ks)
            elif n == 3:
                a("s_nop 3")
            if hook:
                hook(n)

    def t_pre():
        a(f"""
        s_mov_b32 s{t0}, s{sN0}
        s_lshl_b32 s{t2}, s{sNB}, 2
        s_sub_u32 s{t2}, 320, s{t2}
        s_lshr_b32 s{t2}, -1, s{t2}
        """)
        if "nobp" in X:
            a(f"""
            v_lshlrev_b32 v4, 8, v{vJn}
            v_lshl_add_u32 v4, v{vRow}, 4, v4
            """)
        else:
            a(f"""
            v_lshrrev_b32 v6, 2, v{vL}
            v_and_b32 v7, 3, v{vL}
            s_lshl_b32 s{t1}, s{sT0}, 6
            v_lshl_add_u32 v4, v6, 8, s{t1}
            v_lshl_add_u32 v4, v7, 4, v4
            v_lshl_add_u32 v5, v7, 4, v6
            v_lshlrev_b32 v5, 2, v5
            """)
        a(f"""
        s_mov_b32 s{t1}, 0x07060302
        s_setreg_imm32_b32 hwreg(HW_REG_MODE, 4, 2), 0
        """)

    def t_epi(n):
        P = vPk + 4 * (n & 1)
        b = [vAcc + 8 * (n & 1) + t for t in range(4)]
        h = [vAcc + 8 * (n & 1) + 4 + t for t in range(4)]
        SD = "clamp dst_sel:DWORD dst_unused:UNUSED_PAD src0_sel:DWORD src1_sel:WORD_1"
        o = [f"v_mul_f32 v{b[t]}, s{sLG}, v{b[t]}" for t in range(4)]
        o += [f"v_add_f32 v{h[t]}, 0, v{h[t]}" for t in (0, 1, 3)]
        o += [f"v_add_u32 v{h[t]}, 0x8000, v{h[t]}" for t in (2, 0, 3, 1)]
        o += [f"v_sub_u32_sdwa v{h[0]}, v{h[0]}, v{h[2]} {SD}",
              f"v_cvt_pk_bf16_f32 v{P+2}, v{b[0]}, v{b[1]}",
              f"v_sub_u32_sdwa v{h[3]}, v{h[3]}, v{h[0]} {SD}",
              f"v_cvt_pk_bf16_f32 v{P+3}, v{b[2]}, v{b[3]}",
              f"v_sub_u32_sdwa v{h[1]}, v{h[1]}, v{h[3]} {SD}",
              f"v_perm_b32 v{P}, v{h[0]}, v{h[2]}, s{t1}",
              f"v_perm_b32 v{P+1}, v{h[1]}, v{h[3]}, s{t1}"]
        if "nobp" in X:
            o += [f"buffer_store_dwordx4 {vr(P,4)}, v4, {sq(SRD_T)}, s{t0} offen sc1",
                  f"s_add_u32 s{t0}, s{t0}, 4096"]
        else:
            o += [f"ds_bpermute_b32 v{P+u}, v5, v{P+u}" for u in (2, 3, 0, 1)]
        return o

    def t_post(n):
        if n == 4:
            a(f"s_mov_b32 exec_hi, s{t2}")
        a(f"buffer_store_dwordx4 {vr(vPk+4*(n&1),4)}, v4, {sq(SRD_T)}, s{t0} offen sc1\ns_add_u32 s{t0}, s{t0}, 4096")

    gemm(t_epi, t_pre, None if "nobp" in X else t_post)
    a(f"""
    s_setreg_imm32_b32 hwreg(HW_REG_MODE, 4, 2), 3
    """)
    a("s_setprio 0\ns_waitcnt vmcnt(0)" if "tprio" in X else "s_waitcnt vmcnt(0)")
    a(f"""
    s_branch L_GD
    L_GC:
    s_mov_b32 s{t0}, 0xffff0000
    s_waitcnt vmcnt(0)
    """)
    for q in range(4):
        a(f"v_and_b32 v{10+q}, s{t0}, v{10+q}")
    for q in range(4):
        a(f"v_mul_f32 v{10+q}, s{sLG}, v{10+q}")
    a(f"""
    v_cvt_pk_bf16_f32 v10, v10, v11
    v_cvt_pk_bf16_f32 v11, v12, v13
    ds_write_b64 v{vCwa}, v[10:11]
    s_mov_b64 exec, 1
    """)
    if "w15slp" in X:
        spin("L_BS5", F_LAND, "gt", 0x100, 4)
    spin("L_LAND2", F_LAND, "ne", 0x406)
    a("s_mov_b64 exec, -1")
    mark(3)

    def au_pre():
        a(f"""
        s_mov_b32 s{t0}, {AST}
        s_mov_b32 s{t1}, {GST if "u64" in X else UST}
        s_mov_b32 s{t2}, {0 if "u64" in X else LU}
        v_lshlrev_b32 v4, 4, v{vRow}
        v_lshl_add_u32 v5, v{vRow}, 3, s{t2}
        v_mad_u32_u24 v4, v{vJn}, s{t0}, v4
        v_mad_u32_u24 v5, v{vJn}, s{t1}, v5
        """)

    def au_epi(n):
        A = vAcc + 8 * (n & 1)
        o = [f"v_mul_f32 v{A+t}, s{sLG}, v{A+t}" for t in range(4)]
        if "u64" in X:
            o += [f"ds_write_b128 v4, {vr(A,4)} offset:{LA+16*AST*n}"]
            D = (92, 94, 104, 6)
            o += ["@" + f"v_cvt_f64_f32 {vr(D[t],2)}, v{A+4+t}" for t in range(4)]
            o += ["@" + f"ds_write_b64 v5, {vr(D[t],2)} offset:{LAGG+16*GST*n+128*t}" for t in range(4)]
            return o
        o += [f"v_cvt_pk_bf16_f32 v{A+4}, v{A+4}, v{A+5}", f"v_cvt_pk_bf16_f32 v{A+5}, v{A+6}, v{A+7}"]
        o += [f"ds_write_b128 v4, {vr(A,4)} offset:{LA+16*AST*n}"]
        o += [f"ds_write_b64 v5, {vr(A+4,2)} offset:{16*UST*n}"]
        return o

    def au_hook(n):
        HB = int(os.environ.get('HB', 0))
        if n == HB:
            srd(a, SRD_W, sWS, WS_OFF, NCH * 1024)
            a("s_waitcnt lgkmcnt(0)\ns_barrier                                     ; B5")
            mark(22)
            pollreq()
        if n == HB + 1:
            a("s_barrier                                     ; B5b")
            recpf()

    gemm(au_epi, au_pre, None, au_hook)
    mark(5)
    a("s_branch L_PW")
    vW = (8, 32)
    vPr = 56
    REC = (8, 14, 20, 26, 32, 38, 44)

    def rec(k):
        return REC[k]

    vP, vTFa, vLf = 94, 100, 96 - 20
    a("L_GD:\ns_mov_b64 exec, -1")
    mark(5)
    srd(a, SRD_W, sWS, WS_OFF, NCH * 1024)
    a(f"""
    s_waitcnt lgkmcnt(0)
    s_barrier
    """)
    mark(22)
    a(f"""
    {"s_sleep " + os.environ["PDELAY"] if os.environ.get("PDELAY") else ""}
    L_TSD:
    """)
    pollreq()
    a(f"""
    L_FILL:
    v_lshrrev_b32 v4, 4, v0
    v_and_b32 v5, 15, v0
    s_mov_b32 s{t0}, {SLOTB}
    v_mov_b32 v6, {LSLOT}
    v_mad_u32_u24 v4, v4, s{t0}, v6
    v_mad_u32_u24 v4, v5, 48, v4
    v_mov_b32 v56, {DUMMY}
    v_mov_b32 v57, {DUMMY}
    v_mov_b64 v[58:59], v[56:57]
    s_cmp_lt_u32 s{sW}, 8
    ds_write_b128 v4, v[56:59]
    s_cbranch_scc0 L_FT
    ds_write_b128 v4, v[56:59] offset:{48*SLOTB}
    s_branch L_FD
    L_FT:
    s_mov_b32 s{t1}, {LTAB - 8192}
    v_mov_b32 v60, {LDUM}
    v_mov_b32 v61, 0
    v_lshl_add_u32 v5, v0, 4, s{t1}
    v_mov_b64 v[62:63], v[60:61]
    ds_write_b128 v5, v[60:63]
    ds_write_b128 v5, v[60:63] offset:4096
    L_FD:
    s_cmp_eq_u32 s{sFIRST}, 0
    s_waitcnt lgkmcnt(0)
    s_barrier                                     ; B5b
    s_cbranch_scc1 L_AGAIN
    """)
    mark(14)
    recpf()
    a(f"""
    L_PW:
    v_readfirstlane_b32 s{sEP}, v90
    s_nop 0
    s_xor_b32 s{sTAG2}, s{sEP}, 0x2545F491
    s_mul_i32 s{sTAG}, s{sTAG2}, 0x9E3779B1
    s_mul_i32 s{sTAG2}, s{sTAG2}, 0x85EBCA6B
    s_lshr_b32 s{sTAGB}, s{sTAG2}, 25
    s_waitcnt vmcnt({1 if RPF else 0})
    L_POLL:
    v_lshrrev_b32 v4, 25, v88
    v_cmp_ne_u32 vcc, s{sTAG}, v89
    v_cmp_ne_u32 {sp(t0)}, s{sTAGB}, v4
    s_or_b64 exec, vcc, {sp(t0)}
    s_cbranch_execnz L_POLL2
    L_POLLED:
    s_mov_b64 exec, -1
    """)
    mark(6)
    a(f"""
    v_bfe_u32 v{vRem}, v88, 14, 11
    v_and_b32 v4, 0x3fff, v88
    v_add_u32 v{vRO}, v{vRO}, v4
    """)
    a(f"""
    L_WINDOW:
    v_and_b32 v4, 15, v{vL}
    v_and_b32 v5, 3, v{vL}
    v_sub_u32 v5, v{vRem}, v5
    """)
    for k in range(4):
        a(f"v_sub_u32_dpp v{64+k}, v{vRem}, v4 row_newbcast:{4*k} row_mask:0xf bank_mask:0xf")
    for k in range(4):
        a(f"v_cmp_lt_i32 {sp(sM+2*k)}, 0, v{64+k}")
    for k in range(4, KMAX):
        a(f"v_cmp_lt_i32 {sp(sM+2*k)}, {4*k}, v5")
    a(f"""
    L_LOADS:
    """)
    EPF = os.environ.get("EPF", "")
    if EPF:
        a(f"""
        s_mov_b64 exec, 0xff
        global_load_dwordx2 v[82:83], v{vTFa}, {sp(sWS)} sc1
        s_mov_b64 exec, -1
        """)
    a(f"""
    v_and_b32 v4, 15, v{vL}
    v_and_b32 v5, 3, v{vL}
    v_mul_u32_u24 v4, {RB}, v4
    v_mad_u32_u24 v5, v5, {RB}, v{vRO}
    s_or_b64 {sp(sU5)}, {sp(sM+10)}, {sp(sM+12)}
    s_or_b64 {sp(sU4)}, {sp(sU5)}, {sp(sM+8)}
    """)
    for k in range(4):
        a(f"v_add_u32_dpp v{rec(k)+3}, v{vRO}, v4 row_newbcast:{4*k} row_mask:0xf bank_mask:0xf")

    def kloop(done, body, mask=sM):
        for k in range(KMAX):
            if k == 4:
                a(f"s_cmp_eq_u64 {sp(sU4)}, 0\ns_cbranch_scc1 {done}")
            if k == 5:
                a(f"s_cmp_eq_u64 {sp(sU5)}, 0\ns_cbranch_scc1 {done}")
            a(f"s_mov_b64 exec, {sp(mask+2*k)}")
            body(k)
        a(f"{done}:")

    RF = "" if "recplain" in X else "sc1"

    def rload(k):
        if k < 4:
            a(f"buffer_load_dwordx3 {vr(rec(k),3)}, v{rec(k)+3}, {sq(SRD_R)}, 0 offen {RF}")
        else:
            a(f"buffer_load_dwordx3 {vr(rec(k),3)}, v5, {sq(SRD_R)}, 0 offen offset:{48*k} {RF}")

    kloop("L_RL", rload)
    mark(23)
    a(f"""
    s_mov_b64 exec, -1
    s_mov_b32 s{t0}, {LCW}
    v_lshl_add_u32 v4, v{vL}, 3, s{t0}
    """)
    for k in range(8):
        a(f"ds_read_b64 {vr(vW[0]+6*k+4,2)}, v4")
    a(f"""
    s_lshl_b32 s{t0}, s{sW}, 5
    s_add_u32 s{t0}, s{t0}, {LTAB}
    v_lshrrev_b32 v4, 4, v{vL}
    v_bfe_u32 v5, v{vL}, 2, 2
    v_lshl_add_u32 v{vP}, v4, 3, s{t0}
    v_lshl_add_u32 v{vP+1}, v5, 3, s{t0}
    s_lshl_b32 s{t0}, s{sW}, 3
    s_add_u32 s{t0}, s{t0}, s{sH}
    s_lshl_b32 s{t0}, s{t0}, 7
    s_add_u32 s{t0}, s{t0}, {WS_TF}
    v_lshl_add_u32 v{vTFa}, v{vL}, 7, s{t0}
    v_mov_b32 v6, {LSLOT}
    s_mov_b32 s{t0}, {2*SLOTB}
    v_mad_u32_u24 v{vLf}, v{vL}, s{t0}, v6
    v_lshlrev_b32 v{vLf+1}, 9, v{vL}
    v_add_u32 v{vLf+2}, {SLOTB}, v{vLf}
    v_add_u32 v{vLf+3}, 256, v{vLf+1}
    v_lshlrev_b32 v{vLf+4}, 3, v{vL}
    v_mov_b32 v6, {LSLOT-48}
    s_mov_b32 s{t0}, {SLOTB//4}
    s_mov_b32 s{t1}, 0xffffff00
    """)
    if "sprio" in X:
        for lv in (1, 2, 3):
            a(f"s_cmp_lt_u32 s{sW}, {4*lv}\ns_cbranch_scc1 L_SP\ns_setprio {lv}")
        a("L_SP:")
    mark(12)
    a("s_waitcnt vmcnt(0)")
    mark(7)
    PFN = int(os.environ.get("PFN", "14"))
    if PFN:
        a(f"""
        s_mov_b64 exec, 0xff
        global_load_dwordx2 v[70:71], v{vTFa}, {sp(sWS)} sc1
        """)
    def pf(cond):
        if cond:
            a(f"""
            s_mov_b64 exec, 0xff
            v_cmp_eq_u64 vcc, {sp(sTAG)}, v[82:83]
            s_lshr_b32 s{t3}, s2, 5
            s_bitcmp1_b32 vcc_lo, s{t3}
            s_cbranch_scc0 L_NOPF
            """)
        a(f"""
        s_mul_i32 s{t2}, s{sW}, {625*256}
        s_lshr_b32 s{t3}, s2, 3
        s_mul_i32 s{t3}, s{t3}, {39*128}
        s_add_u32 s{t2}, s{t2}, s{t3}
        s_mov_b64 exec, {hex((1 << PFN) - 1)}
        v_lshlrev_b32 v5, 7, v{vL}
        buffer_load_dword v106, v5, {sq(SRD_T)}, s{t2} offen sc1
        """)
        if cond:
            a(f"""
            s_branch L_PFD
            L_NOPF:
            s_mov_b64 exec, 1
            global_load_dword v106, v{vTFa}, {sp(sWS)} sc1
            L_PFD:
            """)

    if EPF == "a":
        pf(True)
    SB = "dst_sel:DWORD dst_unused:UNUSED_PAD src0_sel:DWORD src1_sel:BYTE_0"

    def hist(k):
        a(f"""
        v_lshlrev_b32_sdwa v4, 2, v{rec(k)+2} {SB}
        v_lshlrev_b32_sdwa v{vPr+2*k+1}, 8, v{rec(k)+2} {SB}
        ds_add_rtn_u32 v{rec(k)+3}, v4, v{vONE} offset:{LCNT}
        v_mad_u32_u24 v{vPr+2*k}, v4, s{t0}, v6
        v_and_b32 v{rec(k)+2}, s{t1}, v{rec(k)+2}
        """)

    kloop("L_HD", hist)
    if EPF == "h":
        pf(True)
    a(f"s_mov_b32 s{t2}, 0\ns_waitcnt lgkmcnt(0)")
    mark(24)

    def scat(k):
        r = rec(k)
        a(f"""
        v_cmpx_gt_u32 vcc, {CAP}, v{r+3}
        v_lshrrev_b32 v4, 2, v{r+3}
        v_and_b32 v5, 7, v{r+3}
        v_and_b32 v{r+3}, 3, v{r+3}
        s_andn2_b64 {sp(sM+2*k)}, {sp(sM+2*k)}, vcc
        v_mad_u32_u24 v{vPr+2*k}, v4, 48, v{vPr+2*k}
        v_cmp_eq_u32 vcc, 4, v5
        v_lshl_add_u32 v4, v{r+3}, 2, v{vPr+2*k}
        v_lshl_add_u32 v5, v{r+3}, 3, v{vPr+2*k}
        ds_write_b32 v4, v{r+2} offset:48
        ds_write_b64 v5, {vr(r,2)} offset:64
        s_and_b64 {sp(sO+2*k)}, vcc, exec
        s_bcnt1_i32_b64 s{t3}, {sp(sO+2*k)}
        s_add_u32 s{t2}, s{t2}, s{t3}
        """)

    kloop("L_SD", scat)
    mark(25)
    a(f"""
    s_mov_b64 exec, 1
    v_mov_b32 v4, s{t2}
    ds_add_rtn_u32 v7, v{vF}, v4 offset:{F_NQ}
    s_mov_b64 exec, -1
    v_cmp_lt_i32 vcc, {4*KMAX}, v{vRem}
    s_or_b64 {sp(t0)}, {sp(sM)}, {sp(sM+2)}
    s_or_b64 {sp(t2)}, {sp(sM+4)}, {sp(sM+6)}
    s_or_b64 {sp(t0)}, {sp(t0)}, {sp(sM+8)}
    s_or_b64 {sp(t2)}, {sp(t2)}, {sp(sM+10)}
    s_or_b64 {sp(t0)}, {sp(t0)}, {sp(sM+12)}
    s_or_b64 {sp(t0)}, {sp(t0)}, {sp(t2)}
    s_cselect_b32 s{sBIN}, 1, 0
    s_or_b64 exec, vcc, {sp(t0)}
    ds_write_b32 v{vF}, v{vONE} offset:{F_MORE}
    s_waitcnt lgkmcnt(1)
    v_readlane_b32 s{t2}, v7, 0
    s_lshl_b32 s{t2}, s{t2}, 3
    s_add_u32 s{t2}, s{t2}, {LTAB}
    """)

    def tab(k):
        a(f"""
        v_mbcnt_lo_u32_b32 v4, exec_lo, 0
        v_mbcnt_hi_u32_b32 v4, exec_hi, v4
        v_lshl_add_u32 v4, v4, 3, s{t2}
        s_bcnt1_i32_b64 s{t3}, exec
        s_lshl3_add_u32 s{t2}, s{t3}, s{t2}
        ds_write_b64 v4, {vr(vPr+2*k,2)}
        """)

    kloop("L_TD", tab, sO)
    mark(26)
    a(f"""
    s_mov_b64 exec, 0xff
    s_waitcnt vmcnt({1 if EPF else 0})
    L_TP:
    v_cmp_ne_u64 vcc, {sp(sTAG)}, v[70:71]
    s_cbranch_vccnz L_TP2
    L_TRDY:
    """)
    if PFN and not EPF:
        pf(False)
    a(f"""
    s_mov_b64 exec, -1
    s_mov_b32 s{sFIRST}, 0
    s_waitcnt lgkmcnt(0)
    """)
    mark(8)
    a(f"""
    s_lshl4_add_u32 s{t0}, s2, s{sW}
    s_cmp_eq_u32 s{t0}, 15
    s_barrier                                     ; B6
    s_cbranch_scc1 L_EPO
    L_EPD:
    """)
    mark(9)
    if stamp:
        a("s_memtime s[96:97]\nv_mov_b32 v107, 0")
    vT, vAp, vS = 56, 80, 84
    vTQ, vNA, vFA, vQE = 88, 90, 92, 93
    vDn, vNm, vAa, vCk = 72, 100, 4, 106
    vD = (76, 78, 4, 6)
    sRET = sTHR + 1
    PRA, PRB = [int(x) for x in os.environ.get('PR', '5,2').split(',')]

    def sh(g):
        return (96, 98, 104, 124)[g]

    def saddr(S):
        a(f"""
        v_pk_add_f32 {vr(S,2)}, {vr(S,2)}, {vr(vLO,2)} op_sel_hi:[1,0]
        v_pk_add_f32 {vr(S+2,2)}, {vr(S+2,2)}, {vr(vLO,2)} op_sel_hi:[1,0]
        """)

    def loads(p, S, loop=False):
        for g in range(int(os.environ.get("NLD", 4)) if loop else 4):
            a(f"buffer_load_dwordx4 {vr(vW[p]+6*g,4)}, v{S+g}, {sq(SRD_T)}, 0 offen sc1")

    def naddr(dst, TQ):
        a(f"v_pk_fma_f32 {vr(dst,2)}, {vr(TQ,2)}, {sp(s12)}, {vr(vLO,2)} op_sel:[1,0,0] op_sel_hi:[1,1,1]")

    def eread(q, half):
        a(f"s_mov_b64 exec, {sp(sEM)}")
        for g in range(4):
            a(f"ds_read_b64 {vr(vAo+4*g+2,2)}, v{q} offset:{48*half+16+8*g}")
        a("s_mov_b64 exec, -1")

    def hv(W, g, h):
        return vr(W + 6 * g, 2) if h == 0 else vr(sh(g), 2)

    def mfma(p, g, c=vAp):
        return f"v_mfma_f32_16x16x32_bf16 {vr(vT+4*g,4)}, {vr(vAo+4*g,4)}, {vr(vW[p]+6*g+2,4)}, {vr(c,4)}"

    def flush(ad):
        a(f"""
        v_pk_mul_f32 {vr(vNm,2)}, {vr(vNm,2)}, {vr(vDn,2)}
        v_pk_mul_f32 {vr(vNm+2,2)}, {vr(vNm+2,2)}, {vr(vDn+2,2)}
        """)
        for t in range(4):
            a(f"v_cvt_f64_f32 {vr(vD[t],2)}, v{vNm+t}")
        for t in range(4):
            a(f"ds_add_f64 v{ad}, {vr(vD[t],2)} offset:{128*t}")

    def check(lab):
        a(f"""
        v_pk_add_f32 {vr(vAa,2)}, {vr(vDn,2)}, {vr(vDn+2,2)}
        v_add_f32 v{vCk}, v{vAa}, v{vAa+1}
        v_cmp_nge_f32 vcc, s{sTHR}, v{vCk}
        s_cbranch_vccnz {lab}
        """)

    def leftover():
        for u in range(2):
            a(f"""
            v_min_u32 v{96+u}, {CAP}, v{96+u}
            v_add_u32 v{98+u}, 7, v{96+u}
            v_lshrrev_b32 v{96+u}, 3, v{96+u}
            v_and_b32 v{98+u}, 7, v{98+u}
            """)
        a(f"""
        s_mov_b32 s{t3}, 96
        v_cmp_gt_u32 {sp(sO)}, 4, v98
        v_cmp_gt_u32 {sp(sO+2)}, 4, v99
        v_mad_u32_u24 v{vLf}, v96, s{t3}, v{vLf}
        v_mad_u32_u24 v{vLf+2}, v97, s{t3}, v{vLf+2}
        s_lshl3_add_u32 s{t2}, s{t0}, {LTAB}
        """)
        for u in range(2):
            a(f"""
            s_mov_b64 exec, {sp(sO+2*u)}
            v_mbcnt_lo_u32_b32 v96, exec_lo, 0
            v_mbcnt_hi_u32_b32 v96, exec_hi, v96
            v_lshl_add_u32 v96, v96, 3, s{t2}
            s_bcnt1_i32_b64 s{t3}, exec
            s_lshl3_add_u32 s{t2}, s{t3}, s{t2}
            ds_write_b64 v96, {vr(vLf+2*u,2)}
            """)
        a(f"""
        s_mov_b64 exec, -1
        s_sub_u32 s{t2}, s{t2}, {LTAB - 24}
        s_lshr_b32 s{t2}, s{t2}, 5                ; groups
        s_sub_u32 s{t2}, s{t2}, s{sW}
        s_add_u32 s{t2}, s{t2}, 15
        s_lshr_b32 s{t2}, s{t2}, 4
        s_lshl4_add_u32 s{t3}, s{t2}, s{sW}
        s_lshl_b32 s{t3}, s{t3}, 2
        s_add_u32 s{t1}, s{t0}, 64
        s_lshl_b32 s{sN}, s{t2}, 1
        s_cmp_lt_u32 s{t3}, s{t1}
        s_addc_u32 s{sN}, s{sN}, 0
        """)

    a(f"""
    ds_read_b64 v[4:5], v{vF} offset:{F_MORE}
    ds_read_b64 v[96:97], v{vLf+4} offset:{LCNT}
    L_PRE:
    ds_read_b64 {vr(vT,2)}, v{vP}
    ds_read_b32 v{vQE}, v{vP+1}
    ds_read_b64 {vr(vTQ,2)}, v{vP} offset:512
    s_setprio 3
    v_mov_b32 v{vFA}, v{vLO+1}
    v_mov_b64 {vr(vNm,2)}, 0
    v_mov_b64 {vr(vNm+2,2)}, 0
    s_waitcnt lgkmcnt(2)
    ds_read_b128 {vr(vT+4,4)}, v{vT}
    ds_read_b128 {vr(vS,4)}, v{vT} offset:48
    v_readfirstlane_b32 s{t0}, v5
    v_readfirstlane_b32 s{sMORE}, v4
    """)
    naddr(vNA, vT)
    a(f"""
    s_cmp_lt_u32 s{t0}, 128
    s_cbranch_scc1 L_FEW
    s_waitcnt lgkmcnt(1)
    """)
    saddr(vT + 4)
    loads(0, vT + 4)
    a(f"ds_read_b128 {vr(vAp,4)}, v{vNA} offset:{LA}")
    eread(vQE, 0)
    for t in range(4):
        a(f"v_mov_b32 v{vDn+t}, 1.0")
    a(f"s_cmp_eq_u32 s{t0}, -1\ns_cbranch_scc1 L_SB1")
    if "w1late" in X:
        leftover()
        a("s_branch L_SB1")
    else:
        a("s_waitcnt lgkmcnt(5)")
        saddr(vS)
        loads(1, vS)
        leftover()
        a("s_waitcnt vmcnt(4) lgkmcnt(0)\ns_branch L_M1")
    for p in range(2):
        W = vW[p]
        a(f"""
        L_L{p}:
        ds_read_b128 {vr(vS,4)}, v{vTQ} offset:{48*p}
        """)
        for i in range(16):
            a(f"v_exp_f32 v{vT+i}, v{vT+i}")
            if i == 7:
                eread(vQE, p ^ 1)
                if p == 0:
                    a(f"ds_read_b32 v{vQE}, v{vP+1} offset:512")
                else:
                    a(f"v_mov_b32 v{vFA}, v{vNA+1}")
        if p == 0:
            flush(vFA)
        else:
            naddr(vNA, vTQ)
        for g in range(4):
            a(f"v_lshlrev_b64 {vr(sh(g),2)}, 16, {vr(W+6*g,2)}")
            if g == 0 and p == 1:
                a(f"ds_read_b128 {vr(vAp,4)}, v{vNA} offset:{LA}")
                a(f"ds_read_b64 {vr(vTQ,2)}, v{vP} offset:1024")
        if p == 0:
            for h in range(2):
                a(f"v_pk_add_f32 {vr(vDn+2*h,2)}, {vr(vT+2*h,2)}, 1.0 op_sel_hi:[1,0]")
        for g in range(1 - p, 4):
            for h in range(2):
                src = hv(W, 0, h) if (g == 1 and p == 0) else vr(vNm + 2 * h, 2)
                a(f"v_pk_fma_f32 {vr(vAa+2*h,2)}, {src}, {vr(vT+4*g+2*h,2)}, {src}")
            for h in range(2):
                a(f"v_pk_fma_f32 {vr(vNm+2*h,2)}, {hv(W,g,h)}, {vr(vDn+2*h,2)}, {vr(vAa+2*h,2)}")
            for h in range(2):
                a(f"v_pk_fma_f32 {vr(vDn+2*h,2)}, {vr(vDn+2*h,2)}, {vr(vT+4*g+2*h,2)}, {vr(vDn+2*h,2)}")
        if p == 1:
            check("L_REDO1")
            a(f"L_RB1:\nv_pk_add_f32 {vr(vP,2)}, {vr(vP,2)}, {sp(sINC)}")
        a(f"""
        L_SB{p}:
        """)
        if "trace" in X:
            a(f"s_memtime s[92:93]\ns_add_u32 m0, s{sN}, 16")
        a(f"""
        s_cmp_le_u32 s{sN}, 2
        s_waitcnt lgkmcnt(0)
        """)
        if "trace" in X:
            a("v_writelane_b32 v107, s92, m0")
        saddr(vS)
        a(f"s_cbranch_scc1 L_TAIL{p}")
        loads(p, vS, True)
        a(f"""
        s_waitcnt vmcnt({os.environ.get("NLD", 4)})
        L_M{p}:
        """)
        for g in range(4):
            a(mfma(p ^ 1, g))
            if p == 1:
                a(f"v_rcp_f32 v{vDn+g}, v{vDn+g}")
        a(f"""
        s_sub_u32 s{sN}, s{sN}, 1
        s_bitcmp1_b32 {(1 << PRA) | (1 << PRB)}, s{sN}
        s_cbranch_scc1 L_PR{p}
        """)
        a("s_branch L_L0" if p == 1 else "s_nop 0")
    for p in range(2):
        a(f"""
        L_PR{p}:
        """)
        a(f"""
        s_setprio 2
        s_cmp_eq_u32 s{sN}, {PRA}
        s_cbranch_scc1 L_L{p^1}
        s_setprio 1
        """)
        a(f"""
        s_branch L_L{p^1}
        L_TAIL{p}:
        s_setprio 0
        s_cmp_eq_u32 s{sN}, 2
        s_waitcnt vmcnt(0)
        s_cbranch_scc1 L_M{p}
        """)
        if p == 0:
            check("L_REDO0")
            a(f"L_RB0:\nv_mov_b32 v{vFA}, v{vNA+1}\ns_branch L_LAST")
    a("L_LAST:")
    for g in range(4):
        a(f"v_rcp_f32 v{vDn+g}, v{vDn+g}")
    a("s_nop 0")
    flush(vFA)
    a(f"""
    L_LD:
    s_cmp_lt_u32 s{sW}, 10
    s_cbranch_scc0 L_LD2
    v_lshrrev_b32 v97, 3, v0
    v_and_b32 v98, 7, v0
    v_lshlrev_b32 v98, 4, v98
    """)
    if "u64" not in X:
        a(f"""
        s_mov_b32 s{t0}, {UST}
        v_add_u32 v99, {LU}, v98
        v_mad_u32_u24 v99, v97, s{t0}, v99
        ds_read2_b64 v[56:59], v99 offset0:0 offset1:1
        """)
    a(f"""
    s_mov_b32 s{t0}, {GST}
    v_mad_u32_u24 v96, v97, s{t0}, v98
    s_add_u32 s{t1}, s{sN0}, s{sH}
    v_cmp_gt_u32 {sp(sO)}, s{sNB}, v97
    v_lshlrev_b32 v97, 8, v97
    v_add3_u32 v97, v97, v98, s{t1}
    s_mov_b32 s{t2}, s{sLG}
    s_mov_b32 s{t3}, s{sLG}
    """)
    for i in range(0 if "u64" in X else 4):
        a(f"v_lshlrev_b32 v{60+2*i}, 16, v{56+i}\nv_and_b32 v{61+2*i}, s{t0}, v{56+i}")
    a("L_LD2:\ns_waitcnt lgkmcnt(0)")
    mark(10)
    if stamp:
        a("s_memtime s[92:93]\ns_waitcnt lgkmcnt(0)\ns_sub_u32 s92, s92, s96\nv_writelane_b32 v107, s92, 15\nv_writelane_b32 v107, s96, 16")
    a(f"""
    s_cmp_eq_u32 s{sMORE}, 0
    s_barrier                                     ; B8
    s_cbranch_scc0 L_MORE
    s_cmp_lt_u32 s{sW}, 10
    s_cbranch_scc0 L_FIN
    ds_read_b128 v[24:27], v96 offset:{LAGG}
    ds_read_b128 v[28:31], v96 offset:{LAGG+128}
    ds_read_b128 v[32:35], v96 offset:{LAGG+256}
    ds_read_b128 v[36:39], v96 offset:{LAGG+384}
    """)
    for t in range(4):
        a(f"s_waitcnt lgkmcnt({3-t})")
        for u in range(2):
            a(f"v_cvt_f32_f64 v{8+4*u+t}, {vr(24+4*t+2*u,2)}")
    for i in range(0 if "u64" in X else 4):
        a(f"v_pk_add_f32 {vr(8+2*i,2)}, {vr(8+2*i,2)}, {vr(60+2*i,2)}")
    for i in range(4):
        a(f"v_pk_mul_f32 {vr(16+2*i,2)}, {vr(8+2*i,2)}, {sp(t2)}")
    for i in range(8):
        a(f"v_exp_f32 v{16+i}, v{16+i}")
    for i in range(4):
        a(f"v_pk_add_f32 {vr(16+2*i,2)}, {vr(16+2*i,2)}, 1.0 op_sel_hi:[1,0]")
    for i in range(8):
        a(f"v_rcp_f32 v{16+i}, v{16+i}")
    for i in range(4):
        a(f"v_pk_mul_f32 {vr(16+2*i,2)}, {vr(16+2*i,2)}, {vr(8+2*i,2)}")
    for i in range(4):
        a(f"v_cvt_pk_bf16_f32 v{8+i}, v{16+2*i}, v{17+2*i}")
    a(f"""
    s_mov_b64 exec, {sp(sO)}
    global_store_dwordx4 v97, v[8:11], {sp(sOUT)} {os.environ.get('OF', 'sc1')}
    L_FIN:
    """)
    if stamp:
        a("s_mov_b64 exec, -1")
    if PROBE:
        a("s_waitcnt vmcnt(0)")
        mark(30)
        a(f"""
        s_lshl_b32 s{t0}, s2, 4
        s_add_u32 s{t0}, s{t0}, s{sW}
        s_cmp_eq_u32 s{t0}, {PROBE[0]}
        s_cbranch_scc0 L_PX
        s_memrealtime s[84:85]
        s_sub_u32 s96, s96, s94
        s_lshl_b32 s96, s96, 3
        s_min_u32 s96, s96, 100000
        s_waitcnt lgkmcnt(0)
        L_PS:
        s_memrealtime s[86:87]
        s_waitcnt lgkmcnt(0)
        s_sub_u32 s86, s86, s84
        s_cmp_lt_u32 s86, s96
        s_cbranch_scc1 L_PS
        L_PX:
        """)
    if stamp:
        a("s_waitcnt vmcnt(0)")
        mark(11)
        a("s_waitcnt lgkmcnt(0)")
        for i_, m_ in enumerate(sorted(SLOT)):
            a(f"v_writelane_b32 v107, s{SLOT[m_]}, {i_}")
        a(f"""
        s_lshl_b32 s3, s2, 4
        s_add_u32 s3, s3, s{sW}
        s_lshl_b32 s3, s3, 6
        s_add_u32 s3, s3, {WS_STAMP}
        v_lshl_add_u32 v4, v{vL}, 2, s3
        s_mov_b64 exec, 0xffff
        global_store_dword v4, v107, {sp(sWS)}
        s_mov_b64 exec, 0xffff0000
        v_add_u32 v4, {0x40000 - 64}, v4
        global_store_dword v4, v107, {sp(sWS)}
        """)
    a("s_endpgm")
    a(f"""
    L_POLL2:
    s_sub_u32 s{sSPIN}, s{sSPIN}, 1
    s_cbranch_scc1 L_POLLX
    s_sleep 2
    buffer_load_dwordx2 v[88:89], v{vOFFa}, {sq(SRD_W)}, 0 offen sc1
    s_waitcnt vmcnt(0)
    s_branch L_POLL
    L_POLLX:
    v_mov_b32 v88, 0
    s_mov_b32 s{sSPIN}, 0
    s_branch L_POLLED
    """)
    a(f"""
    """)
    a(f"""
    L_EPO:
    v_mov_b32 v6, {WS_EPOCH}
    v_mov_b32 v7, s{sEP}
    s_mov_b64 exec, 1
    global_store_dword v6, v7, {sp(sWS)} sc1
    s_mov_b64 exec, -1
    s_branch L_EPD
    L_TP2:
    s_sub_u32 s{sSPIN}, s{sSPIN}, 1
    s_cbranch_scc1 L_TX
    s_sleep 2
    global_load_dwordx2 v[70:71], v{vTFa}, {sp(sWS)} sc1
    s_waitcnt vmcnt(0)
    s_branch L_TP
    L_TX:
    s_mov_b32 s{sSPIN}, 0
    s_branch L_TRDY
    """)
    a(f"""
    L_FEW:
    s_waitcnt lgkmcnt(0)
    """)
    leftover()
    a(f"""
    s_cmp_eq_u32 s{t2}, 0
    s_cbranch_scc1 L_LD
    v_mov_b32 v5, -1
    s_branch L_PRE
    L_REDO0:
    s_mov_b32 s{sRET}, 0
    s_branch L_REDO
    L_REDO1:
    s_mov_b32 s{sRET}, 1
    L_REDO:
    ds_read_b64 v[76:77], v{vP}
    ds_read_b32 v{vCk}, v{vP+1}
    v_mov_b64 {vr(vNm,2)}, 0
    v_mov_b64 {vr(vNm+2,2)}, 0
    s_mov_b32 s{t0}, 2
    s_waitcnt lgkmcnt(0)
    """)
    naddr(78, 76)
    a(f"""
    ds_read_b128 {vr(vDn,4)}, v78 offset:{LA}
    L_RD1:
    ds_read_b128 {vr(vAa,4)}, v76
    """)
    eread(vCk, 0)
    a("s_waitcnt lgkmcnt(0)")
    saddr(vAa)
    loads(1, vAa)
    a(f"""
    v_add_u32 v76, 48, v76
    v_add_u32 v{vCk}, 48, v{vCk}
    s_waitcnt vmcnt(0)
    """)
    for g in range(4):
        a(mfma(1, g, vDn))
    for g in range(4):
        a(f"v_lshlrev_b64 {vr(sh(g),2)}, 16, {vr(vW[1]+6*g,2)}")
    a("s_nop 3")
    for i in range(16):
        a(f"v_exp_f32 v{vT+i}, v{vT+i}")
    for i in range(8):
        a(f"v_pk_add_f32 {vr(vT+2*i,2)}, {vr(vT+2*i,2)}, 1.0 op_sel_hi:[1,0]")
    for i in range(16):
        a(f"v_rcp_f32 v{vT+i}, v{vT+i}")
    for g in range(4):
        for h in range(2):
            a(f"v_pk_fma_f32 {vr(vNm+2*h,2)}, {vr(vT+4*g+2*h,2)}, {hv(vW[1],g,h)}, {vr(vNm+2*h,2)}")
    a(f"""
    s_sub_u32 s{t0}, s{t0}, 1
    s_cmp_lg_u32 s{t0}, 0
    s_cbranch_scc1 L_RD1
    """)
    eread(vQE, 0)
    for t in range(4):
        a(f"v_mov_b32 v{vDn+t}, 1.0")
    a(f"""
    s_cmp_eq_u32 s{sRET}, 0
    s_cbranch_scc1 L_RB0
    s_branch L_RB1
    """)
    a(f"""
    L_MORE:
    s_setprio 0
    v_mov_b32 v{vF}, {LFLAG}
    v_mov_b32 v{vONE}, 1
    v_lshlrev_b32 v4, 2, v0
    v_mov_b32 v5, 0
    v_cmp_gt_u32 vcc, 130, v0
    s_mov_b64 exec, vcc
    ds_write_b32 v4, v5 offset:{LCNT}
    s_mov_b64 exec, -1
    s_cmp_lt_u32 s{sW}, 12
    s_cbranch_scc1 L_FILL
    s_branch L_FD
    L_AGAIN:
    s_cmp_eq_u32 s{sBIN}, 0
    s_cbranch_scc0 L_LOADS
    v_subrev_u32 v{vRem}, {4*KMAX}, v{vRem}
    v_add_u32 v{vRO}, {48*KMAX}, v{vRO}
    s_branch L_WINDOW
    L_END:
    """)
    if "lay2" in X:
        L = a.l
        i, j, k = L.index("L_B1:") + 3, L.index("L_SETUP:"), L.index("L_STG:")
        assert "s_barrier" in L[i - 1]
        a.l = L[:i] + ["    s_branch L_B1X"] + L[j:k] + ["L_B1X:"] + L[i:j] + ["    s_branch L_SETUP"] + L[k:]
    elif "oldlay" not in X:
        L = a.l
        i, j, k = L.index("L_NOBIN:"), L.index("L_SETUP:"), L.index("L_STG:")
        assert L[i - 1].strip() == "s_branch L_SETUP"
        blk = L[i:j] + ["    s_branch L_SETUP"]
        a.l = L[:i - 1] + L[j:k] + blk + L[k:]
    return a.text()


def build(stamp=False):
    body = kernel(stamp)
    return f"""; Edge-gated MPNN layer, one fused launch.  Kernarg (80 bytes, pointers, base s[0:1]):
;
; @launch grid=(256,1,1) block=(1024,1,1) lds={LDS}
.amdgcn_target "amdgcn-amd-amdhsa--gfx950"
.text
.globl {NAME}
.p2align 8
.type {NAME},@function
{NAME}:
{body}    s_endpgm
.section .rodata,"a"
.p2align 6
.amdhsa_kernel {NAME}
  .amdhsa_next_free_vgpr 128
  .amdhsa_next_free_sgpr 102
  .amdhsa_accum_offset 128
  .amdhsa_group_segment_fixed_size 0
  .amdhsa_kernarg_size 80
  .amdhsa_user_sgpr_count 2
  .amdhsa_user_sgpr_kernarg_segment_ptr 1
  .amdhsa_system_sgpr_workgroup_id_x 1
  .amdhsa_float_denorm_mode_32 3
.end_amdhsa_kernel
"""


if __name__ == "__main__":
    open(sys.argv[1], "w").write(build(stamp="--stamp" in sys.argv))
```

```python
import sys, os
X = set(os.environ.get('X', '').split('+')) | {'u64', 'tprio'}
NAME = "standalone__edge_featured_mpnn_egc__graph_kernel"
N, E = 10000, 320000
NB, NBK, CH, NCH = 80, 128, 1250, 256
CHB = 15360
T_HALF = N * 256
RB = 12
WS_T, WS_REC, WS_OFF, WS_TF, WS_EPOCH, WS_STAMP = 0, 0x500000, 0xA00000, 0xA40000, 0xA80000, 0xB00000
NLOG2E = 0xBFB8AA3B
KA = dict(x=0, e=8, src=16, dst=24, u=32, v=40, g=48, out=56, dbg=64, ws=72)
AST, GST = 272, 528
LA, LAGG = 0, NB * AST
LHIST = LAGG + NB * GST
LCNT, LFLAG, LDUM = LHIST + 512, LHIST + 1024, LHIST + 1056
F_MORE, F_NQ, F_PUB, F_RV, F_LAND, F_EP = 0, 4, 8, 12, 16, 20
LSTART, LCW = LHIST + 1280, LHIST + 1792
LW = LHIST + 2304
LX = LW + 65536
UST = 136
LU = LX + 20480
LDS = LU + (0 if 'u64' in X else NB * UST)
LSLOT, SLOTB, CAP = LW, 784, 64
LTAB = LX
assert LSTART < 65536
KMAX = 7
DUMMY = 0x400000
SPIN = 1 << 22
assert LW % 256 == 0 and LDS <= 163840


class Asm:
    def __init__(self):
        self.l = []

    def __call__(self, s):
        for ln in s.strip("\n").split("\n"):
            ln = ln.strip()
            if ln:
                self.l.append(ln if ln.endswith(":") else "    " + ln)

    def text(self):
        return "\n".join(self.l) + "\n"


def f2h(f):
    import struct
    return hex(struct.unpack('<I', struct.pack('<f', f))[0])


def vr(a, n):
    return f"v[{a}:{a+n-1}]" if n > 1 else f"v{a}"


def sp(a):
    return f"s[{a}:{a+1}]"


def sq(a):
    return f"s[{a}:{a+3}]"


def srd(a, d, base, off, size):
    a(f"s_add_u32 s{d}, s{base}, {off}\ns_addc_u32 s{d+1}, s{base+1}, 0")
    a(f"s_mov_b32 s{d+2}, {size}\ns_mov_b32 s{d+3}, 0x20000")


def scan64(a, v):
    for ctl in ("row_shr:1", "row_shr:2", "row_shr:4", "row_shr:8"):
        a(f"s_nop 1\nv_add_u32_dpp v{v}, v{v}, v{v} {ctl} row_mask:0xf bank_mask:0xf")
    a(f"s_nop 1\nv_add_u32_dpp v{v}, v{v}, v{v} row_bcast:15 row_mask:0xa bank_mask:0xf")
    a(f"s_nop 1\nv_add_u32_dpp v{v}, v{v}, v{v} row_bcast:31 row_mask:0xc bank_mask:0xf")


def kernel(stamp):
    a = Asm()
    PROBE = [int(x) for x in os.environ["PROBE"].split(",")] if os.environ.get("PROBE") else None
    MARKS = set(int(x) for x in os.environ["MARKS"].split(",")) if os.environ.get("MARKS") else None

    FREE = [4, 6, 8, 10, 12, 14, 16, 20, 98]
    SLOT = {0: 94}
    if stamp:
        for m_ in sorted((MARKS or set()) - {0}):
            SLOT[m_] = FREE.pop(0)

    def mark(n):
        if stamp and n in SLOT:
            a(f"s_memrealtime s[{SLOT[n]}:{SLOT[n]+1}]")
        if PROBE and n in PROBE[1:]:
            r = 94 + 2 * PROBE[1:].index(n)
            a(f"s_memrealtime s[{r}:{r+1}]\ns_waitcnt lgkmcnt(0)")

    sRW = 3
    sX, sE, sSRC, sDST, sU, sV, sG, sOUT, sDBG, sWS = 4, 6, 8, 10, 12, 14, 16, 18, 20, 22
    SRD_T, SRD_R, SRD_W = 24, 28, 32
    sM = 36
    sN, sBIN, sT0, sFIRST = 50, 51, 52, 53
    t0, t1, t2, t3 = 54, 55, 56, 57
    sMORE, sW = 58, 59
    sINC, s12, sTHR, sEM = 60, 62, 64, 66
    sH, sB, sC, sEP, sTAG, sTAG2, sSPIN, sLG = 68, 69, 70, 71, 72, 73, 74, 75
    sTAGB, sN0, sNB = 100, 101, 1
    sU5, sU4 = 76, 78
    sO = 80
    vL, vLO, vAo, vRO, vRem = 1, 2, 108, 126, 127
    vF, vONE = 124, 125
    vWf, vXb, vAcc, vPk, vA, vXa, vRow, vJn = 8, 40, 72, 88, 100, 96, 101, 102
    vOFFa, vR4, vCwa = 103, 104, 105
    LNT = "" if "nont" in X else "nt"
    XNT = "nt" if "xnt" in X else ""
    DNT = LNT if "dnt" in X else ""
    SNT = "" if "splain" in X else LNT
    CNT_ = "nt" if "cwnt" in X else ""
    WNT = "nt" if "wwnt" in X else ""

    RPF = 0
    vRp = 106

    def pollreq():
        a(f"buffer_load_dwordx2 v[88:89], v{vOFFa}, {sq(SRD_W)}, 0 offen sc1")
        a(f"ds_read_b32 v90, v{vF} offset:{F_EP}")

    def recpf():
        if RPF:
            a(f"""
            s_mov_b64 exec, {hex((1 << RPF) - 1)}
            buffer_load_dword v91, v{vRp}, {sq(SRD_R)}, 0 offen sc1
            s_mov_b64 exec, -1
            """)

    def spin(label, off, cond, val, slp=0):
        a(f"""
        {label}:
        s_sub_u32 s{sSPIN}, s{sSPIN}, 1
        s_cbranch_scc1 L_END
        {f"s_sleep {slp}" if slp else ""}
        ds_read_b32 v7, v{vF} offset:{off}
        s_waitcnt lgkmcnt(0)
        """)
        if cond == "lowne":
            a(f"v_and_b32 v7, 0xff, v7\nv_cmp_ne_u32 vcc, {val}, v7")
        elif cond == "midne":
            a(f"v_cmp_ne_u32 vcc, {val}, v7")
        else:
            a(f"v_cmp_{cond}_u32 vcc, {val}, v7")
        a(f"s_cbranch_vccnz {label}")

    MAP = os.environ.get("MAP", "hi")
    QSEL = {"par": f"s_bfe_u32 s{t0}, s2, 0x20001", "hi": f"s_and_b32 s{t0}, s2, 3",
            "mid": f"s_bfe_u32 s{t1}, s2, 0x10002\ns_and_b32 s{t0}, s2, 1\ns_lshl1_add_u32 s{t0}, s{t1}, s{t0}"}[MAP]
    HSEL = {"par": f"s_and_b32 s{t0}, s2, 1", "hi": f"s_bfe_u32 s{t0}, s2, 0x10002", "mid": f"s_bfe_u32 s{t0}, s2, 0x10001"}[MAP]
    mark(0)
    a(f"""
    s_load_dwordx16 s[4:19], s[0:1], 0
    s_load_dwordx4 s[20:23], s[0:1], {KA['dbg']}
    s_lshr_b32 s{sB}, s2, 3
    """)
    if "latewarm" not in X:
        a(f"""
        s_getpc_b64 {sp(t0)}
        L_PC:
        s_mul_i32 s{t3}, s{sB}, 384
        v_lshl_add_u32 v6, v0, 7, s{t3}
        v_cmp_gt_u32 vcc, 3, v0
        v_min_u32 v6, L_END-L_PC, v6
        s_cbranch_vccz L_NOCW
        s_mov_b64 exec, vcc
        global_load_dword v9, v6, {sp(t0)} {CNT_}
        s_mov_b64 exec, -1
        L_NOCW:
        """)
    a(f"""
    {QSEL}
    s_lshl_b32 s{t0}, s{t0}, 5
    s_add_u32 s{sB}, s{sB}, s{t0}
    s_mul_i32 s{sN0}, s{sB}, 625
    s_add_u32 s{sN0}, s{sN0}, 7
    s_lshr_b32 s{sN0}, s{sN0}, 3
    s_lshl_b32 s{sN0}, s{sN0}, 8
    s_cmp_ge_u32 s2, 256
    s_cbranch_scc1 L_END
    v_lshrrev_b32 v4, 6, v0
    v_and_b32 v{vL}, 63, v0
    v_readfirstlane_b32 s{sW}, v4
    {HSEL}
    s_lshl_b32 s{sH}, s{t0}, 7                    ; half*128
    s_lshl_b32 s{sC}, s{sB}, 1
    s_add_u32 s{sC}, s{sC}, s{t0}                 ; chunk
    s_sub_u32 s{sRW}, s{sW}, 5
    s_cmp_lt_u32 s{sRW}, 5
    s_cbranch_scc0 L_NOBIN
    """)
    B1 = "s_barrier                                     ; B1"
    HM = "s_mov_b32 exec_hi, 0x1fffffff"
    FM = "s_mov_b32 exec_hi, -1"
    a(f"""
    s_mul_i32 s{t1}, s{sC}, {CH*4}
    s_mul_i32 s{t2}, s{sRW}, 1000
    s_add_u32 s{t1}, s{t1}, s{t2}
    v_lshl_add_u32 v20, v{vL}, 3, s{t1}
    v_lshlrev_b32 v21, 1, v20
    s_setprio 3
    s_mov_b32 s{sBIN}, 1
    s_waitcnt lgkmcnt(0)
    global_load_dwordx2 v[4:5], v20, {sp(sDST)}
    {HM}
    global_load_dwordx2 v[6:7], v20, {sp(sDST)} offset:512
    {B1}
    global_load_dwordx2 v[10:11], v20, {sp(sSRC)} offset:512 nt
    {FM}
    global_load_dwordx2 v[8:9], v20, {sp(sSRC)} nt
    global_load_dwordx4 v[12:15], v21, {sp(sE)} nt
    {HM}
    global_load_dwordx4 v[16:19], v21, {sp(sE)} offset:1024 nt
    {FM}
    """)
    a(f"""
    s_mul_i32 s{t0}, s{sC}, {CHB}
    s_add_u32 s{t0}, s{t0}, {WS_REC}
    """)
    srd(a, SRD_W, sWS, f"s{t0}", (CH * RB + 127) // 128 * 128)
    a(f"""
    s_add_u32 s{t2}, s{sWS}, {WS_EPOCH}
    s_addc_u32 s{t3}, s{sWS+1}, 0
    s_load_dword s{sEP}, {sp(t2)}, 0
    """)
    a(f"""
    s_branch L_SETUP
    L_NOBIN:
    s_mov_b32 s{sBIN}, 0
    s_cmp_lt_u32 s{sW}, 10
    s_cbranch_scc1 L_B1
    s_cmp_eq_u32 s{sW}, 15
    s_cbranch_scc1 L_WARM
    v_lshlrev_b32 v12, 2, v0
    v_lshrrev_b32 v16, 2, v0
    v_cmp_eq_u32 vcc, {(640 + (LDUM - LHIST) // 4) // 4}, v16
    v_mov_b32 v15, {DUMMY}
    s_mov_b64 {sp(t0)}, vcc
    v_cmp_eq_u32 vcc, {(640 + (LDUM - LHIST) // 4) // 4 + 3}, v16
    s_or_b64 vcc, vcc, {sp(t0)}
    v_cndmask_b32 v13, 0, v15, vcc
    ds_write_b32 v12, v13 offset:{LHIST - 2560}
    s_branch L_B1
    L_WARM:
    """)
    a(f"""
    s_lshr_b32 s{t2}, s2, 3
    s_mul_i32 s{t2}, s{t2}, 9
    v_add_u32 v6, s{t2}, v{vL}
    v_min_u32 v8, 259, v6
    v_lshl_add_u32 v8, v8, 8, s{sH}
    s_lshr_b32 s{t2}, s{t2}, 1
    v_add_u32 v6, s{t2}, v{vL}
    v_min_u32 v6, 127, v6
    v_lshl_add_u32 v6, v6, 8, s{sH}
    v_lshrrev_b32 v4, 4, v{vL}
    v_and_b32 v5, 15, v{vL}
    v_lshl_add_u32 v4, v5, 2, v4
    s_add_u32 s{t2}, s{sH}, {256*256}
    v_lshl_add_u32 v4, v4, 1, s{t2}
    s_waitcnt lgkmcnt(0)
    s_mov_b64 exec, 0x1ff
    global_load_dword v9, v8, {sp(sG)} {WNT}
    s_mov_b64 exec, 31
    global_load_dword v9, v6, {sp(sV)} {WNT}
    global_load_dword v9, v6, {sp(sU)} {WNT}
    s_mov_b64 exec, -1
    global_load_short_d16_hi v10, v4, {sp(sG)}
    global_load_short_d16_hi v11, v4, {sp(sG)} offset:256
    global_load_short_d16_hi v12, v4, {sp(sG)} offset:512
    global_load_short_d16_hi v13, v4, {sp(sG)} offset:768
    L_B1:
    s_waitcnt lgkmcnt(0)
    s_barrier                                     ; B1
    """)
    if "xlate" in X:
        a(f"""
        s_cmp_eq_u32 s{sW}, 10
        s_cselect_b32 s{sRW}, 1, 0
        s_cbranch_scc1 L_XL
        s_cmp_eq_u32 s{sW}, 4
        s_cbranch_scc1 L_XL
        """)
    else:
        a(f"""
        s_mov_b32 s{sRW}, s{sW}
        s_cmp_lt_u32 s{sW}, 2
        s_cbranch_scc1 L_XL
        """)
    a(f"""
    s_cmp_lt_u32 s{sW}, 5
    s_cselect_b32 s{sRW}, {0 if "xlate" in X else 2}, 7
    s_sub_u32 s{sRW}, s{sW}, s{sRW}
    v_lshrrev_b32 v26, 3, v{vL}
    v_lshlrev_b32 v26, 8, v26
    v_and_b32 v28, 7, v{vL}
    v_lshlrev_b32 v28, 4, v28
    v_and_b32 v27, 16, v{vL}
    v_lshlrev_b32 v27, 1, v27
    v_xor_b32 v28, v28, v27
    v_add3_u32 v26, v26, v28, s{sH}
    v_xor_b32 v27, 64, v26
    s_add_u32 s{SRD_W}, s{sG}, {128*256}
    s_addc_u32 s{SRD_W+1}, s{sG+1}, 0
    s_cmp_ge_u32 s{sRW}, 2
    s_cselect_b64 {sp(SRD_W)}, {sp(sV)}, {sp(SRD_W)}
    s_cmp_ge_u32 s{sRW}, 4
    s_cselect_b64 {sp(SRD_W)}, {sp(sG)}, {sp(SRD_W)}
    s_cmp_ge_u32 s{sRW}, 6
    s_cselect_b64 {sp(SRD_W)}, {sp(sU)}, {sp(SRD_W)}
    s_mov_b32 s{SRD_W+2}, {128*256}
    s_mov_b32 s{SRD_W+3}, 0x20000
    s_cmp_ge_u32 s{sRW}, 4
    {"s_barrier" if "b1b" in X else ""}
    s_cbranch_scc1 L_SETUP
    """)
    if "u64" not in X:
        a(f"""
        v_lshlrev_b32 v17, 4, v0
        v_mov_b64 v[20:21], 0
        v_mov_b64 v[22:23], 0
        v_min_u32 v18, {11264 + NB * GST - 8 * 5120 - 16}, v17
        """)
    for i in range(0 if "u64" in X else 9):
        a(f"ds_write_b128 v{17 if i < 8 else 18}, v[20:23] offset:{LAGG - 11264 + 5120 * i}")

    def wdma(lab):
        a(f"""
        s_and_b32 s{t0}, s{sRW}, 1
        s_lshl_b32 s{t0}, s{t0}, 14
        s_lshl_b32 s{t1}, s{sRW}, 13
        s_add_u32 s{t1}, s{t1}, {LW}
        s_mov_b32 s{t2}, 4
        {lab}:
        s_mov_b32 m0, s{t1}
        s_add_u32 s{t3}, s{t0}, 1024
        buffer_load_dwordx4 v26, {sq(SRD_W)}, s{t0} offen lds
        buffer_load_dwordx4 v27, {sq(SRD_W)}, s{t3} offen offset:1024 lds
        s_add_u32 s{t0}, s{t0}, 4096
        s_add_u32 s{t1}, s{t1}, 2048
        s_sub_u32 s{t2}, s{t2}, 1
        s_cmp_lg_u32 s{t2}, 0
        s_cbranch_scc1 {lab}
        """)

    wdma("L_WL")
    a(f"""
    s_branch L_SETUP
    L_XL:
    v_lshrrev_b32 v4, 4, v{vL}
    v_and_b32 v5, 15, v{vL}
    v_xor_b32 v5, v5, v4
    v_lshlrev_b32 v5, 4, v5
    s_lshl_b32 s{t1}, s{sRW}, 7
    v_xor_b32 v5, s{t1}, v5
    s_mul_i32 s{t0}, s{sRW}, 10240
    s_add_u32 s{t2}, s{sN0}, s{t0}
    s_sub_u32 s{t3}, {N*256}, s{t2}
    v_lshl_add_u32 v4, v4, 8, v5
    s_add_u32 s{t1}, s{t0}, {LX}
    v_xor_b32 v5, 64, v4
    v_xor_b32 v6, 0x80, v4
    v_xor_b32 v7, 0xc0, v4
    v_mov_b32 v26, 0
    v_mov_b32 v27, 0
    """)
    srd(a, SRD_W, sX, f"s{t2}", f"s{t3}")
    a(f"s_mov_b32 s{t0}, 0\ns_mov_b32 s{sRW}, 0")
    if "b1b" in X:
        a("s_barrier")
    for i in range(10):
        if i % 4 == 0:
            a(f"s_mov_b32 m0, s{t1}\ns_add_u32 s{t1}, s{t1}, 4096")
        a(f"buffer_load_dwordx4 v{4+i%4}, {sq(SRD_W)}, s{t0} offen offset:{1024*(i%4)} {XNT} lds")
        if i % 4 == 3:
            a(f"s_add_u32 s{t0}, s{t0}, 4096")
    a(f"""
    L_SETUP:
    s_and_b32 s{sT0}, s{sW}, 3
    s_cmp_ge_u32 s{sW}, 12
    s_cselect_b32 s{t0}, {2*16384}, 0
    s_add_u32 s{t0}, s{t0}, {LW}
    s_mov_b32 s{t1}, {LX}
    v_lshrrev_b32 v40, 4, v{vL}                   ; sigma
    v_bfe_u32 v41, v{vL}, 2, 2
    v_and_b32 v42, 3, v{vL}
    v_and_b32 v{vJn}, 15, v{vL}
    v_lshlrev_b32 v43, 10, v40
    v_lshlrev_b32 v44, 7, v41
    v_lshl_add_u32 v44, v42, 3, v44
    v_bfe_u32 v45, v{vL}, 3, 2
    v_xor_b32 v45, s{sT0}, v45
    v_lshl_add_u32 v45, v45, 5, v44
    v_add3_u32 v{vA}, v43, v45, s{t0}
    s_lshl_b32 s{t0}, s{sT0}, 2
    v_add_u32 v{vRow}, s{t0}, v40
    v_xor_b32 v43, v{vJn}, v40
    v_lshlrev_b32 v43, 4, v43
    v_lshlrev_b32 v44, 8, v{vJn}
    v_add3_u32 v{vXa}, v43, v44, s{t1}
    v_xor_b32 v{vXa+1}, 64, v{vXa}
    v_xor_b32 v{vXa+2}, 0x80, v{vXa}
    v_xor_b32 v{vXa+3}, 0xc0, v{vXa}
    s_mov_b32 s{t0}, {LCW}
    v_lshl_add_u32 v{vCwa}, v{vL}, 3, s{t0}
    v_cmp_eq_u32 vcc, v40, v41
    v_mov_b32 v43, 0x3f80
    v_cmp_eq_u32 {sp(sEM)}, v40, v42
    v_cndmask_b32 v{vAo}, 0, v43, vcc
    v_mov_b32 v{vAo+1}, 0
    v_lshlrev_b32 v42, 4, v42
    v_lshlrev_b64 {vr(vAo,2)}, v42, {vr(vAo,2)}
    """)
    for g in range(4):
        if g:
            a(f"v_mov_b64 {vr(vAo+4*g,2)}, {vr(vAo,2)}")
        a(f"v_mov_b64 {vr(vAo+4*g+2,2)}, 0")
    a(f"""
    v_lshlrev_b32 v{vLO}, 4, v{vJn}
    v_lshlrev_b32 v{vLO+1}, 3, v{vJn}
    v_add_u32 v{vLO+1}, {LAGG}, v{vLO+1}
    v_lshrrev_b32 v40, 2, v0
    s_lshl_b32 s{t0}, s{sB}, 3
    v_lshl_add_u32 v{vOFFa}, v40, 10, s{t0}
    v_mul_u32_u24 v{vRO}, {CHB}, v40
    v_mov_b32 v{vF}, {LFLAG}
    v_mov_b32 v{vONE}, 1
    s_and_b32 s{t0}, s{sB}, 7
    s_cmp_eq_u32 s{t0}, 0
    s_addc_u32 s{sNB}, 78, 0
    s_mov_b32 s{sLG}, {hex(NLOG2E)}
    s_mov_b32 s{s12}, {f2h(AST/256)}
    s_mov_b32 s{s12+1}, {f2h(GST/256)}
    s_mov_b32 s{sINC}, 512
    s_mov_b32 s{sINC+1}, 512
    s_mov_b32 s{sTHR}, 0x5f800000
    s_mov_b32 s{sFIRST}, 1
    s_mov_b32 s{sSPIN}, {SPIN}
    s_mul_i32 s{t1}, s{sH}, {T_HALF//128}
    """)
    srd(a, SRD_T, sWS, f"s{t1}", T_HALF)
    srd(a, SRD_R, sWS, WS_REC, NCH * CHB)
    a(f"""
    s_cmp_eq_u32 s{sBIN}, 0
    s_cbranch_scc1 L_STG
    s_mov_b32 s{t0}, 429497
    s_mov_b32 s{t1}, 625
    v_lshlrev_b32 v33, 3, v{vL}
    s_mul_i32 s{t2}, s{sRW}, 3072
    v_lshl_add_u32 v32, v{vL}, 4, s{t2}
    s_waitcnt vmcnt(4)
    """)
    mark(1)
    for i in range(4):
        a(f"""
        {HM if i == 2 else ""}
        v_mul_u32_u24 v{24+i}, s{t0}, v{4+i}
        v_lshrrev_b32 v{24+i}, 25, v{24+i}
        v_lshlrev_b32 v{20+i}, 2, v{24+i}
        ds_add_rtn_u32 v{28+i}, v{20+i}, v{vONE} offset:{LHIST}
        """)
    a(f"""
    s_mov_b64 exec, 1
    ds_add_u32 v{vF}, v{vONE} offset:{F_RV}
    s_mov_b64 exec, -1
    """)
    for i in range(4):
        a(f"""
        v_mad_u32_u24 v{24+i}, v{24+i}, s{t1}, 7
        v_lshrrev_b32 v{24+i}, 3, v{24+i}
        v_sub_u32 v{24+i}, v{4+i}, v{24+i}
        """)
    a("s_mov_b64 exec, 1")
    if "spr" in X:
        a("s_setprio 1")
    spin("L_BS1", F_RV, "gt", 5, int(os.environ.get("SLB", 0)))
    if "spr" in X:
        a("s_setprio 3")
    mark(15)
    a(f"""
    s_mov_b64 exec, -1
    ds_read_b64 v[34:35], v33 offset:{LHIST}
    s_add_u32 s{sEP}, s{sEP}, 1
    s_xor_b32 s{sTAG2}, s{sEP}, 0x2545F491
    s_mul_i32 s{sTAG}, s{sTAG2}, 0x9E3779B1
    s_mul_i32 s{sTAG2}, s{sTAG2}, 0x85EBCA6B
    s_lshr_b32 s{sTAGB}, s{sTAG2}, 25
    s_waitcnt lgkmcnt(0)
    v_add_u32 v36, v34, v35
    v_mov_b32 v37, v36
    """)
    scan64(a, 37)
    a(f"""
    v_sub_u32 v38, v37, v36
    v_add_u32 v39, v38, v34
    v_mul_u32_u24 v38, {RB}, v38
    v_mul_u32_u24 v39, {RB}, v39
    ds_write_b64 v33, v[38:39] offset:{LSTART}
    """)
    for i in range(4):
        a(f"{HM if i == 2 else ''}\nds_read_b32 v{20+i}, v{20+i} offset:{LSTART}")
    a(FM)
    a(f"""
    s_lshl_b32 s{t0}, s{sTAGB}, 25
    s_lshl_b32 s{t1}, s{sC}, 10
    s_add_u32 s{t1}, s{t1}, {WS_OFF}
    v_lshl_or_b32 v48, v34, 14, v38
    v_lshl_or_b32 v50, v35, 14, v39
    v_or_b32 v48, s{t0}, v48
    v_or_b32 v50, s{t0}, v50
    v_mov_b32 v49, s{sTAG}
    v_mov_b32 v51, s{sTAG}
    v_lshl_add_u32 v52, v{vL}, 4, s{t1}
    """)
    mark(16)
    a(f"""
    s_waitcnt vmcnt(2) lgkmcnt(0)
    """)
    for i in range(4):
        a(f"""
        {HM if i == 2 else ""}
        v_mad_u32_u24 v{20+i}, v{28+i}, {RB}, v{20+i}
        v_lshl_or_b32 v{24+i}, v{8+i}, 8, v{24+i}
        ds_write_b32 v{20+i}, v{24+i} offset:8
        """)
    for i in range(4):
        if i % 2 == 0:
            a(f"{HM if i else FM}\ns_waitcnt vmcnt({1 - i // 2})")
        a(f"ds_write2_b32 v{20+i}, v{12+2*i}, v{13+2*i} offset0:0 offset1:1")
    mark(13)
    a(f"""
    s_mov_b64 exec, 1
    ds_add_u32 v{vF}, v{vONE} offset:{F_RV}
    """)
    if "spr" in X:
        a("s_setprio 1")
    spin("L_BS2", F_RV, "gt", 10, int(os.environ.get("SLB", 0)))
    if "spr" in X:
        a("s_setprio 3")
    a("s_mov_b64 exec, -1")
    for i in range(3):
        a(f"ds_read_b128 {vr(8+4*i,4)}, v32 offset:{1024*i}")
    for i in range(3):
        a(f"s_waitcnt lgkmcnt({2-i})\nbuffer_store_dwordx4 {vr(8+4*i,4)}, v32, {sq(SRD_W)}, 0 offen offset:{1024*i} sc1")
    a(f"""
    s_mov_b64 exec, 1
    """)
    mark(2)
    a(f"""
    s_waitcnt vmcnt(0)
    ds_add_rtn_u32 v7, v{vF}, v{vONE} offset:{F_PUB}
    s_waitcnt lgkmcnt(0)
    v_cmp_eq_u32 vcc, 4, v7
    s_mov_b64 exec, -1
    s_cbranch_vccz L_NOPUB
    global_store_dwordx4 v52, v[48:51], {sp(sWS)} sc1
    L_NOPUB:
    s_setprio 0
    v_mov_b32 v4, s{sEP}
    ds_write_b32 v{vF}, v4 offset:{F_EP}
    """)
    mark(4)
    a(f"""
    s_cmp_eq_u32 s{sW}, 5
    s_cbranch_scc0 L_GD
    s_add_u32 s{t2}, s{sH}, s{sB}
    s_lshl_b32 s{t2}, s{t2}, 7
    s_add_u32 s{t2}, s{t2}, {WS_TF}
    v_mov_b32 v8, s{t2}
    v_mov_b32 v10, s{sTAG}
    v_mov_b32 v11, s{sTAG2}
    """)
    srd(a, SRD_W, sWS, WS_OFF, NCH * 1024)
    a(f"""
    s_mov_b64 exec, 1
    s_waitcnt lgkmcnt(0)
    s_barrier                                     ; B5
    global_store_dwordx2 v8, v[10:11], {sp(sWS)} sc1
    s_mov_b64 exec, -1
    s_branch L_TSD
    L_STG:
    v_mov_b32 v6, 1
    s_cmp_lt_u32 s{sRW}, 4
    s_cbranch_scc1 L_EARLY
    s_cmp_eq_u32 s{sRW}, 8
    s_cbranch_scc1 L_GC
    """)
    a(f"""
    ; Ga / U go out once half of the first copies have landed
    s_mov_b64 exec, 1
    """)
    TRG = os.environ.get("TRG", "land3")
    spin("L_BS3", F_LAND if TRG[:4] == "land" else F_RV, "gt", int(TRG.lstrip("landrv")), 2)
    a("s_mov_b64 exec, -1")
    wdma("L_WL2")
    a(f"""
    v_mov_b32 v6, 0x100
    L_EARLY:
    s_mov_b64 exec, 1
    s_waitcnt vmcnt(0)
    ds_add_u32 v{vF}, v6 offset:{F_LAND}
    """)
    mark(13)
    a(f"""
    s_cmp_ge_u32 s{sW}, 12
    s_cbranch_scc1 L_LAND2
    s_cmp_ge_u32 s{sW}, 4
    s_cbranch_scc1 L_GD
    """)
    spin("L_LAND1", F_LAND, "lowne", 6, int(os.environ.get("SL1", 0)))
    a("s_mov_b64 exec, -1")
    if "tprio" in X:
        a("s_setprio 2")
    mark(3)

    def gemm(epi, pre, post=None, hook=None):
        def xr(n, ks):
            a(f"ds_read_b128 {vr(vXb+16*(n&1)+4*ks,4)}, v{vXa+ks} offset:{4096*n}")
        for ks in range(4):
            xr(0, ks)
            for m in range(2):
                o = m * 16384 + ks * 4096
                r = vWf + 16 * m + 4 * ks
                a(f"ds_read_b64_tr_b16 {vr(r,2)}, v{vA} offset:{o}")
                a(f"ds_read_b64_tr_b16 {vr(r+2,2)}, v{vA} offset:{o+512}")
            if ks == 1:
                pre()
                a("s_waitcnt lgkmcnt(4)")
        IL = "noil" not in X
        if not IL:
            a("s_waitcnt lgkmcnt(9)")
            for ks in range(4):
                xr(1, ks)
        prev_lds = 0
        for n in range(6):
            ops = epi(n - 1) if n else []
            tail = [o[1:] for o in ops if o[0] == "@"]
            ops = [o for o in ops if o[0] != "@"]
            if n == 5:
                ops += tail
                if post:
                    a("s_nop 3")
                    for o in ops[:-4]:
                        a(o)
                    a("s_waitcnt lgkmcnt(0)")
                    post(3)
                    for o in ops[-4:]:
                        a(o)
                    a("s_waitcnt lgkmcnt(0)")
                    post(4)
                    break
                a("s_nop 7")
                for o in ops:
                    a(o)
                break
            late = post and n >= 2
            if IL:
                a(f"s_waitcnt lgkmcnt({prev_lds})")
                prev_lds = len([o for o in ops + tail if o.startswith("ds_")])
            else:
                a(f"s_waitcnt lgkmcnt({(4 if n < 4 else 0) + (4 if late else 0)})")
            if n == 0:
                mark(21)
            per = -(-len(ops) // 5)
            for ks in range(4):
                for m in range(2):
                    acc = vAcc + 8 * (n & 1) + 4 * m
                    c = "0" if ks == 0 else vr(acc, 4)
                    a(f"v_mfma_f32_16x16x32_bf16 {vr(acc,4)}, {vr(vWf+16*m+4*ks,4)}, {vr(vXb+16*(n&1)+4*ks,4)}, {c}")
                    if IL and 2 * ks + m < 4:
                        if n < 4:
                            xr(n + 1, 2 * ks + m)
                        else:
                            a("s_nop 0")
                    if late and 2 * ks + m == 3:
                        a(f"s_waitcnt lgkmcnt({4 if n < 4 else 0})")
                        post(n - 2)
                    if 2 * ks + m >= 3:
                        for o in ops[:per]:
                            a(o)
                        ops = ops[per:]
            assert not ops
            for o in tail:
                a(o)
            if IL:
                pass
            elif n + 2 < 5:
                for ks in range(4):
                    xr(n + 2, ks)
            elif n == 3:
                a("s_nop 3")
            if hook:
                hook(n)

    def t_pre():
        a(f"""
        s_mov_b32 s{t0}, s{sN0}
        s_lshl_b32 s{t2}, s{sNB}, 2
        s_sub_u32 s{t2}, 320, s{t2}
        s_lshr_b32 s{t2}, -1, s{t2}
        """)
        if "nobp" in X:
            a(f"""
            v_lshlrev_b32 v4, 8, v{vJn}
            v_lshl_add_u32 v4, v{vRow}, 4, v4
            """)
        else:
            a(f"""
            v_lshrrev_b32 v6, 2, v{vL}
            v_and_b32 v7, 3, v{vL}
            s_lshl_b32 s{t1}, s{sT0}, 6
            v_lshl_add_u32 v4, v6, 8, s{t1}
            v_lshl_add_u32 v4, v7, 4, v4
            v_lshl_add_u32 v5, v7, 4, v6
            v_lshlrev_b32 v5, 2, v5
            """)
        a(f"""
        s_mov_b32 s{t1}, 0x07060302
        s_setreg_imm32_b32 hwreg(HW_REG_MODE, 4, 2), 0
        """)

    def t_epi(n):
        P = vPk + 4 * (n & 1)
        b = [vAcc + 8 * (n & 1) + t for t in range(4)]
        h = [vAcc + 8 * (n & 1) + 4 + t for t in range(4)]
        SD = "clamp dst_sel:DWORD dst_unused:UNUSED_PAD src0_sel:DWORD src1_sel:WORD_1"
        o = [f"v_mul_f32 v{b[t]}, s{sLG}, v{b[t]}" for t in range(4)]
        o += [f"v_add_f32 v{h[t]}, 0, v{h[t]}" for t in (0, 1, 3)]
        o += [f"v_add_u32 v{h[t]}, 0x8000, v{h[t]}" for t in (2, 0, 3, 1)]
        o += [f"v_sub_u32_sdwa v{h[0]}, v{h[0]}, v{h[2]} {SD}",
              f"v_cvt_pk_bf16_f32 v{P+2}, v{b[0]}, v{b[1]}",
              f"v_sub_u32_sdwa v{h[3]}, v{h[3]}, v{h[0]} {SD}",
              f"v_cvt_pk_bf16_f32 v{P+3}, v{b[2]}, v{b[3]}",
              f"v_sub_u32_sdwa v{h[1]}, v{h[1]}, v{h[3]} {SD}",
              f"v_perm_b32 v{P}, v{h[0]}, v{h[2]}, s{t1}",
              f"v_perm_b32 v{P+1}, v{h[1]}, v{h[3]}, s{t1}"]
        if "nobp" in X:
            o += [f"buffer_store_dwordx4 {vr(P,4)}, v4, {sq(SRD_T)}, s{t0} offen sc1",
                  f"s_add_u32 s{t0}, s{t0}, 4096"]
        else:
            o += [f"ds_bpermute_b32 v{P+u}, v5, v{P+u}" for u in (2, 3, 0, 1)]
        return o

    def t_post(n):
        if n == 4:
            a(f"s_mov_b32 exec_hi, s{t2}")
        a(f"buffer_store_dwordx4 {vr(vPk+4*(n&1),4)}, v4, {sq(SRD_T)}, s{t0} offen sc1\ns_add_u32 s{t0}, s{t0}, 4096")
        mark(40 + n)

    gemm(t_epi, t_pre, None if "nobp" in X else t_post)
    a(f"""
    s_setreg_imm32_b32 hwreg(HW_REG_MODE, 4, 2), 3
    """)
    a("s_setprio 0\ns_waitcnt vmcnt(0)" if "tprio" in X else "s_waitcnt vmcnt(0)")
    a(f"""
    s_branch L_GD
    L_GC:
    s_mov_b32 s{t0}, 0xffff0000
    s_waitcnt vmcnt(0)
    """)
    for q in range(4):
        a(f"v_and_b32 v{10+q}, s{t0}, v{10+q}")
    for q in range(4):
        a(f"v_mul_f32 v{10+q}, s{sLG}, v{10+q}")
    a(f"""
    v_cvt_pk_bf16_f32 v10, v10, v11
    v_cvt_pk_bf16_f32 v11, v12, v13
    ds_write_b64 v{vCwa}, v[10:11]
    s_mov_b64 exec, 1
    """)
    if "w15slp" in X:
        spin("L_BS5", F_LAND, "gt", 0x100, 4)
    spin("L_LAND2", F_LAND, "ne", 0x406)
    a("s_mov_b64 exec, -1")
    mark(3)

    def au_pre():
        a(f"""
        s_mov_b32 s{t0}, {AST}
        s_mov_b32 s{t1}, {GST if "u64" in X else UST}
        s_mov_b32 s{t2}, {0 if "u64" in X else LU}
        v_lshlrev_b32 v4, 4, v{vRow}
        v_lshl_add_u32 v5, v{vRow}, 3, s{t2}
        v_mad_u32_u24 v4, v{vJn}, s{t0}, v4
        v_mad_u32_u24 v5, v{vJn}, s{t1}, v5
        """)

    def au_epi(n):
        A = vAcc + 8 * (n & 1)
        o = [f"v_mul_f32 v{A+t}, s{sLG}, v{A+t}" for t in range(4)]
        if "u64" in X:
            o += [f"ds_write_b128 v4, {vr(A,4)} offset:{LA+16*AST*n}"]
            D = (92, 94, 104, 6)
            o += ["@" + f"v_cvt_f64_f32 {vr(D[t],2)}, v{A+4+t}" for t in range(4)]
            o += ["@" + f"ds_write_b64 v5, {vr(D[t],2)} offset:{LAGG+16*GST*n+128*t}" for t in range(4)]
            return o
        o += [f"v_cvt_pk_bf16_f32 v{A+4}, v{A+4}, v{A+5}", f"v_cvt_pk_bf16_f32 v{A+5}, v{A+6}, v{A+7}"]
        o += [f"ds_write_b128 v4, {vr(A,4)} offset:{LA+16*AST*n}"]
        o += [f"ds_write_b64 v5, {vr(A+4,2)} offset:{16*UST*n}"]
        return o

    def au_hook(n):
        HB = int(os.environ.get('HB', 0))
        if n == HB:
            srd(a, SRD_W, sWS, WS_OFF, NCH * 1024)
            a("s_waitcnt lgkmcnt(0)\ns_barrier                                     ; B5")
            mark(22)
            pollreq()
            if 'aprio' in X:
                a('s_setprio 2')
        if n == HB + 1:
            a("s_barrier                                     ; B5b")
            recpf()

    gemm(au_epi, au_pre, None, au_hook)
    mark(5)
    a(("s_setprio 0\n" if 'aprio' in X else "") + "s_branch L_PW")
    vW = (8, 32)
    vPr = 56
    REC = (8, 14, 20, 26, 32, 38, 44)

    def rec(k):
        return REC[k]

    vP, vTFa, vLf = 94, 100, 96 - 20
    a("L_GD:\ns_mov_b64 exec, -1")
    mark(5)
    srd(a, SRD_W, sWS, WS_OFF, NCH * 1024)
    a(f"""
    s_waitcnt lgkmcnt(0)
    s_barrier
    """)
    mark(22)
    a(f"""
    {"s_sleep " + os.environ["PDELAY"] if os.environ.get("PDELAY") else ""}
    L_TSD:
    """)
    pollreq()
    a(f"""
    L_FILL:
    v_lshrrev_b32 v4, 4, v0
    v_and_b32 v5, 15, v0
    s_mov_b32 s{t0}, {SLOTB}
    v_mov_b32 v6, {LSLOT}
    v_mad_u32_u24 v4, v4, s{t0}, v6
    v_mad_u32_u24 v4, v5, 48, v4
    v_mov_b32 v56, {DUMMY}
    v_mov_b32 v57, {DUMMY}
    v_mov_b64 v[58:59], v[56:57]
    s_cmp_lt_u32 s{sW}, 8
    ds_write_b128 v4, v[56:59]
    s_cbranch_scc0 L_FT
    ds_write_b128 v4, v[56:59] offset:{48*SLOTB}
    s_branch L_FD
    L_FT:
    s_mov_b32 s{t1}, {LTAB - 8192}
    v_mov_b32 v60, {LDUM}
    v_mov_b32 v61, 0
    v_lshl_add_u32 v5, v0, 4, s{t1}
    v_mov_b64 v[62:63], v[60:61]
    ds_write_b128 v5, v[60:63]
    ds_write_b128 v5, v[60:63] offset:4096
    L_FD:
    s_cmp_eq_u32 s{sFIRST}, 0
    s_waitcnt lgkmcnt(0)
    s_barrier                                     ; B5b
    s_cbranch_scc1 L_AGAIN
    """)
    mark(14)
    recpf()
    a(f"""
    L_PW:
    v_readfirstlane_b32 s{sEP}, v90
    s_nop 0
    s_xor_b32 s{sTAG2}, s{sEP}, 0x2545F491
    s_mul_i32 s{sTAG}, s{sTAG2}, 0x9E3779B1
    s_mul_i32 s{sTAG2}, s{sTAG2}, 0x85EBCA6B
    s_lshr_b32 s{sTAGB}, s{sTAG2}, 25
    s_waitcnt vmcnt({1 if RPF else 0})
    L_POLL:
    v_lshrrev_b32 v4, 25, v88
    v_cmp_ne_u32 vcc, s{sTAG}, v89
    v_cmp_ne_u32 {sp(t0)}, s{sTAGB}, v4
    s_or_b64 exec, vcc, {sp(t0)}
    s_cbranch_execnz L_POLL2
    L_POLLED:
    s_mov_b64 exec, -1
    """)
    mark(6)
    a(f"""
    v_bfe_u32 v{vRem}, v88, 14, 11
    v_and_b32 v4, 0x3fff, v88
    v_add_u32 v{vRO}, v{vRO}, v4
    """)
    a(f"""
    L_WINDOW:
    v_and_b32 v4, 15, v{vL}
    v_and_b32 v5, 3, v{vL}
    v_sub_u32 v5, v{vRem}, v5
    """)
    for k in range(4):
        a(f"v_sub_u32_dpp v{64+k}, v{vRem}, v4 row_newbcast:{4*k} row_mask:0xf bank_mask:0xf")
    for k in range(4):
        a(f"v_cmp_lt_i32 {sp(sM+2*k)}, 0, v{64+k}")
    for k in range(4, KMAX):
        a(f"v_cmp_lt_i32 {sp(sM+2*k)}, {4*k}, v5")
    a(f"""
    L_LOADS:
    """)
    EPF = os.environ.get("EPF", "")
    if EPF:
        a(f"""
        s_mov_b64 exec, 0xff
        global_load_dwordx2 v[82:83], v{vTFa}, {sp(sWS)} sc1
        s_mov_b64 exec, -1
        """)
    a(f"""
    v_and_b32 v4, 15, v{vL}
    v_and_b32 v5, 3, v{vL}
    v_mul_u32_u24 v4, {RB}, v4
    v_mad_u32_u24 v5, v5, {RB}, v{vRO}
    s_or_b64 {sp(sU5)}, {sp(sM+10)}, {sp(sM+12)}
    s_or_b64 {sp(sU4)}, {sp(sU5)}, {sp(sM+8)}
    """)
    for k in range(4):
        a(f"v_add_u32_dpp v{rec(k)+3}, v{vRO}, v4 row_newbcast:{4*k} row_mask:0xf bank_mask:0xf")

    def kloop(done, body, mask=sM):
        for k in range(KMAX):
            if k == 4:
                a(f"s_cmp_eq_u64 {sp(sU4)}, 0\ns_cbranch_scc1 {done}")
            if k == 5:
                a(f"s_cmp_eq_u64 {sp(sU5)}, 0\ns_cbranch_scc1 {done}")
            a(f"s_mov_b64 exec, {sp(mask+2*k)}")
            body(k)
        a(f"{done}:")

    RF = "" if "recplain" in X else "sc1"

    def rload(k):
        if k < 4:
            a(f"buffer_load_dwordx3 {vr(rec(k),3)}, v{rec(k)+3}, {sq(SRD_R)}, 0 offen {RF}")
        else:
            a(f"buffer_load_dwordx3 {vr(rec(k),3)}, v5, {sq(SRD_R)}, 0 offen offset:{48*k} {RF}")

    kloop("L_RL", rload)
    mark(23)
    a(f"""
    s_mov_b64 exec, -1
    s_mov_b32 s{t0}, {LCW}
    v_lshl_add_u32 v4, v{vL}, 3, s{t0}
    """)
    for k in range(8):
        a(f"ds_read_b64 {vr(vW[0]+6*k+4,2)}, v4")
    a(f"""
    s_lshl_b32 s{t0}, s{sW}, 5
    s_add_u32 s{t0}, s{t0}, {LTAB}
    v_lshrrev_b32 v4, 4, v{vL}
    v_bfe_u32 v5, v{vL}, 2, 2
    v_lshl_add_u32 v{vP}, v4, 3, s{t0}
    v_lshl_add_u32 v{vP+1}, v5, 3, s{t0}
    s_lshl_b32 s{t0}, s{sW}, 3
    s_add_u32 s{t0}, s{t0}, s{sH}
    s_lshl_b32 s{t0}, s{t0}, 7
    s_add_u32 s{t0}, s{t0}, {WS_TF}
    v_lshl_add_u32 v{vTFa}, v{vL}, 7, s{t0}
    v_mov_b32 v6, {LSLOT}
    s_mov_b32 s{t0}, {2*SLOTB}
    v_mad_u32_u24 v{vLf}, v{vL}, s{t0}, v6
    v_lshlrev_b32 v{vLf+1}, 9, v{vL}
    v_add_u32 v{vLf+2}, {SLOTB}, v{vLf}
    v_add_u32 v{vLf+3}, 256, v{vLf+1}
    v_lshlrev_b32 v{vLf+4}, 3, v{vL}
    v_mov_b32 v6, {LSLOT-48}
    s_mov_b32 s{t0}, {SLOTB//4}
    s_mov_b32 s{t1}, 0xffffff00
    """)
    if "sprio" in X:
        for lv in (1, 2, 3):
            a(f"s_cmp_lt_u32 s{sW}, {4*lv}\ns_cbranch_scc1 L_SP\ns_setprio {lv}")
        a("L_SP:")
    mark(12)
    a("s_waitcnt vmcnt(0)")
    mark(7)
    PFN = int(os.environ.get("PFN", "14"))
    if PFN:
        a(f"""
        s_mov_b64 exec, 0xff
        global_load_dwordx2 v[70:71], v{vTFa}, {sp(sWS)} sc1
        """)
    def pf(cond):
        if cond:
            a(f"""
            s_mov_b64 exec, 0xff
            v_cmp_eq_u64 vcc, {sp(sTAG)}, v[82:83]
            s_lshr_b32 s{t3}, s2, 5
            s_bitcmp1_b32 vcc_lo, s{t3}
            s_cbranch_scc0 L_NOPF
            """)
        a(f"""
        s_mul_i32 s{t2}, s{sW}, {625*256}
        s_lshr_b32 s{t3}, s2, 3
        s_mul_i32 s{t3}, s{t3}, {39*128}
        s_add_u32 s{t2}, s{t2}, s{t3}
        s_mov_b64 exec, {hex((1 << PFN) - 1)}
        v_lshlrev_b32 v5, 7, v{vL}
        buffer_load_dword v106, v5, {sq(SRD_T)}, s{t2} offen sc1
        """)
        if cond:
            a(f"""
            s_branch L_PFD
            L_NOPF:
            s_mov_b64 exec, 1
            global_load_dword v106, v{vTFa}, {sp(sWS)} sc1
            L_PFD:
            """)

    if EPF == "a":
        pf(True)
    SB = "dst_sel:DWORD dst_unused:UNUSED_PAD src0_sel:DWORD src1_sel:BYTE_0"

    def hist(k):
        a(f"""
        v_lshlrev_b32_sdwa v4, 2, v{rec(k)+2} {SB}
        v_lshlrev_b32_sdwa v{vPr+2*k+1}, 8, v{rec(k)+2} {SB}
        ds_add_rtn_u32 v{rec(k)+3}, v4, v{vONE} offset:{LCNT}
        v_mad_u32_u24 v{vPr+2*k}, v4, s{t0}, v6
        v_and_b32 v{rec(k)+2}, s{t1}, v{rec(k)+2}
        """)

    kloop("L_HD", hist)
    if EPF == "h":
        pf(True)
    a(f"s_mov_b32 s{t2}, 0\ns_waitcnt lgkmcnt(0)")
    mark(24)

    def scat(k):
        r = rec(k)
        a(f"""
        v_cmpx_gt_u32 vcc, {CAP}, v{r+3}
        v_lshrrev_b32 v4, 2, v{r+3}
        v_and_b32 v5, 7, v{r+3}
        v_and_b32 v{r+3}, 3, v{r+3}
        s_andn2_b64 {sp(sM+2*k)}, {sp(sM+2*k)}, vcc
        v_mad_u32_u24 v{vPr+2*k}, v4, 48, v{vPr+2*k}
        v_cmp_eq_u32 vcc, 4, v5
        v_lshl_add_u32 v4, v{r+3}, 2, v{vPr+2*k}
        v_lshl_add_u32 v5, v{r+3}, 3, v{vPr+2*k}
        ds_write_b32 v4, v{r+2} offset:48
        ds_write_b64 v5, {vr(r,2)} offset:64
        s_and_b64 {sp(sO+2*k)}, vcc, exec
        s_bcnt1_i32_b64 s{t3}, {sp(sO+2*k)}
        s_add_u32 s{t2}, s{t2}, s{t3}
        """)

    kloop("L_SD", scat)
    mark(25)
    a(f"""
    s_mov_b64 exec, 1
    v_mov_b32 v4, s{t2}
    ds_add_rtn_u32 v7, v{vF}, v4 offset:{F_NQ}
    s_mov_b64 exec, -1
    v_cmp_lt_i32 vcc, {4*KMAX}, v{vRem}
    s_or_b64 {sp(t0)}, {sp(sM)}, {sp(sM+2)}
    s_or_b64 {sp(t2)}, {sp(sM+4)}, {sp(sM+6)}
    s_or_b64 {sp(t0)}, {sp(t0)}, {sp(sM+8)}
    s_or_b64 {sp(t2)}, {sp(t2)}, {sp(sM+10)}
    s_or_b64 {sp(t0)}, {sp(t0)}, {sp(sM+12)}
    s_or_b64 {sp(t0)}, {sp(t0)}, {sp(t2)}
    s_cselect_b32 s{sBIN}, 1, 0
    s_or_b64 exec, vcc, {sp(t0)}
    ds_write_b32 v{vF}, v{vONE} offset:{F_MORE}
    s_waitcnt lgkmcnt(1)
    v_readlane_b32 s{t2}, v7, 0
    s_lshl_b32 s{t2}, s{t2}, 3
    s_add_u32 s{t2}, s{t2}, {LTAB}
    """)

    def tab(k):
        a(f"""
        v_mbcnt_lo_u32_b32 v4, exec_lo, 0
        v_mbcnt_hi_u32_b32 v4, exec_hi, v4
        v_lshl_add_u32 v4, v4, 3, s{t2}
        s_bcnt1_i32_b64 s{t3}, exec
        s_lshl3_add_u32 s{t2}, s{t3}, s{t2}
        ds_write_b64 v4, {vr(vPr+2*k,2)}
        """)

    kloop("L_TD", tab, sO)
    mark(26)
    a(f"""
    s_mov_b64 exec, 0xff
    s_waitcnt vmcnt({1 if EPF else 0})
    L_TP:
    v_cmp_ne_u64 vcc, {sp(sTAG)}, v[70:71]
    s_cbranch_vccnz L_TP2
    L_TRDY:
    """)
    if PFN and not EPF:
        pf(False)
    a(f"""
    s_mov_b64 exec, -1
    s_mov_b32 s{sFIRST}, 0
    s_waitcnt lgkmcnt(0)
    """)
    mark(8)
    a(f"""
    s_lshl4_add_u32 s{t0}, s2, s{sW}
    s_cmp_eq_u32 s{t0}, 15
    s_barrier                                     ; B6
    s_cbranch_scc1 L_EPO
    L_EPD:
    """)
    mark(9)
    if stamp:
        a("s_memtime s[96:97]\nv_mov_b32 v107, 0")
    vT, vAp, vS = 56, 80, 84
    vTQ, vNA, vFA, vQE = 88, 90, 92, 93
    vDn, vNm, vAa, vCk = 72, 100, 4, 106
    vD = (76, 78, 4, 6)
    sRET = sTHR + 1
    PRA, PRB = [int(x) for x in os.environ.get('PR', '5,2').split(',')]

    def sh(g):
        return (96, 98, 104, 124)[g]

    def saddr(S):
        a(f"""
        v_pk_add_f32 {vr(S,2)}, {vr(S,2)}, {vr(vLO,2)} op_sel_hi:[1,0]
        v_pk_add_f32 {vr(S+2,2)}, {vr(S+2,2)}, {vr(vLO,2)} op_sel_hi:[1,0]
        """)

    def loads(p, S, loop=False):
        for g in range(int(os.environ.get("NLD", 4)) if loop else 4):
            a(f"buffer_load_dwordx4 {vr(vW[p]+6*g,4)}, v{S+g}, {sq(SRD_T)}, 0 offen sc1")

    def naddr(dst, TQ):
        a(f"v_pk_fma_f32 {vr(dst,2)}, {vr(TQ,2)}, {sp(s12)}, {vr(vLO,2)} op_sel:[1,0,0] op_sel_hi:[1,1,1]")

    def eread(q, half):
        a(f"s_mov_b64 exec, {sp(sEM)}")
        for g in range(4):
            a(f"ds_read_b64 {vr(vAo+4*g+2,2)}, v{q} offset:{48*half+16+8*g}")
        a("s_mov_b64 exec, -1")

    def hv(W, g, h):
        return vr(W + 6 * g, 2) if h == 0 else vr(sh(g), 2)

    def mfma(p, g, c=vAp):
        return f"v_mfma_f32_16x16x32_bf16 {vr(vT+4*g,4)}, {vr(vAo+4*g,4)}, {vr(vW[p]+6*g+2,4)}, {vr(c,4)}"

    def flush(ad):
        a(f"""
        v_pk_mul_f32 {vr(vNm,2)}, {vr(vNm,2)}, {vr(vDn,2)}
        v_pk_mul_f32 {vr(vNm+2,2)}, {vr(vNm+2,2)}, {vr(vDn+2,2)}
        """)
        for t in range(4):
            a(f"v_cvt_f64_f32 {vr(vD[t],2)}, v{vNm+t}")
        for t in range(4):
            a(f"ds_add_f64 v{ad}, {vr(vD[t],2)} offset:{128*t}")

    def check(lab):
        a(f"""
        v_pk_add_f32 {vr(vAa,2)}, {vr(vDn,2)}, {vr(vDn+2,2)}
        v_add_f32 v{vCk}, v{vAa}, v{vAa+1}
        v_cmp_nge_f32 vcc, s{sTHR}, v{vCk}
        s_cbranch_vccnz {lab}
        """)

    def leftover():
        for u in range(2):
            a(f"""
            v_min_u32 v{96+u}, {CAP}, v{96+u}
            v_add_u32 v{98+u}, 7, v{96+u}
            v_lshrrev_b32 v{96+u}, 3, v{96+u}
            v_and_b32 v{98+u}, 7, v{98+u}
            """)
        a(f"""
        s_mov_b32 s{t3}, 96
        v_cmp_gt_u32 {sp(sO)}, 4, v98
        v_cmp_gt_u32 {sp(sO+2)}, 4, v99
        v_mad_u32_u24 v{vLf}, v96, s{t3}, v{vLf}
        v_mad_u32_u24 v{vLf+2}, v97, s{t3}, v{vLf+2}
        s_lshl3_add_u32 s{t2}, s{t0}, {LTAB}
        """)
        for u in range(2):
            a(f"""
            s_mov_b64 exec, {sp(sO+2*u)}
            v_mbcnt_lo_u32_b32 v96, exec_lo, 0
            v_mbcnt_hi_u32_b32 v96, exec_hi, v96
            v_lshl_add_u32 v96, v96, 3, s{t2}
            s_bcnt1_i32_b64 s{t3}, exec
            s_lshl3_add_u32 s{t2}, s{t3}, s{t2}
            ds_write_b64 v96, {vr(vLf+2*u,2)}
            """)
        a(f"""
        s_mov_b64 exec, -1
        s_sub_u32 s{t2}, s{t2}, {LTAB - 24}
        s_lshr_b32 s{t2}, s{t2}, 5                ; groups
        s_sub_u32 s{t2}, s{t2}, s{sW}
        s_add_u32 s{t2}, s{t2}, 15
        s_lshr_b32 s{t2}, s{t2}, 4
        s_lshl4_add_u32 s{t3}, s{t2}, s{sW}
        s_lshl_b32 s{t3}, s{t3}, 2
        s_add_u32 s{t1}, s{t0}, 64
        s_lshl_b32 s{sN}, s{t2}, 1
        s_cmp_lt_u32 s{t3}, s{t1}
        s_addc_u32 s{sN}, s{sN}, 0
        """)

    a(f"""
    ds_read_b64 v[4:5], v{vF} offset:{F_MORE}
    ds_read_b64 v[96:97], v{vLf+4} offset:{LCNT}
    L_PRE:
    ds_read_b64 {vr(vT,2)}, v{vP}
    ds_read_b32 v{vQE}, v{vP+1}
    ds_read_b64 {vr(vTQ,2)}, v{vP} offset:512
    s_setprio 3
    v_mov_b32 v{vFA}, v{vLO+1}
    v_mov_b64 {vr(vNm,2)}, 0
    v_mov_b64 {vr(vNm+2,2)}, 0
    s_waitcnt lgkmcnt(2)
    ds_read_b128 {vr(vT+4,4)}, v{vT}
    ds_read_b128 {vr(vS,4)}, v{vT} offset:48
    v_readfirstlane_b32 s{t0}, v5
    v_readfirstlane_b32 s{sMORE}, v4
    """)
    naddr(vNA, vT)
    a(f"""
    s_cmp_lt_u32 s{t0}, 128
    s_cbranch_scc1 L_FEW
    s_waitcnt lgkmcnt(1)
    """)
    saddr(vT + 4)
    loads(0, vT + 4)
    a(f"ds_read_b128 {vr(vAp,4)}, v{vNA} offset:{LA}")
    eread(vQE, 0)
    for t in range(4):
        a(f"v_mov_b32 v{vDn+t}, 1.0")
    a(f"s_cmp_eq_u32 s{t0}, -1\ns_cbranch_scc1 L_SB1")
    if "w1late" in X:
        leftover()
        a("s_branch L_SB1")
    else:
        a("s_waitcnt lgkmcnt(5)")
        saddr(vS)
        loads(1, vS)
        leftover()
        a("s_waitcnt vmcnt(4) lgkmcnt(0)\ns_branch L_M1")
    for p in range(2):
        W = vW[p]
        a(f"""
        L_L{p}:
        ds_read_b128 {vr(vS,4)}, v{vTQ} offset:{48*p}
        """)
        for i in range(16):
            a(f"v_exp_f32 v{vT+i}, v{vT+i}")
            if i == 7:
                eread(vQE, p ^ 1)
                if p == 0:
                    a(f"ds_read_b32 v{vQE}, v{vP+1} offset:512")
                else:
                    a(f"v_mov_b32 v{vFA}, v{vNA+1}")
        if p == 0:
            flush(vFA)
        else:
            naddr(vNA, vTQ)
        for g in range(4):
            a(f"v_lshlrev_b64 {vr(sh(g),2)}, 16, {vr(W+6*g,2)}")
            if g == 0 and p == 1:
                a(f"ds_read_b128 {vr(vAp,4)}, v{vNA} offset:{LA}")
                a(f"ds_read_b64 {vr(vTQ,2)}, v{vP} offset:1024")
        if p == 0:
            for h in range(2):
                a(f"v_pk_add_f32 {vr(vDn+2*h,2)}, {vr(vT+2*h,2)}, 1.0 op_sel_hi:[1,0]")
        for g in range(1 - p, 4):
            for h in range(2):
                src = hv(W, 0, h) if (g == 1 and p == 0) else vr(vNm + 2 * h, 2)
                a(f"v_pk_fma_f32 {vr(vAa+2*h,2)}, {src}, {vr(vT+4*g+2*h,2)}, {src}")
            for h in range(2):
                a(f"v_pk_fma_f32 {vr(vNm+2*h,2)}, {hv(W,g,h)}, {vr(vDn+2*h,2)}, {vr(vAa+2*h,2)}")
            for h in range(2):
                a(f"v_pk_fma_f32 {vr(vDn+2*h,2)}, {vr(vDn+2*h,2)}, {vr(vT+4*g+2*h,2)}, {vr(vDn+2*h,2)}")
        if p == 1:
            check("L_REDO1")
            a(f"L_RB1:\nv_pk_add_f32 {vr(vP,2)}, {vr(vP,2)}, {sp(sINC)}")
        a(f"""
        L_SB{p}:
        """)
        if "trace" in X:
            a(f"s_memtime s[92:93]\ns_add_u32 m0, s{sN}, 16")
        a(f"""
        s_cmp_le_u32 s{sN}, 2
        s_waitcnt lgkmcnt(0)
        """)
        if "trace" in X:
            a("v_writelane_b32 v107, s92, m0")
        saddr(vS)
        a(f"s_cbranch_scc1 L_TAIL{p}")
        loads(p, vS, True)
        a(f"""
        s_waitcnt vmcnt({os.environ.get("NLD", 4)})
        L_M{p}:
        """)
        for g in range(4):
            a(mfma(p ^ 1, g))
            if p == 1:
                a(f"v_rcp_f32 v{vDn+g}, v{vDn+g}")
        a(f"""
        s_sub_u32 s{sN}, s{sN}, 1
        s_bitcmp1_b32 {(1 << PRA) | (1 << PRB)}, s{sN}
        s_cbranch_scc1 L_PR{p}
        """)
        a("s_branch L_L0" if p == 1 else "s_nop 0")
    for p in range(2):
        a(f"""
        L_PR{p}:
        """)
        a(f"""
        s_setprio 2
        s_cmp_eq_u32 s{sN}, {PRA}
        s_cbranch_scc1 L_L{p^1}
        s_setprio 1
        """)
        a(f"""
        s_branch L_L{p^1}
        L_TAIL{p}:
        s_setprio 0
        s_cmp_eq_u32 s{sN}, 2
        s_waitcnt vmcnt(0)
        s_cbranch_scc1 L_M{p}
        """)
        if p == 0:
            check("L_REDO0")
            a(f"L_RB0:\nv_mov_b32 v{vFA}, v{vNA+1}\ns_branch L_LAST")
    a("L_LAST:")
    for g in range(4):
        a(f"v_rcp_f32 v{vDn+g}, v{vDn+g}")
    a("s_nop 0")
    flush(vFA)
    a(f"""
    L_LD:
    s_cmp_lt_u32 s{sW}, 10
    s_cbranch_scc0 L_LD2
    v_lshrrev_b32 v97, 3, v0
    v_and_b32 v98, 7, v0
    v_lshlrev_b32 v98, 4, v98
    """)
    if "u64" not in X:
        a(f"""
        s_mov_b32 s{t0}, {UST}
        v_add_u32 v99, {LU}, v98
        v_mad_u32_u24 v99, v97, s{t0}, v99
        ds_read2_b64 v[56:59], v99 offset0:0 offset1:1
        """)
    a(f"""
    s_mov_b32 s{t0}, {GST}
    v_mad_u32_u24 v96, v97, s{t0}, v98
    s_add_u32 s{t1}, s{sN0}, s{sH}
    v_cmp_gt_u32 {sp(sO)}, s{sNB}, v97
    v_lshlrev_b32 v97, 8, v97
    v_add3_u32 v97, v97, v98, s{t1}
    s_mov_b32 s{t2}, s{sLG}
    s_mov_b32 s{t3}, s{sLG}
    """)
    for i in range(0 if "u64" in X else 4):
        a(f"v_lshlrev_b32 v{60+2*i}, 16, v{56+i}\nv_and_b32 v{61+2*i}, s{t0}, v{56+i}")
    a("L_LD2:\ns_waitcnt lgkmcnt(0)")
    mark(10)
    if stamp:
        a("s_memtime s[92:93]\ns_waitcnt lgkmcnt(0)\ns_sub_u32 s92, s92, s96\nv_writelane_b32 v107, s92, 15\nv_writelane_b32 v107, s96, 16")
    a(f"""
    s_cmp_eq_u32 s{sMORE}, 0
    s_barrier                                     ; B8
    s_cbranch_scc0 L_MORE
    s_cmp_lt_u32 s{sW}, 10
    s_cbranch_scc0 L_FIN
    ds_read_b128 v[24:27], v96 offset:{LAGG}
    ds_read_b128 v[28:31], v96 offset:{LAGG+128}
    ds_read_b128 v[32:35], v96 offset:{LAGG+256}
    ds_read_b128 v[36:39], v96 offset:{LAGG+384}
    """)
    for t in range(4):
        a(f"s_waitcnt lgkmcnt({3-t})")
        for u in range(2):
            a(f"v_cvt_f32_f64 v{8+4*u+t}, {vr(24+4*t+2*u,2)}")
    for i in range(0 if "u64" in X else 4):
        a(f"v_pk_add_f32 {vr(8+2*i,2)}, {vr(8+2*i,2)}, {vr(60+2*i,2)}")
    for i in range(4):
        a(f"v_pk_mul_f32 {vr(16+2*i,2)}, {vr(8+2*i,2)}, {sp(t2)}")
    for i in range(8):
        a(f"v_exp_f32 v{16+i}, v{16+i}")
    for i in range(4):
        a(f"v_pk_add_f32 {vr(16+2*i,2)}, {vr(16+2*i,2)}, 1.0 op_sel_hi:[1,0]")
    for i in range(8):
        a(f"v_rcp_f32 v{16+i}, v{16+i}")
    for i in range(4):
        a(f"v_pk_mul_f32 {vr(16+2*i,2)}, {vr(16+2*i,2)}, {vr(8+2*i,2)}")
    for i in range(4):
        a(f"v_cvt_pk_bf16_f32 v{8+i}, v{16+2*i}, v{17+2*i}")
    a(f"""
    s_mov_b64 exec, {sp(sO)}
    global_store_dwordx4 v97, v[8:11], {sp(sOUT)} {os.environ.get('OF', 'sc1')}
    L_FIN:
    """)
    if stamp:
        a("s_mov_b64 exec, -1")
    if PROBE:
        a("s_waitcnt vmcnt(0)")
        mark(30)
        a(f"""
        s_lshl_b32 s{t0}, s2, 4
        s_add_u32 s{t0}, s{t0}, s{sW}
        s_cmp_eq_u32 s{t0}, {PROBE[0]}
        s_cbranch_scc0 L_PX
        s_memrealtime s[84:85]
        s_sub_u32 s96, s96, s94
        s_lshl_b32 s96, s96, 3
        s_min_u32 s96, s96, 100000
        s_waitcnt lgkmcnt(0)
        L_PS:
        s_memrealtime s[86:87]
        s_waitcnt lgkmcnt(0)
        s_sub_u32 s86, s86, s84
        s_cmp_lt_u32 s86, s96
        s_cbranch_scc1 L_PS
        L_PX:
        """)
    if stamp:
        a("s_waitcnt vmcnt(0)")
        mark(11)
        a("s_waitcnt lgkmcnt(0)")
        for i_, m_ in enumerate(sorted(SLOT)):
            a(f"v_writelane_b32 v107, s{SLOT[m_]}, {i_}")
        a(f"""
        s_lshl_b32 s3, s2, 4
        s_add_u32 s3, s3, s{sW}
        s_lshl_b32 s3, s3, 6
        s_add_u32 s3, s3, {WS_STAMP}
        v_lshl_add_u32 v4, v{vL}, 2, s3
        s_mov_b64 exec, 0xffff
        global_store_dword v4, v107, {sp(sWS)}
        s_mov_b64 exec, 0xffff0000
        v_add_u32 v4, {0x40000 - 64}, v4
        global_store_dword v4, v107, {sp(sWS)}
        """)
    a("s_endpgm")
    a(f"""
    L_POLL2:
    s_sub_u32 s{sSPIN}, s{sSPIN}, 1
    s_cbranch_scc1 L_POLLX
    s_sleep 2
    buffer_load_dwordx2 v[88:89], v{vOFFa}, {sq(SRD_W)}, 0 offen sc1
    s_waitcnt vmcnt(0)
    s_branch L_POLL
    L_POLLX:
    v_mov_b32 v88, 0
    s_mov_b32 s{sSPIN}, 0
    s_branch L_POLLED
    """)
    a(f"""
    """)
    a(f"""
    L_EPO:
    v_mov_b32 v6, {WS_EPOCH}
    v_mov_b32 v7, s{sEP}
    s_mov_b64 exec, 1
    global_store_dword v6, v7, {sp(sWS)} sc1
    s_mov_b64 exec, -1
    s_branch L_EPD
    L_TP2:
    s_sub_u32 s{sSPIN}, s{sSPIN}, 1
    s_cbranch_scc1 L_TX
    s_sleep 2
    global_load_dwordx2 v[70:71], v{vTFa}, {sp(sWS)} sc1
    s_waitcnt vmcnt(0)
    s_branch L_TP
    L_TX:
    s_mov_b32 s{sSPIN}, 0
    s_branch L_TRDY
    """)
    a(f"""
    L_FEW:
    s_waitcnt lgkmcnt(0)
    """)
    leftover()
    a(f"""
    s_cmp_eq_u32 s{t2}, 0
    s_cbranch_scc1 L_LD
    v_mov_b32 v5, -1
    s_branch L_PRE
    L_REDO0:
    s_mov_b32 s{sRET}, 0
    s_branch L_REDO
    L_REDO1:
    s_mov_b32 s{sRET}, 1
    L_REDO:
    ds_read_b64 v[76:77], v{vP}
    ds_read_b32 v{vCk}, v{vP+1}
    v_mov_b64 {vr(vNm,2)}, 0
    v_mov_b64 {vr(vNm+2,2)}, 0
    s_mov_b32 s{t0}, 2
    s_waitcnt lgkmcnt(0)
    """)
    naddr(78, 76)
    a(f"""
    ds_read_b128 {vr(vDn,4)}, v78 offset:{LA}
    L_RD1:
    ds_read_b128 {vr(vAa,4)}, v76
    """)
    eread(vCk, 0)
    a("s_waitcnt lgkmcnt(0)")
    saddr(vAa)
    loads(1, vAa)
    a(f"""
    v_add_u32 v76, 48, v76
    v_add_u32 v{vCk}, 48, v{vCk}
    s_waitcnt vmcnt(0)
    """)
    for g in range(4):
        a(mfma(1, g, vDn))
    for g in range(4):
        a(f"v_lshlrev_b64 {vr(sh(g),2)}, 16, {vr(vW[1]+6*g,2)}")
    a("s_nop 3")
    for i in range(16):
        a(f"v_exp_f32 v{vT+i}, v{vT+i}")
    for i in range(8):
        a(f"v_pk_add_f32 {vr(vT+2*i,2)}, {vr(vT+2*i,2)}, 1.0 op_sel_hi:[1,0]")
    for i in range(16):
        a(f"v_rcp_f32 v{vT+i}, v{vT+i}")
    for g in range(4):
        for h in range(2):
            a(f"v_pk_fma_f32 {vr(vNm+2*h,2)}, {vr(vT+4*g+2*h,2)}, {hv(vW[1],g,h)}, {vr(vNm+2*h,2)}")
    a(f"""
    s_sub_u32 s{t0}, s{t0}, 1
    s_cmp_lg_u32 s{t0}, 0
    s_cbranch_scc1 L_RD1
    """)
    eread(vQE, 0)
    for t in range(4):
        a(f"v_mov_b32 v{vDn+t}, 1.0")
    a(f"""
    s_cmp_eq_u32 s{sRET}, 0
    s_cbranch_scc1 L_RB0
    s_branch L_RB1
    """)
    a(f"""
    L_MORE:
    s_setprio 0
    v_mov_b32 v{vF}, {LFLAG}
    v_mov_b32 v{vONE}, 1
    v_lshlrev_b32 v4, 2, v0
    v_mov_b32 v5, 0
    v_cmp_gt_u32 vcc, 130, v0
    s_mov_b64 exec, vcc
    ds_write_b32 v4, v5 offset:{LCNT}
    s_mov_b64 exec, -1
    s_cmp_lt_u32 s{sW}, 12
    s_cbranch_scc1 L_FILL
    s_branch L_FD
    L_AGAIN:
    s_cmp_eq_u32 s{sBIN}, 0
    s_cbranch_scc0 L_LOADS
    v_subrev_u32 v{vRem}, {4*KMAX}, v{vRem}
    v_add_u32 v{vRO}, {48*KMAX}, v{vRO}
    s_branch L_WINDOW
    L_END:
    """)
    if "lay2" in X:
        L = a.l
        i, j, k = L.index("L_B1:") + 3, L.index("L_SETUP:"), L.index("L_STG:")
        assert "s_barrier" in L[i - 1]
        a.l = L[:i] + ["    s_branch L_B1X"] + L[j:k] + ["L_B1X:"] + L[i:j] + ["    s_branch L_SETUP"] + L[k:]
    elif "oldlay" not in X:
        L = a.l
        i, j, k = L.index("L_NOBIN:"), L.index("L_SETUP:"), L.index("L_STG:")
        assert L[i - 1].strip() == "s_branch L_SETUP"
        blk = L[i:j] + ["    s_branch L_SETUP"]
        a.l = L[:i - 1] + L[j:k] + blk + L[k:]
    return a.text()


def build(stamp=False):
    body = kernel(stamp)
    return f"""; Edge-gated MPNN layer, one fused launch.  Kernarg (80 bytes, pointers, base s[0:1]):
;
; @launch grid=(256,1,1) block=(1024,1,1) lds={LDS}
.amdgcn_target "amdgcn-amd-amdhsa--gfx950"
.text
.globl {NAME}
.p2align 8
.type {NAME},@function
{NAME}:
{body}    s_endpgm
.section .rodata,"a"
.p2align 6
.amdhsa_kernel {NAME}
  .amdhsa_next_free_vgpr 128
  .amdhsa_next_free_sgpr 102
  .amdhsa_accum_offset 128
  .amdhsa_group_segment_fixed_size 0
  .amdhsa_kernarg_size 80
  .amdhsa_user_sgpr_count 2
  .amdhsa_user_sgpr_kernarg_segment_ptr 1
  .amdhsa_system_sgpr_workgroup_id_x 1
  .amdhsa_float_denorm_mode_32 3
.end_amdhsa_kernel
"""


if __name__ == "__main__":
    open(sys.argv[1], "w").write(build(stamp="--stamp" in sys.argv))
```

```python
import sys, os
X = set(os.environ.get('X', '').split('+')) | {'u64', 'tprio'}
NAME = "standalone__edge_featured_mpnn_egc__graph_kernel"
N, E = 10000, 320000
NB, NBK, CH, NCH = 80, 128, 1250, 256
CHB = 15360
T_HALF = N * 256
RB = 12
WS_T, WS_REC, WS_OFF, WS_TF, WS_EPOCH, WS_STAMP = 0, 0x500000, 0xA00000, 0xA40000, 0xA80000, 0xB00000
NLOG2E = 0xBFB8AA3B
KA = dict(x=0, e=8, src=16, dst=24, u=32, v=40, g=48, out=56, dbg=64, ws=72)
AST, GST = 272, 528
LA, LAGG = 0, NB * AST
LHIST = LAGG + NB * GST
LCNT, LFLAG, LDUM = LHIST + 512, LHIST + 1024, LHIST + 1056
F_MORE, F_NQ, F_DONE, F_RV, F_LAND, F_EP, F_PUB = 0, 4, 8, 12, 16, 20, 24
LSTART, LCW = LHIST + 1280, LHIST + 1792
LW = LHIST + 2304
LX = LW + 65536
UST = 136
LU = LX + 20480
LDS = LU + (0 if 'u64' in X else NB * UST)
LSLOT, SLOTB, CAP = LW, 784, 64
LTAB = LX
assert LSTART < 65536
KMAX = 7
DUMMY = 0x400000
SPIN = 1 << 22
assert LW % 256 == 0 and LDS <= 163840


class Asm:
    def __init__(self):
        self.l = []

    def __call__(self, s):
        for ln in s.strip("\n").split("\n"):
            ln = ln.strip()
            if ln:
                self.l.append(ln if ln.endswith(":") else "    " + ln)

    def text(self):
        return "\n".join(self.l) + "\n"


def f2h(f):
    import struct
    return hex(struct.unpack('<I', struct.pack('<f', f))[0])


def vr(a, n):
    return f"v[{a}:{a+n-1}]" if n > 1 else f"v{a}"


def sp(a):
    return f"s[{a}:{a+1}]"


def sq(a):
    return f"s[{a}:{a+3}]"


def srd(a, d, base, off, size):
    a(f"s_add_u32 s{d}, s{base}, {off}\ns_addc_u32 s{d+1}, s{base+1}, 0")
    a(f"s_mov_b32 s{d+2}, {size}\ns_mov_b32 s{d+3}, 0x20000")


def scan64(a, v):
    for ctl in ("row_shr:1", "row_shr:2", "row_shr:4", "row_shr:8"):
        a(f"s_nop 1\nv_add_u32_dpp v{v}, v{v}, v{v} {ctl} row_mask:0xf bank_mask:0xf")
    a(f"s_nop 1\nv_add_u32_dpp v{v}, v{v}, v{v} row_bcast:15 row_mask:0xa bank_mask:0xf")
    a(f"s_nop 1\nv_add_u32_dpp v{v}, v{v}, v{v} row_bcast:31 row_mask:0xc bank_mask:0xf")


def kernel(stamp):
    a = Asm()
    PROBE = [int(x) for x in os.environ["PROBE"].split(",")] if os.environ.get("PROBE") else None
    MARKS = set(int(x) for x in os.environ["MARKS"].split(",")) if os.environ.get("MARKS") else None

    FREE = [4, 6, 8, 10, 12, 14, 16, 20, 98]
    SLOT = {0: 94}
    if stamp:
        for m_ in sorted((MARKS or set()) - {0}):
            SLOT[m_] = FREE.pop(0)

    def mark(n):
        if stamp and n in SLOT:
            a(f"s_memrealtime s[{SLOT[n]}:{SLOT[n]+1}]")
        if PROBE and n in PROBE[1:]:
            r = 94 + 2 * PROBE[1:].index(n)
            a(f"s_memrealtime s[{r}:{r+1}]\ns_waitcnt lgkmcnt(0)")

    sRW = 3
    sX, sE, sSRC, sDST, sU, sV, sG, sOUT, sDBG, sWS = 4, 6, 8, 10, 12, 14, 16, 18, 20, 22
    SRD_T, SRD_R, SRD_W = 24, 28, 32
    sM = 36
    sN, sBIN, sT0, sFIRST = 50, 51, 52, 53
    t0, t1, t2, t3 = 54, 55, 56, 57
    sMORE, sW = 58, 59
    sINC, s12, sTHR, sEM = 60, 62, 64, 66
    sH, sB, sC, sEP, sTAG, sTAG2, sSPIN, sLG = 68, 69, 70, 71, 72, 73, 74, 75
    sTAGB, sN0, sNB = 100, 101, 1
    sEG = 0
    sU5, sU4 = 76, 78
    sO = 80
    vL, vLO, vAo, vRO, vRem = 1, 2, 108, 126, 127
    vF, vONE = 124, 125
    vWf, vXb, vAcc, vPk, vA, vXa, vRow, vJn = 8, 40, 72, 88, 100, 96, 101, 102
    vOFFa, vR4, vCwa = 103, 104, 105
    LNT = "" if "nont" in X else "nt"
    XNT = "nt" if "xnt" in X else ""
    DNT = LNT if "dnt" in X else ""
    SNT = "" if "splain" in X else LNT
    CNT_ = "nt" if "cwnt" in X else ""
    WNT = "nt" if "wwnt" in X else ""

    RPF = 0
    vRp = 106

    def pollreq():
        a(f"buffer_load_dwordx2 v[88:89], v{vOFFa}, {sq(SRD_W)}, 0 offen sc1")
        a(f"ds_read_b32 v90, v{vF} offset:{F_EP}")

    def recpf():
        if RPF:
            a(f"""
            s_mov_b64 exec, {hex((1 << RPF) - 1)}
            buffer_load_dword v91, v{vRp}, {sq(SRD_R)}, 0 offen sc1
            s_mov_b64 exec, -1
            """)

    def spin(label, off, cond, val, slp=0):
        a(f"""
        {label}:
        s_sub_u32 s{sSPIN}, s{sSPIN}, 1
        s_cbranch_scc1 L_END
        {f"s_sleep {slp}" if slp else ""}
        ds_read_b32 v7, v{vF} offset:{off}
        s_waitcnt lgkmcnt(0)
        """)
        if cond == "lowne":
            a(f"v_and_b32 v7, 0xff, v7\nv_cmp_ne_u32 vcc, {val}, v7")
        elif cond == "midne":
            a(f"v_cmp_ne_u32 vcc, {val}, v7")
        else:
            a(f"v_cmp_{cond}_u32 vcc, {val}, v7")
        a(f"s_cbranch_vccnz {label}")

    MAP = os.environ.get("MAP", "hi")
    QSEL = {"par": f"s_bfe_u32 s{t0}, s2, 0x20001", "hi": f"s_and_b32 s{t0}, s2, 3",
            "mid": f"s_bfe_u32 s{t1}, s2, 0x10002\ns_and_b32 s{t0}, s2, 1\ns_lshl1_add_u32 s{t0}, s{t1}, s{t0}"}[MAP]
    HSEL = {"par": f"s_and_b32 s{t0}, s2, 1", "hi": f"s_bfe_u32 s{t0}, s2, 0x10002", "mid": f"s_bfe_u32 s{t0}, s2, 0x10001"}[MAP]
    mark(0)
    a(f"""
    s_load_dwordx16 s[4:19], s[0:1], 0
    s_load_dwordx4 s[20:23], s[0:1], {KA['dbg']}
    s_lshr_b32 s{sB}, s2, 3
    """)
    if "latewarm" not in X:
        a(f"""
        s_getpc_b64 {sp(t0)}
        L_PC:
        s_mul_i32 s{t3}, s{sB}, 384
        v_lshl_add_u32 v6, v0, 7, s{t3}
        v_cmp_gt_u32 vcc, 3, v0
        v_min_u32 v6, L_END-L_PC, v6
        s_cbranch_vccz L_NOCW
        v_mov_b32 v7, 0
        v_lshl_add_u64 v[6:7], v[6:7], 0, {sp(t0)}
        s_mov_b64 exec, vcc
        global_load_dword v9, v[6:7], off
        s_mov_b64 exec, -1
        L_NOCW:
        """)
    a(f"""
    {QSEL}
    s_lshl_b32 s{t0}, s{t0}, 5
    s_add_u32 s{sB}, s{sB}, s{t0}
    s_mul_i32 s{sN0}, s{sB}, 625
    s_add_u32 s{sN0}, s{sN0}, 7
    s_lshr_b32 s{sN0}, s{sN0}, 3
    s_lshl_b32 s{sN0}, s{sN0}, 8
    s_cmp_ge_u32 s2, 256
    s_cbranch_scc1 L_END
    v_lshrrev_b32 v4, 6, v0
    v_and_b32 v{vL}, 63, v0
    v_readfirstlane_b32 s{sW}, v4
    {HSEL}
    s_lshl_b32 s{sH}, s{t0}, 7                    ; half*128
    s_add_u32 s{sC}, s{sH}, s{sB}                 ; chunk
    s_sub_u32 s{sRW}, s{sW}, 5
    s_cmp_lt_u32 s{sRW}, 5
    s_cbranch_scc0 L_NOBIN
    """)
    B1 = "s_barrier                                     ; B1"
    HM = "s_mov_b32 exec_hi, 0x1fffffff"
    FM = "s_mov_b32 exec_hi, -1"
    a(f"""
    s_mul_i32 s{t1}, s{sC}, {CH*4}
    s_mul_i32 s{t2}, s{sRW}, 1000
    s_add_u32 s{t1}, s{t1}, s{t2}
    v_lshl_add_u32 v20, v{vL}, 3, s{t1}
    v_lshlrev_b32 v21, 1, v20
    s_setprio 3
    s_mov_b32 s{sBIN}, 1
    s_waitcnt lgkmcnt(0)
    global_load_dwordx2 v[4:5], v20, {sp(sDST)}
    {HM}
    global_load_dwordx2 v[6:7], v20, {sp(sDST)} offset:512
    {B1}
    global_load_dwordx2 v[10:11], v20, {sp(sSRC)} offset:512 nt
    {FM}
    global_load_dwordx2 v[8:9], v20, {sp(sSRC)} nt
    global_load_dwordx4 v[12:15], v21, {sp(sE)} nt
    {HM}
    global_load_dwordx4 v[16:19], v21, {sp(sE)} offset:1024 nt
    {FM}
    """)
    a(f"""
    s_mul_i32 s{t0}, s{sC}, {CHB}
    s_add_u32 s{t0}, s{t0}, {WS_REC}
    """)
    srd(a, SRD_W, sWS, f"s{t0}", (CH * RB + 127) // 128 * 128)
    a(f"""
    s_add_u32 s{t2}, s{sWS}, {WS_EPOCH}
    s_addc_u32 s{t3}, s{sWS+1}, 0
    s_load_dword s{sEP}, {sp(t2)}, 0
    """)
    a(f"""
    s_branch L_SETUP
    L_NOBIN:
    s_mov_b32 s{sBIN}, 0
    s_cmp_lt_u32 s{sW}, 10
    s_cbranch_scc1 L_B1
    s_cmp_eq_u32 s{sW}, 15
    s_cbranch_scc1 L_WARM
    v_lshlrev_b32 v12, 2, v0
    v_lshrrev_b32 v16, 2, v0
    v_subrev_u32 v16, {(640 + (LDUM - LHIST) // 4) // 4}, v16
    v_min_u32 v16, 31, v16
    v_mov_b32 v15, 0x249
    v_bfe_u32 v13, v15, v16, 1
    v_lshlrev_b32 v13, 22, v13
    ds_write_b32 v12, v13 offset:{LHIST - 2560}
    s_branch L_B1
    L_WARM:
    """)
    a(f"""
    s_lshr_b32 s{t2}, s2, 3
    s_mul_i32 s{t2}, s{t2}, 9
    v_add_u32 v6, s{t2}, v{vL}
    v_min_u32 v8, 259, v6
    v_lshl_add_u32 v8, v8, 8, s{sH}
    s_lshr_b32 s{t2}, s{t2}, 1
    v_add_u32 v6, s{t2}, v{vL}
    v_min_u32 v6, 127, v6
    v_lshl_add_u32 v6, v6, 8, s{sH}
    v_lshrrev_b32 v4, 4, v{vL}
    v_and_b32 v5, 15, v{vL}
    v_lshl_add_u32 v4, v5, 2, v4
    s_add_u32 s{t2}, s{sH}, {256*256}
    v_lshl_add_u32 v4, v4, 1, s{t2}
    s_waitcnt lgkmcnt(0)
    s_mov_b64 exec, 0x1ff
    global_load_dword v9, v8, {sp(sG)} {WNT}
    s_mov_b64 exec, 31
    global_load_dword v9, v6, {sp(sV)} {WNT}
    global_load_dword v9, v6, {sp(sU)} {WNT}
    s_mov_b64 exec, -1
    global_load_short_d16_hi v10, v4, {sp(sG)}
    global_load_short_d16_hi v11, v4, {sp(sG)} offset:256
    global_load_short_d16_hi v12, v4, {sp(sG)} offset:512
    global_load_short_d16_hi v13, v4, {sp(sG)} offset:768
    L_B1:
    s_waitcnt lgkmcnt(0)
    s_barrier                                     ; B1
    """)
    if "xlate" in X:
        a(f"""
        s_cmp_eq_u32 s{sW}, 10
        s_cselect_b32 s{sRW}, 1, 0
        s_cbranch_scc1 L_XL
        s_cmp_eq_u32 s{sW}, 4
        s_cbranch_scc1 L_XL
        """)
    else:
        a(f"""
        s_mov_b32 s{sRW}, s{sW}
        s_cmp_lt_u32 s{sW}, 2
        s_cbranch_scc1 L_XL
        """)
    a(f"""
    s_cmp_lt_u32 s{sW}, 5
    s_cselect_b32 s{sRW}, {0 if "xlate" in X else 2}, 7
    s_sub_u32 s{sRW}, s{sW}, s{sRW}
    v_lshrrev_b32 v26, 3, v{vL}
    v_lshlrev_b32 v26, 8, v26
    v_and_b32 v28, 7, v{vL}
    v_lshlrev_b32 v28, 4, v28
    v_and_b32 v27, 16, v{vL}
    v_lshlrev_b32 v27, 1, v27
    v_xor_b32 v28, v28, v27
    v_add3_u32 v26, v26, v28, s{sH}
    v_xor_b32 v27, 64, v26
    s_add_u32 s{SRD_W}, s{sG}, {128*256}
    s_addc_u32 s{SRD_W+1}, s{sG+1}, 0
    s_cmp_ge_u32 s{sRW}, 2
    s_cselect_b64 {sp(SRD_W)}, {sp(sV)}, {sp(SRD_W)}
    s_cmp_ge_u32 s{sRW}, 4
    s_cselect_b64 {sp(SRD_W)}, {sp(sG)}, {sp(SRD_W)}
    s_cmp_ge_u32 s{sRW}, 6
    s_cselect_b64 {sp(SRD_W)}, {sp(sU)}, {sp(SRD_W)}
    s_mov_b32 s{SRD_W+2}, {128*256}
    s_mov_b32 s{SRD_W+3}, 0x20000
    s_cmp_ge_u32 s{sRW}, 4
    {"s_barrier" if "b1b" in X else ""}
    s_cbranch_scc1 L_SETUP
    """)
    if "u64" not in X:
        a(f"""
        v_lshlrev_b32 v17, 4, v0
        v_mov_b64 v[20:21], 0
        v_mov_b64 v[22:23], 0
        v_min_u32 v18, {11264 + NB * GST - 8 * 5120 - 16}, v17
        """)
    for i in range(0 if "u64" in X else 9):
        a(f"ds_write_b128 v{17 if i < 8 else 18}, v[20:23] offset:{LAGG - 11264 + 5120 * i}")

    def wdma(lab):
        a(f"""
        s_and_b32 s{t0}, s{sRW}, 1
        s_lshl_b32 s{t0}, s{t0}, 14
        s_lshl_b32 s{t1}, s{sRW}, 13
        s_add_u32 s{t1}, s{t1}, {LW}
        s_mov_b32 s{t2}, 4
        {lab}:
        s_mov_b32 m0, s{t1}
        s_add_u32 s{t3}, s{t0}, 1024
        buffer_load_dwordx4 v26, {sq(SRD_W)}, s{t0} offen lds
        buffer_load_dwordx4 v27, {sq(SRD_W)}, s{t3} offen offset:1024 lds
        s_add_u32 s{t0}, s{t0}, 4096
        s_add_u32 s{t1}, s{t1}, 2048
        s_sub_u32 s{t2}, s{t2}, 1
        s_cmp_lg_u32 s{t2}, 0
        s_cbranch_scc1 {lab}
        """)

    wdma("L_WL")
    a(f"""
    s_branch L_SETUP
    L_XL:
    v_lshrrev_b32 v4, 4, v{vL}
    v_and_b32 v5, 15, v{vL}
    v_xor_b32 v5, v5, v4
    v_lshlrev_b32 v5, 4, v5
    s_lshl_b32 s{t1}, s{sRW}, 7
    v_xor_b32 v5, s{t1}, v5
    s_mul_i32 s{t0}, s{sRW}, 10240
    s_add_u32 s{t2}, s{sN0}, s{t0}
    s_sub_u32 s{t3}, {N*256}, s{t2}
    v_lshl_add_u32 v4, v4, 8, v5
    s_add_u32 s{t1}, s{t0}, {LX}
    v_xor_b32 v5, 64, v4
    v_xor_b32 v6, 0x80, v4
    v_xor_b32 v7, 0xc0, v4
    v_mov_b32 v26, 0
    v_mov_b32 v27, 0
    """)
    srd(a, SRD_W, sX, f"s{t2}", f"s{t3}")
    a(f"s_mov_b32 s{t0}, 0\ns_mov_b32 s{sRW}, 0")
    if "b1b" in X:
        a("s_barrier")
    for i in range(10):
        if i % 4 == 0:
            a(f"s_mov_b32 m0, s{t1}\ns_add_u32 s{t1}, s{t1}, 4096")
        a(f"buffer_load_dwordx4 v{4+i%4}, {sq(SRD_W)}, s{t0} offen offset:{1024*(i%4)} {XNT} lds")
        if i % 4 == 3:
            a(f"s_add_u32 s{t0}, s{t0}, 4096")
    a(f"""
    L_SETUP:
    s_and_b32 s{sT0}, s{sW}, 3
    s_cmp_ge_u32 s{sW}, 12
    s_cselect_b32 s{t0}, {2*16384}, 0
    s_add_u32 s{t0}, s{t0}, {LW}
    s_mov_b32 s{t1}, {LX}
    v_lshrrev_b32 v40, 4, v{vL}                   ; sigma
    v_bfe_u32 v41, v{vL}, 2, 2
    v_and_b32 v42, 3, v{vL}
    v_and_b32 v{vJn}, 15, v{vL}
    v_lshlrev_b32 v43, 10, v40
    v_lshlrev_b32 v44, 7, v41
    v_lshl_add_u32 v44, v42, 3, v44
    v_bfe_u32 v45, v{vL}, 3, 2
    v_xor_b32 v45, s{sT0}, v45
    v_lshl_add_u32 v45, v45, 5, v44
    v_add3_u32 v{vA}, v43, v45, s{t0}
    s_lshl_b32 s{t0}, s{sT0}, 2
    v_add_u32 v{vRow}, s{t0}, v40
    v_xor_b32 v43, v{vJn}, v40
    v_lshlrev_b32 v43, 4, v43
    v_lshlrev_b32 v44, 8, v{vJn}
    v_add3_u32 v{vXa}, v43, v44, s{t1}
    v_xor_b32 v{vXa+1}, 64, v{vXa}
    v_xor_b32 v{vXa+2}, 0x80, v{vXa}
    v_xor_b32 v{vXa+3}, 0xc0, v{vXa}
    s_mov_b32 s{t0}, {LCW}
    v_lshl_add_u32 v{vCwa}, v{vL}, 3, s{t0}
    v_cmp_eq_u32 vcc, v40, v41
    v_mov_b32 v43, 0x3f80
    v_cmp_eq_u32 {sp(sEM)}, v40, v42
    v_cndmask_b32 v{vAo}, 0, v43, vcc
    v_mov_b32 v{vAo+1}, 0
    v_lshlrev_b32 v42, 4, v42
    v_lshlrev_b64 {vr(vAo,2)}, v42, {vr(vAo,2)}
    """)
    for g in range(4):
        if g:
            a(f"v_mov_b64 {vr(vAo+4*g,2)}, {vr(vAo,2)}")
        a(f"v_mov_b64 {vr(vAo+4*g+2,2)}, 0")
    a(f"""
    v_lshlrev_b32 v{vLO}, 4, v{vJn}
    v_lshlrev_b32 v{vLO+1}, 3, v{vJn}
    v_add_u32 v{vLO+1}, {LAGG}, v{vLO+1}
    v_lshrrev_b32 v40, 2, v0
    s_lshl_b32 s{t0}, s{sB}, 3
    v_lshl_add_u32 v{vOFFa}, v40, 10, s{t0}
    v_mul_u32_u24 v{vRO}, {CHB}, v40
    v_mov_b32 v{vF}, {LFLAG}
    v_mov_b32 v{vONE}, 1
    s_and_b32 s{t0}, s{sB}, 7
    s_cmp_eq_u32 s{t0}, 0
    s_addc_u32 s{sNB}, 78, 0
    s_mov_b32 s{sLG}, {hex(NLOG2E)}
    s_mov_b32 s{s12}, {f2h(AST/256)}
    s_mov_b32 s{s12+1}, {f2h(GST/256)}
    s_mov_b32 s{sINC}, 512
    s_mov_b32 s{sINC+1}, 512
    s_mov_b32 s{sTHR}, 0x67800000                 ; 2^80
    s_mov_b32 s{sFIRST}, 1
    s_mov_b32 s{sSPIN}, {SPIN}
    s_mul_i32 s{t1}, s{sH}, {T_HALF//128}
    """)
    srd(a, SRD_T, sWS, f"s{t1}", T_HALF)
    srd(a, SRD_R, sWS, WS_REC, NCH * CHB)
    a(f"""
    s_cmp_eq_u32 s{sBIN}, 0
    s_cbranch_scc1 L_STG
    s_mov_b32 s{t0}, 429497
    s_mov_b32 s{t1}, 625
    v_lshlrev_b32 v33, 3, v{vL}
    s_mul_i32 s{t2}, s{sRW}, 3072
    v_lshl_add_u32 v32, v{vL}, 4, s{t2}
    s_waitcnt vmcnt(4)
    """)
    mark(1)
    for i in range(4):
        a(f"""
        {HM if i == 2 else ""}
        v_mul_u32_u24 v{24+i}, s{t0}, v{4+i}
        v_lshrrev_b32 v{24+i}, 25, v{24+i}
        v_lshlrev_b32 v{20+i}, 2, v{24+i}
        ds_add_rtn_u32 v{28+i}, v{20+i}, v{vONE} offset:{LHIST}
        """)
    a(f"""
    s_mov_b64 exec, 1
    ds_add_u32 v{vF}, v{vONE} offset:{F_RV}
    s_mov_b64 exec, -1
    """)
    for i in range(4):
        a(f"""
        v_mad_u32_u24 v{24+i}, v{24+i}, s{t1}, 7
        v_lshrrev_b32 v{24+i}, 3, v{24+i}
        v_sub_u32 v{24+i}, v{4+i}, v{24+i}
        """)
    a("s_mov_b64 exec, 1")
    if "spr" in X:
        a("s_setprio 1")
    spin("L_BS1", F_RV, "gt", 5, int(os.environ.get("SLB", 0)))
    if "spr" in X:
        a("s_setprio 3")
    mark(15)
    a(f"""
    s_mov_b64 exec, -1
    ds_read_b64 v[34:35], v33 offset:{LHIST}
    s_add_u32 s{sEP}, s{sEP}, 1
    s_xor_b32 s{sTAG2}, s{sEP}, 0x2545F491
    s_mul_i32 s{sTAG}, s{sTAG2}, 0x9E3779B1
    s_mul_i32 s{sTAG2}, s{sTAG2}, 0x85EBCA6B
    s_lshr_b32 s{sTAGB}, s{sTAG2}, 25
    s_waitcnt lgkmcnt(0)
    v_add_u32 v36, v34, v35
    v_mov_b32 v37, v36
    """)
    scan64(a, 37)
    a(f"""
    v_sub_u32 v38, v37, v36
    v_add_u32 v39, v38, v34
    v_mul_u32_u24 v38, {RB}, v38
    v_mul_u32_u24 v39, {RB}, v39
    ds_write_b64 v33, v[38:39] offset:{LSTART}
    """)
    for i in range(4):
        a(f"{HM if i == 2 else ''}\nds_read_b32 v{20+i}, v{20+i} offset:{LSTART}")
    a(FM)
    a(f"""
    s_lshl_b32 s{t0}, s{sTAGB}, 25
    s_lshl_b32 s{t1}, s{sC}, 10
    s_add_u32 s{t1}, s{t1}, {WS_OFF}
    v_lshl_or_b32 v48, v34, 14, v38
    v_lshl_or_b32 v50, v35, 14, v39
    v_or_b32 v48, s{t0}, v48
    v_or_b32 v50, s{t0}, v50
    v_mov_b32 v49, s{sTAG}
    v_mov_b32 v51, s{sTAG}
    v_lshl_add_u32 v52, v{vL}, 4, s{t1}
    """)
    mark(16)
    a(f"""
    s_waitcnt vmcnt(2) lgkmcnt(0)
    """)
    for i in range(4):
        a(f"""
        {HM if i == 2 else ""}
        v_mad_u32_u24 v{20+i}, v{28+i}, {RB}, v{20+i}
        v_lshl_or_b32 v{24+i}, v{8+i}, 8, v{24+i}
        ds_write_b32 v{20+i}, v{24+i} offset:8
        """)
    for i in range(4):
        if i % 2 == 0:
            a(f"{HM if i else FM}\ns_waitcnt vmcnt({1 - i // 2})")
        a(f"ds_write2_b32 v{20+i}, v{12+2*i}, v{13+2*i} offset0:0 offset1:1")
    mark(13)
    a(f"""
    s_mov_b64 exec, 1
    ds_add_u32 v{vF}, v{vONE} offset:{F_RV}
    """)
    if "spr" in X:
        a("s_setprio 1")
    spin("L_BS2", F_RV, "gt", 10, int(os.environ.get("SLB", 0)))
    if "spr" in X:
        a("s_setprio 3")
    a("s_mov_b64 exec, -1")
    for i in range(3):
        a(f"ds_read_b128 {vr(8+4*i,4)}, v32 offset:{1024*i}")
    for i in range(3):
        a(f"s_waitcnt lgkmcnt({2-i})\nbuffer_store_dwordx4 {vr(8+4*i,4)}, v32, {sq(SRD_W)}, 0 offen offset:{1024*i} sc1")
    a(f"""
    s_mov_b64 exec, 1
    """)
    mark(2)
    a(f"""
    s_waitcnt vmcnt(0)
    ds_add_rtn_u32 v7, v{vF}, v{vONE} offset:{F_PUB}
    s_waitcnt lgkmcnt(0)
    v_cmp_eq_u32 vcc, 4, v7
    s_mov_b64 exec, -1
    s_cbranch_vccz L_NOPUB
    global_store_dwordx4 v52, v[48:51], {sp(sWS)} sc1
    L_NOPUB:
    s_setprio 0
    v_mov_b32 v4, s{sEP}
    ds_write_b32 v{vF}, v4 offset:{F_EP}
    """)
    mark(4)
    a(f"""
    """)
    if os.environ.get("TV"):
        a(f"""
        s_lshl_b32 s{t2}, s{sC}, 7
        s_add_u32 s{t2}, s{t2}, {WS_TF}
        v_mov_b32 v8, s{t2}
        v_mov_b32 v10, s{sTAG}
        v_mov_b32 v11, s{sTAG2}
        s_branch L_GD
        """)
    else:
        a(f"""
    s_cmp_eq_u32 s{sW}, 5
    s_cbranch_scc0 L_GD
    s_lshl_b32 s{t2}, s{sC}, 7
    s_add_u32 s{t2}, s{t2}, {WS_TF}
    v_mov_b32 v8, s{t2}
    v_mov_b32 v10, s{sTAG}
    v_mov_b32 v11, s{sTAG2}
        """)
        srd(a, SRD_W, sWS, WS_OFF, NCH * 1024)
        a(f"""
    s_mov_b64 exec, 1
    s_waitcnt lgkmcnt(0)
    s_barrier                                     ; B5
    global_store_dwordx2 v8, v[10:11], {sp(sWS)} sc1
    s_mov_b64 exec, -1
    s_branch L_TSD
        """)
    a(f"""
    L_STG:
    v_mov_b32 v6, 1
    s_cmp_lt_u32 s{sRW}, 4
    s_cbranch_scc1 L_EARLY
    s_cmp_eq_u32 s{sRW}, 8
    s_cbranch_scc1 L_GC
    """)
    a(f"""
    ; Ga / U go out once half of the first copies have landed
    s_mov_b64 exec, 1
    """)
    TRG = os.environ.get("TRG", "land3")
    spin("L_BS3", F_LAND if TRG[:4] == "land" else F_RV, "gt", int(TRG.lstrip("landrv")), 2)
    a("s_mov_b64 exec, -1")
    wdma("L_WL2")
    a(f"""
    v_mov_b32 v6, 0x100
    L_EARLY:
    s_mov_b64 exec, 1
    s_waitcnt vmcnt(0)
    ds_add_u32 v{vF}, v6 offset:{F_LAND}
    """)
    mark(13)
    a(f"""
    s_cmp_ge_u32 s{sW}, 12
    s_cbranch_scc1 L_LAND2
    s_cmp_ge_u32 s{sW}, 4
    s_cbranch_scc1 L_GD
    """)
    spin("L_LAND1", F_LAND, "lowne", 6, int(os.environ.get("SL1", 0)))
    a("s_mov_b64 exec, -1")
    if "tprio" in X:
        a("s_setprio 2")
    mark(3)

    def gemm(epi, pre, post=None, hook=None):
        def xr(n, ks):
            a(f"ds_read_b128 {vr(vXb+16*(n&1)+4*ks,4)}, v{vXa+ks} offset:{4096*n}")
        for ks in range(4):
            xr(0, ks)
            for m in range(2):
                o = m * 16384 + ks * 4096
                r = vWf + 16 * m + 4 * ks
                a(f"ds_read_b64_tr_b16 {vr(r,2)}, v{vA} offset:{o}")
                a(f"ds_read_b64_tr_b16 {vr(r+2,2)}, v{vA} offset:{o+512}")
            if ks == 1:
                pre()
                a("s_waitcnt lgkmcnt(4)")
        IL = "noil" not in X
        if not IL:
            a("s_waitcnt lgkmcnt(9)")
            for ks in range(4):
                xr(1, ks)
        prev_lds = 0
        for n in range(6):
            ops = epi(n - 1) if n else []
            tail = [o[1:] for o in ops if o[0] == "@"]
            ops = [o for o in ops if o[0] != "@"]
            if n == 5:
                ops += tail
                if post:
                    a("s_nop 3")
                    for o in ops[:-4]:
                        a(o)
                    a("s_waitcnt lgkmcnt(0)")
                    post(3)
                    for o in ops[-4:]:
                        a(o)
                    a("s_waitcnt lgkmcnt(0)")
                    post(4)
                    break
                a("s_nop 7")
                for o in ops:
                    a(o)
                break
            late = post and n >= 2
            if IL:
                a(f"s_waitcnt lgkmcnt({prev_lds})")
                prev_lds = len([o for o in ops + tail if o.startswith("ds_")])
            else:
                a(f"s_waitcnt lgkmcnt({(4 if n < 4 else 0) + (4 if late else 0)})")
            if n == 0:
                mark(21)
            per = -(-len(ops) // 5)
            for ks in range(4):
                for m in range(2):
                    acc = vAcc + 8 * (n & 1) + 4 * m
                    c = "0" if ks == 0 else vr(acc, 4)
                    a(f"v_mfma_f32_16x16x32_bf16 {vr(acc,4)}, {vr(vWf+16*m+4*ks,4)}, {vr(vXb+16*(n&1)+4*ks,4)}, {c}")
                    if IL and 2 * ks + m < 4:
                        if n < 4:
                            xr(n + 1, 2 * ks + m)
                        else:
                            a("s_nop 0")
                    if late and 2 * ks + m == 3:
                        a(f"s_waitcnt lgkmcnt({4 if n < 4 else 0})")
                        post(n - 2)
                    if 2 * ks + m >= 3:
                        for o in ops[:per]:
                            a(o)
                        ops = ops[per:]
            assert not ops
            for o in tail:
                a(o)
            if IL:
                pass
            elif n + 2 < 5:
                for ks in range(4):
                    xr(n + 2, ks)
            elif n == 3:
                a("s_nop 3")
            if hook:
                hook(n)

    def t_pre():
        a(f"""
        s_mov_b32 s{t0}, s{sN0}
        s_lshl_b32 s{t2}, s{sNB}, 2
        s_sub_u32 s{t2}, 320, s{t2}
        s_lshr_b32 s{t2}, -1, s{t2}
        """)
        if "nobp" in X:
            a(f"""
            v_lshlrev_b32 v4, 8, v{vJn}
            v_lshl_add_u32 v4, v{vRow}, 4, v4
            """)
        else:
            a(f"""
            v_lshrrev_b32 v6, 2, v{vL}
            v_and_b32 v7, 3, v{vL}
            s_lshl_b32 s{t1}, s{sT0}, 6
            v_lshl_add_u32 v4, v6, 8, s{t1}
            v_lshl_add_u32 v4, v7, 4, v4
            v_lshl_add_u32 v5, v7, 4, v6
            v_lshlrev_b32 v5, 2, v5
            """)
        a(f"""
        s_mov_b32 s{t1}, 0x07060302
        s_setreg_imm32_b32 hwreg(HW_REG_MODE, 4, 2), 0
        """)

    def t_epi(n):
        P = vPk + 4 * (n & 1)
        b = [vAcc + 8 * (n & 1) + t for t in range(4)]
        h = [vAcc + 8 * (n & 1) + 4 + t for t in range(4)]
        SD = "clamp dst_sel:DWORD dst_unused:UNUSED_PAD src0_sel:DWORD src1_sel:WORD_1"
        o = [f"v_mul_f32 v{b[t]}, s{sLG}, v{b[t]}" for t in range(4)]
        o += [f"v_add_f32 v{h[t]}, 0, v{h[t]}" for t in (0, 1, 3)]
        o += [f"v_add_u32 v{h[t]}, 0x8000, v{h[t]}" for t in (2, 0, 3, 1)]
        o += [f"v_sub_u32_sdwa v{h[0]}, v{h[0]}, v{h[2]} {SD}",
              f"v_cvt_pk_bf16_f32 v{P+2}, v{b[0]}, v{b[1]}",
              f"v_sub_u32_sdwa v{h[3]}, v{h[3]}, v{h[0]} {SD}",
              f"v_cvt_pk_bf16_f32 v{P+3}, v{b[2]}, v{b[3]}",
              f"v_sub_u32_sdwa v{h[1]}, v{h[1]}, v{h[3]} {SD}",
              f"v_perm_b32 v{P}, v{h[0]}, v{h[2]}, s{t1}",
              f"v_perm_b32 v{P+1}, v{h[1]}, v{h[3]}, s{t1}"]
        if "nobp" in X:
            o += [f"buffer_store_dwordx4 {vr(P,4)}, v4, {sq(SRD_T)}, s{t0} offen sc1",
                  f"s_add_u32 s{t0}, s{t0}, 4096"]
        else:
            o += [f"ds_bpermute_b32 v{P+u}, v5, v{P+u}" for u in (2, 3, 0, 1)]
        return o

    def t_post(n):
        if n == 4:
            a(f"s_mov_b32 exec_hi, s{t2}")
        a(f"buffer_store_dwordx4 {vr(vPk+4*(n&1),4)}, v4, {sq(SRD_T)}, s{t0} offen sc1\ns_add_u32 s{t0}, s{t0}, 4096")
        mark(40 + n)

    gemm(t_epi, t_pre, None if "nobp" in X else t_post)
    a(f"""
    s_setreg_imm32_b32 hwreg(HW_REG_MODE, 4, 2), 3
    """)
    a("s_setprio 0")
    a(f"s_waitcnt vmcnt({os.environ.get('TV', 0)})")
    a(f"""
    s_branch L_GD
    L_GC:
    s_mov_b32 s{t0}, 0xffff0000
    s_waitcnt vmcnt(0)
    """)
    for q in range(4):
        a(f"v_and_b32 v{10+q}, s{t0}, v{10+q}")
    for q in range(4):
        a(f"v_mul_f32 v{10+q}, s{sLG}, v{10+q}")
    a(f"""
    v_cvt_pk_bf16_f32 v10, v10, v11
    v_cvt_pk_bf16_f32 v11, v12, v13
    ds_write_b64 v{vCwa}, v[10:11]
    s_mov_b64 exec, 1
    """)
    if "w15slp" in X:
        spin("L_BS5", F_LAND, "gt", 0x100, 4)
    spin("L_LAND2", F_LAND, "ne", 0x406)
    a("s_mov_b64 exec, -1")
    mark(3)

    def au_pre():
        a(f"""
        s_mov_b32 s{t0}, {AST}
        s_mov_b32 s{t1}, {GST if "u64" in X else UST}
        s_mov_b32 s{t2}, {0 if "u64" in X else LU}
        v_lshlrev_b32 v4, 4, v{vRow}
        v_lshl_add_u32 v5, v{vRow}, 3, s{t2}
        v_mad_u32_u24 v4, v{vJn}, s{t0}, v4
        v_mad_u32_u24 v5, v{vJn}, s{t1}, v5
        """)

    def au_epi(n):
        A = vAcc + 8 * (n & 1)
        o = [f"v_mul_f32 v{A+t}, s{sLG}, v{A+t}" for t in range(4)]
        if "u64" in X:
            o += [f"ds_write_b128 v4, {vr(A,4)} offset:{LA+16*AST*n}"]
            D = (92, 94, 104, 6)
            o += ["@" + f"v_cvt_f64_f32 {vr(D[t],2)}, v{A+4+t}" for t in range(4)]
            o += ["@" + f"ds_write_b64 v5, {vr(D[t],2)} offset:{LAGG+16*GST*n+128*t}" for t in range(4)]
            return o
        o += [f"v_cvt_pk_bf16_f32 v{A+4}, v{A+4}, v{A+5}", f"v_cvt_pk_bf16_f32 v{A+5}, v{A+6}, v{A+7}"]
        o += [f"ds_write_b128 v4, {vr(A,4)} offset:{LA+16*AST*n}"]
        o += [f"ds_write_b64 v5, {vr(A+4,2)} offset:{16*UST*n}"]
        return o

    def au_hook(n):
        HB = int(os.environ.get('HB', 0))
        if n == HB:
            srd(a, SRD_W, sWS, WS_OFF, NCH * 1024)
            a("s_waitcnt lgkmcnt(0)\ns_barrier                                     ; B5")
            mark(22)
            pollreq()
            if 'aprio' in X:
                a('s_setprio 2')
        if n == HB + 1:
            a("s_barrier                                     ; B5b")
            recpf()

    gemm(au_epi, au_pre, None, au_hook)
    mark(5)
    a(("s_setprio 0\n" if 'aprio' in X else "") + "s_branch L_PW")
    vW = (8, 32)
    vPr = 56
    REC = (8, 14, 20, 26, 32, 38, 44)

    def rec(k):
        return REC[k]

    vP, vTFa, vLf = 94, 100, 96 - 20
    a("L_GD:\ns_mov_b64 exec, -1")
    mark(5)
    srd(a, SRD_W, sWS, WS_OFF, NCH * 1024)
    a(f"""
    s_waitcnt lgkmcnt(0)
    s_barrier
    """)
    mark(22)
    a(f"""
    {"s_sleep " + os.environ["PDELAY"] if os.environ.get("PDELAY") else ""}
    L_TSD:
    """)
    pollreq()
    a(f"""
    L_FILL:
    v_lshrrev_b32 v4, 4, v0
    v_and_b32 v5, 15, v0
    s_mov_b32 s{t0}, {SLOTB}
    v_mov_b32 v6, {LSLOT}
    v_mad_u32_u24 v4, v4, s{t0}, v6
    v_mad_u32_u24 v4, v5, 48, v4
    v_mov_b32 v56, {DUMMY}
    v_mov_b32 v57, {DUMMY}
    v_mov_b64 v[58:59], v[56:57]
    s_cmp_lt_u32 s{sW}, 8
    ds_write_b128 v4, v[56:59]
    s_cbranch_scc0 L_FT
    ds_write_b128 v4, v[56:59] offset:{48*SLOTB}
    s_branch L_FD
    L_FT:
    s_mov_b32 s{t1}, {LTAB - 8192}
    v_mov_b32 v60, {LDUM}
    v_mov_b32 v61, 0
    v_lshl_add_u32 v5, v0, 4, s{t1}
    v_mov_b64 v[62:63], v[60:61]
    ds_write_b128 v5, v[60:63]
    ds_write_b128 v5, v[60:63] offset:4096
    L_FD:
    s_cmp_eq_u32 s{sFIRST}, 0
    s_waitcnt {"vmcnt(1) " if os.environ.get("TV") else ""}lgkmcnt(0)
    s_barrier                                     ; B5b
    s_cbranch_scc1 L_AGAIN
    """)
    if os.environ.get("TV"):
        a(f"""
        s_cmp_eq_u32 s{sW}, 5
        s_cbranch_scc0 L_PW
        s_mov_b64 exec, 1
        global_store_dwordx2 v8, v[10:11], {sp(sWS)} sc1
        s_mov_b64 exec, -1
        s_waitcnt vmcnt(1)
        s_branch L_POLL
        """)
    mark(14)
    recpf()
    a(f"""
    L_PW:
    v_readfirstlane_b32 s{sEP}, v90
    s_nop 0
    s_xor_b32 s{sTAG2}, s{sEP}, 0x2545F491
    s_mul_i32 s{sTAG}, s{sTAG2}, 0x9E3779B1
    s_mul_i32 s{sTAG2}, s{sTAG2}, 0x85EBCA6B
    s_lshr_b32 s{sTAGB}, s{sTAG2}, 25
    s_waitcnt vmcnt({1 if RPF else 0})
    L_POLL:
    v_lshrrev_b32 v4, 25, v88
    v_cmp_ne_u32 vcc, s{sTAG}, v89
    v_cmp_ne_u32 {sp(t0)}, s{sTAGB}, v4
    s_or_b64 exec, vcc, {sp(t0)}
    s_cbranch_execnz L_POLL2
    L_POLLED:
    s_mov_b64 exec, -1
    """)
    mark(6)
    a(f"""
    v_bfe_u32 v{vRem}, v88, 14, 11
    v_and_b32 v4, 0x3fff, v88
    v_add_u32 v{vRO}, v{vRO}, v4
    """)
    a(f"""
    L_WINDOW:
    v_and_b32 v4, 15, v{vL}
    v_and_b32 v5, 3, v{vL}
    v_sub_u32 v5, v{vRem}, v5
    """)
    for k in range(4):
        a(f"v_sub_u32_dpp v{64+k}, v{vRem}, v4 row_newbcast:{4*k} row_mask:0xf bank_mask:0xf")
    for k in range(4):
        a(f"v_cmp_lt_i32 {sp(sM+2*k)}, 0, v{64+k}")
    for k in range(4, KMAX):
        a(f"v_cmp_lt_i32 {sp(sM+2*k)}, {4*k}, v5")
    a(f"""
    L_LOADS:
    """)
    EPF = os.environ.get("EPF", "")
    if EPF:
        a(f"""
        s_mov_b64 exec, 0xff
        global_load_dwordx2 v[82:83], v{vTFa}, {sp(sWS)} sc1
        s_mov_b64 exec, -1
        """)
    a(f"""
    v_and_b32 v4, 15, v{vL}
    v_and_b32 v5, 3, v{vL}
    v_mul_u32_u24 v4, {RB}, v4
    v_mad_u32_u24 v5, v5, {RB}, v{vRO}
    s_or_b64 {sp(sU5)}, {sp(sM+10)}, {sp(sM+12)}
    s_or_b64 {sp(sU4)}, {sp(sU5)}, {sp(sM+8)}
    """)
    for k in range(4):
        a(f"v_add_u32_dpp v{rec(k)+3}, v{vRO}, v4 row_newbcast:{4*k} row_mask:0xf bank_mask:0xf")

    def kloop(done, body, mask=sM):
        for k in range(KMAX):
            if k == 4:
                a(f"s_cmp_eq_u64 {sp(sU4)}, 0\ns_cbranch_scc1 {done}")
            if k == 5:
                a(f"s_cmp_eq_u64 {sp(sU5)}, 0\ns_cbranch_scc1 {done}")
            a(f"s_mov_b64 exec, {sp(mask+2*k)}")
            body(k)
        a(f"{done}:")

    RF = "" if "recplain" in X else "sc1"

    def rload(k):
        if k < 4:
            a(f"buffer_load_dwordx3 {vr(rec(k),3)}, v{rec(k)+3}, {sq(SRD_R)}, 0 offen {RF}")
        else:
            a(f"buffer_load_dwordx3 {vr(rec(k),3)}, v5, {sq(SRD_R)}, 0 offen offset:{48*k} {RF}")

    kloop("L_RL", rload)
    mark(23)
    a(f"""
    s_mov_b64 exec, -1
    s_mov_b32 s{t0}, {LCW}
    v_lshl_add_u32 v4, v{vL}, 3, s{t0}
    """)
    for k in range(8):
        a(f"ds_read_b64 {vr(vW[0]+6*k+4,2)}, v4")
    a(f"""
    s_cmp_ge_u32 s{sW}, 8
    s_cselect_b32 s{sT0}, {os.environ.get("SNK", 3)}, 0
    s_xor_b32 s{sT0}, s{sT0}, s{sW}
    s_lshl_b32 s{t0}, s{sT0}, 5
    s_add_u32 s{t0}, s{t0}, {LTAB}
    v_lshrrev_b32 v4, 4, v{vL}
    v_bfe_u32 v5, v{vL}, 2, 2
    v_lshl_add_u32 v{vP}, v4, 3, s{t0}
    v_lshl_add_u32 v{vP+1}, v5, 3, s{t0}
    s_lshl_b32 s{t0}, s{sW}, 5
    s_add_u32 s{t0}, s{t0}, s{sH}
    s_lshl_b32 s{t0}, s{t0}, 7
    s_add_u32 s{t0}, s{t0}, {WS_TF}
    v_lshl_add_u32 v{vTFa}, v{vL}, 7, s{t0}
    v_mov_b32 v6, {LSLOT}
    s_mov_b32 s{t0}, {2*SLOTB}
    v_mad_u32_u24 v{vLf}, v{vL}, s{t0}, v6
    v_lshlrev_b32 v{vLf+1}, 9, v{vL}
    v_add_u32 v{vLf+2}, {SLOTB}, v{vLf}
    v_add_u32 v{vLf+3}, 256, v{vLf+1}
    v_lshlrev_b32 v{vLf+4}, 3, v{vL}
    v_mov_b32 v6, {LSLOT-144}
    s_mov_b32 s{t0}, {SLOTB//4}
    s_mov_b32 s{t1}, 0xffffff00
    """)
    if "sprio" in X:
        for lv in (1, 2, 3):
            a(f"s_cmp_lt_u32 s{sW}, {4*lv}\ns_cbranch_scc1 L_SP\ns_setprio {lv}")
        a("L_SP:")
    mark(12)
    a("s_waitcnt vmcnt(0)")
    mark(7)
    SB = "dst_sel:DWORD dst_unused:UNUSED_PAD src0_sel:DWORD src1_sel:BYTE_0"

    def hist(k):
        a(f"""
        v_lshlrev_b32_sdwa v4, 2, v{rec(k)+2} {SB}
        v_lshlrev_b32_sdwa v{vPr+2*k+1}, 8, v{rec(k)+2} {SB}
        ds_add_rtn_u32 v{rec(k)+3}, v4, v{vONE} offset:{LCNT}
        v_mad_u32_u24 v{vPr+2*k}, v4, s{t0}, v6
        v_and_b32 v{rec(k)+2}, s{t1}, v{rec(k)+2}
        """)

    kloop("L_HD", hist)
    a(f"s_mov_b32 s{t2}, 0\ns_waitcnt lgkmcnt(0)")
    mark(24)

    def scat(k):
        r = rec(k)
        a(f"""
        v_cmpx_gt_u32 vcc, {CAP}, v{r+3}
        v_lshrrev_b32 v4, 2, v{r+3}
        v_and_b32 v5, 15, v{r+3}
        v_and_b32 v{r+3}, 3, v{r+3}
        s_andn2_b64 {sp(sM+2*k)}, {sp(sM+2*k)}, vcc
        v_mad_u32_u24 v{vPr+2*k}, v4, 48, v{vPr+2*k}
        v_cmp_eq_u32 vcc, 12, v5
        v_lshl_add_u32 v4, v{r+3}, 2, v{vPr+2*k}
        v_lshl_add_u32 v5, v{r+3}, 3, v{vPr+2*k}
        ds_write_b32 v4, v{r+2} offset:144
        ds_write_b64 v5, {vr(r,2)} offset:160
        s_and_b64 {sp(sO+2*k)}, vcc, exec
        s_bcnt1_i32_b64 s{t3}, {sp(sO+2*k)}
        s_add_u32 s{t2}, s{t2}, s{t3}
        """)

    kloop("L_SD", scat)
    mark(25)
    a(f"""
    s_cmp_lt_u32 s{sW}, 4
    s_cbranch_scc0 L_NTF
    s_mov_b32 exec_lo, -1
    s_mov_b32 exec_hi, 0
    global_load_dwordx2 v[70:71], v{vTFa}, {sp(sWS)} sc1
    L_NTF:
    s_mov_b64 exec, 1
    v_mov_b32 v4, s{t2}
    ds_add_rtn_u32 v7, v{vF}, v4 offset:{F_NQ}
    s_mov_b64 exec, -1
    v_cmp_lt_i32 vcc, {4*KMAX}, v{vRem}
    s_or_b64 {sp(t0)}, {sp(sM)}, {sp(sM+2)}
    s_or_b64 {sp(t2)}, {sp(sM+4)}, {sp(sM+6)}
    s_or_b64 {sp(t0)}, {sp(t0)}, {sp(sM+8)}
    s_or_b64 {sp(t2)}, {sp(t2)}, {sp(sM+10)}
    s_or_b64 {sp(t0)}, {sp(t0)}, {sp(sM+12)}
    s_or_b64 {sp(t0)}, {sp(t0)}, {sp(t2)}
    s_cselect_b32 s{sBIN}, 1, 0
    s_or_b64 exec, vcc, {sp(t0)}
    ds_write_b32 v{vF}, v{vONE} offset:{F_MORE}
    s_waitcnt lgkmcnt(1)
    v_readlane_b32 s{t2}, v7, 0
    s_lshl_b32 s{t2}, s{t2}, 3
    s_add_u32 s{t2}, s{t2}, {LTAB}
    """)

    def tab(k):
        a(f"""
        v_mbcnt_lo_u32_b32 v4, exec_lo, 0
        v_mbcnt_hi_u32_b32 v4, exec_hi, v4
        v_lshl_add_u32 v4, v4, 3, s{t2}
        s_bcnt1_i32_b64 s{t3}, exec
        s_lshl3_add_u32 s{t2}, s{t3}, s{t2}
        ds_write_b64 v4, {vr(vPr+2*k,2)}
        """)

    kloop("L_TD", tab, sO)
    mark(26)
    a(f"""
    s_mov_b64 exec, 1
    ds_add_u32 v{vF}, v{vONE} offset:{F_DONE}
    s_mov_b32 s{sFIRST}, 0
    s_mov_b32 s{sEG}, 0
    s_cmp_lt_u32 s{sW}, 4
    s_cbranch_scc1 L_EG
    L_EGD:
    s_mov_b64 exec, -1
    s_waitcnt lgkmcnt(0)
    """)
    mark(8)
    a(f"""
    s_lshl4_add_u32 s{t0}, s2, s{sW}
    s_cmp_eq_u32 s{t0}, 15
    s_barrier                                     ; B6
    s_cbranch_scc1 L_EPO
    L_EPD:
    """)
    mark(9)
    if stamp:
        a("s_memtime s[96:97]\nv_mov_b32 v107, 0")
    vT, vAp, vS = 56, 80, 84
    vTQ, vNA, vFA, vQE = 88, 90, 92, 93
    vDn, vNm, vAa, vCk = 72, 100, 4, 106
    vD = (76, 78, 4, 6)
    sRET = sTHR + 1
    DW = int(os.environ.get('DW', 0))
    sPM = 79
    PRA, PRB = [int(x) for x in os.environ.get('PR', '5,2').split(',')]

    def sh(g):
        return (96, 98, 104, 124)[g]

    def saddr(S):
        if "a64" in X:
            a(f"v_lshl_add_u64 {vr(S,2)}, {vr(S,2)}, 0, v[126:127]\nv_lshl_add_u64 {vr(S+2,2)}, {vr(S+2,2)}, 0, v[126:127]")
            return
        a(f"""
        v_pk_add_f32 {vr(S,2)}, {vr(S,2)}, {vr(vLO,2)} op_sel_hi:[1,0]
        v_pk_add_f32 {vr(S+2,2)}, {vr(S+2,2)}, {vr(vLO,2)} op_sel_hi:[1,0]
        """)

    def loads(p, S, loop=False):
        for g in range(int(os.environ.get("NLD", 4)) if loop else 4):
            a(f"buffer_load_dwordx4 {vr(vW[p]+6*g,4)}, v{S+g}, {sq(SRD_T)}, 0 offen {os.environ.get('GF', 'sc1')}")

    def naddr(dst, TQ):
        a(f"v_pk_fma_f32 {vr(dst,2)}, {vr(TQ,2)}, {sp(s12)}, {vr(vLO,2)} op_sel:[1,0,0] op_sel_hi:[1,1,1]")

    def eread(q, half):
        a(f"s_mov_b64 exec, {sp(sEM)}")
        for g in range(4):
            a(f"ds_read_b64 {vr(vAo+4*g+2,2)}, v{q} offset:{48*half+16+8*g}")
        a("s_mov_b64 exec, -1")

    def hv(W, g, h):
        return vr(W + 6 * g, 2) if h == 0 else vr(sh(g), 2)

    def mfma(p, g, c=vAp):
        return f"v_mfma_f32_16x16x32_bf16 {vr(vT+4*g,4)}, {vr(vAo+4*g,4)}, {vr(vW[p]+6*g+2,4)}, {vr(c,4)}"

    def flush(ad):
        a(f"""
        v_pk_mul_f32 {vr(vNm,2)}, {vr(vNm,2)}, {vr(vDn,2)}
        v_pk_mul_f32 {vr(vNm+2,2)}, {vr(vNm+2,2)}, {vr(vDn+2,2)}
        """)
        for t in range(4):
            a(f"v_cvt_f64_f32 {vr(vD[t],2)}, v{vNm+t}")
        for t in range(4):
            a(f"ds_add_f64 v{ad}, {vr(vD[t],2)} offset:{128*t}")

    def check(lab):
        a(f"""
        v_pk_add_f32 {vr(vAa,2)}, {vr(vDn,2)}, {vr(vDn+2,2)}
        v_add_f32 v{vCk}, v{vAa}, v{vAa+1}
        v_cmp_nge_f32 vcc, s{sTHR}, v{vCk}
        s_cbranch_vccnz {lab}
        """)

    def leftover():
        for u in range(2):
            a(f"""
            v_min_u32 v{96+u}, {CAP}, v{96+u}
            v_add_u32 v{98+u}, 15, v{96+u}
            v_lshrrev_b32 v{96+u}, 4, v{96+u}
            v_bfe_u32 v{98+u}, v{98+u}, 2, 2
            """)
        a(f"""
        s_mov_b32 s{t3}, 192
        v_mad_u32_u24 v{vLf}, v96, s{t3}, v{vLf}
        v_mad_u32_u24 v{vLf+2}, v97, s{t3}, v{vLf+2}
        s_lshl3_add_u32 s{t2}, s{t0}, {LTAB}
        """)
        for c in range(3):
            for u in range(2):
                a(f"v_cmp_eq_u32 {sp(sO+4*c+2*u)}, {2-c}, v{98+u}")
        for c in range(3):
            a(f"s_mov_b32 s{sU5+c}, s{t2}")
            for u in range(2):
                a(f"""
                s_mov_b64 exec, {sp(sO+4*c+2*u)}
                v_mbcnt_lo_u32_b32 v96, exec_lo, 0
                v_mbcnt_hi_u32_b32 v96, exec_hi, v96
                v_lshl_add_u32 v96, v96, 3, s{t2}
                s_bcnt1_i32_b64 s{t3}, exec
                s_lshl3_add_u32 s{t2}, s{t3}, s{t2}
                ds_write_b64 v96, {vr(vLf+2*u,2)}
                """)
        a(f"""
        s_mov_b64 exec, -1
        s_sub_u32 s{t2}, s{t2}, {LTAB - 24}
        s_lshr_b32 s{t2}, s{t2}, 5
        s_sub_u32 s{t2}, s{t2}, s{sT0}
        s_add_u32 s{t2}, s{t2}, 15
        s_lshr_b32 s{t2}, s{t2}, 4
        s_lshl4_add_u32 s{t3}, s{t2}, s{sT0}
        s_lshl_b32 s{t3}, s{t3}, 5
        s_add_u32 s{t3}, s{t3}, {LTAB - 512}
        s_lshl2_add_u32 s{sN}, s{t2}, -2
        """)
        for c in range(3):
            a(f"s_cmp_lt_u32 s{t3}, s{sU5+c}\ns_addc_u32 s{sN}, s{sN}, 0")

    a(f"""
    ds_read_b64 v[4:5], v{vF} offset:{F_MORE}
    ds_read_b64 v[96:97], v{vLf+4} offset:{LCNT}
    L_PRE:
    ds_read_b64 {vr(vTQ,2)}, v{vP}
    ds_read_b32 v{vQE}, v{vP+1}
    s_setprio 3
    {f"s_cmp_ge_u32 s{sW}, {DW}" if DW else ""}
    {f"s_cselect_b32 s{sPM}, {(1 << PRA) | (1 << PRB)}, 0" if DW else ""}
    {"v_mov_b32 v126, v2" if "a64" in X else ""}
    {"v_mov_b32 v127, v2" if "a64" in X else ""}
    v_mov_b32 v{vFA}, v{vLO+1}
    v_mov_b64 {vr(vNm,2)}, 0
    v_mov_b64 {vr(vNm+2,2)}, 0
    s_waitcnt lgkmcnt(1)
    ds_read_b128 {vr(vT+4,4)}, v{vTQ}
    ds_read_b128 {vr(vS,4)}, v{vTQ} offset:48
    v_readfirstlane_b32 s{t0}, v5
    v_readfirstlane_b32 s{sMORE}, v4
    """)
    naddr(vNA, vTQ)
    a(f"""
    s_cmp_lt_u32 s{t0}, 64
    s_cbranch_scc1 L_FEW
    s_cmp_eq_u32 s{sEG}, 0
    s_waitcnt lgkmcnt(1)
    s_cbranch_scc0 L_G1
    """)
    saddr(vT + 4)
    loads(0, vT + 4)
    a("L_G1:")
    a(f"ds_read_b128 {vr(vAp,4)}, v{vNA} offset:{LA}")
    eread(vQE, 0)
    for t in range(4):
        a(f"v_mov_b32 v{vDn+t}, 1.0")
    a(f"s_cmp_eq_u32 s{t0}, -1\ns_cbranch_scc1 L_SB3")
    a(f"s_cmp_eq_u32 s{sEG}, 1\ns_cbranch_scc1 L_G2\ns_waitcnt lgkmcnt(5)")
    saddr(vS)
    loads(1, vS)
    a("L_G2:")
    leftover()
    a("s_waitcnt vmcnt(4) lgkmcnt(0)\ns_branch L_M3")
    for q in range(4):
        p = q & 1
        W = vW[p]
        a(f"""
        L_L{q}:
        ds_read_b128 {vr(vS,4)}, v{vTQ} offset:{48*((q+2)&3)}
        """)
        if q == 1:
            a(f"ds_read_b64 {vr(vTQ,2)}, v{vP} offset:512")
        for i in range(16):
            a(f"v_exp_f32 v{vT+i}, v{vT+i}")
            if i == 7:
                eread(vQE, (q + 1) & 3)
                if q == 2:
                    a(f"ds_read_b32 v{vQE}, v{vP+1} offset:512")
                if q == 3:
                    a(f"v_mov_b32 v{vFA}, v{vNA+1}")
        if q == 0:
            flush(vFA)
        if q == 3:
            naddr(vNA, vTQ)
        if q == 3:
            a(f"ds_read_b128 {vr(vAp,4)}, v{vNA} offset:{LA}")
        if q == 0:
            for h in range(2):
                a(f"v_pk_add_f32 {vr(vDn+2*h,2)}, {vr(vT+2*h,2)}, 1.0 op_sel_hi:[1,0]")
        for g in range(1 if q == 0 else 0, 4):
            for h in range(2):
                src = hv(W, 0, h) if (g == 1 and q == 0) else vr(vNm + 2 * h, 2)
                a(f"v_pk_fma_f32 {vr(vAa+2*h,2)}, {src}, {vr(vT+4*g+2*h,2)}, {src}")
            for h in range(2):
                a(f"v_pk_fma_f32 {vr(vNm+2*h,2)}, {hv(W,g,h)}, {vr(vDn+2*h,2)}, {vr(vAa+2*h,2)}")
            for h in range(2):
                a(f"v_pk_fma_f32 {vr(vDn+2*h,2)}, {vr(vDn+2*h,2)}, {vr(vT+4*g+2*h,2)}, {vr(vDn+2*h,2)}")
        if q == 3:
            check("L_REDO1")
            a(f"L_RB1:\nv_pk_add_f32 {vr(vP,2)}, {vr(vP,2)}, {sp(sINC)}")
        a(f"""
        L_SB{q}:
        """)
        if "trace" in X:
            a(f"s_memtime s[92:93]\ns_add_u32 m0, s{sN}, 16")
        a(f"""
        s_cmp_le_u32 s{sN}, 2
        s_waitcnt lgkmcnt(0)
        """)
        if "trace" in X:
            a("v_writelane_b32 v107, s92, m0")
        saddr(vS)
        a(f"s_cbranch_scc1 L_TAIL{q}")
        loads(p, vS, True)
        a(f"""
        s_waitcnt vmcnt({os.environ.get("NLD", 4)})
        L_M{q}:
        """)
        for g in range(4):
            a(mfma(p ^ 1, g))
            a(f"v_lshlrev_b64 {vr(sh(g),2)}, 16, {vr(vW[p^1]+6*g,2)}")
            if q == 3:
                a(f"v_rcp_f32 v{vDn+g}, v{vDn+g}")
        a(f"""
        s_sub_u32 s{sN}, s{sN}, 1
        s_bitcmp1_b32 {f's{sPM}' if DW else (1 << PRA) | (1 << PRB)}, s{sN}
        s_cbranch_scc1 L_PR{q}
        """)
        if q == 3:
            a("s_branch L_L0")
    for q in (3, 0, 1, 2):
        a(f"""
        L_PR{q}:
        s_setprio 2
        s_cmp_eq_u32 s{sN}, {PRA}
        s_cbranch_scc1 L_L{(q+1)&3}
        s_setprio 1
        s_branch L_L{(q+1)&3}
        L_TAIL{q}:
        {f"s_cmp_lt_u32 s{sW}, {DW}" if DW else ""}
        {"s_cbranch_scc1 1" if DW else ""}
        s_setprio 0
        s_cmp_eq_u32 s{sN}, 2
        s_waitcnt vmcnt(0)
        s_cbranch_scc1 L_M{q}
        """)
        if q != 2:
            a("s_branch L_LAST" if q == 3 else "s_branch L_CUT")
    a("L_CUT:")
    check("L_REDO0")
    a(f"L_RB0:\nv_mov_b32 v{vFA}, v{vNA+1}")
    a("L_LAST:")
    for g in range(4):
        a(f"v_rcp_f32 v{vDn+g}, v{vDn+g}")
    a("s_nop 0")
    flush(vFA)
    a(f"""
    L_LD:
    s_cmp_lt_u32 s{sW}, 10
    s_cbranch_scc0 L_LD2
    v_lshrrev_b32 v97, 3, v0
    v_and_b32 v98, 7, v0
    v_lshlrev_b32 v98, 4, v98
    """)
    if "u64" not in X:
        a(f"""
        s_mov_b32 s{t0}, {UST}
        v_add_u32 v99, {LU}, v98
        v_mad_u32_u24 v99, v97, s{t0}, v99
        ds_read2_b64 v[56:59], v99 offset0:0 offset1:1
        """)
    a(f"""
    s_mov_b32 s{t0}, {GST}
    v_mad_u32_u24 v96, v97, s{t0}, v98
    s_add_u32 s{t1}, s{sN0}, s{sH}
    v_cmp_gt_u32 {sp(sO)}, s{sNB}, v97
    v_lshlrev_b32 v97, 8, v97
    v_add3_u32 v97, v97, v98, s{t1}
    s_mov_b32 s{t2}, s{sLG}
    s_mov_b32 s{t3}, s{sLG}
    """)
    for i in range(0 if "u64" in X else 4):
        a(f"v_lshlrev_b32 v{60+2*i}, 16, v{56+i}\nv_and_b32 v{61+2*i}, s{t0}, v{56+i}")
    a("L_LD2:\ns_waitcnt lgkmcnt(0)")
    mark(10)
    if stamp:
        a("s_memtime s[92:93]\ns_waitcnt lgkmcnt(0)\ns_sub_u32 s92, s92, s96\nv_writelane_b32 v107, s92, 15\nv_writelane_b32 v107, s96, 16")
    a(f"""
    s_cmp_eq_u32 s{sMORE}, 0
    s_barrier                                     ; B8
    s_cbranch_scc0 L_MORE
    s_cmp_lt_u32 s{sW}, 10
    s_cbranch_scc0 L_FIN
    ds_read_b128 v[24:27], v96 offset:{LAGG}
    ds_read_b128 v[28:31], v96 offset:{LAGG+128}
    ds_read_b128 v[32:35], v96 offset:{LAGG+256}
    ds_read_b128 v[36:39], v96 offset:{LAGG+384}
    """)
    for t in range(4):
        a(f"s_waitcnt lgkmcnt({3-t})")
        for u in range(2):
            a(f"v_cvt_f32_f64 v{8+4*u+t}, {vr(24+4*t+2*u,2)}")
    for i in range(0 if "u64" in X else 4):
        a(f"v_pk_add_f32 {vr(8+2*i,2)}, {vr(8+2*i,2)}, {vr(60+2*i,2)}")
    for i in range(4):
        a(f"v_pk_mul_f32 {vr(16+2*i,2)}, {vr(8+2*i,2)}, {sp(t2)}")
    for i in range(8):
        a(f"v_exp_f32 v{16+i}, v{16+i}")
    for i in range(4):
        a(f"v_pk_add_f32 {vr(16+2*i,2)}, {vr(16+2*i,2)}, 1.0 op_sel_hi:[1,0]")
    for i in range(8):
        a(f"v_rcp_f32 v{16+i}, v{16+i}")
    for i in range(4):
        a(f"v_pk_mul_f32 {vr(16+2*i,2)}, {vr(16+2*i,2)}, {vr(8+2*i,2)}")
    for i in range(4):
        a(f"v_cvt_pk_bf16_f32 v{8+i}, v{16+2*i}, v{17+2*i}")
    a(f"""
    s_mov_b64 exec, {sp(sO)}
    global_store_dwordx4 v97, v[8:11], {sp(sOUT)} {os.environ.get('OF', 'sc1')}
    L_FIN:
    """)
    if stamp:
        a("s_mov_b64 exec, -1")
    if PROBE:
        a("s_waitcnt vmcnt(0)")
        mark(30)
        a(f"""
        s_lshl_b32 s{t0}, s2, 4
        s_add_u32 s{t0}, s{t0}, s{sW}
        s_cmp_eq_u32 s{t0}, {PROBE[0]}
        s_cbranch_scc0 L_PX
        s_memrealtime s[84:85]
        s_sub_u32 s96, s96, s94
        s_lshl_b32 s96, s96, 3
        s_min_u32 s96, s96, 100000
        s_waitcnt lgkmcnt(0)
        L_PS:
        s_memrealtime s[86:87]
        s_waitcnt lgkmcnt(0)
        s_sub_u32 s86, s86, s84
        s_cmp_lt_u32 s86, s96
        s_cbranch_scc1 L_PS
        L_PX:
        """)
    if stamp:
        a("s_waitcnt vmcnt(0)")
        mark(11)
        a("s_waitcnt lgkmcnt(0)")
        for i_, m_ in enumerate(sorted(SLOT)):
            a(f"v_writelane_b32 v107, s{SLOT[m_]}, {i_}")
        a(f"""
        s_lshl_b32 s3, s2, 4
        s_add_u32 s3, s3, s{sW}
        s_lshl_b32 s3, s3, 6
        s_add_u32 s3, s3, {WS_STAMP}
        v_lshl_add_u32 v4, v{vL}, 2, s3
        s_mov_b64 exec, 0xffff
        global_store_dword v4, v107, {sp(sWS)}
        s_mov_b64 exec, 0xffff0000
        v_add_u32 v4, {0x40000 - 64}, v4
        global_store_dword v4, v107, {sp(sWS)}
        """)
    a("s_endpgm")
    a(f"""
    L_POLL2:
    s_sub_u32 s{sSPIN}, s{sSPIN}, 1
    s_cbranch_scc1 L_POLLX
    s_sleep 2
    buffer_load_dwordx2 v[88:89], v{vOFFa}, {sq(SRD_W)}, 0 offen sc1
    s_waitcnt vmcnt(0)
    s_branch L_POLL
    L_POLLX:
    v_mov_b32 v88, 0
    s_mov_b32 s{sSPIN}, 0
    s_branch L_POLLED
    """)
    a(f"""
    """)
    a(f"""
    L_EPO:
    v_mov_b32 v6, {WS_EPOCH}
    v_mov_b32 v7, s{sEP}
    s_mov_b64 exec, 1
    global_store_dword v6, v7, {sp(sWS)} sc1
    s_mov_b64 exec, -1
    s_branch L_EPD
    L_EG:
    v_mov_b32 v6, 0x100
    s_mov_b32 exec_lo, -1
    s_mov_b32 exec_hi, 0
    L_TP:
    s_waitcnt vmcnt(0)
    v_cmp_ne_u64 vcc, {sp(sTAG)}, v[70:71]
    s_cbranch_vccz L_TRDY
    s_sub_u32 s{sSPIN}, s{sSPIN}, 1
    s_cbranch_scc1 L_END
    s_sleep 2
    global_load_dwordx2 v[70:71], v{vTFa}, {sp(sWS)} sc1
    s_branch L_TP
    L_TRDY:
    s_mov_b64 exec, 1
    ds_add_u32 v{vF}, v6 offset:{F_DONE}
    """)
    PFE = int(os.environ.get("PFE", 16))
    if PFE:
        a(f"""
        s_mul_i32 s{t2}, s{sW}, {2500*256}
        s_lshr_b32 s{t3}, s2, 3
        s_mul_i32 s{t3}, s{t3}, {156*128}
        s_add_u32 s{t2}, s{t2}, s{t3}
        s_bfm_b64 exec, {PFE}, 0
        v_lshlrev_b32 v5, 7, v{vL}
        buffer_load_dword v106, v5, {sq(SRD_T)}, s{t2} offen sc1
        """)
    a(f"""
    s_mov_b64 exec, -1
    L_EG1:
    s_sub_u32 s{sSPIN}, s{sSPIN}, 1
    s_cbranch_scc1 L_END
    {"s_sleep " + os.environ["SLE"] if os.environ.get("SLE") else ""}
    ds_read_b32 v7, v{vF} offset:{F_DONE}
    ds_read_b32 v4, v{vP}
    s_waitcnt lgkmcnt(0)
    ds_read_b128 {vr(vT+4,4)}, v4
    ds_read_b128 {vr(vS,4)}, v4 offset:48
    v_readfirstlane_b32 s{t0}, v7
    s_waitcnt lgkmcnt(0)
    v_or3_b32 v4, v{vT+4}, v{vT+5}, v{vT+6}
    v_or3_b32 v5, v{vS}, v{vS+1}, v{vS+2}
    v_or3_b32 v4, v4, v{vT+7}, v{vS+3}
    v_or_b32 v4, v4, v5
    v_cmp_le_u32 vcc, {DUMMY}, v4
    s_and_b32 s{t1}, s{t0}, 0xff
    s_cmp_eq_u32 s{t1}, 16
    s_cbranch_scc1 L_EGD
    s_cmp_lt_u32 s{t0}, 0x400
    s_cbranch_scc1 L_EG1
    s_cbranch_vccnz L_EG1
    """)
    saddr(vT + 4)
    saddr(vS)
    loads(0, vT + 4)
    loads(1, vS)
    a(f"""
    s_mov_b32 s{sEG}, 1
    s_branch L_EGD
    L_FEW:
    s_mov_b32 s{sEG}, 0
    s_waitcnt vmcnt(0) lgkmcnt(0)
    """)
    leftover()
    a(f"""
    s_cmp_eq_u32 s{t2}, 0
    s_cbranch_scc1 L_LD
    v_mov_b32 v5, -1
    s_branch L_PRE
    L_REDO0:
    s_mov_b32 s{sRET}, 0
    s_branch L_REDO
    L_REDO1:
    s_mov_b32 s{sRET}, 1
    L_REDO:
    ds_read_b64 v[76:77], v{vP}
    ds_read_b32 v{vCk}, v{vP+1}
    v_mov_b64 {vr(vNm,2)}, 0
    v_mov_b64 {vr(vNm+2,2)}, 0
    s_mov_b32 s{t0}, 4
    s_waitcnt lgkmcnt(0)
    """)
    naddr(78, 76)
    a(f"""
    ds_read_b128 {vr(vDn,4)}, v78 offset:{LA}
    L_RD1:
    ds_read_b128 {vr(vAa,4)}, v76
    """)
    eread(vCk, 0)
    a("s_waitcnt lgkmcnt(0)")
    saddr(vAa)
    loads(1, vAa)
    a(f"""
    v_add_u32 v76, 48, v76
    v_add_u32 v{vCk}, 48, v{vCk}
    s_waitcnt vmcnt(0)
    """)
    for g in range(4):
        a(mfma(1, g, vDn))
    for g in range(4):
        a(f"v_lshlrev_b64 {vr(sh(g),2)}, 16, {vr(vW[1]+6*g,2)}")
    a("s_nop 3")
    for i in range(16):
        a(f"v_exp_f32 v{vT+i}, v{vT+i}")
    for i in range(8):
        a(f"v_pk_add_f32 {vr(vT+2*i,2)}, {vr(vT+2*i,2)}, 1.0 op_sel_hi:[1,0]")
    for i in range(16):
        a(f"v_rcp_f32 v{vT+i}, v{vT+i}")
    for g in range(4):
        for h in range(2):
            a(f"v_pk_fma_f32 {vr(vNm+2*h,2)}, {vr(vT+4*g+2*h,2)}, {hv(vW[1],g,h)}, {vr(vNm+2*h,2)}")
    a(f"""
    s_sub_u32 s{t0}, s{t0}, 1
    s_cmp_lg_u32 s{t0}, 0
    s_cbranch_scc1 L_RD1
    """)
    eread(vQE, 0)
    for t in range(4):
        a(f"v_mov_b32 v{vDn+t}, 1.0")
    a(f"""
    s_cmp_eq_u32 s{sRET}, 0
    s_cbranch_scc1 L_RB0
    s_branch L_RB1
    """)
    a(f"""
    L_MORE:
    s_setprio 0
    s_mov_b32 s{sSPIN}, {SPIN}
    v_mov_b32 v{vF}, {LFLAG}
    v_mov_b32 v{vONE}, 1
    v_lshlrev_b32 v4, 2, v0
    v_mov_b32 v5, 0
    v_cmp_gt_u32 vcc, 131, v0
    s_mov_b64 exec, vcc
    ds_write_b32 v4, v5 offset:{LCNT}
    s_mov_b64 exec, -1
    s_cmp_lt_u32 s{sW}, 12
    s_cbranch_scc1 L_FILL
    s_branch L_FD
    L_AGAIN:
    s_cmp_eq_u32 s{sBIN}, 0
    s_cbranch_scc0 L_LOADS
    v_subrev_u32 v{vRem}, {4*KMAX}, v{vRem}
    v_add_u32 v{vRO}, {48*KMAX}, v{vRO}
    s_branch L_WINDOW
    L_END:
    """)
    if "lay2" in X:
        L = a.l
        i, j, k = L.index("L_B1:") + 3, L.index("L_SETUP:"), L.index("L_STG:")
        assert "s_barrier" in L[i - 1]
        a.l = L[:i] + ["    s_branch L_B1X"] + L[j:k] + ["L_B1X:"] + L[i:j] + ["    s_branch L_SETUP"] + L[k:]
    elif "oldlay" not in X:
        L = a.l
        i, j, k = L.index("L_NOBIN:"), L.index("L_SETUP:"), L.index("L_STG:")
        assert L[i - 1].strip() == "s_branch L_SETUP"
        blk = L[i:j] + ["    s_branch L_SETUP"]
        a.l = L[:i - 1] + L[j:k] + blk + L[k:]
    return a.text()


def build(stamp=False):
    body = kernel(stamp)
    return f"""; Edge-gated MPNN layer, one fused launch.  Kernarg (80 bytes, pointers, base s[0:1]):
;
; @launch grid=(256,1,1) block=(1024,1,1) lds={LDS}
.amdgcn_target "amdgcn-amd-amdhsa--gfx950"
.text
.globl {NAME}
.p2align 8
.type {NAME},@function
{NAME}:
{body}    s_endpgm
.section .rodata,"a"
.p2align 6
.amdhsa_kernel {NAME}
  .amdhsa_next_free_vgpr 128
  .amdhsa_next_free_sgpr 102
  .amdhsa_accum_offset 128
  .amdhsa_group_segment_fixed_size 0
  .amdhsa_kernarg_size 80
  .amdhsa_user_sgpr_count 2
  .amdhsa_user_sgpr_kernarg_segment_ptr 1
  .amdhsa_system_sgpr_workgroup_id_x 1
  .amdhsa_float_denorm_mode_32 3
.end_amdhsa_kernel
"""


if __name__ == "__main__":
    open(sys.argv[1], "w").write(build(stamp="--stamp" in sys.argv))
```

```python
import sys, os
X = set(os.environ.get('X', '').split('+')) | {'u64', 'tprio'}
NAME = "standalone__edge_featured_mpnn_egc__graph_kernel"
N, E = 10000, 320000
NB, NBK, CH, NCH = 80, 128, 1250, 256
CHB = 15360
T_HALF = N * 256
RB = 12
WS_T, WS_REC, WS_OFF, WS_TF, WS_EPOCH, WS_STAMP = 0, 0x500000, 0xA00000, 0xA40000, 0xA80000, 0xB00000
NLOG2E = 0xBFB8AA3B
KA = dict(x=0, e=8, src=16, dst=24, u=32, v=40, g=48, out=56, dbg=64, ws=72)
AST, GST = 272, 528
LA, LAGG = 0, NB * AST
LHIST = LAGG + NB * GST
LCNT, LFLAG, LDUM = LHIST + 512, LHIST + 1024, LHIST + 1056
F_MORE, F_NQ, F_DONE, F_RV, F_LAND, F_EP, F_PUB = 0, 4, 8, 12, 16, 20, 24
LSTART, LCW = LHIST + 1280, LHIST + 1792
LW = LHIST + 2304
LX = LW + 65536
UST = 136
LU = LX + 20480
LDS = LU + (0 if 'u64' in X else NB * UST)
LSLOT, SLOTB, CAP = LW, 784, 64
LTAB = LX
assert LSTART < 65536
KMAX = 7
DUMMY = 0x400000
SPIN = 1 << 22
assert LW % 256 == 0 and LDS <= 163840


class Asm:
    def __init__(self):
        self.l = []

    def __call__(self, s):
        for ln in s.strip("\n").split("\n"):
            ln = ln.strip()
            if ln:
                self.l.append(ln if ln.endswith(":") else "    " + ln)

    def text(self):
        return "\n".join(self.l) + "\n"


def f2h(f):
    import struct
    return hex(struct.unpack('<I', struct.pack('<f', f))[0])


def vr(a, n):
    return f"v[{a}:{a+n-1}]" if n > 1 else f"v{a}"


def sp(a):
    return f"s[{a}:{a+1}]"


def sq(a):
    return f"s[{a}:{a+3}]"


def srd(a, d, base, off, size):
    a(f"s_add_u32 s{d}, s{base}, {off}\ns_addc_u32 s{d+1}, s{base+1}, 0")
    a(f"s_mov_b32 s{d+2}, {size}\ns_mov_b32 s{d+3}, 0x20000")


def scan64(a, v):
    for ctl in ("row_shr:1", "row_shr:2", "row_shr:4", "row_shr:8"):
        a(f"s_nop 1\nv_add_u32_dpp v{v}, v{v}, v{v} {ctl} row_mask:0xf bank_mask:0xf")
    a(f"s_nop 1\nv_add_u32_dpp v{v}, v{v}, v{v} row_bcast:15 row_mask:0xa bank_mask:0xf")
    a(f"s_nop 1\nv_add_u32_dpp v{v}, v{v}, v{v} row_bcast:31 row_mask:0xc bank_mask:0xf")


def kernel(stamp):
    a = Asm()
    PROBE = [int(x) for x in os.environ["PROBE"].split(",")] if os.environ.get("PROBE") else None
    MARKS = set(int(x) for x in os.environ["MARKS"].split(",")) if os.environ.get("MARKS") else None

    FREE = [4, 6, 8, 10, 12, 14, 16, 20, 98]
    SLOT = {0: 94}
    if stamp:
        for m_ in sorted((MARKS or set()) - {0}):
            SLOT[m_] = FREE.pop(0)

    def mark(n):
        if stamp and n in SLOT:
            a(f"s_memrealtime s[{SLOT[n]}:{SLOT[n]+1}]")
        if PROBE and n in PROBE[1:]:
            r = 94 + 2 * PROBE[1:].index(n)
            a(f"s_memrealtime s[{r}:{r+1}]\ns_waitcnt lgkmcnt(0)")

    sRW = 3
    sX, sE, sSRC, sDST, sU, sV, sG, sOUT, sDBG, sWS = 4, 6, 8, 10, 12, 14, 16, 18, 20, 22
    SRD_T, SRD_R, SRD_W = 24, 28, 32
    sM = 36
    sN, sBIN, sT0, sFIRST = 50, 51, 52, 53
    t0, t1, t2, t3 = 54, 55, 56, 57
    sMORE, sW = 58, 59
    sINC, s12, sTHR, sEM = 60, 62, 64, 66
    sH, sB, sC, sEP, sTAG, sTAG2, sSPIN, sLG = 68, 69, 70, 71, 72, 73, 74, 75
    sTAGB, sN0, sNB = 100, 101, 1
    sEG = 0
    sU5, sU4 = 76, 78
    sO = 80
    vL, vLO, vAo, vRO, vRem = 1, 2, 108, 126, 127
    vF, vONE = 124, 125
    vWf, vXb, vAcc, vPk, vA, vXa, vRow, vJn = 8, 40, 72, 88, 100, 96, 101, 102
    vOFFa, vR4, vCwa = 103, 104, 105
    LNT = "" if "nont" in X else "nt"
    XNT = "nt" if "xnt" in X else ""
    DNT = LNT if "dnt" in X else ""
    SNT = "" if "splain" in X else LNT
    CNT_ = "nt" if "cwnt" in X else ""
    WNT = "nt" if "wwnt" in X else ""

    RPF = 0
    vRp = 106

    def pollreq():
        a(f"buffer_load_dwordx2 v[88:89], v{vOFFa}, {sq(SRD_W)}, 0 offen sc1")
        a(f"ds_read_b32 v90, v{vF} offset:{F_EP}")

    def recpf():
        if RPF:
            a(f"""
            s_mov_b64 exec, {hex((1 << RPF) - 1)}
            buffer_load_dword v91, v{vRp}, {sq(SRD_R)}, 0 offen sc1
            s_mov_b64 exec, -1
            """)

    def spin(label, off, cond, val, slp=0):
        a(f"""
        {label}:
        s_sub_u32 s{sSPIN}, s{sSPIN}, 1
        s_cbranch_scc1 L_END
        {f"s_sleep {slp}" if slp else ""}
        ds_read_b32 v7, v{vF} offset:{off}
        s_waitcnt lgkmcnt(0)
        """)
        if cond == "lowne":
            a(f"v_and_b32 v7, 0xff, v7\nv_cmp_ne_u32 vcc, {val}, v7")
        elif cond == "midne":
            a(f"v_cmp_ne_u32 vcc, {val}, v7")
        else:
            a(f"v_cmp_{cond}_u32 vcc, {val}, v7")
        a(f"s_cbranch_vccnz {label}")

    MAP = os.environ.get("MAP", "hi")
    QSEL = {"par": f"s_bfe_u32 s{t0}, s2, 0x20001", "hi": f"s_and_b32 s{t0}, s2, 3",
            "mid": f"s_bfe_u32 s{t1}, s2, 0x10002\ns_and_b32 s{t0}, s2, 1\ns_lshl1_add_u32 s{t0}, s{t1}, s{t0}"}[MAP]
    HSEL = {"par": f"s_and_b32 s{t0}, s2, 1", "hi": f"s_bfe_u32 s{t0}, s2, 0x10002", "mid": f"s_bfe_u32 s{t0}, s2, 0x10001"}[MAP]
    mark(0)
    a(f"""
    s_load_dwordx16 s[4:19], s[0:1], 0
    s_load_dwordx4 s[20:23], s[0:1], {KA['dbg']}
    s_lshr_b32 s{sB}, s2, 3
    """)
    if "latewarm" not in X:
        a(f"""
        s_getpc_b64 {sp(t0)}
        L_PC:
        s_mul_i32 s{t3}, s{sB}, 384
        v_lshl_add_u32 v6, v0, 7, s{t3}
        v_cmp_gt_u32 vcc, 3, v0
        v_min_u32 v6, L_END-L_PC, v6
        s_cbranch_vccz L_NOCW
        v_mov_b32 v7, 0
        v_lshl_add_u64 v[6:7], v[6:7], 0, {sp(t0)}
        s_mov_b64 exec, vcc
        global_load_dword v9, v[6:7], off
        s_mov_b64 exec, -1
        L_NOCW:
        """)
    a(f"""
    {QSEL}
    s_lshl_b32 s{t0}, s{t0}, 5
    s_add_u32 s{sB}, s{sB}, s{t0}
    s_mul_i32 s{sN0}, s{sB}, 625
    s_add_u32 s{sN0}, s{sN0}, 7
    s_lshr_b32 s{sN0}, s{sN0}, 3
    s_lshl_b32 s{sN0}, s{sN0}, 8
    s_cmp_ge_u32 s2, 256
    s_cbranch_scc1 L_END
    v_lshrrev_b32 v4, 6, v0
    v_and_b32 v{vL}, 63, v0
    v_readfirstlane_b32 s{sW}, v4
    {HSEL}
    s_lshl_b32 s{sH}, s{t0}, 7                    ; half*128
    s_add_u32 s{sC}, s{sH}, s{sB}                 ; chunk
    s_sub_u32 s{sRW}, s{sW}, 5
    s_cmp_lt_u32 s{sRW}, 5
    s_cbranch_scc0 L_NOBIN
    """)
    B1 = "s_barrier                                     ; B1"
    HM = "s_mov_b32 exec_hi, 0x1fffffff"
    FM = "s_mov_b32 exec_hi, -1"
    a(f"""
    s_mul_i32 s{t1}, s{sC}, {CH*4}
    s_mul_i32 s{t2}, s{sRW}, 1000
    s_add_u32 s{t1}, s{t1}, s{t2}
    v_lshl_add_u32 v20, v{vL}, 3, s{t1}
    v_lshlrev_b32 v21, 1, v20
    s_setprio 3
    s_mov_b32 s{sBIN}, 1
    s_waitcnt lgkmcnt(0)
    global_load_dwordx2 v[4:5], v20, {sp(sDST)}
    {HM}
    global_load_dwordx2 v[6:7], v20, {sp(sDST)} offset:512
    {B1}
    global_load_dwordx2 v[10:11], v20, {sp(sSRC)} offset:512 nt
    {FM}
    global_load_dwordx2 v[8:9], v20, {sp(sSRC)} nt
    global_load_dwordx4 v[12:15], v21, {sp(sE)} nt
    {HM}
    global_load_dwordx4 v[16:19], v21, {sp(sE)} offset:1024 nt
    {FM}
    """)
    a(f"""
    s_mul_i32 s{t0}, s{sC}, {CHB}
    s_add_u32 s{t0}, s{t0}, {WS_REC}
    """)
    srd(a, SRD_W, sWS, f"s{t0}", (CH * RB + 127) // 128 * 128)
    a(f"""
    s_add_u32 s{t2}, s{sWS}, {WS_EPOCH}
    s_addc_u32 s{t3}, s{sWS+1}, 0
    s_load_dword s{sEP}, {sp(t2)}, 0
    """)
    a(f"""
    s_branch L_SETUP
    L_NOBIN:
    s_mov_b32 s{sBIN}, 0
    s_cmp_lt_u32 s{sW}, 10
    s_cbranch_scc1 L_B1
    s_cmp_eq_u32 s{sW}, 15
    s_cbranch_scc1 L_WARM
    v_lshlrev_b32 v12, 2, v0
    v_lshrrev_b32 v16, 2, v0
    v_subrev_u32 v16, {(640 + (LDUM - LHIST) // 4) // 4}, v16
    v_min_u32 v16, 31, v16
    v_mov_b32 v15, 0x249
    v_bfe_u32 v13, v15, v16, 1
    v_lshlrev_b32 v13, 22, v13
    ds_write_b32 v12, v13 offset:{LHIST - 2560}
    s_branch L_B1
    L_WARM:
    """)
    a(f"""
    s_lshr_b32 s{t2}, s2, 3
    s_mul_i32 s{t2}, s{t2}, 9
    v_add_u32 v6, s{t2}, v{vL}
    v_min_u32 v8, 259, v6
    v_lshl_add_u32 v8, v8, 8, s{sH}
    s_lshr_b32 s{t2}, s{t2}, 1
    v_add_u32 v6, s{t2}, v{vL}
    v_min_u32 v6, 127, v6
    v_lshl_add_u32 v6, v6, 8, s{sH}
    v_lshrrev_b32 v4, 4, v{vL}
    v_and_b32 v5, 15, v{vL}
    v_lshl_add_u32 v4, v5, 2, v4
    s_add_u32 s{t2}, s{sH}, {256*256}
    v_lshl_add_u32 v4, v4, 1, s{t2}
    s_waitcnt lgkmcnt(0)
    s_mov_b64 exec, 0x1ff
    global_load_dword v9, v8, {sp(sG)} {WNT}
    s_mov_b64 exec, 31
    global_load_dword v9, v6, {sp(sV)} {WNT}
    global_load_dword v9, v6, {sp(sU)} {WNT}
    s_mov_b64 exec, -1
    global_load_short_d16_hi v10, v4, {sp(sG)}
    global_load_short_d16_hi v11, v4, {sp(sG)} offset:256
    global_load_short_d16_hi v12, v4, {sp(sG)} offset:512
    global_load_short_d16_hi v13, v4, {sp(sG)} offset:768
    L_B1:
    s_waitcnt lgkmcnt(0)
    s_barrier                                     ; B1
    """)
    if "xlate" in X:
        a(f"""
        s_cmp_eq_u32 s{sW}, 10
        s_cselect_b32 s{sRW}, 1, 0
        s_cbranch_scc1 L_XL
        s_cmp_eq_u32 s{sW}, 4
        s_cbranch_scc1 L_XL
        """)
    else:
        a(f"""
        s_mov_b32 s{sRW}, s{sW}
        s_cmp_lt_u32 s{sW}, 2
        s_cbranch_scc1 L_XL
        """)
    a(f"""
    s_cmp_lt_u32 s{sW}, 5
    s_cselect_b32 s{sRW}, {0 if "xlate" in X else 2}, 7
    s_sub_u32 s{sRW}, s{sW}, s{sRW}
    v_lshrrev_b32 v26, 3, v{vL}
    v_lshlrev_b32 v26, 8, v26
    v_and_b32 v28, 7, v{vL}
    v_lshlrev_b32 v28, 4, v28
    v_and_b32 v27, 16, v{vL}
    v_lshlrev_b32 v27, 1, v27
    v_xor_b32 v28, v28, v27
    v_add3_u32 v26, v26, v28, s{sH}
    v_xor_b32 v27, 64, v26
    s_add_u32 s{SRD_W}, s{sG}, {128*256}
    s_addc_u32 s{SRD_W+1}, s{sG+1}, 0
    s_cmp_ge_u32 s{sRW}, 2
    s_cselect_b64 {sp(SRD_W)}, {sp(sV)}, {sp(SRD_W)}
    s_cmp_ge_u32 s{sRW}, 4
    s_cselect_b64 {sp(SRD_W)}, {sp(sG)}, {sp(SRD_W)}
    s_cmp_ge_u32 s{sRW}, 6
    s_cselect_b64 {sp(SRD_W)}, {sp(sU)}, {sp(SRD_W)}
    s_mov_b32 s{SRD_W+2}, {128*256}
    s_mov_b32 s{SRD_W+3}, 0x20000
    s_cmp_ge_u32 s{sRW}, 4
    {"s_barrier" if "b1b" in X else ""}
    s_cbranch_scc1 L_SETUP
    """)
    if "u64" not in X:
        a(f"""
        v_lshlrev_b32 v17, 4, v0
        v_mov_b64 v[20:21], 0
        v_mov_b64 v[22:23], 0
        v_min_u32 v18, {11264 + NB * GST - 8 * 5120 - 16}, v17
        """)
    for i in range(0 if "u64" in X else 9):
        a(f"ds_write_b128 v{17 if i < 8 else 18}, v[20:23] offset:{LAGG - 11264 + 5120 * i}")

    def wdma(lab):
        a(f"""
        s_and_b32 s{t0}, s{sRW}, 1
        s_lshl_b32 s{t0}, s{t0}, 14
        s_lshl_b32 s{t1}, s{sRW}, 13
        s_add_u32 s{t1}, s{t1}, {LW}
        s_mov_b32 s{t2}, 4
        {lab}:
        s_mov_b32 m0, s{t1}
        s_add_u32 s{t3}, s{t0}, 1024
        buffer_load_dwordx4 v26, {sq(SRD_W)}, s{t0} offen lds
        buffer_load_dwordx4 v27, {sq(SRD_W)}, s{t3} offen offset:1024 lds
        s_add_u32 s{t0}, s{t0}, 4096
        s_add_u32 s{t1}, s{t1}, 2048
        s_sub_u32 s{t2}, s{t2}, 1
        s_cmp_lg_u32 s{t2}, 0
        s_cbranch_scc1 {lab}
        """)

    wdma("L_WL")
    a(f"""
    s_branch L_SETUP
    L_XL:
    v_lshrrev_b32 v4, 4, v{vL}
    v_and_b32 v5, 15, v{vL}
    v_xor_b32 v5, v5, v4
    v_lshlrev_b32 v5, 4, v5
    s_lshl_b32 s{t1}, s{sRW}, 7
    v_xor_b32 v5, s{t1}, v5
    s_mul_i32 s{t0}, s{sRW}, 10240
    s_add_u32 s{t2}, s{sN0}, s{t0}
    s_sub_u32 s{t3}, {N*256}, s{t2}
    v_lshl_add_u32 v4, v4, 8, v5
    s_add_u32 s{t1}, s{t0}, {LX}
    v_xor_b32 v5, 64, v4
    v_xor_b32 v6, 0x80, v4
    v_xor_b32 v7, 0xc0, v4
    v_mov_b32 v26, 0
    v_mov_b32 v27, 0
    """)
    srd(a, SRD_W, sX, f"s{t2}", f"s{t3}")
    a(f"s_mov_b32 s{t0}, 0\ns_mov_b32 s{sRW}, 0")
    if "b1b" in X:
        a("s_barrier")
    for i in range(10):
        if i % 4 == 0:
            a(f"s_mov_b32 m0, s{t1}\ns_add_u32 s{t1}, s{t1}, 4096")
        a(f"buffer_load_dwordx4 v{4+i%4}, {sq(SRD_W)}, s{t0} offen offset:{1024*(i%4)} {XNT} lds")
        if i % 4 == 3:
            a(f"s_add_u32 s{t0}, s{t0}, 4096")
    a(f"""
    L_SETUP:
    s_and_b32 s{sT0}, s{sW}, 3
    s_cmp_ge_u32 s{sW}, 12
    s_cselect_b32 s{t0}, {2*16384}, 0
    s_add_u32 s{t0}, s{t0}, {LW}
    s_mov_b32 s{t1}, {LX}
    v_lshrrev_b32 v40, 4, v{vL}                   ; sigma
    v_bfe_u32 v41, v{vL}, 2, 2
    v_and_b32 v42, 3, v{vL}
    v_and_b32 v{vJn}, 15, v{vL}
    v_lshlrev_b32 v43, 10, v40
    v_lshlrev_b32 v44, 7, v41
    v_lshl_add_u32 v44, v42, 3, v44
    v_bfe_u32 v45, v{vL}, 3, 2
    v_xor_b32 v45, s{sT0}, v45
    v_lshl_add_u32 v45, v45, 5, v44
    v_add3_u32 v{vA}, v43, v45, s{t0}
    s_lshl_b32 s{t0}, s{sT0}, 2
    v_add_u32 v{vRow}, s{t0}, v40
    v_xor_b32 v43, v{vJn}, v40
    v_lshlrev_b32 v43, 4, v43
    v_lshlrev_b32 v44, 8, v{vJn}
    v_add3_u32 v{vXa}, v43, v44, s{t1}
    v_xor_b32 v{vXa+1}, 64, v{vXa}
    v_xor_b32 v{vXa+2}, 0x80, v{vXa}
    v_xor_b32 v{vXa+3}, 0xc0, v{vXa}
    s_mov_b32 s{t0}, {LCW}
    v_lshl_add_u32 v{vCwa}, v{vL}, 3, s{t0}
    v_cmp_eq_u32 vcc, v40, v41
    v_mov_b32 v43, 0x3f80
    v_cmp_eq_u32 {sp(sEM)}, v40, v42
    v_cndmask_b32 v{vAo}, 0, v43, vcc
    v_mov_b32 v{vAo+1}, 0
    v_lshlrev_b32 v42, 4, v42
    v_lshlrev_b64 {vr(vAo,2)}, v42, {vr(vAo,2)}
    """)
    for g in range(4):
        if g:
            a(f"v_mov_b64 {vr(vAo+4*g,2)}, {vr(vAo,2)}")
        a(f"v_mov_b64 {vr(vAo+4*g+2,2)}, 0")
    a(f"""
    v_lshlrev_b32 v{vLO}, 4, v{vJn}
    v_lshlrev_b32 v{vLO+1}, 3, v{vJn}
    v_add_u32 v{vLO+1}, {LAGG}, v{vLO+1}
    v_lshrrev_b32 v40, 2, v0
    s_lshl_b32 s{t0}, s{sB}, 3
    v_lshl_add_u32 v{vOFFa}, v40, 10, s{t0}
    v_mul_u32_u24 v{vRO}, {CHB}, v40
    v_mov_b32 v{vF}, {LFLAG}
    v_mov_b32 v{vONE}, 1
    s_and_b32 s{t0}, s{sB}, 7
    s_cmp_eq_u32 s{t0}, 0
    s_addc_u32 s{sNB}, 78, 0
    s_mov_b32 s{sLG}, {hex(NLOG2E)}
    s_mov_b32 s{s12}, {f2h(AST/256)}
    s_mov_b32 s{s12+1}, {f2h(GST/256)}
    s_mov_b32 s{sINC}, 512
    s_mov_b32 s{sINC+1}, 512
    s_mov_b32 s{sTHR}, 0x67800000                 ; 2^80
    s_mov_b32 s{sFIRST}, 1
    s_mov_b32 s{sSPIN}, {SPIN}
    s_mul_i32 s{t1}, s{sH}, {T_HALF//128}
    """)
    srd(a, SRD_T, sWS, f"s{t1}", T_HALF)
    srd(a, SRD_R, sWS, WS_REC, NCH * CHB)
    a(f"""
    s_cmp_eq_u32 s{sBIN}, 0
    s_cbranch_scc1 L_STG
    s_mov_b32 s{t0}, 429497
    s_mov_b32 s{t1}, 625
    v_lshlrev_b32 v33, 3, v{vL}
    s_mul_i32 s{t2}, s{sRW}, 3072
    v_lshl_add_u32 v32, v{vL}, 4, s{t2}
    s_waitcnt vmcnt(4)
    """)
    mark(1)
    for i in range(4):
        a(f"""
        {HM if i == 2 else ""}
        v_mul_u32_u24 v{24+i}, s{t0}, v{4+i}
        v_lshrrev_b32 v{24+i}, 25, v{24+i}
        v_lshlrev_b32 v{20+i}, 2, v{24+i}
        ds_add_rtn_u32 v{28+i}, v{20+i}, v{vONE} offset:{LHIST}
        """)
    a(f"""
    s_mov_b64 exec, 1
    ds_add_u32 v{vF}, v{vONE} offset:{F_RV}
    s_mov_b64 exec, -1
    """)
    for i in range(4):
        a(f"""
        v_mad_u32_u24 v{24+i}, v{24+i}, s{t1}, 7
        v_lshrrev_b32 v{24+i}, 3, v{24+i}
        v_sub_u32 v{24+i}, v{4+i}, v{24+i}
        """)
    a("s_mov_b64 exec, 1")
    if "spr" in X:
        a("s_setprio 1")
    spin("L_BS1", F_RV, "gt", 5, int(os.environ.get("SLB", 0)))
    if "spr" in X:
        a("s_setprio 3")
    mark(15)
    a(f"""
    s_mov_b64 exec, -1
    ds_read_b64 v[34:35], v33 offset:{LHIST}
    s_add_u32 s{sEP}, s{sEP}, 1
    s_xor_b32 s{sTAG2}, s{sEP}, 0x2545F491
    s_mul_i32 s{sTAG}, s{sTAG2}, 0x9E3779B1
    s_mul_i32 s{sTAG2}, s{sTAG2}, 0x85EBCA6B
    s_lshr_b32 s{sTAGB}, s{sTAG2}, 25
    s_waitcnt lgkmcnt(0)
    v_add_u32 v36, v34, v35
    v_mov_b32 v37, v36
    """)
    scan64(a, 37)
    a(f"""
    v_sub_u32 v38, v37, v36
    v_add_u32 v39, v38, v34
    v_mul_u32_u24 v38, {RB}, v38
    v_mul_u32_u24 v39, {RB}, v39
    ds_write_b64 v33, v[38:39] offset:{LSTART}
    """)
    for i in range(4):
        a(f"{HM if i == 2 else ''}\nds_read_b32 v{20+i}, v{20+i} offset:{LSTART}")
    a(FM)
    a(f"""
    s_lshl_b32 s{t0}, s{sTAGB}, 25
    s_lshl_b32 s{t1}, s{sC}, 10
    s_add_u32 s{t1}, s{t1}, {WS_OFF}
    v_lshl_or_b32 v48, v34, 14, v38
    v_lshl_or_b32 v50, v35, 14, v39
    v_or_b32 v48, s{t0}, v48
    v_or_b32 v50, s{t0}, v50
    v_mov_b32 v49, s{sTAG}
    v_mov_b32 v51, s{sTAG}
    v_lshl_add_u32 v52, v{vL}, 4, s{t1}
    """)
    mark(16)
    a(f"""
    s_waitcnt vmcnt(2) lgkmcnt(0)
    """)
    for i in range(4):
        a(f"""
        {HM if i == 2 else ""}
        v_mad_u32_u24 v{20+i}, v{28+i}, {RB}, v{20+i}
        v_lshl_or_b32 v{24+i}, v{8+i}, 8, v{24+i}
        ds_write_b32 v{20+i}, v{24+i} offset:8
        """)
    for i in range(4):
        if i % 2 == 0:
            a(f"{HM if i else FM}\ns_waitcnt vmcnt({1 - i // 2})")
        a(f"ds_write2_b32 v{20+i}, v{12+2*i}, v{13+2*i} offset0:0 offset1:1")
    mark(13)
    a(f"""
    s_mov_b64 exec, 1
    ds_add_u32 v{vF}, v{vONE} offset:{F_RV}
    """)
    if "spr" in X:
        a("s_setprio 1")
    spin("L_BS2", F_RV, "gt", 10, int(os.environ.get("SLB", 0)))
    if "spr" in X:
        a("s_setprio 3")
    a("s_mov_b64 exec, -1")
    for i in range(3):
        a(f"ds_read_b128 {vr(8+4*i,4)}, v32 offset:{1024*i}")
    for i in range(3):
        a(f"s_waitcnt lgkmcnt({2-i})\nbuffer_store_dwordx4 {vr(8+4*i,4)}, v32, {sq(SRD_W)}, 0 offen offset:{1024*i} sc1")
    a(f"""
    s_mov_b64 exec, 1
    """)
    mark(2)
    a(f"""
    s_waitcnt vmcnt(0)
    ds_add_rtn_u32 v7, v{vF}, v{vONE} offset:{F_PUB}
    s_waitcnt lgkmcnt(0)
    v_cmp_eq_u32 vcc, 4, v7
    s_mov_b64 exec, -1
    s_cbranch_vccz L_NOPUB
    global_store_dwordx4 v52, v[48:51], {sp(sWS)} sc1
    L_NOPUB:
    s_setprio 0
    v_mov_b32 v4, s{sEP}
    ds_write_b32 v{vF}, v4 offset:{F_EP}
    """)
    mark(4)
    a(f"""
    """)
    if os.environ.get("TV"):
        a(f"""
        s_lshl_b32 s{t2}, s{sC}, 7
        s_add_u32 s{t2}, s{t2}, {WS_TF}
        v_mov_b32 v8, s{t2}
        v_mov_b32 v10, s{sTAG}
        v_mov_b32 v11, s{sTAG2}
        s_branch L_GD
        """)
    else:
        a(f"""
    s_cmp_eq_u32 s{sW}, 5
    s_cbranch_scc0 L_GD
    s_lshl_b32 s{t2}, s{sC}, 7
    s_add_u32 s{t2}, s{t2}, {WS_TF}
    v_mov_b32 v8, s{t2}
    v_mov_b32 v10, s{sTAG}
    v_mov_b32 v11, s{sTAG2}
        """)
        srd(a, SRD_W, sWS, WS_OFF, NCH * 1024)
        a(f"""
    s_mov_b64 exec, 1
    s_waitcnt lgkmcnt(0)
    s_barrier                                     ; B5
    global_store_dwordx2 v8, v[10:11], {sp(sWS)} sc1
    s_mov_b64 exec, -1
    s_branch L_TSD
        """)
    a(f"""
    L_STG:
    v_mov_b32 v6, 1
    s_cmp_lt_u32 s{sRW}, 4
    s_cbranch_scc1 L_EARLY
    s_cmp_eq_u32 s{sRW}, 8
    s_cbranch_scc1 L_GC
    """)
    a(f"""
    ; Ga / U go out once half of the first copies have landed
    s_mov_b64 exec, 1
    """)
    TRG = os.environ.get("TRG", "land3")
    spin("L_BS3", F_LAND if TRG[:4] == "land" else F_RV, "gt", int(TRG.lstrip("landrv")), 2)
    a("s_mov_b64 exec, -1")
    wdma("L_WL2")
    a(f"""
    v_mov_b32 v6, 0x100
    L_EARLY:
    s_mov_b64 exec, 1
    s_waitcnt vmcnt(0)
    ds_add_u32 v{vF}, v6 offset:{F_LAND}
    """)
    mark(13)
    a(f"""
    s_cmp_ge_u32 s{sW}, 12
    s_cbranch_scc1 L_LAND2
    s_cmp_ge_u32 s{sW}, 4
    s_cbranch_scc1 L_GD
    """)
    spin("L_LAND1", F_LAND, "lowne", 6, int(os.environ.get("SL1", 0)))
    a("s_mov_b64 exec, -1")
    if "tprio" in X:
        a("s_setprio 2")
    mark(3)

    def gemm(epi, pre, post=None, hook=None):
        def xr(n, ks):
            a(f"ds_read_b128 {vr(vXb+16*(n&1)+4*ks,4)}, v{vXa+ks} offset:{4096*n}")
        for ks in range(4):
            xr(0, ks)
            for m in range(2):
                o = m * 16384 + ks * 4096
                r = vWf + 16 * m + 4 * ks
                a(f"ds_read_b64_tr_b16 {vr(r,2)}, v{vA} offset:{o}")
                a(f"ds_read_b64_tr_b16 {vr(r+2,2)}, v{vA} offset:{o+512}")
            if ks == 1:
                pre()
                a("s_waitcnt lgkmcnt(4)")
        IL = "noil" not in X
        if not IL:
            a("s_waitcnt lgkmcnt(9)")
            for ks in range(4):
                xr(1, ks)
        prev_lds = 0
        for n in range(6):
            ops = epi(n - 1) if n else []
            tail = [o[1:] for o in ops if o[0] == "@"]
            ops = [o for o in ops if o[0] != "@"]
            if n == 5:
                ops += tail
                if post:
                    a("s_nop 3")
                    for o in ops[:-4]:
                        a(o)
                    a("s_waitcnt lgkmcnt(0)")
                    post(3)
                    for o in ops[-4:]:
                        a(o)
                    a("s_waitcnt lgkmcnt(0)")
                    post(4)
                    break
                a("s_nop 7")
                for o in ops:
                    a(o)
                break
            late = post and n >= 2
            if IL:
                a(f"s_waitcnt lgkmcnt({prev_lds})")
                prev_lds = len([o for o in ops + tail if o.startswith("ds_")])
            else:
                a(f"s_waitcnt lgkmcnt({(4 if n < 4 else 0) + (4 if late else 0)})")
            if n == 0:
                mark(21)
            per = -(-len(ops) // 5)
            for ks in range(4):
                for m in range(2):
                    acc = vAcc + 8 * (n & 1) + 4 * m
                    c = "0" if ks == 0 else vr(acc, 4)
                    a(f"v_mfma_f32_16x16x32_bf16 {vr(acc,4)}, {vr(vWf+16*m+4*ks,4)}, {vr(vXb+16*(n&1)+4*ks,4)}, {c}")
                    if IL and 2 * ks + m < 4:
                        if n < 4:
                            xr(n + 1, 2 * ks + m)
                        else:
                            a("s_nop 0")
                    if late and 2 * ks + m == 3:
                        a(f"s_waitcnt lgkmcnt({4 if n < 4 else 0})")
                        post(n - 2)
                    if 2 * ks + m >= 3:
                        for o in ops[:per]:
                            a(o)
                        ops = ops[per:]
            assert not ops
            for o in tail:
                a(o)
            if IL:
                pass
            elif n + 2 < 5:
                for ks in range(4):
                    xr(n + 2, ks)
            elif n == 3:
                a("s_nop 3")
            if hook:
                hook(n)

    def t_pre():
        a(f"""
        s_mov_b32 s{t0}, s{sN0}
        s_lshl_b32 s{t2}, s{sNB}, 2
        s_sub_u32 s{t2}, 320, s{t2}
        s_lshr_b32 s{t2}, -1, s{t2}
        """)
        if "nobp" in X:
            a(f"""
            v_lshlrev_b32 v4, 8, v{vJn}
            v_lshl_add_u32 v4, v{vRow}, 4, v4
            """)
        else:
            a(f"""
            v_lshrrev_b32 v6, 2, v{vL}
            v_and_b32 v7, 3, v{vL}
            s_lshl_b32 s{t1}, s{sT0}, 6
            v_lshl_add_u32 v4, v6, 8, s{t1}
            v_lshl_add_u32 v4, v7, 4, v4
            v_lshl_add_u32 v5, v7, 4, v6
            v_lshlrev_b32 v5, 2, v5
            """)
        a(f"""
        s_mov_b32 s{t1}, 0x07060302
        s_setreg_imm32_b32 hwreg(HW_REG_MODE, 4, 2), 0
        """)

    def t_epi(n):
        P = vPk + 4 * (n & 1)
        b = [vAcc + 8 * (n & 1) + t for t in range(4)]
        h = [vAcc + 8 * (n & 1) + 4 + t for t in range(4)]
        SD = "clamp dst_sel:DWORD dst_unused:UNUSED_PAD src0_sel:DWORD src1_sel:WORD_1"
        o = [f"v_mul_f32 v{b[t]}, s{sLG}, v{b[t]}" for t in range(4)]
        o += [f"v_add_f32 v{h[t]}, 0, v{h[t]}" for t in (0, 1, 3)]
        o += [f"v_add_u32 v{h[t]}, 0x8000, v{h[t]}" for t in (2, 0, 3, 1)]
        o += [f"v_sub_u32_sdwa v{h[0]}, v{h[0]}, v{h[2]} {SD}",
              f"v_cvt_pk_bf16_f32 v{P+2}, v{b[0]}, v{b[1]}",
              f"v_sub_u32_sdwa v{h[3]}, v{h[3]}, v{h[0]} {SD}",
              f"v_cvt_pk_bf16_f32 v{P+3}, v{b[2]}, v{b[3]}",
              f"v_sub_u32_sdwa v{h[1]}, v{h[1]}, v{h[3]} {SD}",
              f"v_perm_b32 v{P}, v{h[0]}, v{h[2]}, s{t1}",
              f"v_perm_b32 v{P+1}, v{h[1]}, v{h[3]}, s{t1}"]
        if "nobp" in X:
            o += [f"buffer_store_dwordx4 {vr(P,4)}, v4, {sq(SRD_T)}, s{t0} offen sc1",
                  f"s_add_u32 s{t0}, s{t0}, 4096"]
        else:
            o += [f"ds_bpermute_b32 v{P+u}, v5, v{P+u}" for u in (2, 3, 0, 1)]
        return o

    def t_post(n):
        if n == 4:
            a(f"s_mov_b32 exec_hi, s{t2}")
        a(f"buffer_store_dwordx4 {vr(vPk+4*(n&1),4)}, v4, {sq(SRD_T)}, s{t0} offen sc1\ns_add_u32 s{t0}, s{t0}, 4096")
        mark(40 + n)

    gemm(t_epi, t_pre, None if "nobp" in X else t_post)
    a(f"""
    s_setreg_imm32_b32 hwreg(HW_REG_MODE, 4, 2), 3
    """)
    a("s_setprio 0")
    a(f"s_waitcnt vmcnt({os.environ.get('TV', 0)})")
    a(f"""
    s_branch L_GD
    L_GC:
    s_mov_b32 s{t0}, 0xffff0000
    s_waitcnt vmcnt(0)
    """)
    for q in range(4):
        a(f"v_and_b32 v{10+q}, s{t0}, v{10+q}")
    for q in range(4):
        a(f"v_mul_f32 v{10+q}, s{sLG}, v{10+q}")
    a(f"""
    v_cvt_pk_bf16_f32 v10, v10, v11
    v_cvt_pk_bf16_f32 v11, v12, v13
    ds_write_b64 v{vCwa}, v[10:11]
    s_mov_b64 exec, 1
    """)
    if "w15slp" in X:
        spin("L_BS5", F_LAND, "gt", 0x100, 4)
    spin("L_LAND2", F_LAND, "ne", 0x406)
    a("s_mov_b64 exec, -1")
    mark(3)

    def au_pre():
        a(f"""
        s_mov_b32 s{t0}, {AST}
        s_mov_b32 s{t1}, {GST if "u64" in X else UST}
        s_mov_b32 s{t2}, {0 if "u64" in X else LU}
        v_lshlrev_b32 v4, 4, v{vRow}
        v_lshl_add_u32 v5, v{vRow}, 3, s{t2}
        v_mad_u32_u24 v4, v{vJn}, s{t0}, v4
        v_mad_u32_u24 v5, v{vJn}, s{t1}, v5
        """)

    def au_epi(n):
        A = vAcc + 8 * (n & 1)
        o = [f"v_mul_f32 v{A+t}, s{sLG}, v{A+t}" for t in range(4)]
        if "u64" in X:
            o += [f"ds_write_b128 v4, {vr(A,4)} offset:{LA+16*AST*n}"]
            D = (92, 94, 104, 6)
            o += ["@" + f"v_cvt_f64_f32 {vr(D[t],2)}, v{A+4+t}" for t in range(4)]
            o += ["@" + f"ds_write_b64 v5, {vr(D[t],2)} offset:{LAGG+16*GST*n+128*t}" for t in range(4)]
            return o
        o += [f"v_cvt_pk_bf16_f32 v{A+4}, v{A+4}, v{A+5}", f"v_cvt_pk_bf16_f32 v{A+5}, v{A+6}, v{A+7}"]
        o += [f"ds_write_b128 v4, {vr(A,4)} offset:{LA+16*AST*n}"]
        o += [f"ds_write_b64 v5, {vr(A+4,2)} offset:{16*UST*n}"]
        return o

    def au_hook(n):
        HB = int(os.environ.get('HB', 0))
        if n == HB:
            srd(a, SRD_W, sWS, WS_OFF, NCH * 1024)
            a("s_waitcnt lgkmcnt(0)\ns_barrier                                     ; B5")
            mark(22)
            pollreq()
            if 'aprio' in X:
                a('s_setprio 2')
        if n == HB + 1:
            a("s_barrier                                     ; B5b")
            recpf()

    gemm(au_epi, au_pre, None, au_hook)
    mark(5)
    a(("s_setprio 0\n" if 'aprio' in X else "") + "s_branch L_PW")
    vW = (8, 32)
    vPr = 56
    REC = (8, 14, 20, 26, 32, 38, 44)

    def rec(k):
        return REC[k]

    vP, vTFa, vLf = 94, 100, 96 - 20
    a("L_GD:\ns_mov_b64 exec, -1")
    mark(5)
    srd(a, SRD_W, sWS, WS_OFF, NCH * 1024)
    a(f"""
    s_waitcnt lgkmcnt(0)
    s_barrier
    """)
    mark(22)
    a(f"""
    {"s_sleep " + os.environ["PDELAY"] if os.environ.get("PDELAY") else ""}
    L_TSD:
    """)
    pollreq()
    a(f"""
    L_FILL:
    v_lshrrev_b32 v4, 4, v0
    v_and_b32 v5, 15, v0
    s_mov_b32 s{t0}, {SLOTB}
    v_mov_b32 v6, {LSLOT}
    v_mad_u32_u24 v4, v4, s{t0}, v6
    v_mad_u32_u24 v4, v5, 48, v4
    v_mov_b32 v56, {DUMMY}
    v_mov_b32 v57, {DUMMY}
    v_mov_b64 v[58:59], v[56:57]
    s_cmp_lt_u32 s{sW}, 8
    ds_write_b128 v4, v[56:59]
    s_cbranch_scc0 L_FT
    ds_write_b128 v4, v[56:59] offset:{48*SLOTB}
    s_branch L_FD
    L_FT:
    s_mov_b32 s{t1}, {LTAB - 8192}
    v_mov_b32 v60, {LDUM}
    v_mov_b32 v61, 0
    v_lshl_add_u32 v5, v0, 4, s{t1}
    v_mov_b64 v[62:63], v[60:61]
    ds_write_b128 v5, v[60:63]
    ds_write_b128 v5, v[60:63] offset:4096
    L_FD:
    s_cmp_eq_u32 s{sFIRST}, 0
    s_waitcnt {"vmcnt(1) " if os.environ.get("TV") else ""}lgkmcnt(0)
    s_barrier                                     ; B5b
    s_cbranch_scc1 L_AGAIN
    """)
    if os.environ.get("TV"):
        a(f"""
        s_cmp_eq_u32 s{sW}, 5
        s_cbranch_scc0 L_PW
        s_mov_b64 exec, 1
        global_store_dwordx2 v8, v[10:11], {sp(sWS)} sc1
        s_mov_b64 exec, -1
        s_waitcnt vmcnt(1)
        s_branch L_POLL
        """)
    mark(14)
    recpf()
    a(f"""
    L_PW:
    v_readfirstlane_b32 s{sEP}, v90
    s_nop 0
    s_xor_b32 s{sTAG2}, s{sEP}, 0x2545F491
    s_mul_i32 s{sTAG}, s{sTAG2}, 0x9E3779B1
    s_mul_i32 s{sTAG2}, s{sTAG2}, 0x85EBCA6B
    s_lshr_b32 s{sTAGB}, s{sTAG2}, 25
    s_waitcnt vmcnt({1 if RPF else 0})
    L_POLL:
    v_lshrrev_b32 v4, 25, v88
    v_cmp_ne_u32 vcc, s{sTAG}, v89
    v_cmp_ne_u32 {sp(t0)}, s{sTAGB}, v4
    s_or_b64 exec, vcc, {sp(t0)}
    s_cbranch_execnz L_POLL2
    L_POLLED:
    s_mov_b64 exec, -1
    """)
    mark(6)
    a(f"""
    v_bfe_u32 v{vRem}, v88, 14, 11
    v_and_b32 v4, 0x3fff, v88
    v_add_u32 v{vRO}, v{vRO}, v4
    """)
    a(f"""
    L_WINDOW:
    v_and_b32 v4, 15, v{vL}
    v_and_b32 v5, 3, v{vL}
    v_sub_u32 v5, v{vRem}, v5
    """)
    for k in range(4):
        a(f"v_sub_u32_dpp v{64+k}, v{vRem}, v4 row_newbcast:{4*k} row_mask:0xf bank_mask:0xf")
    for k in range(4):
        a(f"v_cmp_lt_i32 {sp(sM+2*k)}, 0, v{64+k}")
    for k in range(4, KMAX):
        a(f"v_cmp_lt_i32 {sp(sM+2*k)}, {4*k}, v5")
    a(f"""
    L_LOADS:
    """)
    EPF = os.environ.get("EPF", "")
    if EPF:
        a(f"""
        s_mov_b64 exec, 0xff
        global_load_dwordx2 v[82:83], v{vTFa}, {sp(sWS)} sc1
        s_mov_b64 exec, -1
        """)
    a(f"""
    v_and_b32 v4, 15, v{vL}
    v_and_b32 v5, 3, v{vL}
    v_mul_u32_u24 v4, {RB}, v4
    v_mad_u32_u24 v5, v5, {RB}, v{vRO}
    s_or_b64 {sp(sU5)}, {sp(sM+10)}, {sp(sM+12)}
    s_or_b64 {sp(sU4)}, {sp(sU5)}, {sp(sM+8)}
    """)
    for k in range(4):
        a(f"v_add_u32_dpp v{rec(k)+3}, v{vRO}, v4 row_newbcast:{4*k} row_mask:0xf bank_mask:0xf")

    def kloop(done, body, mask=sM):
        for k in range(KMAX):
            if k == 4:
                a(f"s_cmp_eq_u64 {sp(sU4)}, 0\ns_cbranch_scc1 {done}")
            if k == 5:
                a(f"s_cmp_eq_u64 {sp(sU5)}, 0\ns_cbranch_scc1 {done}")
            a(f"s_mov_b64 exec, {sp(mask+2*k)}")
            body(k)
        a(f"{done}:")

    RF = "" if "recplain" in X else "sc1"

    def rload(k):
        if k < 4:
            a(f"buffer_load_dwordx3 {vr(rec(k),3)}, v{rec(k)+3}, {sq(SRD_R)}, 0 offen {RF}")
        else:
            a(f"buffer_load_dwordx3 {vr(rec(k),3)}, v5, {sq(SRD_R)}, 0 offen offset:{48*k} {RF}")

    kloop("L_RL", rload)
    mark(23)
    a(f"""
    s_mov_b64 exec, -1
    s_mov_b32 s{t0}, {LCW}
    v_lshl_add_u32 v4, v{vL}, 3, s{t0}
    """)
    for k in range(8):
        a(f"ds_read_b64 {vr(vW[0]+6*k+4,2)}, v4")
    a(f"""
    s_cmp_ge_u32 s{sW}, 8
    s_cselect_b32 s{sT0}, {os.environ.get("SNK", 3)}, 0
    s_xor_b32 s{sT0}, s{sT0}, s{sW}
    s_lshl_b32 s{t0}, s{sT0}, 5
    s_add_u32 s{t0}, s{t0}, {LTAB}
    v_lshrrev_b32 v4, 4, v{vL}
    v_bfe_u32 v5, v{vL}, 2, 2
    v_lshl_add_u32 v{vP}, v4, 3, s{t0}
    v_lshl_add_u32 v{vP+1}, v5, 3, s{t0}
    s_lshl_b32 s{t0}, s{sW}, 5
    s_add_u32 s{t0}, s{t0}, s{sH}
    s_lshl_b32 s{t0}, s{t0}, 7
    s_add_u32 s{t0}, s{t0}, {WS_TF}
    v_lshl_add_u32 v{vTFa}, v{vL}, 7, s{t0}
    v_mov_b32 v6, {LSLOT}
    s_mov_b32 s{t0}, {2*SLOTB}
    v_mad_u32_u24 v{vLf}, v{vL}, s{t0}, v6
    v_lshlrev_b32 v{vLf+1}, 9, v{vL}
    v_add_u32 v{vLf+2}, {SLOTB}, v{vLf}
    v_add_u32 v{vLf+3}, 256, v{vLf+1}
    v_lshlrev_b32 v{vLf+4}, 3, v{vL}
    v_mov_b32 v6, {LSLOT-144}
    s_mov_b32 s{t0}, {SLOTB//4}
    s_mov_b32 s{t1}, 0xffffff00
    """)
    if "sprio" in X:
        for lv in (1, 2, 3):
            a(f"s_cmp_lt_u32 s{sW}, {4*lv}\ns_cbranch_scc1 L_SP\ns_setprio {lv}")
        a("L_SP:")
    mark(12)
    a("s_waitcnt vmcnt(0)")
    mark(7)
    SB = "dst_sel:DWORD dst_unused:UNUSED_PAD src0_sel:DWORD src1_sel:BYTE_0"

    def hist(k):
        a(f"""
        v_lshlrev_b32_sdwa v4, 2, v{rec(k)+2} {SB}
        v_lshlrev_b32_sdwa v{vPr+2*k+1}, 8, v{rec(k)+2} {SB}
        ds_add_rtn_u32 v{rec(k)+3}, v4, v{vONE} offset:{LCNT}
        v_mad_u32_u24 v{vPr+2*k}, v4, s{t0}, v6
        v_and_b32 v{rec(k)+2}, s{t1}, v{rec(k)+2}
        """)

    kloop("L_HD", hist)
    a(f"s_mov_b32 s{t2}, 0\ns_waitcnt lgkmcnt(0)")
    mark(24)

    def scat(k):
        r = rec(k)
        a(f"""
        v_cmpx_gt_u32 vcc, {CAP}, v{r+3}
        v_lshrrev_b32 v4, 2, v{r+3}
        v_and_b32 v5, 15, v{r+3}
        v_and_b32 v{r+3}, 3, v{r+3}
        s_andn2_b64 {sp(sM+2*k)}, {sp(sM+2*k)}, vcc
        v_mad_u32_u24 v{vPr+2*k}, v4, 48, v{vPr+2*k}
        v_cmp_eq_u32 vcc, 12, v5
        v_lshl_add_u32 v4, v{r+3}, 2, v{vPr+2*k}
        v_lshl_add_u32 v5, v{r+3}, 3, v{vPr+2*k}
        ds_write_b32 v4, v{r+2} offset:144
        ds_write_b64 v5, {vr(r,2)} offset:160
        s_and_b64 {sp(sO+2*k)}, vcc, exec
        s_bcnt1_i32_b64 s{t3}, {sp(sO+2*k)}
        s_add_u32 s{t2}, s{t2}, s{t3}
        """)

    kloop("L_SD", scat)
    mark(25)
    a(f"""
    s_cmp_lt_u32 s{sW}, 4
    s_cbranch_scc0 L_NTF
    s_mov_b32 exec_lo, -1
    s_mov_b32 exec_hi, 0
    global_load_dwordx2 v[70:71], v{vTFa}, {sp(sWS)} sc1
    L_NTF:
    s_mov_b64 exec, 1
    v_mov_b32 v4, s{t2}
    ds_add_rtn_u32 v7, v{vF}, v4 offset:{F_NQ}
    s_mov_b64 exec, -1
    v_cmp_lt_i32 vcc, {4*KMAX}, v{vRem}
    s_or_b64 {sp(t0)}, {sp(sM)}, {sp(sM+2)}
    s_or_b64 {sp(t2)}, {sp(sM+4)}, {sp(sM+6)}
    s_or_b64 {sp(t0)}, {sp(t0)}, {sp(sM+8)}
    s_or_b64 {sp(t2)}, {sp(t2)}, {sp(sM+10)}
    s_or_b64 {sp(t0)}, {sp(t0)}, {sp(sM+12)}
    s_or_b64 {sp(t0)}, {sp(t0)}, {sp(t2)}
    s_cselect_b32 s{sBIN}, 1, 0
    s_or_b64 exec, vcc, {sp(t0)}
    ds_write_b32 v{vF}, v{vONE} offset:{F_MORE}
    s_waitcnt lgkmcnt(1)
    v_readlane_b32 s{t2}, v7, 0
    s_lshl_b32 s{t2}, s{t2}, 3
    s_add_u32 s{t2}, s{t2}, {LTAB}
    """)

    def tab(k):
        a(f"""
        v_mbcnt_lo_u32_b32 v4, exec_lo, 0
        v_mbcnt_hi_u32_b32 v4, exec_hi, v4
        v_lshl_add_u32 v4, v4, 3, s{t2}
        s_bcnt1_i32_b64 s{t3}, exec
        s_lshl3_add_u32 s{t2}, s{t3}, s{t2}
        ds_write_b64 v4, {vr(vPr+2*k,2)}
        """)

    kloop("L_TD", tab, sO)
    mark(26)
    a(f"""
    s_mov_b64 exec, 1
    ds_add_u32 v{vF}, v{vONE} offset:{F_DONE}
    s_mov_b32 s{sFIRST}, 0
    s_mov_b32 s{sEG}, 0
    s_cmp_lt_u32 s{sW}, {os.environ.get("EW", 8)}
    s_cbranch_scc1 L_EG
    L_EGD:
    s_mov_b64 exec, -1
    s_waitcnt lgkmcnt(0)
    """)
    mark(8)
    a(f"""
    s_lshl4_add_u32 s{t0}, s2, s{sW}
    s_cmp_eq_u32 s{t0}, 15
    s_barrier                                     ; B6
    s_cbranch_scc1 L_EPO
    L_EPD:
    """)
    mark(9)
    if stamp:
        a("s_memtime s[96:97]\nv_mov_b32 v107, 0")
    vT, vAp, vS = 56, 80, 84
    vTQ, vNA, vFA, vQE = 88, 90, 92, 93
    vDn, vNm, vAa, vCk = 72, 100, 4, 106
    vD = (76, 78, 4, 6)
    sRET = sTHR + 1
    DW = int(os.environ.get('DW', 0))
    sPM = 79
    PRA, PRB = [int(x) for x in os.environ.get('PR', '5,2').split(',')]

    def sh(g):
        return (96, 98, 104, 124)[g]

    def saddr(S):
        if "a64" in X:
            a(f"v_lshl_add_u64 {vr(S,2)}, {vr(S,2)}, 0, v[126:127]\nv_lshl_add_u64 {vr(S+2,2)}, {vr(S+2,2)}, 0, v[126:127]")
            return
        a(f"""
        v_pk_add_f32 {vr(S,2)}, {vr(S,2)}, {vr(vLO,2)} op_sel_hi:[1,0]
        v_pk_add_f32 {vr(S+2,2)}, {vr(S+2,2)}, {vr(vLO,2)} op_sel_hi:[1,0]
        """)

    def loads(p, S, loop=False):
        for g in range(int(os.environ.get("NLD", 4)) if loop else 4):
            a(f"buffer_load_dwordx4 {vr(vW[p]+6*g,4)}, v{S+g}, {sq(SRD_T)}, 0 offen {os.environ.get('GF', 'sc1')}")

    def naddr(dst, TQ):
        a(f"v_pk_fma_f32 {vr(dst,2)}, {vr(TQ,2)}, {sp(s12)}, {vr(vLO,2)} op_sel:[1,0,0] op_sel_hi:[1,1,1]")

    def eread(q, half):
        a(f"s_mov_b64 exec, {sp(sEM)}")
        for g in range(4):
            a(f"ds_read_b64 {vr(vAo+4*g+2,2)}, v{q} offset:{48*half+16+8*g}")
        a("s_mov_b64 exec, -1")

    def hv(W, g, h):
        return vr(W + 6 * g, 2) if h == 0 else vr(sh(g), 2)

    def mfma(p, g, c=vAp):
        return f"v_mfma_f32_16x16x32_bf16 {vr(vT+4*g,4)}, {vr(vAo+4*g,4)}, {vr(vW[p]+6*g+2,4)}, {vr(c,4)}"

    def flush(ad):
        a(f"""
        v_pk_mul_f32 {vr(vNm,2)}, {vr(vNm,2)}, {vr(vDn,2)}
        v_pk_mul_f32 {vr(vNm+2,2)}, {vr(vNm+2,2)}, {vr(vDn+2,2)}
        """)
        for t in range(4):
            a(f"v_cvt_f64_f32 {vr(vD[t],2)}, v{vNm+t}")
        for t in range(4):
            a(f"ds_add_f64 v{ad}, {vr(vD[t],2)} offset:{128*t}")

    def check(lab):
        a(f"""
        v_pk_add_f32 {vr(vAa,2)}, {vr(vDn,2)}, {vr(vDn+2,2)}
        v_add_f32 v{vCk}, v{vAa}, v{vAa+1}
        v_cmp_nge_f32 vcc, s{sTHR}, v{vCk}
        s_cbranch_vccnz {lab}
        """)

    def leftover():
        for u in range(2):
            a(f"""
            v_min_u32 v{96+u}, {CAP}, v{96+u}
            v_add_u32 v{98+u}, 15, v{96+u}
            v_lshrrev_b32 v{96+u}, 4, v{96+u}
            v_bfe_u32 v{98+u}, v{98+u}, 2, 2
            """)
        a(f"""
        s_mov_b32 s{t3}, 192
        v_mad_u32_u24 v{vLf}, v96, s{t3}, v{vLf}
        v_mad_u32_u24 v{vLf+2}, v97, s{t3}, v{vLf+2}
        s_lshl3_add_u32 s{t2}, s{t0}, {LTAB}
        """)
        for c in range(3):
            for u in range(2):
                a(f"v_cmp_eq_u32 {sp(sO+4*c+2*u)}, {2-c}, v{98+u}")
        for c in range(3):
            a(f"s_mov_b32 s{sU5+c}, s{t2}")
            for u in range(2):
                a(f"""
                s_mov_b64 exec, {sp(sO+4*c+2*u)}
                v_mbcnt_lo_u32_b32 v96, exec_lo, 0
                v_mbcnt_hi_u32_b32 v96, exec_hi, v96
                v_lshl_add_u32 v96, v96, 3, s{t2}
                s_bcnt1_i32_b64 s{t3}, exec
                s_lshl3_add_u32 s{t2}, s{t3}, s{t2}
                ds_write_b64 v96, {vr(vLf+2*u,2)}
                """)
        a(f"""
        s_mov_b64 exec, -1
        s_sub_u32 s{t2}, s{t2}, {LTAB - 24}
        s_lshr_b32 s{t2}, s{t2}, 5
        s_sub_u32 s{t2}, s{t2}, s{sT0}
        s_add_u32 s{t2}, s{t2}, 15
        s_lshr_b32 s{t2}, s{t2}, 4
        s_lshl4_add_u32 s{t3}, s{t2}, s{sT0}
        s_lshl_b32 s{t3}, s{t3}, 5
        s_add_u32 s{t3}, s{t3}, {LTAB - 512}
        s_lshl2_add_u32 s{sN}, s{t2}, -2
        """)
        for c in range(3):
            a(f"s_cmp_lt_u32 s{t3}, s{sU5+c}\ns_addc_u32 s{sN}, s{sN}, 0")

    a(f"""
    ds_read_b64 v[4:5], v{vF} offset:{F_MORE}
    ds_read_b64 v[96:97], v{vLf+4} offset:{LCNT}
    L_PRE:
    ds_read_b64 {vr(vTQ,2)}, v{vP}
    ds_read_b32 v{vQE}, v{vP+1}
    s_setprio 3
    {f"s_cmp_ge_u32 s{sW}, {DW}" if DW else ""}
    {f"s_cselect_b32 s{sPM}, {(1 << PRA) | (1 << PRB)}, 0" if DW else ""}
    {"v_mov_b32 v126, v2" if "a64" in X else ""}
    {"v_mov_b32 v127, v2" if "a64" in X else ""}
    v_mov_b32 v{vFA}, v{vLO+1}
    v_mov_b64 {vr(vNm,2)}, 0
    v_mov_b64 {vr(vNm+2,2)}, 0
    s_waitcnt lgkmcnt(1)
    ds_read_b128 {vr(vT+4,4)}, v{vTQ}
    ds_read_b128 {vr(vS,4)}, v{vTQ} offset:48
    v_readfirstlane_b32 s{t0}, v5
    v_readfirstlane_b32 s{sMORE}, v4
    """)
    naddr(vNA, vTQ)
    a(f"""
    s_cmp_lt_u32 s{t0}, 64
    s_cbranch_scc1 L_FEW
    s_cmp_eq_u32 s{sEG}, 0
    s_waitcnt lgkmcnt(1)
    s_cbranch_scc0 L_G1
    """)
    saddr(vT + 4)
    loads(0, vT + 4)
    a("L_G1:")
    a(f"ds_read_b128 {vr(vAp,4)}, v{vNA} offset:{LA}")
    eread(vQE, 0)
    for t in range(4):
        a(f"v_mov_b32 v{vDn+t}, 1.0")
    a(f"s_cmp_eq_u32 s{t0}, -1\ns_cbranch_scc1 L_SB3")
    leftover()
    a("s_branch L_SB3")
    LP = int(os.environ.get("LP", 16))
    for q in range(4):
        p = q & 1
        W = vW[p]
        a(f"""
        L_L{q}:
        s_cmp_eq_u32 s{sN}, 1
        """)
        if LP > 16:
            a(f"ds_read_b128 {vr(vS,4)}, v{vTQ} offset:{48*((q+1)&3)}")
            if q == 2:
                a(f"ds_read_b64 {vr(vTQ,2)}, v{vP} offset:512")

        def late(g):
            if LP == 17 + g:
                a(f"s_cbranch_scc1 L_NL{q}")
                loads(p ^ 1, vS)
                a(f"L_NL{q}:")
        for i in range(17):
            if i == LP:
                a(f"s_cbranch_scc1 L_NL{q}")
                loads(p ^ 1, vS)
                a(f"L_NL{q}:")
                a(f"ds_read_b128 {vr(vS,4)}, v{vTQ} offset:{48*((q+2)&3)}")
                if q == 1:
                    a(f"ds_read_b64 {vr(vTQ,2)}, v{vP} offset:512")
            if i == 16:
                break
            a(f"v_exp_f32 v{vT+i}, v{vT+i}")
            if i == 7:
                eread(vQE, (q + 1) & 3)
                if q == 2:
                    a(f"ds_read_b32 v{vQE}, v{vP+1} offset:512")
                if q == 3:
                    a(f"v_mov_b32 v{vFA}, v{vNA+1}")
        if LP > 16:
            a(f"s_waitcnt lgkmcnt({6 if q == 2 else 4})")
            saddr(vS)
        if q == 0:
            flush(vFA)
        if q == 3:
            naddr(vNA, vTQ)
        if q == 3:
            a(f"ds_read_b128 {vr(vAp,4)}, v{vNA} offset:{LA}")
        if q == 0:
            for h in range(2):
                a(f"v_pk_add_f32 {vr(vDn+2*h,2)}, {vr(vT+2*h,2)}, 1.0 op_sel_hi:[1,0]")
            late(0)
        for g in range(1 if q == 0 else 0, 4):
            for h in range(2):
                src = hv(W, 0, h) if (g == 1 and q == 0) else vr(vNm + 2 * h, 2)
                a(f"v_pk_fma_f32 {vr(vAa+2*h,2)}, {src}, {vr(vT+4*g+2*h,2)}, {src}")
            for h in range(2):
                a(f"v_pk_fma_f32 {vr(vNm+2*h,2)}, {hv(W,g,h)}, {vr(vDn+2*h,2)}, {vr(vAa+2*h,2)}")
            for h in range(2):
                a(f"v_pk_fma_f32 {vr(vDn+2*h,2)}, {vr(vDn+2*h,2)}, {vr(vT+4*g+2*h,2)}, {vr(vDn+2*h,2)}")
            late(g)
        if q == 3:
            check("L_REDO1")
            a(f"L_RB1:\nv_pk_add_f32 {vr(vP,2)}, {vr(vP,2)}, {sp(sINC)}")
        a(f"""
        L_SB{q}:
        """)
        if "trace" in X:
            a(f"s_memtime s[92:93]\ns_add_u32 m0, s{sN}, 16")
        a(f"""
        s_cmp_eq_u32 s{sN}, 1
        s_waitcnt lgkmcnt(0)
        """)
        if "trace" in X:
            a("v_writelane_b32 v107, s92, m0")
        if LP <= 16:
            saddr(vS)
        a(f"""
        s_cbranch_scc1 {"L_LAST" if q == 3 else "L_CUT"}
        s_waitcnt vmcnt(0)
        L_M{q}:
        """)
        for g in range(4):
            a(mfma(p ^ 1, g))
            a(f"v_lshlrev_b64 {vr(sh(g),2)}, 16, {vr(vW[p^1]+6*g,2)}")
            if q == 3:
                a(f"v_rcp_f32 v{vDn+g}, v{vDn+g}")
        a(f"""
        s_sub_u32 s{sN}, s{sN}, 1
        s_bitcmp1_b32 {(1 << PRA) | (1 << PRB) | 2}, s{sN}
        s_cbranch_scc1 L_PR{q}
        """)
        if q == 3:
            a("s_branch L_L0")
    for q in (3, 0, 1, 2):
        a(f"""
        L_PR{q}:
        s_setprio 2
        s_cmp_eq_u32 s{sN}, {PRA}
        s_cbranch_scc1 L_L{(q+1)&3}
        s_setprio 1
        s_cmp_eq_u32 s{sN}, {PRB}
        s_cbranch_scc1 L_L{(q+1)&3}
        s_setprio 0
        s_branch L_L{(q+1)&3}
        """)
    a("L_CUT:")
    check("L_REDO0")
    a(f"L_RB0:\nv_mov_b32 v{vFA}, v{vNA+1}")
    a("L_LAST:")
    for g in range(4):
        a(f"v_rcp_f32 v{vDn+g}, v{vDn+g}")
    a("s_nop 0")
    flush(vFA)
    a(f"""
    L_LD:
    s_cmp_lt_u32 s{sW}, 10
    s_cbranch_scc0 L_LD2
    v_lshrrev_b32 v97, 3, v0
    v_and_b32 v98, 7, v0
    v_lshlrev_b32 v98, 4, v98
    """)
    if "u64" not in X:
        a(f"""
        s_mov_b32 s{t0}, {UST}
        v_add_u32 v99, {LU}, v98
        v_mad_u32_u24 v99, v97, s{t0}, v99
        ds_read2_b64 v[56:59], v99 offset0:0 offset1:1
        """)
    a(f"""
    s_mov_b32 s{t0}, {GST}
    v_mad_u32_u24 v96, v97, s{t0}, v98
    s_add_u32 s{t1}, s{sN0}, s{sH}
    v_cmp_gt_u32 {sp(sO)}, s{sNB}, v97
    v_lshlrev_b32 v97, 8, v97
    v_add3_u32 v97, v97, v98, s{t1}
    s_mov_b32 s{t2}, s{sLG}
    s_mov_b32 s{t3}, s{sLG}
    """)
    for i in range(0 if "u64" in X else 4):
        a(f"v_lshlrev_b32 v{60+2*i}, 16, v{56+i}\nv_and_b32 v{61+2*i}, s{t0}, v{56+i}")
    a("L_LD2:\ns_waitcnt lgkmcnt(0)")
    mark(10)
    if stamp:
        a("s_memtime s[92:93]\ns_waitcnt lgkmcnt(0)\ns_sub_u32 s92, s92, s96\nv_writelane_b32 v107, s92, 15\nv_writelane_b32 v107, s96, 16")
    a(f"""
    s_cmp_eq_u32 s{sMORE}, 0
    s_barrier                                     ; B8
    s_cbranch_scc0 L_MORE
    s_cmp_lt_u32 s{sW}, 10
    s_cbranch_scc0 L_FIN
    ds_read_b128 v[24:27], v96 offset:{LAGG}
    ds_read_b128 v[28:31], v96 offset:{LAGG+128}
    ds_read_b128 v[32:35], v96 offset:{LAGG+256}
    ds_read_b128 v[36:39], v96 offset:{LAGG+384}
    """)
    for t in range(4):
        a(f"s_waitcnt lgkmcnt({3-t})")
        for u in range(2):
            a(f"v_cvt_f32_f64 v{8+4*u+t}, {vr(24+4*t+2*u,2)}")
    for i in range(0 if "u64" in X else 4):
        a(f"v_pk_add_f32 {vr(8+2*i,2)}, {vr(8+2*i,2)}, {vr(60+2*i,2)}")
    for i in range(4):
        a(f"v_pk_mul_f32 {vr(16+2*i,2)}, {vr(8+2*i,2)}, {sp(t2)}")
    for i in range(8):
        a(f"v_exp_f32 v{16+i}, v{16+i}")
    for i in range(4):
        a(f"v_pk_add_f32 {vr(16+2*i,2)}, {vr(16+2*i,2)}, 1.0 op_sel_hi:[1,0]")
    for i in range(8):
        a(f"v_rcp_f32 v{16+i}, v{16+i}")
    for i in range(4):
        a(f"v_pk_mul_f32 {vr(16+2*i,2)}, {vr(16+2*i,2)}, {vr(8+2*i,2)}")
    for i in range(4):
        a(f"v_cvt_pk_bf16_f32 v{8+i}, v{16+2*i}, v{17+2*i}")
    a(f"""
    s_mov_b64 exec, {sp(sO)}
    global_store_dwordx4 v97, v[8:11], {sp(sOUT)} {os.environ.get('OF', 'sc1')}
    L_FIN:
    """)
    if stamp:
        a("s_mov_b64 exec, -1")
    if PROBE:
        a("s_waitcnt vmcnt(0)")
        mark(30)
        a(f"""
        s_lshl_b32 s{t0}, s2, 4
        s_add_u32 s{t0}, s{t0}, s{sW}
        s_cmp_eq_u32 s{t0}, {PROBE[0]}
        s_cbranch_scc0 L_PX
        s_memrealtime s[84:85]
        s_sub_u32 s96, s96, s94
        s_lshl_b32 s96, s96, 3
        s_min_u32 s96, s96, 100000
        s_waitcnt lgkmcnt(0)
        L_PS:
        s_memrealtime s[86:87]
        s_waitcnt lgkmcnt(0)
        s_sub_u32 s86, s86, s84
        s_cmp_lt_u32 s86, s96
        s_cbranch_scc1 L_PS
        L_PX:
        """)
    if stamp:
        a("s_waitcnt vmcnt(0)")
        mark(11)
        a("s_waitcnt lgkmcnt(0)")
        for i_, m_ in enumerate(sorted(SLOT)):
            a(f"v_writelane_b32 v107, s{SLOT[m_]}, {i_}")
        a(f"""
        s_lshl_b32 s3, s2, 4
        s_add_u32 s3, s3, s{sW}
        s_lshl_b32 s3, s3, 6
        s_add_u32 s3, s3, {WS_STAMP}
        v_lshl_add_u32 v4, v{vL}, 2, s3
        s_mov_b64 exec, 0xffff
        global_store_dword v4, v107, {sp(sWS)}
        s_mov_b64 exec, 0xffff0000
        v_add_u32 v4, {0x40000 - 64}, v4
        global_store_dword v4, v107, {sp(sWS)}
        """)
    a("s_endpgm")
    a(f"""
    L_POLL2:
    s_sub_u32 s{sSPIN}, s{sSPIN}, 1
    s_cbranch_scc1 L_POLLX
    s_sleep 2
    buffer_load_dwordx2 v[88:89], v{vOFFa}, {sq(SRD_W)}, 0 offen sc1
    s_waitcnt vmcnt(0)
    s_branch L_POLL
    L_POLLX:
    v_mov_b32 v88, 0
    s_mov_b32 s{sSPIN}, 0
    s_branch L_POLLED
    """)
    a(f"""
    """)
    a(f"""
    L_EPO:
    v_mov_b32 v6, {WS_EPOCH}
    v_mov_b32 v7, s{sEP}
    s_mov_b64 exec, 1
    global_store_dword v6, v7, {sp(sWS)} sc1
    s_mov_b64 exec, -1
    s_branch L_EPD
    L_EG:
    v_mov_b32 v6, 0x100
    s_cmp_ge_u32 s{sW}, 4
    s_cbranch_scc1 L_EG0
    s_mov_b32 exec_lo, -1
    s_mov_b32 exec_hi, 0
    L_TP:
    s_waitcnt vmcnt(0)
    v_cmp_ne_u64 vcc, {sp(sTAG)}, v[70:71]
    s_cbranch_vccz L_TRDY
    s_sub_u32 s{sSPIN}, s{sSPIN}, 1
    s_cbranch_scc1 L_END
    s_sleep 2
    global_load_dwordx2 v[70:71], v{vTFa}, {sp(sWS)} sc1
    s_branch L_TP
    L_TRDY:
    s_mov_b64 exec, 1
    ds_add_u32 v{vF}, v6 offset:{F_DONE}
    """)
    PFE = int(os.environ.get("PFE", 16))
    if PFE:
        a(f"""
        s_mul_i32 s{t2}, s{sW}, {2500*256}
        s_lshr_b32 s{t3}, s2, 3
        s_mul_i32 s{t3}, s{t3}, {156*128}
        s_add_u32 s{t2}, s{t2}, s{t3}
        s_bfm_b64 exec, {PFE}, 0
        v_lshlrev_b32 v5, 7, v{vL}
        buffer_load_dword v106, v5, {sq(SRD_T)}, s{t2} offen sc1
        """)
    a(f"""
    L_EG0:
    s_mov_b64 exec, -1
    L_EG1:
    s_sub_u32 s{sSPIN}, s{sSPIN}, 1
    s_cbranch_scc1 L_END
    {"s_sleep " + os.environ["SLE"] if os.environ.get("SLE") else ""}
    ds_read_b32 v7, v{vF} offset:{F_DONE}
    ds_read_b32 v4, v{vP}
    s_waitcnt lgkmcnt(0)
    ds_read_b128 {vr(vT+4,4)}, v4
    v_readfirstlane_b32 s{t0}, v7
    s_waitcnt lgkmcnt(0)
    v_or3_b32 v4, v{vT+4}, v{vT+5}, v{vT+6}
    v_or_b32 v4, v4, v{vT+7}
    v_cmp_le_u32 vcc, {DUMMY}, v4
    s_and_b32 s{t1}, s{t0}, 0xff
    s_cmp_eq_u32 s{t1}, 16
    s_cbranch_scc1 L_EGD
    s_cmp_lt_u32 s{t0}, 0x400
    s_cbranch_scc1 L_EG1
    s_cbranch_vccnz L_EG1
    """)
    saddr(vT + 4)
    loads(0, vT + 4)
    a(f"""
    s_mov_b32 s{sEG}, 1
    s_branch L_EGD
    L_FEW:
    s_mov_b32 s{sEG}, 0
    s_waitcnt vmcnt(0) lgkmcnt(0)
    """)
    leftover()
    a(f"""
    s_cmp_eq_u32 s{t2}, 0
    s_cbranch_scc1 L_LD
    v_mov_b32 v5, -1
    s_branch L_PRE
    L_REDO0:
    s_mov_b32 s{sRET}, 0
    s_branch L_REDO
    L_REDO1:
    s_mov_b32 s{sRET}, 1
    L_REDO:
    ds_read_b64 v[76:77], v{vP}
    ds_read_b32 v{vCk}, v{vP+1}
    v_mov_b64 {vr(vNm,2)}, 0
    v_mov_b64 {vr(vNm+2,2)}, 0
    s_mov_b32 s{t0}, 4
    s_waitcnt lgkmcnt(0)
    """)
    naddr(78, 76)
    a(f"""
    ds_read_b128 {vr(vDn,4)}, v78 offset:{LA}
    L_RD1:
    ds_read_b128 {vr(vAa,4)}, v76
    """)
    eread(vCk, 0)
    a("s_waitcnt lgkmcnt(0)")
    saddr(vAa)
    loads(1, vAa)
    a(f"""
    v_add_u32 v76, 48, v76
    v_add_u32 v{vCk}, 48, v{vCk}
    s_waitcnt vmcnt(0)
    """)
    for g in range(4):
        a(mfma(1, g, vDn))
    for g in range(4):
        a(f"v_lshlrev_b64 {vr(sh(g),2)}, 16, {vr(vW[1]+6*g,2)}")
    a("s_nop 3")
    for i in range(16):
        a(f"v_exp_f32 v{vT+i}, v{vT+i}")
    for i in range(8):
        a(f"v_pk_add_f32 {vr(vT+2*i,2)}, {vr(vT+2*i,2)}, 1.0 op_sel_hi:[1,0]")
    for i in range(16):
        a(f"v_rcp_f32 v{vT+i}, v{vT+i}")
    for g in range(4):
        for h in range(2):
            a(f"v_pk_fma_f32 {vr(vNm+2*h,2)}, {vr(vT+4*g+2*h,2)}, {hv(vW[1],g,h)}, {vr(vNm+2*h,2)}")
    a(f"""
    s_sub_u32 s{t0}, s{t0}, 1
    s_cmp_lg_u32 s{t0}, 0
    s_cbranch_scc1 L_RD1
    """)
    eread(vQE, 0)
    for t in range(4):
        a(f"v_mov_b32 v{vDn+t}, 1.0")
    a(f"""
    s_cmp_eq_u32 s{sRET}, 0
    s_cbranch_scc1 L_RB0
    s_branch L_RB1
    """)
    a(f"""
    L_MORE:
    s_setprio 0
    s_mov_b32 s{sSPIN}, {SPIN}
    v_mov_b32 v{vF}, {LFLAG}
    v_mov_b32 v{vONE}, 1
    v_lshlrev_b32 v4, 2, v0
    v_mov_b32 v5, 0
    v_cmp_gt_u32 vcc, 131, v0
    s_mov_b64 exec, vcc
    ds_write_b32 v4, v5 offset:{LCNT}
    s_mov_b64 exec, -1
    s_cmp_lt_u32 s{sW}, 12
    s_cbranch_scc1 L_FILL
    s_branch L_FD
    L_AGAIN:
    s_cmp_eq_u32 s{sBIN}, 0
    s_cbranch_scc0 L_LOADS
    v_subrev_u32 v{vRem}, {4*KMAX}, v{vRem}
    v_add_u32 v{vRO}, {48*KMAX}, v{vRO}
    s_branch L_WINDOW
    L_END:
    """)
    if "lay2" in X:
        L = a.l
        i, j, k = L.index("L_B1:") + 3, L.index("L_SETUP:"), L.index("L_STG:")
        assert "s_barrier" in L[i - 1]
        a.l = L[:i] + ["    s_branch L_B1X"] + L[j:k] + ["L_B1X:"] + L[i:j] + ["    s_branch L_SETUP"] + L[k:]
    elif "oldlay" not in X:
        L = a.l
        i, j, k = L.index("L_NOBIN:"), L.index("L_SETUP:"), L.index("L_STG:")
        assert L[i - 1].strip() == "s_branch L_SETUP"
        blk = L[i:j] + ["    s_branch L_SETUP"]
        a.l = L[:i - 1] + L[j:k] + blk + L[k:]
    return a.text()


def build(stamp=False):
    body = kernel(stamp)
    return f"""; Edge-gated MPNN layer, one fused launch.  Kernarg (80 bytes, pointers, base s[0:1]):
;
; @launch grid=(256,1,1) block=(1024,1,1) lds={LDS}
.amdgcn_target "amdgcn-amd-amdhsa--gfx950"
.text
.globl {NAME}
.p2align 8
.type {NAME},@function
{NAME}:
{body}    s_endpgm
.section .rodata,"a"
.p2align 6
.amdhsa_kernel {NAME}
  .amdhsa_next_free_vgpr 128
  .amdhsa_next_free_sgpr 102
  .amdhsa_accum_offset 128
  .amdhsa_group_segment_fixed_size 0
  .amdhsa_kernarg_size 80
  .amdhsa_user_sgpr_count 2
  .amdhsa_user_sgpr_kernarg_segment_ptr 1
  .amdhsa_system_sgpr_workgroup_id_x 1
  .amdhsa_float_denorm_mode_32 3
.end_amdhsa_kernel
"""


if __name__ == "__main__":
    open(sys.argv[1], "w").write(build(stamp="--stamp" in sys.argv))
```

```python
import sys, os
X = set(os.environ.get('X', '').split('+')) | {'u64', 'tprio'}
NAME = "standalone__edge_featured_mpnn_egc__graph_kernel"
N, E = 10000, 320000
NB, NBK, CH, NCH = 80, 128, 1250, 256
CHB = 15360
T_HALF = N * 256
RB = 12
WS_T, WS_REC, WS_OFF, WS_TF, WS_EPOCH, WS_STAMP = 0, 0x500000, 0xA00000, 0xA40000, 0xA80000, 0xB00000
NLOG2E = 0xBFB8AA3B
KA = dict(x=0, e=8, src=16, dst=24, u=32, v=40, g=48, out=56, dbg=64, ws=72)
AST, GST = 272, 528
LA, LAGG = 0, NB * AST
LHIST = LAGG + NB * GST
LCNT, LFLAG, LDUM = LHIST + 512, LHIST + 1024, LHIST + 1056
F_MORE, F_NQ, F_DONE, F_RV, F_LAND, F_EP, F_PUB = 0, 4, 8, 12, 16, 20, 24
LSTART, LCW = LHIST + 1280, LHIST + 1792
LW = LHIST + 2304
LX = LW + 65536
UST = 136
LU = LX + 20480
LDS = LU + (0 if 'u64' in X else NB * UST)
LSLOT, SLOTB, CAP = LW, 784, 64
LTAB = LX
assert LSTART < 65536
KMAX = 7
DUMMY = 0x400000
SPIN = 1 << 22
assert LW % 256 == 0 and LDS <= 163840


class Asm:
    def __init__(self):
        self.l = []

    def __call__(self, s):
        for ln in s.strip("\n").split("\n"):
            ln = ln.strip()
            if ln:
                self.l.append(ln if ln.endswith(":") else "    " + ln)

    def text(self):
        return "\n".join(self.l) + "\n"


def f2h(f):
    import struct
    return hex(struct.unpack('<I', struct.pack('<f', f))[0])


def vr(a, n):
    return f"v[{a}:{a+n-1}]" if n > 1 else f"v{a}"


def sp(a):
    return f"s[{a}:{a+1}]"


def sq(a):
    return f"s[{a}:{a+3}]"


def srd(a, d, base, off, size):
    a(f"s_add_u32 s{d}, s{base}, {off}\ns_addc_u32 s{d+1}, s{base+1}, 0")
    a(f"s_mov_b32 s{d+2}, {size}\ns_mov_b32 s{d+3}, 0x20000")


def scan64(a, v):
    for ctl in ("row_shr:1", "row_shr:2", "row_shr:4", "row_shr:8"):
        a(f"s_nop 1\nv_add_u32_dpp v{v}, v{v}, v{v} {ctl} row_mask:0xf bank_mask:0xf")
    a(f"s_nop 1\nv_add_u32_dpp v{v}, v{v}, v{v} row_bcast:15 row_mask:0xa bank_mask:0xf")
    a(f"s_nop 1\nv_add_u32_dpp v{v}, v{v}, v{v} row_bcast:31 row_mask:0xc bank_mask:0xf")


def kernel(stamp):
    a = Asm()
    PROBE = [int(x) for x in os.environ["PROBE"].split(",")] if os.environ.get("PROBE") else None
    MARKS = set(int(x) for x in os.environ["MARKS"].split(",")) if os.environ.get("MARKS") else None

    FREE = [4, 6, 8, 10, 12, 14, 16, 20, 98]
    SLOT = {0: 94}
    if stamp:
        for m_ in sorted((MARKS or set()) - {0}):
            SLOT[m_] = FREE.pop(0)

    def mark(n):
        if stamp and n in SLOT:
            a(f"s_memrealtime s[{SLOT[n]}:{SLOT[n]+1}]")
        if PROBE and n in PROBE[1:]:
            r = 94 + 2 * PROBE[1:].index(n)
            a(f"s_memrealtime s[{r}:{r+1}]\ns_waitcnt lgkmcnt(0)")

    sRW = 3
    sX, sE, sSRC, sDST, sU, sV, sG, sOUT, sDBG, sWS = 4, 6, 8, 10, 12, 14, 16, 18, 20, 22
    SRD_T, SRD_R, SRD_W = 24, 28, 32
    sM = 36
    sN, sBIN, sT0, sFIRST = 50, 51, 52, 53
    t0, t1, t2, t3 = 54, 55, 56, 57
    sMORE, sW = 58, 59
    sINC, s12, sTHR, sEM = 60, 62, 64, 66
    sH, sB, sC, sEP, sTAG, sTAG2, sSPIN, sLG = 68, 69, 70, 71, 72, 73, 74, 75
    sTAGB, sN0, sNB = 100, 101, 1
    sEG = 0
    sU5, sU4 = 76, 78
    sO = 80
    vL, vLO, vAo, vRO, vRem = 1, 2, 108, 126, 127
    vF, vONE = 124, 125
    vWf, vXb, vAcc, vPk, vA, vXa, vRow, vJn = 8, 40, 72, 88, 100, 96, 101, 102
    vOFFa, vR4, vCwa = 103, 104, 105
    LNT = "" if "nont" in X else "nt"
    XNT = "nt" if "xnt" in X else ""
    DNT = LNT if "dnt" in X else ""
    SNT = "" if "splain" in X else LNT
    CNT_ = "nt" if "cwnt" in X else ""
    WNT = "nt" if "wwnt" in X else ""

    RPF = 0
    vRp = 106

    def pollreq():
        a(f"buffer_load_dwordx2 v[88:89], v{vOFFa}, {sq(SRD_W)}, 0 offen sc1")
        a(f"ds_read_b32 v90, v{vF} offset:{F_EP}")

    def recpf():
        if RPF:
            a(f"""
            s_mov_b64 exec, {hex((1 << RPF) - 1)}
            buffer_load_dword v91, v{vRp}, {sq(SRD_R)}, 0 offen sc1
            s_mov_b64 exec, -1
            """)

    def spin(label, off, cond, val, slp=0):
        a(f"""
        {label}:
        s_sub_u32 s{sSPIN}, s{sSPIN}, 1
        s_cbranch_scc1 L_END
        {f"s_sleep {slp}" if slp else ""}
        ds_read_b32 v7, v{vF} offset:{off}
        s_waitcnt lgkmcnt(0)
        """)
        if cond == "lowne":
            a(f"v_and_b32 v7, 0xff, v7\nv_cmp_ne_u32 vcc, {val}, v7")
        elif cond == "midne":
            a(f"v_cmp_ne_u32 vcc, {val}, v7")
        else:
            a(f"v_cmp_{cond}_u32 vcc, {val}, v7")
        a(f"s_cbranch_vccnz {label}")

    MAP = os.environ.get("MAP", "hi")
    QSEL = {"par": f"s_bfe_u32 s{t0}, s2, 0x20001", "hi": f"s_and_b32 s{t0}, s2, 3",
            "mid": f"s_bfe_u32 s{t1}, s2, 0x10002\ns_and_b32 s{t0}, s2, 1\ns_lshl1_add_u32 s{t0}, s{t1}, s{t0}"}[MAP]
    HSEL = {"par": f"s_and_b32 s{t0}, s2, 1", "hi": f"s_bfe_u32 s{t0}, s2, 0x10002", "mid": f"s_bfe_u32 s{t0}, s2, 0x10001"}[MAP]
    mark(0)
    a(f"""
    s_load_dwordx16 s[4:19], s[0:1], 0
    s_load_dwordx4 s[20:23], s[0:1], {KA['dbg']}
    s_lshr_b32 s{sB}, s2, 3
    """)
    if "latewarm" not in X:
        a(f"""
        s_getpc_b64 {sp(t0)}
        L_PC:
        s_mul_i32 s{t3}, s{sB}, 384
        v_lshl_add_u32 v6, v0, 7, s{t3}
        v_cmp_gt_u32 vcc, 3, v0
        v_min_u32 v6, L_END-L_PC, v6
        s_cbranch_vccz L_NOCW
        v_mov_b32 v7, 0
        v_lshl_add_u64 v[6:7], v[6:7], 0, {sp(t0)}
        s_mov_b64 exec, vcc
        global_load_dword v9, v[6:7], off
        s_mov_b64 exec, -1
        L_NOCW:
        """)
    a(f"""
    {QSEL}
    s_lshl_b32 s{t0}, s{t0}, 5
    s_add_u32 s{sB}, s{sB}, s{t0}
    s_mul_i32 s{sN0}, s{sB}, 625
    s_add_u32 s{sN0}, s{sN0}, 7
    s_lshr_b32 s{sN0}, s{sN0}, 3
    s_lshl_b32 s{sN0}, s{sN0}, 8
    s_cmp_ge_u32 s2, 256
    s_cbranch_scc1 L_END
    v_lshrrev_b32 v4, 6, v0
    v_and_b32 v{vL}, 63, v0
    v_readfirstlane_b32 s{sW}, v4
    {HSEL}
    s_lshl_b32 s{sH}, s{t0}, 7                    ; half*128
    s_add_u32 s{sC}, s{sH}, s{sB}                 ; chunk
    s_sub_u32 s{sRW}, s{sW}, 5
    s_cmp_lt_u32 s{sRW}, 5
    s_cbranch_scc0 L_NOBIN
    """)
    B1 = "s_barrier                                     ; B1"
    HM = "s_mov_b32 exec_hi, 0x1fffffff"
    FM = "s_mov_b32 exec_hi, -1"
    a(f"""
    s_mul_i32 s{t1}, s{sC}, {CH*4}
    s_mul_i32 s{t2}, s{sRW}, 1000
    s_add_u32 s{t1}, s{t1}, s{t2}
    v_lshl_add_u32 v20, v{vL}, 3, s{t1}
    v_lshlrev_b32 v21, 1, v20
    s_setprio 3
    s_mov_b32 s{sBIN}, 1
    s_waitcnt lgkmcnt(0)
    global_load_dwordx2 v[4:5], v20, {sp(sDST)}
    {HM}
    global_load_dwordx2 v[6:7], v20, {sp(sDST)} offset:512
    {B1}
    global_load_dwordx2 v[10:11], v20, {sp(sSRC)} offset:512 nt
    {FM}
    global_load_dwordx2 v[8:9], v20, {sp(sSRC)} nt
    global_load_dwordx4 v[12:15], v21, {sp(sE)} nt
    {HM}
    global_load_dwordx4 v[16:19], v21, {sp(sE)} offset:1024 nt
    {FM}
    """)
    a(f"""
    s_mul_i32 s{t0}, s{sC}, {CHB}
    s_add_u32 s{t0}, s{t0}, {WS_REC}
    """)
    srd(a, SRD_W, sWS, f"s{t0}", (CH * RB + 127) // 128 * 128)
    a(f"""
    s_add_u32 s{t2}, s{sWS}, {WS_EPOCH}
    s_addc_u32 s{t3}, s{sWS+1}, 0
    s_load_dword s{sEP}, {sp(t2)}, 0
    """)
    a(f"""
    s_branch L_SETUP
    L_NOBIN:
    s_mov_b32 s{sBIN}, 0
    s_cmp_lt_u32 s{sW}, 10
    s_cbranch_scc1 L_B1
    s_cmp_eq_u32 s{sW}, 15
    s_cbranch_scc1 L_WARM
    v_lshlrev_b32 v12, 2, v0
    v_lshrrev_b32 v16, 2, v0
    v_subrev_u32 v16, {(640 + (LDUM - LHIST) // 4) // 4}, v16
    v_min_u32 v16, 31, v16
    v_mov_b32 v15, 0x249
    v_bfe_u32 v13, v15, v16, 1
    v_lshlrev_b32 v13, 22, v13
    ds_write_b32 v12, v13 offset:{LHIST - 2560}
    s_branch L_B1
    L_WARM:
    """)
    a(f"""
    s_lshr_b32 s{t2}, s2, 3
    s_mul_i32 s{t2}, s{t2}, 9
    v_add_u32 v6, s{t2}, v{vL}
    v_min_u32 v8, 259, v6
    v_lshl_add_u32 v8, v8, 8, s{sH}
    s_lshr_b32 s{t2}, s{t2}, 1
    v_add_u32 v6, s{t2}, v{vL}
    v_min_u32 v6, 127, v6
    v_lshl_add_u32 v6, v6, 8, s{sH}
    v_lshrrev_b32 v4, 4, v{vL}
    v_and_b32 v5, 15, v{vL}
    v_lshl_add_u32 v4, v5, 2, v4
    s_add_u32 s{t2}, s{sH}, {256*256}
    v_lshl_add_u32 v4, v4, 1, s{t2}
    s_waitcnt lgkmcnt(0)
    s_mov_b64 exec, 0x1ff
    global_load_dword v9, v8, {sp(sG)} {WNT}
    s_mov_b64 exec, 31
    global_load_dword v9, v6, {sp(sV)} {WNT}
    global_load_dword v9, v6, {sp(sU)} {WNT}
    s_mov_b64 exec, -1
    global_load_short_d16_hi v10, v4, {sp(sG)}
    global_load_short_d16_hi v11, v4, {sp(sG)} offset:256
    global_load_short_d16_hi v12, v4, {sp(sG)} offset:512
    global_load_short_d16_hi v13, v4, {sp(sG)} offset:768
    L_B1:
    s_waitcnt lgkmcnt(0)
    s_barrier                                     ; B1
    """)
    if "xlate" in X:
        a(f"""
        s_cmp_eq_u32 s{sW}, 10
        s_cselect_b32 s{sRW}, 1, 0
        s_cbranch_scc1 L_XL
        s_cmp_eq_u32 s{sW}, 4
        s_cbranch_scc1 L_XL
        """)
    else:
        a(f"""
        s_mov_b32 s{sRW}, s{sW}
        s_cmp_lt_u32 s{sW}, 2
        s_cbranch_scc1 L_XL
        """)
    a(f"""
    s_cmp_lt_u32 s{sW}, 5
    s_cselect_b32 s{sRW}, {0 if "xlate" in X else 2}, 7
    s_sub_u32 s{sRW}, s{sW}, s{sRW}
    v_lshrrev_b32 v26, 3, v{vL}
    v_lshlrev_b32 v26, 8, v26
    v_and_b32 v28, 7, v{vL}
    v_lshlrev_b32 v28, 4, v28
    v_and_b32 v27, 16, v{vL}
    v_lshlrev_b32 v27, 1, v27
    v_xor_b32 v28, v28, v27
    v_add3_u32 v26, v26, v28, s{sH}
    v_xor_b32 v27, 64, v26
    s_add_u32 s{SRD_W}, s{sG}, {128*256}
    s_addc_u32 s{SRD_W+1}, s{sG+1}, 0
    s_cmp_ge_u32 s{sRW}, 2
    s_cselect_b64 {sp(SRD_W)}, {sp(sV)}, {sp(SRD_W)}
    s_cmp_ge_u32 s{sRW}, 4
    s_cselect_b64 {sp(SRD_W)}, {sp(sG)}, {sp(SRD_W)}
    s_cmp_ge_u32 s{sRW}, 6
    s_cselect_b64 {sp(SRD_W)}, {sp(sU)}, {sp(SRD_W)}
    s_mov_b32 s{SRD_W+2}, {128*256}
    s_mov_b32 s{SRD_W+3}, 0x20000
    s_cmp_ge_u32 s{sRW}, 4
    {"s_barrier" if "b1b" in X else ""}
    s_cbranch_scc1 L_SETUP
    """)
    if "u64" not in X:
        a(f"""
        v_lshlrev_b32 v17, 4, v0
        v_mov_b64 v[20:21], 0
        v_mov_b64 v[22:23], 0
        v_min_u32 v18, {11264 + NB * GST - 8 * 5120 - 16}, v17
        """)
    for i in range(0 if "u64" in X else 9):
        a(f"ds_write_b128 v{17 if i < 8 else 18}, v[20:23] offset:{LAGG - 11264 + 5120 * i}")

    def wdma(lab):
        a(f"""
        s_and_b32 s{t0}, s{sRW}, 1
        s_lshl_b32 s{t0}, s{t0}, 14
        s_lshl_b32 s{t1}, s{sRW}, 13
        s_add_u32 s{t1}, s{t1}, {LW}
        s_mov_b32 s{t2}, 4
        {lab}:
        s_mov_b32 m0, s{t1}
        s_add_u32 s{t3}, s{t0}, 1024
        buffer_load_dwordx4 v26, {sq(SRD_W)}, s{t0} offen lds
        buffer_load_dwordx4 v27, {sq(SRD_W)}, s{t3} offen offset:1024 lds
        s_add_u32 s{t0}, s{t0}, 4096
        s_add_u32 s{t1}, s{t1}, 2048
        s_sub_u32 s{t2}, s{t2}, 1
        s_cmp_lg_u32 s{t2}, 0
        s_cbranch_scc1 {lab}
        """)

    wdma("L_WL")
    a(f"""
    s_branch L_SETUP
    L_XL:
    v_lshrrev_b32 v4, 4, v{vL}
    v_and_b32 v5, 15, v{vL}
    v_xor_b32 v5, v5, v4
    v_lshlrev_b32 v5, 4, v5
    s_lshl_b32 s{t1}, s{sRW}, 7
    v_xor_b32 v5, s{t1}, v5
    s_mul_i32 s{t0}, s{sRW}, 10240
    s_add_u32 s{t2}, s{sN0}, s{t0}
    s_sub_u32 s{t3}, {N*256}, s{t2}
    v_lshl_add_u32 v4, v4, 8, v5
    s_add_u32 s{t1}, s{t0}, {LX}
    v_xor_b32 v5, 64, v4
    v_xor_b32 v6, 0x80, v4
    v_xor_b32 v7, 0xc0, v4
    v_mov_b32 v26, 0
    v_mov_b32 v27, 0
    """)
    srd(a, SRD_W, sX, f"s{t2}", f"s{t3}")
    a(f"s_mov_b32 s{t0}, 0\ns_mov_b32 s{sRW}, 0")
    if "b1b" in X:
        a("s_barrier")
    for i in range(10):
        if i % 4 == 0:
            a(f"s_mov_b32 m0, s{t1}\ns_add_u32 s{t1}, s{t1}, 4096")
        a(f"buffer_load_dwordx4 v{4+i%4}, {sq(SRD_W)}, s{t0} offen offset:{1024*(i%4)} {XNT} lds")
        if i % 4 == 3:
            a(f"s_add_u32 s{t0}, s{t0}, 4096")
    a(f"""
    L_SETUP:
    s_and_b32 s{sT0}, s{sW}, 3
    s_cmp_ge_u32 s{sW}, 12
    s_cselect_b32 s{t0}, {2*16384}, 0
    s_add_u32 s{t0}, s{t0}, {LW}
    s_mov_b32 s{t1}, {LX}
    v_lshrrev_b32 v40, 4, v{vL}                   ; sigma
    v_bfe_u32 v41, v{vL}, 2, 2
    v_and_b32 v42, 3, v{vL}
    v_and_b32 v{vJn}, 15, v{vL}
    v_lshlrev_b32 v43, 10, v40
    v_lshlrev_b32 v44, 7, v41
    v_lshl_add_u32 v44, v42, 3, v44
    v_bfe_u32 v45, v{vL}, 3, 2
    v_xor_b32 v45, s{sT0}, v45
    v_lshl_add_u32 v45, v45, 5, v44
    v_add3_u32 v{vA}, v43, v45, s{t0}
    s_lshl_b32 s{t0}, s{sT0}, 2
    v_add_u32 v{vRow}, s{t0}, v40
    v_xor_b32 v43, v{vJn}, v40
    v_lshlrev_b32 v43, 4, v43
    v_lshlrev_b32 v44, 8, v{vJn}
    v_add3_u32 v{vXa}, v43, v44, s{t1}
    v_xor_b32 v{vXa+1}, 64, v{vXa}
    v_xor_b32 v{vXa+2}, 0x80, v{vXa}
    v_xor_b32 v{vXa+3}, 0xc0, v{vXa}
    s_mov_b32 s{t0}, {LCW}
    v_lshl_add_u32 v{vCwa}, v{vL}, 3, s{t0}
    v_cmp_eq_u32 vcc, v40, v41
    v_mov_b32 v43, 0x3f80
    v_cmp_eq_u32 {sp(sEM)}, v40, v42
    v_cndmask_b32 v{vAo}, 0, v43, vcc
    v_mov_b32 v{vAo+1}, 0
    v_lshlrev_b32 v42, 4, v42
    v_lshlrev_b64 {vr(vAo,2)}, v42, {vr(vAo,2)}
    """)
    for g in range(4):
        if g:
            a(f"v_mov_b64 {vr(vAo+4*g,2)}, {vr(vAo,2)}")
        a(f"v_mov_b64 {vr(vAo+4*g+2,2)}, 0")
    a(f"""
    v_lshlrev_b32 v{vLO}, 4, v{vJn}
    v_lshlrev_b32 v{vLO+1}, 3, v{vJn}
    v_add_u32 v{vLO+1}, {LAGG}, v{vLO+1}
    v_lshrrev_b32 v40, 2, v0
    s_lshl_b32 s{t0}, s{sB}, 3
    v_lshl_add_u32 v{vOFFa}, v40, 10, s{t0}
    v_mul_u32_u24 v{vRO}, {CHB}, v40
    v_mov_b32 v{vF}, {LFLAG}
    v_mov_b32 v{vONE}, 1
    s_and_b32 s{t0}, s{sB}, 7
    s_cmp_eq_u32 s{t0}, 0
    s_addc_u32 s{sNB}, 78, 0
    s_mov_b32 s{sLG}, {hex(NLOG2E)}
    s_mov_b32 s{s12}, {f2h(AST/256)}
    s_mov_b32 s{s12+1}, {f2h(GST/256)}
    s_mov_b32 s{sINC}, 512
    s_mov_b32 s{sINC+1}, 512
    s_mov_b32 s{sTHR}, 0x67800000                 ; 2^80
    s_mov_b32 s{sFIRST}, 1
    s_mov_b32 s{sSPIN}, {SPIN}
    s_mul_i32 s{t1}, s{sH}, {T_HALF//128}
    """)
    srd(a, SRD_T, sWS, f"s{t1}", T_HALF)
    srd(a, SRD_R, sWS, WS_REC, NCH * CHB)
    a(f"""
    s_cmp_eq_u32 s{sBIN}, 0
    s_cbranch_scc1 L_STG
    s_mov_b32 s{t0}, 429497
    s_mov_b32 s{t1}, 625
    v_lshlrev_b32 v33, 3, v{vL}
    s_mul_i32 s{t2}, s{sRW}, 3072
    v_lshl_add_u32 v32, v{vL}, 4, s{t2}
    s_waitcnt vmcnt(4)
    """)
    mark(1)
    for i in range(4):
        a(f"""
        {HM if i == 2 else ""}
        v_mul_u32_u24 v{24+i}, s{t0}, v{4+i}
        v_lshrrev_b32 v{24+i}, 25, v{24+i}
        v_lshlrev_b32 v{20+i}, 2, v{24+i}
        ds_add_rtn_u32 v{28+i}, v{20+i}, v{vONE} offset:{LHIST}
        """)
    a(f"""
    s_mov_b64 exec, 1
    ds_add_u32 v{vF}, v{vONE} offset:{F_RV}
    s_mov_b64 exec, -1
    """)
    for i in range(4):
        a(f"""
        v_mad_u32_u24 v{24+i}, v{24+i}, s{t1}, 7
        v_lshrrev_b32 v{24+i}, 3, v{24+i}
        v_sub_u32 v{24+i}, v{4+i}, v{24+i}
        """)
    a("s_mov_b64 exec, 1")
    if "spr" in X:
        a("s_setprio 1")
    spin("L_BS1", F_RV, "gt", 5, int(os.environ.get("SLB", 0)))
    if "spr" in X:
        a("s_setprio 3")
    mark(15)
    a(f"""
    s_mov_b64 exec, -1
    ds_read_b64 v[34:35], v33 offset:{LHIST}
    s_add_u32 s{sEP}, s{sEP}, 1
    s_xor_b32 s{sTAG2}, s{sEP}, 0x2545F491
    s_mul_i32 s{sTAG}, s{sTAG2}, 0x9E3779B1
    s_mul_i32 s{sTAG2}, s{sTAG2}, 0x85EBCA6B
    s_lshr_b32 s{sTAGB}, s{sTAG2}, 25
    s_waitcnt lgkmcnt(0)
    v_add_u32 v36, v34, v35
    v_mov_b32 v37, v36
    """)
    scan64(a, 37)
    a(f"""
    v_sub_u32 v38, v37, v36
    v_add_u32 v39, v38, v34
    v_mul_u32_u24 v38, {RB}, v38
    v_mul_u32_u24 v39, {RB}, v39
    ds_write_b64 v33, v[38:39] offset:{LSTART}
    """)
    for i in range(4):
        a(f"{HM if i == 2 else ''}\nds_read_b32 v{20+i}, v{20+i} offset:{LSTART}")
    a(FM)
    a(f"""
    s_lshl_b32 s{t0}, s{sTAGB}, 25
    s_lshl_b32 s{t1}, s{sC}, 10
    s_add_u32 s{t1}, s{t1}, {WS_OFF}
    v_lshl_or_b32 v48, v34, 14, v38
    v_lshl_or_b32 v50, v35, 14, v39
    v_or_b32 v48, s{t0}, v48
    v_or_b32 v50, s{t0}, v50
    v_mov_b32 v49, s{sTAG}
    v_mov_b32 v51, s{sTAG}
    v_lshl_add_u32 v52, v{vL}, 4, s{t1}
    """)
    mark(16)
    a(f"""
    s_waitcnt vmcnt(2) lgkmcnt(0)
    """)
    for i in range(4):
        a(f"""
        {HM if i == 2 else ""}
        v_mad_u32_u24 v{20+i}, v{28+i}, {RB}, v{20+i}
        v_lshl_or_b32 v{24+i}, v{8+i}, 8, v{24+i}
        ds_write_b32 v{20+i}, v{24+i} offset:8
        """)
    for i in range(4):
        if i % 2 == 0:
            a(f"{HM if i else FM}\ns_waitcnt vmcnt({1 - i // 2})")
        a(f"ds_write2_b32 v{20+i}, v{12+2*i}, v{13+2*i} offset0:0 offset1:1")
    mark(13)
    a(f"""
    s_mov_b64 exec, 1
    ds_add_u32 v{vF}, v{vONE} offset:{F_RV}
    """)
    if "spr" in X:
        a("s_setprio 1")
    spin("L_BS2", F_RV, "gt", 10, int(os.environ.get("SLB", 0)))
    if "spr" in X:
        a("s_setprio 3")
    a("s_mov_b64 exec, -1")
    for i in range(3):
        a(f"ds_read_b128 {vr(8+4*i,4)}, v32 offset:{1024*i}")
    for i in range(3):
        a(f"s_waitcnt lgkmcnt({2-i})\nbuffer_store_dwordx4 {vr(8+4*i,4)}, v32, {sq(SRD_W)}, 0 offen offset:{1024*i} sc1")
    a(f"""
    s_mov_b64 exec, 1
    """)
    mark(2)
    a(f"""
    s_waitcnt vmcnt(0)
    ds_add_rtn_u32 v7, v{vF}, v{vONE} offset:{F_PUB}
    s_waitcnt lgkmcnt(0)
    v_cmp_eq_u32 vcc, 4, v7
    s_mov_b64 exec, -1
    s_cbranch_vccz L_NOPUB
    global_store_dwordx4 v52, v[48:51], {sp(sWS)} sc1
    L_NOPUB:
    s_setprio 0
    v_mov_b32 v4, s{sEP}
    ds_write_b32 v{vF}, v4 offset:{F_EP}
    """)
    mark(4)
    a(f"""
    """)
    if os.environ.get("TV"):
        a(f"""
        s_lshl_b32 s{t2}, s{sC}, 7
        s_add_u32 s{t2}, s{t2}, {WS_TF}
        v_mov_b32 v8, s{t2}
        v_mov_b32 v10, s{sTAG}
        v_mov_b32 v11, s{sTAG2}
        s_branch L_GD
        """)
    else:
        a(f"""
    s_cmp_eq_u32 s{sW}, 5
    s_cbranch_scc0 L_GD
    s_lshl_b32 s{t2}, s{sC}, 7
    s_add_u32 s{t2}, s{t2}, {WS_TF}
    v_mov_b32 v8, s{t2}
    v_mov_b32 v10, s{sTAG}
    v_mov_b32 v11, s{sTAG2}
        """)
        srd(a, SRD_W, sWS, WS_OFF, NCH * 1024)
        a(f"""
    s_mov_b64 exec, 1
    s_waitcnt lgkmcnt(0)
    s_barrier                                     ; B5
    global_store_dwordx2 v8, v[10:11], {sp(sWS)} sc1
    s_mov_b64 exec, -1
    s_branch L_TSD
        """)
    a(f"""
    L_STG:
    v_mov_b32 v6, 1
    s_cmp_lt_u32 s{sRW}, 4
    s_cbranch_scc1 L_EARLY
    s_cmp_eq_u32 s{sRW}, 8
    s_cbranch_scc1 L_GC
    """)
    a(f"""
    ; Ga / U go out once half of the first copies have landed
    s_mov_b64 exec, 1
    """)
    TRG = os.environ.get("TRG", "land3")
    spin("L_BS3", F_LAND if TRG[:4] == "land" else F_RV, "gt", int(TRG.lstrip("landrv")), 2)
    a("s_mov_b64 exec, -1")
    wdma("L_WL2")
    a(f"""
    v_mov_b32 v6, 0x100
    L_EARLY:
    s_mov_b64 exec, 1
    s_waitcnt vmcnt(0)
    ds_add_u32 v{vF}, v6 offset:{F_LAND}
    """)
    mark(13)
    a(f"""
    s_cmp_ge_u32 s{sW}, 12
    s_cbranch_scc1 L_LAND2
    s_cmp_ge_u32 s{sW}, 4
    s_cbranch_scc1 L_GD
    """)
    spin("L_LAND1", F_LAND, "lowne", 6, int(os.environ.get("SL1", 0)))
    a("s_mov_b64 exec, -1")
    if "tprio" in X:
        a("s_setprio 2")
    mark(3)

    def gemm(epi, pre, post=None, hook=None):
        def xr(n, ks):
            a(f"ds_read_b128 {vr(vXb+16*(n&1)+4*ks,4)}, v{vXa+ks} offset:{4096*n}")
        for ks in range(4):
            xr(0, ks)
            for m in range(2):
                o = m * 16384 + ks * 4096
                r = vWf + 16 * m + 4 * ks
                a(f"ds_read_b64_tr_b16 {vr(r,2)}, v{vA} offset:{o}")
                a(f"ds_read_b64_tr_b16 {vr(r+2,2)}, v{vA} offset:{o+512}")
            if ks == 1:
                pre()
                a("s_waitcnt lgkmcnt(4)")
        IL = "noil" not in X
        if not IL:
            a("s_waitcnt lgkmcnt(9)")
            for ks in range(4):
                xr(1, ks)
        prev_lds = 0
        for n in range(6):
            ops = epi(n - 1) if n else []
            tail = [o[1:] for o in ops if o[0] == "@"]
            ops = [o for o in ops if o[0] != "@"]
            if n == 5:
                ops += tail
                if post:
                    a("s_nop 3")
                    for o in ops[:-4]:
                        a(o)
                    a("s_waitcnt lgkmcnt(0)")
                    post(3)
                    for o in ops[-4:]:
                        a(o)
                    a("s_waitcnt lgkmcnt(0)")
                    post(4)
                    break
                a("s_nop 7")
                for o in ops:
                    a(o)
                break
            late = post and n >= 2
            if IL:
                a(f"s_waitcnt lgkmcnt({prev_lds})")
                prev_lds = len([o for o in ops + tail if o.startswith("ds_")])
            else:
                a(f"s_waitcnt lgkmcnt({(4 if n < 4 else 0) + (4 if late else 0)})")
            if n == 0:
                mark(21)
            per = -(-len(ops) // 5)
            for ks in range(4):
                for m in range(2):
                    acc = vAcc + 8 * (n & 1) + 4 * m
                    c = "0" if ks == 0 else vr(acc, 4)
                    a(f"v_mfma_f32_16x16x32_bf16 {vr(acc,4)}, {vr(vWf+16*m+4*ks,4)}, {vr(vXb+16*(n&1)+4*ks,4)}, {c}")
                    if IL and 2 * ks + m < 4:
                        if n < 4:
                            xr(n + 1, 2 * ks + m)
                        else:
                            a("s_nop 0")
                    if late and 2 * ks + m == 3:
                        a(f"s_waitcnt lgkmcnt({4 if n < 4 else 0})")
                        post(n - 2)
                    if 2 * ks + m >= 3:
                        for o in ops[:per]:
                            a(o)
                        ops = ops[per:]
            assert not ops
            for o in tail:
                a(o)
            if IL:
                pass
            elif n + 2 < 5:
                for ks in range(4):
                    xr(n + 2, ks)
            elif n == 3:
                a("s_nop 3")
            if hook:
                hook(n)

    def t_pre():
        a(f"""
        s_mov_b32 s{t0}, s{sN0}
        s_lshl_b32 s{t2}, s{sNB}, 2
        s_sub_u32 s{t2}, 320, s{t2}
        s_lshr_b32 s{t2}, -1, s{t2}
        """)
        if "nobp" in X:
            a(f"""
            v_lshlrev_b32 v4, 8, v{vJn}
            v_lshl_add_u32 v4, v{vRow}, 4, v4
            """)
        else:
            a(f"""
            v_lshrrev_b32 v6, 2, v{vL}
            v_and_b32 v7, 3, v{vL}
            s_lshl_b32 s{t1}, s{sT0}, 6
            v_lshl_add_u32 v4, v6, 8, s{t1}
            v_lshl_add_u32 v4, v7, 4, v4
            v_lshl_add_u32 v5, v7, 4, v6
            v_lshlrev_b32 v5, 2, v5
            """)
        a(f"""
        s_mov_b32 s{t1}, 0x07060302
        s_setreg_imm32_b32 hwreg(HW_REG_MODE, 4, 2), 0
        """)

    def t_epi(n):
        P = vPk + 4 * (n & 1)
        b = [vAcc + 8 * (n & 1) + t for t in range(4)]
        h = [vAcc + 8 * (n & 1) + 4 + t for t in range(4)]
        SD = "clamp dst_sel:DWORD dst_unused:UNUSED_PAD src0_sel:DWORD src1_sel:WORD_1"
        o = [f"v_mul_f32 v{b[t]}, s{sLG}, v{b[t]}" for t in range(4)]
        o += [f"v_add_f32 v{h[t]}, 0, v{h[t]}" for t in (0, 1, 3)]
        o += [f"v_add_u32 v{h[t]}, 0x8000, v{h[t]}" for t in (2, 0, 3, 1)]
        o += [f"v_sub_u32_sdwa v{h[0]}, v{h[0]}, v{h[2]} {SD}",
              f"v_cvt_pk_bf16_f32 v{P+2}, v{b[0]}, v{b[1]}",
              f"v_sub_u32_sdwa v{h[3]}, v{h[3]}, v{h[0]} {SD}",
              f"v_cvt_pk_bf16_f32 v{P+3}, v{b[2]}, v{b[3]}",
              f"v_sub_u32_sdwa v{h[1]}, v{h[1]}, v{h[3]} {SD}",
              f"v_perm_b32 v{P}, v{h[0]}, v{h[2]}, s{t1}",
              f"v_perm_b32 v{P+1}, v{h[1]}, v{h[3]}, s{t1}"]
        if "nobp" in X:
            o += [f"buffer_store_dwordx4 {vr(P,4)}, v4, {sq(SRD_T)}, s{t0} offen sc1",
                  f"s_add_u32 s{t0}, s{t0}, 4096"]
        else:
            o += [f"ds_bpermute_b32 v{P+u}, v5, v{P+u}" for u in (2, 3, 0, 1)]
        return o

    def t_post(n):
        if n == 4:
            a(f"s_mov_b32 exec_hi, s{t2}")
        a(f"buffer_store_dwordx4 {vr(vPk+4*(n&1),4)}, v4, {sq(SRD_T)}, s{t0} offen sc1\ns_add_u32 s{t0}, s{t0}, 4096")
        mark(40 + n)

    gemm(t_epi, t_pre, None if "nobp" in X else t_post)
    a(f"""
    s_setreg_imm32_b32 hwreg(HW_REG_MODE, 4, 2), 3
    """)
    a("s_setprio 0")
    a(f"s_waitcnt vmcnt({os.environ.get('TV', 0)})")
    a(f"""
    s_branch L_GD
    L_GC:
    s_mov_b32 s{t0}, 0xffff0000
    s_waitcnt vmcnt(0)
    """)
    for q in range(4):
        a(f"v_and_b32 v{10+q}, s{t0}, v{10+q}")
    for q in range(4):
        a(f"v_mul_f32 v{10+q}, s{sLG}, v{10+q}")
    a(f"""
    v_cvt_pk_bf16_f32 v10, v10, v11
    v_cvt_pk_bf16_f32 v11, v12, v13
    ds_write_b64 v{vCwa}, v[10:11]
    s_mov_b64 exec, 1
    """)
    if "w15slp" in X:
        spin("L_BS5", F_LAND, "gt", 0x100, 4)
    spin("L_LAND2", F_LAND, "ne", 0x406)
    a("s_mov_b64 exec, -1")
    mark(3)

    def au_pre():
        a(f"""
        s_mov_b32 s{t0}, {AST}
        s_mov_b32 s{t1}, {GST if "u64" in X else UST}
        s_mov_b32 s{t2}, {0 if "u64" in X else LU}
        v_lshlrev_b32 v4, 4, v{vRow}
        v_lshl_add_u32 v5, v{vRow}, 3, s{t2}
        v_mad_u32_u24 v4, v{vJn}, s{t0}, v4
        v_mad_u32_u24 v5, v{vJn}, s{t1}, v5
        """)

    def au_epi(n):
        A = vAcc + 8 * (n & 1)
        o = [f"v_mul_f32 v{A+t}, s{sLG}, v{A+t}" for t in range(4)]
        if "u64" in X:
            o += [f"ds_write_b128 v4, {vr(A,4)} offset:{LA+16*AST*n}"]
            D = (92, 94, 104, 6)
            o += ["@" + f"v_cvt_f64_f32 {vr(D[t],2)}, v{A+4+t}" for t in range(4)]
            o += ["@" + f"ds_write_b64 v5, {vr(D[t],2)} offset:{LAGG+16*GST*n+128*t}" for t in range(4)]
            return o
        o += [f"v_cvt_pk_bf16_f32 v{A+4}, v{A+4}, v{A+5}", f"v_cvt_pk_bf16_f32 v{A+5}, v{A+6}, v{A+7}"]
        o += [f"ds_write_b128 v4, {vr(A,4)} offset:{LA+16*AST*n}"]
        o += [f"ds_write_b64 v5, {vr(A+4,2)} offset:{16*UST*n}"]
        return o

    def au_hook(n):
        HB = int(os.environ.get('HB', 0))
        if n == HB:
            srd(a, SRD_W, sWS, WS_OFF, NCH * 1024)
            a("s_waitcnt lgkmcnt(0)\ns_barrier                                     ; B5")
            mark(22)
            pollreq()
            if 'aprio' in X:
                a('s_setprio 2')
        if n == HB + 1:
            a("s_barrier                                     ; B5b")
            recpf()

    gemm(au_epi, au_pre, None, au_hook)
    mark(5)
    a(("s_setprio 0\n" if 'aprio' in X else "") + "s_branch L_PW")
    vW = (8, 32)
    vPr = 56
    REC = (8, 14, 20, 26, 32, 38, 44)

    def rec(k):
        return REC[k]

    vP, vTFa, vLf = 94, 100, 96 - 20
    a("L_GD:\ns_mov_b64 exec, -1")
    mark(5)
    srd(a, SRD_W, sWS, WS_OFF, NCH * 1024)
    a(f"""
    s_waitcnt lgkmcnt(0)
    s_barrier
    """)
    mark(22)
    a(f"""
    {"s_sleep " + os.environ["PDELAY"] if os.environ.get("PDELAY") else ""}
    L_TSD:
    """)
    pollreq()
    a(f"""
    L_FILL:
    v_lshrrev_b32 v4, 4, v0
    v_and_b32 v5, 15, v0
    s_mov_b32 s{t0}, {SLOTB}
    v_mov_b32 v6, {LSLOT}
    v_mad_u32_u24 v4, v4, s{t0}, v6
    v_mad_u32_u24 v4, v5, 48, v4
    v_mov_b32 v56, {DUMMY}
    v_mov_b32 v57, {DUMMY}
    v_mov_b64 v[58:59], v[56:57]
    s_cmp_lt_u32 s{sW}, 8
    ds_write_b128 v4, v[56:59]
    s_cbranch_scc0 L_FT
    ds_write_b128 v4, v[56:59] offset:{48*SLOTB}
    s_branch L_FD
    L_FT:
    s_mov_b32 s{t1}, {LTAB - 8192}
    v_mov_b32 v60, {LDUM}
    v_mov_b32 v61, 0
    v_lshl_add_u32 v5, v0, 4, s{t1}
    v_mov_b64 v[62:63], v[60:61]
    ds_write_b128 v5, v[60:63]
    ds_write_b128 v5, v[60:63] offset:4096
    L_FD:
    s_cmp_eq_u32 s{sFIRST}, 0
    s_waitcnt {"vmcnt(1) " if os.environ.get("TV") else ""}lgkmcnt(0)
    s_barrier                                     ; B5b
    s_cbranch_scc1 L_AGAIN
    """)
    if os.environ.get("TV"):
        a(f"""
        s_cmp_eq_u32 s{sW}, 5
        s_cbranch_scc0 L_PW
        s_mov_b64 exec, 1
        global_store_dwordx2 v8, v[10:11], {sp(sWS)} sc1
        s_mov_b64 exec, -1
        s_waitcnt vmcnt(1)
        s_branch L_POLL
        """)
    mark(14)
    recpf()
    a(f"""
    L_PW:
    v_readfirstlane_b32 s{sEP}, v90
    s_nop 0
    s_xor_b32 s{sTAG2}, s{sEP}, 0x2545F491
    s_mul_i32 s{sTAG}, s{sTAG2}, 0x9E3779B1
    s_mul_i32 s{sTAG2}, s{sTAG2}, 0x85EBCA6B
    s_lshr_b32 s{sTAGB}, s{sTAG2}, 25
    s_waitcnt vmcnt({1 if RPF else 0})
    L_POLL:
    v_lshrrev_b32 v4, 25, v88
    v_cmp_ne_u32 vcc, s{sTAG}, v89
    v_cmp_ne_u32 {sp(t0)}, s{sTAGB}, v4
    s_or_b64 exec, vcc, {sp(t0)}
    s_cbranch_execnz L_POLL2
    L_POLLED:
    s_mov_b64 exec, -1
    """)
    mark(6)
    a(f"""
    v_bfe_u32 v{vRem}, v88, 14, 11
    v_and_b32 v4, 0x3fff, v88
    v_add_u32 v{vRO}, v{vRO}, v4
    """)
    a(f"""
    L_WINDOW:
    v_and_b32 v4, 15, v{vL}
    v_and_b32 v5, 3, v{vL}
    v_sub_u32 v5, v{vRem}, v5
    """)
    for k in range(4):
        a(f"v_sub_u32_dpp v{64+k}, v{vRem}, v4 row_newbcast:{4*k} row_mask:0xf bank_mask:0xf")
    for k in range(4):
        a(f"v_cmp_lt_i32 {sp(sM+2*k)}, 0, v{64+k}")
    for k in range(4, KMAX):
        a(f"v_cmp_lt_i32 {sp(sM+2*k)}, {4*k}, v5")
    a(f"""
    L_LOADS:
    """)
    EPF = os.environ.get("EPF", "")
    if EPF:
        a(f"""
        s_mov_b64 exec, 0xff
        global_load_dwordx2 v[82:83], v{vTFa}, {sp(sWS)} sc1
        s_mov_b64 exec, -1
        """)
    a(f"""
    v_and_b32 v4, 15, v{vL}
    v_and_b32 v5, 3, v{vL}
    v_mul_u32_u24 v4, {RB}, v4
    v_mad_u32_u24 v5, v5, {RB}, v{vRO}
    s_or_b64 {sp(sU5)}, {sp(sM+10)}, {sp(sM+12)}
    s_or_b64 {sp(sU4)}, {sp(sU5)}, {sp(sM+8)}
    """)
    for k in range(4):
        a(f"v_add_u32_dpp v{rec(k)+3}, v{vRO}, v4 row_newbcast:{4*k} row_mask:0xf bank_mask:0xf")

    def kloop(done, body, mask=sM):
        for k in range(KMAX):
            if k == 4:
                a(f"s_cmp_eq_u64 {sp(sU4)}, 0\ns_cbranch_scc1 {done}")
            if k == 5:
                a(f"s_cmp_eq_u64 {sp(sU5)}, 0\ns_cbranch_scc1 {done}")
            a(f"s_mov_b64 exec, {sp(mask+2*k)}")
            body(k)
        a(f"{done}:")

    RF = "" if "recplain" in X else "sc1"

    def rload(k):
        if k < 4:
            a(f"buffer_load_dwordx3 {vr(rec(k),3)}, v{rec(k)+3}, {sq(SRD_R)}, 0 offen {RF}")
        else:
            a(f"buffer_load_dwordx3 {vr(rec(k),3)}, v5, {sq(SRD_R)}, 0 offen offset:{48*k} {RF}")

    kloop("L_RL", rload)
    mark(23)
    a(f"""
    s_mov_b64 exec, -1
    s_mov_b32 s{t0}, {LCW}
    v_lshl_add_u32 v4, v{vL}, 3, s{t0}
    """)
    for k in range(8):
        a(f"ds_read_b64 {vr(vW[0]+6*k+4,2)}, v4")
    a(f"""
    s_cmp_ge_u32 s{sW}, 8
    s_cselect_b32 s{sT0}, {os.environ.get("SNK", 3)}, 0
    s_xor_b32 s{sT0}, s{sT0}, s{sW}
    s_lshl_b32 s{t0}, s{sT0}, 5
    s_add_u32 s{t0}, s{t0}, {LTAB}
    v_lshrrev_b32 v4, 4, v{vL}
    v_bfe_u32 v5, v{vL}, 2, 2
    v_lshl_add_u32 v{vP}, v4, 3, s{t0}
    v_lshl_add_u32 v{vP+1}, v5, 3, s{t0}
    s_lshl_b32 s{t0}, s{sW}, 5
    s_add_u32 s{t0}, s{t0}, s{sH}
    s_lshl_b32 s{t0}, s{t0}, 7
    s_add_u32 s{t0}, s{t0}, {WS_TF}
    v_lshl_add_u32 v{vTFa}, v{vL}, 7, s{t0}
    v_mov_b32 v6, {LSLOT}
    s_mov_b32 s{t0}, {2*SLOTB}
    v_mad_u32_u24 v{vLf}, v{vL}, s{t0}, v6
    v_lshlrev_b32 v{vLf+1}, 9, v{vL}
    v_add_u32 v{vLf+2}, {SLOTB}, v{vLf}
    v_add_u32 v{vLf+3}, 256, v{vLf+1}
    v_lshlrev_b32 v{vLf+4}, 3, v{vL}
    v_mov_b32 v6, {LSLOT-144}
    s_mov_b32 s{t0}, {SLOTB//4}
    s_mov_b32 s{t1}, 0xffffff00
    """)
    if "sprio" in X:
        for lv in (1, 2, 3):
            a(f"s_cmp_lt_u32 s{sW}, {4*lv}\ns_cbranch_scc1 L_SP\ns_setprio {lv}")
        a("L_SP:")
    mark(12)
    a("s_waitcnt vmcnt(0)")
    mark(7)
    SB = "dst_sel:DWORD dst_unused:UNUSED_PAD src0_sel:DWORD src1_sel:BYTE_0"

    def hist(k):
        a(f"""
        v_lshlrev_b32_sdwa v4, 2, v{rec(k)+2} {SB}
        v_lshlrev_b32_sdwa v{vPr+2*k+1}, 8, v{rec(k)+2} {SB}
        ds_add_rtn_u32 v{rec(k)+3}, v4, v{vONE} offset:{LCNT}
        v_mad_u32_u24 v{vPr+2*k}, v4, s{t0}, v6
        v_and_b32 v{rec(k)+2}, s{t1}, v{rec(k)+2}
        """)

    TFP = os.environ.get("TFP", "s")

    def tfl():
        a(f"""
    s_cmp_lt_u32 s{sW}, 4
    s_cbranch_scc0 L_NTF
    s_mov_b32 exec_lo, -1
    s_mov_b32 exec_hi, 0
    global_load_dwordx2 v[70:71], v{vTFa}, {sp(sWS)} sc1
    L_NTF:
        """)

    if TFP == "a":
        tfl()
    kloop("L_HD", hist)
    if TFP == "h":
        tfl()
    a(f"s_mov_b32 s{t2}, 0\ns_waitcnt lgkmcnt(0)")
    mark(24)

    def scat(k):
        r = rec(k)
        a(f"""
        v_cmpx_gt_u32 vcc, {CAP}, v{r+3}
        v_lshrrev_b32 v4, 2, v{r+3}
        v_and_b32 v5, 15, v{r+3}
        v_and_b32 v{r+3}, 3, v{r+3}
        s_andn2_b64 {sp(sM+2*k)}, {sp(sM+2*k)}, vcc
        v_mad_u32_u24 v{vPr+2*k}, v4, 48, v{vPr+2*k}
        v_cmp_eq_u32 vcc, 12, v5
        v_lshl_add_u32 v4, v{r+3}, 2, v{vPr+2*k}
        v_lshl_add_u32 v5, v{r+3}, 3, v{vPr+2*k}
        ds_write_b32 v4, v{r+2} offset:144
        ds_write_b64 v5, {vr(r,2)} offset:160
        s_and_b64 {sp(sO+2*k)}, vcc, exec
        s_bcnt1_i32_b64 s{t3}, {sp(sO+2*k)}
        s_add_u32 s{t2}, s{t2}, s{t3}
        """)

    kloop("L_SD", scat)
    mark(25)
    a(f"""
    """)
    if TFP == "s":
        tfl()
    a(f"""
    s_mov_b64 exec, 1
    v_mov_b32 v4, s{t2}
    ds_add_rtn_u32 v7, v{vF}, v4 offset:{F_NQ}
    s_mov_b64 exec, -1
    v_cmp_lt_i32 vcc, {4*KMAX}, v{vRem}
    s_or_b64 {sp(t0)}, {sp(sM)}, {sp(sM+2)}
    s_or_b64 {sp(t2)}, {sp(sM+4)}, {sp(sM+6)}
    s_or_b64 {sp(t0)}, {sp(t0)}, {sp(sM+8)}
    s_or_b64 {sp(t2)}, {sp(t2)}, {sp(sM+10)}
    s_or_b64 {sp(t0)}, {sp(t0)}, {sp(sM+12)}
    s_or_b64 {sp(t0)}, {sp(t0)}, {sp(t2)}
    s_cselect_b32 s{sBIN}, 1, 0
    s_or_b64 exec, vcc, {sp(t0)}
    ds_write_b32 v{vF}, v{vONE} offset:{F_MORE}
    s_waitcnt lgkmcnt(1)
    v_readlane_b32 s{t2}, v7, 0
    s_lshl_b32 s{t2}, s{t2}, 3
    s_add_u32 s{t2}, s{t2}, {LTAB}
    """)

    def tab(k):
        a(f"""
        v_mbcnt_lo_u32_b32 v4, exec_lo, 0
        v_mbcnt_hi_u32_b32 v4, exec_hi, v4
        v_lshl_add_u32 v4, v4, 3, s{t2}
        s_bcnt1_i32_b64 s{t3}, exec
        s_lshl3_add_u32 s{t2}, s{t3}, s{t2}
        ds_write_b64 v4, {vr(vPr+2*k,2)}
        """)

    kloop("L_TD", tab, sO)
    mark(26)
    a(f"""
    s_mov_b64 exec, 1
    ds_add_u32 v{vF}, v{vONE} offset:{F_DONE}
    s_mov_b32 s{sFIRST}, 0
    s_mov_b32 s{sEG}, 0
    s_cmp_lt_u32 s{sW}, {os.environ.get("EW", 8)}
    s_cbranch_scc1 L_EG
    L_EGD:
    s_mov_b64 exec, -1
    s_waitcnt lgkmcnt(0)
    """)
    mark(8)
    a(f"""
    s_lshl4_add_u32 s{t0}, s2, s{sW}
    s_cmp_eq_u32 s{t0}, 15
    s_barrier                                     ; B6
    s_cbranch_scc1 L_EPO
    L_EPD:
    """)
    mark(9)
    if stamp:
        a("s_memtime s[96:97]\nv_mov_b32 v107, 0")
    vT, vAp, vS = 56, 80, 84
    vTQ, vNA, vFA, vQE = 88, 90, 92, 93
    vDn, vNm, vAa, vCk = 72, 100, 4, 106
    vD = (76, 78, 4, 6)
    sRET = sTHR + 1
    DW = int(os.environ.get('DW', 0))
    sPM = 79
    PRA, PRB = [int(x) for x in os.environ.get('PR', '5,2').split(',')]

    def sh(g):
        return (96, 98, 104, 124)[g]

    def saddr(S):
        if "a64" in X:
            a(f"v_lshl_add_u64 {vr(S,2)}, {vr(S,2)}, 0, v[126:127]\nv_lshl_add_u64 {vr(S+2,2)}, {vr(S+2,2)}, 0, v[126:127]")
            return
        a(f"""
        v_pk_add_f32 {vr(S,2)}, {vr(S,2)}, {vr(vLO,2)} op_sel_hi:[1,0]
        v_pk_add_f32 {vr(S+2,2)}, {vr(S+2,2)}, {vr(vLO,2)} op_sel_hi:[1,0]
        """)

    def loads(p, S, loop=False):
        for g in range(int(os.environ.get("NLD", 4)) if loop else 4):
            a(f"buffer_load_dwordx4 {vr(vW[p]+6*g,4)}, v{S+g}, {sq(SRD_T)}, 0 offen {os.environ.get('GF', 'sc1')}")

    def naddr(dst, TQ):
        a(f"v_pk_fma_f32 {vr(dst,2)}, {vr(TQ,2)}, {sp(s12)}, {vr(vLO,2)} op_sel:[1,0,0] op_sel_hi:[1,1,1]")

    def eread(q, half):
        a(f"s_mov_b64 exec, {sp(sEM)}")
        for g in range(4):
            a(f"ds_read_b64 {vr(vAo+4*g+2,2)}, v{q} offset:{48*half+16+8*g}")
        a("s_mov_b64 exec, -1")

    def hv(W, g, h):
        return vr(W + 6 * g, 2) if h == 0 else vr(sh(g), 2)

    def mfma(p, g, c=vAp):
        return f"v_mfma_f32_16x16x32_bf16 {vr(vT+4*g,4)}, {vr(vAo+4*g,4)}, {vr(vW[p]+6*g+2,4)}, {vr(c,4)}"

    def flush(ad):
        a(f"""
        v_pk_mul_f32 {vr(vNm,2)}, {vr(vNm,2)}, {vr(vDn,2)}
        v_pk_mul_f32 {vr(vNm+2,2)}, {vr(vNm+2,2)}, {vr(vDn+2,2)}
        """)
        for t in range(4):
            a(f"v_cvt_f64_f32 {vr(vD[t],2)}, v{vNm+t}")
        for t in range(4):
            a(f"ds_add_f64 v{ad}, {vr(vD[t],2)} offset:{128*t}")

    def check(lab):
        a(f"""
        v_pk_add_f32 {vr(vAa,2)}, {vr(vDn,2)}, {vr(vDn+2,2)}
        v_add_f32 v{vCk}, v{vAa}, v{vAa+1}
        v_cmp_nge_f32 vcc, s{sTHR}, v{vCk}
        s_cbranch_vccnz {lab}
        """)

    def leftover():
        for u in range(2):
            a(f"""
            v_min_u32 v{96+u}, {CAP}, v{96+u}
            v_add_u32 v{98+u}, 15, v{96+u}
            v_lshrrev_b32 v{96+u}, 4, v{96+u}
            v_bfe_u32 v{98+u}, v{98+u}, 2, 2
            """)
        a(f"""
        s_mov_b32 s{t3}, 192
        v_mad_u32_u24 v{vLf}, v96, s{t3}, v{vLf}
        v_mad_u32_u24 v{vLf+2}, v97, s{t3}, v{vLf+2}
        s_lshl3_add_u32 s{t2}, s{t0}, {LTAB}
        """)
        for c in range(3):
            for u in range(2):
                a(f"v_cmp_eq_u32 {sp(sO+4*c+2*u)}, {2-c}, v{98+u}")
        for c in range(3):
            a(f"s_mov_b32 s{sU5+c}, s{t2}")
            for u in range(2):
                a(f"""
                s_mov_b64 exec, {sp(sO+4*c+2*u)}
                v_mbcnt_lo_u32_b32 v96, exec_lo, 0
                v_mbcnt_hi_u32_b32 v96, exec_hi, v96
                v_lshl_add_u32 v96, v96, 3, s{t2}
                s_bcnt1_i32_b64 s{t3}, exec
                s_lshl3_add_u32 s{t2}, s{t3}, s{t2}
                ds_write_b64 v96, {vr(vLf+2*u,2)}
                """)
        a(f"""
        s_mov_b64 exec, -1
        s_sub_u32 s{t2}, s{t2}, {LTAB - 24}
        s_lshr_b32 s{t2}, s{t2}, 5
        s_sub_u32 s{t2}, s{t2}, s{sT0}
        s_add_u32 s{t2}, s{t2}, 15
        s_lshr_b32 s{t2}, s{t2}, 4
        s_lshl4_add_u32 s{t3}, s{t2}, s{sT0}
        s_lshl_b32 s{t3}, s{t3}, 5
        s_add_u32 s{t3}, s{t3}, {LTAB - 512}
        s_lshl2_add_u32 s{sN}, s{t2}, -2
        """)
        for c in range(3):
            a(f"s_cmp_lt_u32 s{t3}, s{sU5+c}\ns_addc_u32 s{sN}, s{sN}, 0")

    a(f"""
    ds_read_b64 v[4:5], v{vF} offset:{F_MORE}
    ds_read_b64 v[96:97], v{vLf+4} offset:{LCNT}
    L_PRE:
    ds_read_b64 {vr(vTQ,2)}, v{vP}
    ds_read_b32 v{vQE}, v{vP+1}
    s_setprio 3
    {f"s_cmp_ge_u32 s{sW}, {DW}" if DW else ""}
    {f"s_cselect_b32 s{sPM}, {(1 << PRA) | (1 << PRB)}, 0" if DW else ""}
    {"v_mov_b32 v126, v2" if "a64" in X else ""}
    {"v_mov_b32 v127, v2" if "a64" in X else ""}
    v_mov_b32 v{vFA}, v{vLO+1}
    v_mov_b64 {vr(vNm,2)}, 0
    v_mov_b64 {vr(vNm+2,2)}, 0
    s_waitcnt lgkmcnt(1)
    ds_read_b128 {vr(vT+4,4)}, v{vTQ}
    ds_read_b128 {vr(vS,4)}, v{vTQ} offset:48
    v_readfirstlane_b32 s{t0}, v5
    v_readfirstlane_b32 s{sMORE}, v4
    """)
    naddr(vNA, vTQ)
    a(f"""
    s_cmp_lt_u32 s{t0}, 64
    s_cbranch_scc1 L_FEW
    s_cmp_eq_u32 s{sEG}, 0
    s_waitcnt lgkmcnt(1)
    s_cbranch_scc0 L_G1
    """)
    saddr(vT + 4)
    loads(0, vT + 4)
    a("L_G1:")
    a(f"ds_read_b128 {vr(vAp,4)}, v{vNA} offset:{LA}")
    eread(vQE, 0)
    for t in range(4):
        a(f"v_mov_b32 v{vDn+t}, 1.0")
    a(f"s_cmp_eq_u32 s{t0}, -1\ns_cbranch_scc1 L_SB3")
    leftover()
    a("s_branch L_SB3")
    LP = int(os.environ.get("LP", 16))
    for q in range(4):
        p = q & 1
        W = vW[p]
        a(f"""
        L_L{q}:
        s_cmp_eq_u32 s{sN}, 1
        """)
        if LP > 16:
            a(f"ds_read_b128 {vr(vS,4)}, v{vTQ} offset:{48*((q+1)&3)}")
            if q == 2:
                a(f"ds_read_b64 {vr(vTQ,2)}, v{vP} offset:512")

        def late(g):
            if LP == 17 + g:
                a(f"s_cbranch_scc1 L_NL{q}")
                loads(p ^ 1, vS)
                a(f"L_NL{q}:")
        SPR = [int(x) for x in os.environ.get("SPR", "16,16,16,16").split(",")]
        for i in range(17):
            gs = [g for g in range(4) if SPR[g] == i]
            if gs and LP == 16:
                a(f"s_cbranch_scc1 L_NL{q}_{i}")
                for g in gs:
                    a(f"buffer_load_dwordx4 {vr(vW[p^1]+6*g,4)}, v{vS+g}, {sq(SRD_T)}, 0 offen sc1")
                a(f"L_NL{q}_{i}:")
            if i == LP:
                a(f"ds_read_b128 {vr(vS,4)}, v{vTQ} offset:{48*((q+2)&3)}")
                if q == 1:
                    a(f"ds_read_b64 {vr(vTQ,2)}, v{vP} offset:512")
            if i == 16:
                break
            a(f"v_exp_f32 v{vT+i}, v{vT+i}")
            if i == int(os.environ.get('EPOS', 7)):
                eread(vQE, (q + 1) & 3)
                if q == 2:
                    a(f"ds_read_b32 v{vQE}, v{vP+1} offset:512")
                if q == 3:
                    a(f"v_mov_b32 v{vFA}, v{vNA+1}")
        if LP > 16:
            a(f"s_waitcnt lgkmcnt({6 if q == 2 else 4})")
            saddr(vS)
        if q == 0:
            flush(vFA)
        if q == 3:
            naddr(vNA, vTQ)
        if q == 3:
            a(f"ds_read_b128 {vr(vAp,4)}, v{vNA} offset:{LA}")
        if q == 0:
            for h in range(2):
                a(f"v_pk_add_f32 {vr(vDn+2*h,2)}, {vr(vT+2*h,2)}, 1.0 op_sel_hi:[1,0]")
            late(0)
        for g in range(1 if q == 0 else 0, 4):
            for h in range(2):
                src = hv(W, 0, h) if (g == 1 and q == 0) else vr(vNm + 2 * h, 2)
                a(f"v_pk_fma_f32 {vr(vAa+2*h,2)}, {src}, {vr(vT+4*g+2*h,2)}, {src}")
            for h in range(2):
                a(f"v_pk_fma_f32 {vr(vNm+2*h,2)}, {hv(W,g,h)}, {vr(vDn+2*h,2)}, {vr(vAa+2*h,2)}")
            for h in range(2):
                a(f"v_pk_fma_f32 {vr(vDn+2*h,2)}, {vr(vDn+2*h,2)}, {vr(vT+4*g+2*h,2)}, {vr(vDn+2*h,2)}")
            late(g)
        if q == 3:
            check("L_REDO1")
            a(f"L_RB1:\nv_pk_add_f32 {vr(vP,2)}, {vr(vP,2)}, {sp(sINC)}")
        a(f"""
        L_SB{q}:
        """)
        if "trace" in X:
            a(f"s_memtime s[92:93]\ns_add_u32 m0, s{sN}, 16")
        a(f"""
        s_cmp_eq_u32 s{sN}, 1
        s_waitcnt lgkmcnt(0)
        """)
        if "trace" in X:
            a("v_writelane_b32 v107, s92, m0")
        if LP <= 16:
            saddr(vS)
        a(f"""
        s_cbranch_scc1 {"L_LAST" if q == 3 else "L_CUT"}
        L_M{q}:
        """)
        PW = os.environ.get("PW", "2-0-")
        for g in range(4):
            if PW[g] != "-":
                a(f"s_waitcnt vmcnt({PW[g]})")
            a(mfma(p ^ 1, g))
            a(f"v_lshlrev_b64 {vr(sh(g),2)}, 16, {vr(vW[p^1]+6*g,2)}")
            if q == 3:
                a(f"v_rcp_f32 v{vDn+g}, v{vDn+g}")
        a(f"""
        s_sub_u32 s{sN}, s{sN}, 1
        s_bitcmp1_b32 {(1 << PRA) | (1 << PRB) | 2}, s{sN}
        s_cbranch_scc1 L_PR{q}
        """)
        if q == 3:
            a("s_branch L_L0")
    for q in (3, 0, 1, 2):
        a(f"""
        L_PR{q}:
        s_setprio 2
        s_cmp_eq_u32 s{sN}, {PRA}
        s_cbranch_scc1 L_L{(q+1)&3}
        s_setprio 1
        s_cmp_eq_u32 s{sN}, {PRB}
        s_cbranch_scc1 L_L{(q+1)&3}
        s_setprio 0
        s_branch L_L{(q+1)&3}
        """)
    a("L_CUT:")
    check("L_REDO0")
    a(f"L_RB0:\nv_mov_b32 v{vFA}, v{vNA+1}")
    a("L_LAST:")
    for g in range(4):
        a(f"v_rcp_f32 v{vDn+g}, v{vDn+g}")
    a("s_nop 0")
    flush(vFA)
    a(f"""
    L_LD:
    s_cmp_lt_u32 s{sW}, 10
    s_cbranch_scc0 L_LD2
    v_lshrrev_b32 v97, 3, v0
    v_and_b32 v98, 7, v0
    v_lshlrev_b32 v98, 4, v98
    """)
    if "u64" not in X:
        a(f"""
        s_mov_b32 s{t0}, {UST}
        v_add_u32 v99, {LU}, v98
        v_mad_u32_u24 v99, v97, s{t0}, v99
        ds_read2_b64 v[56:59], v99 offset0:0 offset1:1
        """)
    a(f"""
    s_mov_b32 s{t0}, {GST}
    v_mad_u32_u24 v96, v97, s{t0}, v98
    s_add_u32 s{t1}, s{sN0}, s{sH}
    v_cmp_gt_u32 {sp(sO)}, s{sNB}, v97
    v_lshlrev_b32 v97, 8, v97
    v_add3_u32 v97, v97, v98, s{t1}
    s_mov_b32 s{t2}, s{sLG}
    s_mov_b32 s{t3}, s{sLG}
    """)
    for i in range(0 if "u64" in X else 4):
        a(f"v_lshlrev_b32 v{60+2*i}, 16, v{56+i}\nv_and_b32 v{61+2*i}, s{t0}, v{56+i}")
    a("L_LD2:\ns_waitcnt lgkmcnt(0)")
    mark(10)
    if stamp:
        a("s_memtime s[92:93]\ns_waitcnt lgkmcnt(0)\ns_sub_u32 s92, s92, s96\nv_writelane_b32 v107, s92, 15\nv_writelane_b32 v107, s96, 16")
    a(f"""
    s_cmp_eq_u32 s{sMORE}, 0
    s_barrier                                     ; B8
    s_cbranch_scc0 L_MORE
    s_cmp_lt_u32 s{sW}, 10
    s_cbranch_scc0 L_FIN
    ds_read_b128 v[24:27], v96 offset:{LAGG}
    ds_read_b128 v[28:31], v96 offset:{LAGG+128}
    ds_read_b128 v[32:35], v96 offset:{LAGG+256}
    ds_read_b128 v[36:39], v96 offset:{LAGG+384}
    """)
    for t in range(4):
        a(f"s_waitcnt lgkmcnt({3-t})")
        for u in range(2):
            a(f"v_cvt_f32_f64 v{8+4*u+t}, {vr(24+4*t+2*u,2)}")
    for i in range(0 if "u64" in X else 4):
        a(f"v_pk_add_f32 {vr(8+2*i,2)}, {vr(8+2*i,2)}, {vr(60+2*i,2)}")
    for i in range(4):
        a(f"v_pk_mul_f32 {vr(16+2*i,2)}, {vr(8+2*i,2)}, {sp(t2)}")
    for i in range(8):
        a(f"v_exp_f32 v{16+i}, v{16+i}")
    for i in range(4):
        a(f"v_pk_add_f32 {vr(16+2*i,2)}, {vr(16+2*i,2)}, 1.0 op_sel_hi:[1,0]")
    for i in range(8):
        a(f"v_rcp_f32 v{16+i}, v{16+i}")
    for i in range(4):
        a(f"v_pk_mul_f32 {vr(16+2*i,2)}, {vr(16+2*i,2)}, {vr(8+2*i,2)}")
    for i in range(4):
        a(f"v_cvt_pk_bf16_f32 v{8+i}, v{16+2*i}, v{17+2*i}")
    a(f"""
    s_mov_b64 exec, {sp(sO)}
    global_store_dwordx4 v97, v[8:11], {sp(sOUT)} {os.environ.get('OF', 'sc1')}
    L_FIN:
    """)
    if stamp:
        a("s_mov_b64 exec, -1")
    if PROBE:
        a("s_waitcnt vmcnt(0)")
        mark(30)
        a(f"""
        s_lshl_b32 s{t0}, s2, 4
        s_add_u32 s{t0}, s{t0}, s{sW}
        s_cmp_eq_u32 s{t0}, {PROBE[0]}
        s_cbranch_scc0 L_PX
        s_memrealtime s[84:85]
        s_sub_u32 s96, s96, s94
        s_lshl_b32 s96, s96, 3
        s_min_u32 s96, s96, 100000
        s_waitcnt lgkmcnt(0)
        L_PS:
        s_memrealtime s[86:87]
        s_waitcnt lgkmcnt(0)
        s_sub_u32 s86, s86, s84
        s_cmp_lt_u32 s86, s96
        s_cbranch_scc1 L_PS
        L_PX:
        """)
    if stamp:
        a("s_waitcnt vmcnt(0)")
        mark(11)
        a("s_waitcnt lgkmcnt(0)")
        for i_, m_ in enumerate(sorted(SLOT)):
            a(f"v_writelane_b32 v107, s{SLOT[m_]}, {i_}")
        a(f"""
        s_lshl_b32 s3, s2, 4
        s_add_u32 s3, s3, s{sW}
        s_lshl_b32 s3, s3, 6
        s_add_u32 s3, s3, {WS_STAMP}
        v_lshl_add_u32 v4, v{vL}, 2, s3
        s_mov_b64 exec, 0xffff
        global_store_dword v4, v107, {sp(sWS)}
        s_mov_b64 exec, 0xffff0000
        v_add_u32 v4, {0x40000 - 64}, v4
        global_store_dword v4, v107, {sp(sWS)}
        """)
    a("s_endpgm")
    a(f"""
    L_POLL2:
    s_sub_u32 s{sSPIN}, s{sSPIN}, 1
    s_cbranch_scc1 L_POLLX
    s_sleep 2
    buffer_load_dwordx2 v[88:89], v{vOFFa}, {sq(SRD_W)}, 0 offen sc1
    s_waitcnt vmcnt(0)
    s_branch L_POLL
    L_POLLX:
    v_mov_b32 v88, 0
    s_mov_b32 s{sSPIN}, 0
    s_branch L_POLLED
    """)
    a(f"""
    """)
    a(f"""
    L_EPO:
    v_mov_b32 v6, {WS_EPOCH}
    v_mov_b32 v7, s{sEP}
    s_mov_b64 exec, 1
    global_store_dword v6, v7, {sp(sWS)} sc1
    s_mov_b64 exec, -1
    s_branch L_EPD
    L_EG:
    v_mov_b32 v6, 0x100
    s_cmp_ge_u32 s{sW}, 4
    s_cbranch_scc1 L_EG0
    s_mov_b32 exec_lo, -1
    s_mov_b32 exec_hi, 0
    L_TP:
    s_waitcnt vmcnt(0)
    v_cmp_ne_u64 vcc, {sp(sTAG)}, v[70:71]
    s_cbranch_vccz L_TRDY
    s_sub_u32 s{sSPIN}, s{sSPIN}, 1
    s_cbranch_scc1 L_END
    s_sleep 2
    global_load_dwordx2 v[70:71], v{vTFa}, {sp(sWS)} sc1
    s_branch L_TP
    L_TRDY:
    s_mov_b64 exec, 1
    ds_add_u32 v{vF}, v6 offset:{F_DONE}
    """)
    PFE = int(os.environ.get("PFE", 16))
    if PFE:
        a(f"""
        s_mul_i32 s{t2}, s{sW}, {2500*256}
        s_lshr_b32 s{t3}, s2, 3
        s_mul_i32 s{t3}, s{t3}, {156*128}
        s_add_u32 s{t2}, s{t2}, s{t3}
        s_bfm_b64 exec, {PFE}, 0
        v_lshlrev_b32 v5, 7, v{vL}
        buffer_load_dword v106, v5, {sq(SRD_T)}, s{t2} offen sc1
        """)
    a(f"""
    L_EG0:
    s_mov_b64 exec, -1
    L_EG1:
    s_sub_u32 s{sSPIN}, s{sSPIN}, 1
    s_cbranch_scc1 L_END
    {"s_sleep " + os.environ["SLE"] if os.environ.get("SLE") else ""}
    ds_read_b32 v7, v{vF} offset:{F_DONE}
    ds_read_b32 v4, v{vP}
    s_waitcnt lgkmcnt(0)
    ds_read_b128 {vr(vT+4,4)}, v4
    v_readfirstlane_b32 s{t0}, v7
    s_waitcnt lgkmcnt(0)
    v_or3_b32 v4, v{vT+4}, v{vT+5}, v{vT+6}
    v_or_b32 v4, v4, v{vT+7}
    v_cmp_le_u32 vcc, {DUMMY}, v4
    s_and_b32 s{t1}, s{t0}, 0xff
    s_cmp_eq_u32 s{t1}, 16
    s_cbranch_scc1 L_EGD
    s_cmp_lt_u32 s{t0}, 0x400
    s_cbranch_scc1 L_EG1
    s_cbranch_vccnz L_EG1
    """)
    saddr(vT + 4)
    loads(0, vT + 4)
    a(f"""
    s_mov_b32 s{sEG}, 1
    s_branch L_EGD
    L_FEW:
    s_mov_b32 s{sEG}, 0
    s_waitcnt vmcnt(0) lgkmcnt(0)
    """)
    leftover()
    a(f"""
    s_cmp_eq_u32 s{t2}, 0
    s_cbranch_scc1 L_LD
    v_mov_b32 v5, -1
    s_branch L_PRE
    L_REDO0:
    s_mov_b32 s{sRET}, 0
    s_branch L_REDO
    L_REDO1:
    s_mov_b32 s{sRET}, 1
    L_REDO:
    ds_read_b64 v[76:77], v{vP}
    ds_read_b32 v{vCk}, v{vP+1}
    v_mov_b64 {vr(vNm,2)}, 0
    v_mov_b64 {vr(vNm+2,2)}, 0
    s_mov_b32 s{t0}, 4
    s_waitcnt lgkmcnt(0)
    """)
    naddr(78, 76)
    a(f"""
    ds_read_b128 {vr(vDn,4)}, v78 offset:{LA}
    L_RD1:
    ds_read_b128 {vr(vAa,4)}, v76
    """)
    eread(vCk, 0)
    a("s_waitcnt lgkmcnt(0)")
    saddr(vAa)
    loads(1, vAa)
    a(f"""
    v_add_u32 v76, 48, v76
    v_add_u32 v{vCk}, 48, v{vCk}
    s_waitcnt vmcnt(0)
    """)
    for g in range(4):
        a(mfma(1, g, vDn))
    for g in range(4):
        a(f"v_lshlrev_b64 {vr(sh(g),2)}, 16, {vr(vW[1]+6*g,2)}")
    a("s_nop 3")
    for i in range(16):
        a(f"v_exp_f32 v{vT+i}, v{vT+i}")
    for i in range(8):
        a(f"v_pk_add_f32 {vr(vT+2*i,2)}, {vr(vT+2*i,2)}, 1.0 op_sel_hi:[1,0]")
    for i in range(16):
        a(f"v_rcp_f32 v{vT+i}, v{vT+i}")
    for g in range(4):
        for h in range(2):
            a(f"v_pk_fma_f32 {vr(vNm+2*h,2)}, {vr(vT+4*g+2*h,2)}, {hv(vW[1],g,h)}, {vr(vNm+2*h,2)}")
    a(f"""
    s_sub_u32 s{t0}, s{t0}, 1
    s_cmp_lg_u32 s{t0}, 0
    s_cbranch_scc1 L_RD1
    """)
    eread(vQE, 0)
    for t in range(4):
        a(f"v_mov_b32 v{vDn+t}, 1.0")
    a(f"""
    s_cmp_eq_u32 s{sRET}, 0
    s_cbranch_scc1 L_RB0
    s_branch L_RB1
    """)
    a(f"""
    L_MORE:
    s_setprio 0
    s_mov_b32 s{sSPIN}, {SPIN}
    v_mov_b32 v{vF}, {LFLAG}
    v_mov_b32 v{vONE}, 1
    v_lshlrev_b32 v4, 2, v0
    v_mov_b32 v5, 0
    v_cmp_gt_u32 vcc, 131, v0
    s_mov_b64 exec, vcc
    ds_write_b32 v4, v5 offset:{LCNT}
    s_mov_b64 exec, -1
    s_cmp_lt_u32 s{sW}, 12
    s_cbranch_scc1 L_FILL
    s_branch L_FD
    L_AGAIN:
    s_cmp_eq_u32 s{sBIN}, 0
    s_cbranch_scc0 L_LOADS
    v_subrev_u32 v{vRem}, {4*KMAX}, v{vRem}
    v_add_u32 v{vRO}, {48*KMAX}, v{vRO}
    s_branch L_WINDOW
    L_END:
    """)
    if "lay2" in X:
        L = a.l
        i, j, k = L.index("L_B1:") + 3, L.index("L_SETUP:"), L.index("L_STG:")
        assert "s_barrier" in L[i - 1]
        a.l = L[:i] + ["    s_branch L_B1X"] + L[j:k] + ["L_B1X:"] + L[i:j] + ["    s_branch L_SETUP"] + L[k:]
    elif "oldlay" not in X:
        L = a.l
        i, j, k = L.index("L_NOBIN:"), L.index("L_SETUP:"), L.index("L_STG:")
        assert L[i - 1].strip() == "s_branch L_SETUP"
        blk = L[i:j] + ["    s_branch L_SETUP"]
        a.l = L[:i - 1] + L[j:k] + blk + L[k:]
    return a.text()


def build(stamp=False):
    body = kernel(stamp)
    return f"""; Edge-gated MPNN layer, one fused launch.  Kernarg (80 bytes, pointers, base s[0:1]):
;
; @launch grid=(256,1,1) block=(1024,1,1) lds={LDS}
.amdgcn_target "amdgcn-amd-amdhsa--gfx950"
.text
.globl {NAME}
.p2align 8
.type {NAME},@function
{NAME}:
{body}    s_endpgm
.section .rodata,"a"
.p2align 6
.amdhsa_kernel {NAME}
  .amdhsa_next_free_vgpr 128
  .amdhsa_next_free_sgpr 102
  .amdhsa_accum_offset 128
  .amdhsa_group_segment_fixed_size 0
  .amdhsa_kernarg_size 80
  .amdhsa_user_sgpr_count 2
  .amdhsa_user_sgpr_kernarg_segment_ptr 1
  .amdhsa_system_sgpr_workgroup_id_x 1
  .amdhsa_float_denorm_mode_32 3
.end_amdhsa_kernel
"""


if __name__ == "__main__":
    open(sys.argv[1], "w").write(build(stamp="--stamp" in sys.argv))
```
